```python
import torch

def _softmax(x, axis=-1):
    return torch.softmax(x, dim=axis)
def _gelu(x):
    return torch.nn.functional.gelu(x, approximate="tanh")
def _silu(x):
    return torch.nn.functional.silu(x)
def _sigmoid(x):
    return torch.sigmoid(x)
def _layernorm(x, axis=-1, eps=1e-5):
    m = x.mean(dim=axis, keepdim=True)
    v = x.var(dim=axis, keepdim=True, unbiased=False)
    return (x - m) / torch.sqrt(v + eps)
def _scatter_add(tgt, idx, src, axis=0):
    return tgt.clone().index_add_(axis, idx, src)
def _segment_sum(src, seg, n):
    out = torch.zeros((n,) + src.shape[1:], dtype=src.dtype)
    return out.index_add_(0, seg, src)
def _pad(x, pw):
    flat = tuple(v for pair in reversed(pw) for v in pair)
    return torch.nn.functional.pad(x, flat)

kernel_name = 'standalone__molecular_angular_gemnet__graph'

def setup_inputs():

    _w = (lambda a: (lambda t: t.to(torch.bfloat16) if t.is_floating_point() else t)(torch.as_tensor(a)))
    N, deg, De, L = 10000, 16, 16, 2
    E = N * deg
    T = E * deg
    NR = 8
    dist = torch.rand(E).to(float)
    angle = (torch.rand(T) * torch.pi).to(float)
    centers = torch.linspace(0.0, 1.0, NR).to(float)
    ang_freq = torch.arange(1, L + 1).to(float)
    return {
        "m": _w((lambda *s: torch.randn(*s, dtype=torch.bfloat16) * 0.05)(E, De)),
        "idx_in": _w((lambda lo, hi, *s: torch.randint(lo, hi, s))(0, E, T).to(torch.int64)),
        "idx_out": _w((lambda lo, hi, *s: torch.randint(lo, hi, s))(0, E, T).to(torch.int64)),
        "dist": _w(dist),
        "angle": _w(angle),
        "centers": _w(centers),
        "ang_freq": _w(ang_freq),
        "w_rbf": _w((lambda *s: torch.randn(*s, dtype=torch.bfloat16) * 0.2)(NR, De)),
        "w_sbf": _w((lambda *s: torch.randn(*s, dtype=torch.bfloat16) * 0.2)(NR * L, De)),
        "w_down": _w((lambda *s: torch.randn(*s, dtype=torch.bfloat16) * 0.2)(De, De)),
        "w_up": _w((lambda *s: torch.randn(*s, dtype=torch.bfloat16) * 0.2)(De, De)),
    }

def reference(m, idx_in, idx_out, dist, angle, centers, ang_freq, w_rbf, w_sbf, w_down, w_up):
    E, De = m.shape[0], m.shape[1]
    NR = centers.shape[0]
    L = ang_freq.shape[0]
    rbf = torch.exp(-10.0 * (dist[:, None] - centers[None, :]) ** 2)
    cbf = torch.cos(ang_freq[None, :] * angle[:, None])
    rbf_t = rbf[idx_out]
    sbf = torch.reshape(rbf_t[:, :, None] * cbf[:, None, :], (-1, NR * L))
    x = (m[idx_in] @ w_down) * (sbf @ w_sbf)
    agg = _segment_sum(x, idx_out, E)
    return m + (agg @ w_up) * (rbf @ w_rbf)
```

```python
import re

class Alloc:
    def __init__(self, prefix, start, limit):
        self.p = prefix; self.next = start; self.limit = limit; self.names = {}
        self.high = start
    def __call__(self, name, n=1, align=None):
        if align is None:
            align = 1 if n == 1 else (2 if self.p == 'v' else (2 if n == 2 else 4))
        s = (self.next + align - 1) // align * align
        self.next = s + n
        assert self.next <= self.limit, f"out of {self.p} regs allocating {name}: {self.next} > {self.limit}"
        self.high = max(self.high, self.next)
        self.names[name] = (s, n)
        return Reg(self.p, s, n)
    def mark(self): return self.next
    def reset(self, m): self.next = m

class Reg:
    def __init__(self, p, i, n=1): self.p = p; self.i = i; self.n = n
    def __str__(self):
        return f"{self.p}{self.i}" if self.n == 1 else f"{self.p}[{self.i}:{self.i+self.n-1}]"
    __repr__ = __str__
    def __getitem__(self, k):
        if isinstance(k, slice):
            a = k.start or 0; b = k.stop if k.stop is not None else self.n
            assert 0 <= a < b <= self.n
            return Reg(self.p, self.i + a, b - a)
        assert 0 <= k < self.n, (self, k)
        return Reg(self.p, self.i + k, 1)

REG_RE = re.compile(r'^(-|\|)?\|?([vsa])(\d+)\|?$')
RNG_RE = re.compile(r'^([vsa])\[(\d+):(\d+)\]$')

def regs_of(tok):
    t = tok.strip()
    t = t.lstrip('-').strip('|')
    if t == 'vcc': return {('s', 106), ('s', 107)}
    if t == 'vcc_lo': return {('s', 106)}
    if t == 'vcc_hi': return {('s', 107)}
    if t == 'exec': return {('s', 126), ('s', 127)}
    if t == 'exec_lo': return {('s', 126)}
    if t == 'exec_hi': return {('s', 127)}
    if t == 'm0': return {('s', 124)}
    m = re.match(r'^([vsa])(\d+)$', t)
    if m: return {(m.group(1), int(m.group(2)))}
    m = RNG_RE.match(t)
    if m: return {(m.group(1), i) for i in range(int(m.group(2)), int(m.group(3)) + 1)}
    return set()

EXEC = {('s', 126), ('s', 127)}
VCC = {('s', 106), ('s', 107)}
TRANS = ('v_exp_', 'v_log_', 'v_rcp_', 'v_rsq_', 'v_sqrt_', 'v_sin_', 'v_cos_')

class Ins:
    def __init__(self, text):
        self.text = text
        t = text.split(';')[0].strip()
        self.label = None; self.op = None; self.ops = []; self.mods = ''
        if t.endswith(':'):
            self.label = t[:-1]; return
        if not t or t.startswith('.'):
            return
        parts = t.split(None, 1)
        self.op = parts[0]
        rest = parts[1] if len(parts) > 1 else ''
        toks = [x.strip() for x in rest.split(',')] if rest else []
        ops = []
        for k, x in enumerate(toks):
            w = x.split()
            if not w: continue
            ops.append(w[0])
            if len(w) > 1: self.mods += ' ' + ' '.join(w[1:])
        self.ops = ops
        self.classify()
    def classify(self):
        op = self.op
        self.is_mfma = op.startswith('v_mfma')
        self.is_valu = op.startswith('v_') and not self.is_mfma
        self.is_salu = op.startswith('s_')
        self.is_vmem = op.startswith(('buffer_', 'global_', 'flat_'))
        self.is_ds = op.startswith('ds_')
        self.defs = set(); self.uses = set()
        o = self.ops
        R = regs_of
        def U(lst):
            s = set()
            for x in lst: s |= R(x)
            return s
        if self.is_mfma:
            self.defs = R(o[0]); self.uses = U(o[1:]); self.srcc = R(o[3]) if len(o) > 3 else set()
            self.srcab = R(o[1]) | R(o[2])
        elif self.is_valu:
            if op.startswith('v_cmpx'):
                self.defs = R(o[0]) | EXEC; self.uses = U(o[1:])
            elif op.startswith('v_cmp'):
                self.defs = R(o[0]); self.uses = U(o[1:])
            elif op.startswith(('v_add_co', 'v_sub_co', 'v_subrev_co', 'v_addc_co', 'v_subb_co')):
                self.defs = R(o[0]) | R(o[1]); self.uses = U(o[2:])
            elif op.startswith(('v_fmac', 'v_mac', 'v_dot2c', 'v_pk_fmac', 'v_writelane')):
                self.defs = R(o[0]); self.uses = U(o)
            elif op.startswith('v_swap'):
                self.defs = U(o); self.uses = U(o)
            elif op == 'v_nop':
                pass
            else:
                self.defs = R(o[0]); self.uses = U(o[1:])
            if 'dst_sel' in self.mods or 'op_sel' in self.mods:
                self.uses |= R(o[0])
        elif self.is_ds:
            if op.startswith('ds_read') or '_rtn' in op or op.startswith(('ds_bpermute', 'ds_permute', 'ds_swizzle')):
                self.defs = R(o[0]); self.uses = U(o[1:])
            else:
                self.uses = U(o)
        elif self.is_vmem:
            if '_load' in op:
                self.defs = R(o[0]); self.uses = U(o[1:])
                if 'd16' in op: self.uses |= R(o[0])
            elif 'atomic' in op and ' sc0' in (' ' + self.mods):
                if op.startswith('global'):
                    self.defs = R(o[0]); self.uses = U(o[1:])
                else:
                    self.defs = R(o[0]); self.uses = U(o)
            else:
                self.uses = U(o)
        elif self.is_salu:
            pass
    def ws(self):
        if self.op == 's_nop': return int(self.ops[0], 0) + 1
        return 1

def mfma_passes(op):
    if '32x32x16' in op or '32x32x8' in op: return 8
    if '16x16x32' in op or '16x16x16' in op: return 4
    raise ValueError(op)

def need(prod, cons):
    n = 0
    if prod.op is None or cons.op is None: return 0
    pv = prod.is_valu; cv = cons.is_valu
    if pv:
        sdefs = {r for r in prod.defs if r[0] == 's'}
        vdefs = {r for r in prod.defs if r[0] in 'va'}
        if sdefs:
            if cv:
                if cons.op.startswith(('v_readlane', 'v_writelane')):
                    sel = regs_of(cons.ops[2]) if len(cons.ops) > 2 else set()
                    if sel & sdefs: n = max(n, 4)
                    if EXEC & sdefs: n = max(n, 4)
                if cons.op.startswith('v_readfirstlane') and (EXEC & sdefs): n = max(n, 4)
                if cons.uses & sdefs: n = max(n, 2)
                if cons.op.startswith('v_div_fmas') and (VCC & sdefs): n = max(n, 4)
                if ('dpp' in cons.op or 'row_' in cons.mods or 'quad_perm' in cons.mods) and (EXEC & sdefs): n = max(n, 5)
                if cons.op.startswith('v_permlane') and (EXEC & sdefs): n = max(n, 4)
            if cons.is_vmem and (cons.uses & sdefs): n = max(n, 5)
            if cons.is_mfma and (EXEC & sdefs): n = max(n, 4)
        if vdefs:
            if cv and cons.op.startswith(('v_readlane', 'v_readfirstlane')) and (cons.uses & vdefs): n = max(n, 1)
            if cv and ('dpp' in cons.op or 'row_' in cons.mods or 'quad_perm' in cons.mods or 'row_bcast' in cons.mods) and (cons.uses & vdefs): n = max(n, 2)
            if cv and cons.op.startswith('v_permlane') and ((cons.uses | cons.defs) & vdefs): n = max(n, 2)
            if cons.is_mfma and (cons.uses & vdefs): n = max(n, 2)
            if cv and prod.op.startswith(TRANS) and not cons.op.startswith(TRANS) and (cons.uses & vdefs): n = max(n, 1)
            if cv and ('dst_sel' in prod.mods or 'op_sel' in prod.mods or 'd16_hi' in prod.op) and ((cons.uses | cons.defs) & vdefs): n = max(n, 1)
            if prod.op.startswith('v_dot') and cv and ((cons.uses | cons.defs) & vdefs):
                if cons.op == prod.op and not ((regs_of(cons.ops[1]) | regs_of(cons.ops[2])) & vdefs): pass
                else: n = max(n, 3)
    if prod.is_mfma:
        p = mfma_passes(prod.op)
        D = prod.defs
        raw = {2: 5, 4: 8, 8: 12, 16: 20}[p]
        if cons.is_mfma:
            if cons.srcab & D: n = max(n, raw)
            if cons.srcc & D:
                if cons.srcc == D and mfma_passes(cons.op) == p: n = max(n, 2 if p == 2 else 0)
                else: n = max(n, {2: 4, 4: 6, 8: 10, 16: 18}[p])
            elif cons.defs & D:
                n = max(n, raw)
        elif cv or cons.is_vmem or cons.is_ds:
            if (cons.uses | cons.defs) & D: n = max(n, raw)
        if cv and (cons.defs & prod.srcc): n = max(n, {2: 1, 4: 3, 8: 7, 16: 15}[p])
    if prod.is_vmem and (('store' in prod.op and ('x3' in prod.op or 'x4' in prod.op)) or 'cmpswap_x2' in prod.op):
        data = regs_of(prod.ops[1] if prod.op.startswith('global') else prod.ops[0])
        if cons.defs & data:
            n = max(n, 2 if cv else 1)
    return n

class Asm:
    def __init__(self):
        self.lines = []
        self.nlabel = 0
    def __call__(self, s):
        for l in s.split('\n'):
            l = l.strip()
            if l: self.lines.append(l)
    def label(self, name): self.lines.append(name + ':')
    def newlabel(self, base='L'):
        self.nlabel += 1
        return f"{base}_{self.nlabel}"
    def comment(self, s): self.lines.append('; ' + s)
    def finalize(self, window=22):
        ins = [Ins(l) for l in self.lines]
        lab = {x.label: i for i, x in enumerate(ins) if x.label}
        for x in ins: x.preds = []
        for i, x in enumerate(ins):
            if i + 1 < len(ins):
                if not (x.op in ('s_branch', 's_endpgm', 's_setpc_b64')):
                    ins[i + 1].preds.append(x)
            if x.op and (x.op == 's_branch' or x.op.startswith('s_cbranch')):
                tgt = x.ops[0]
                assert tgt in lab, f"unknown label {tgt}"
                ins[lab[tgt]].preds.append(x)
        out = []
        total = 0
        for x in ins:
            if not (x.op is None or x.is_salu):
                req = 0
                stack = [(p, 0) for p in x.preds]
                seen = {}
                while stack:
                    y, dist = stack.pop()
                    k = id(y)
                    if k in seen and seen[k] <= dist: continue
                    seen[k] = dist
                    if y.op is not None:
                        nd = need(y, x)
                        if nd > dist: req = max(req, nd - dist)
                        d2 = dist + y.ws()
                    else:
                        d2 = dist
                    if d2 < window:
                        for p in y.preds: stack.append((p, d2))
                if req > 0:
                    n = Ins(f"s_nop {req-1}")
                    n.preds = x.preds
                    x.preds = [n]
                    out.append(n)
                    total += req
            out.append(x)
        self.nops = total
        res = []
        for x in out:
            if x.label: res.append(x.text)
            else: res.append('    ' + x.text)
        return '\n'.join(res) + '\n'

class VmTrack:
    def __init__(self): self.seq = []
    def issue(self, tag): self.seq.append(tag)
```

```python
import sys, re
sys.path.insert(0, 'gen')
from asmlib import *

NAME = 'standalone__molecular_angular_gemnet__graph'

E = 160000; T = 2560000
NB = 256; EPB = 625; R = 5; CH = 10000; RT = 2000
MAGIC = 6871948
I_CNT, S_CNT, CB_CNT, NONCE, FAIL = 0, 4, 8, 12, 16
CC = 64
PC = 544
PB = 1568
PBS = 264
CB = 69152
GS = 784
CBS = 31360
LDS_END = 163232
TUP2 = 41943040
WSB = 83886080
LIM = 0x9C400000
INV = 0xFFFFC000
OOB = '1.0'
PROF_OFF = 100 << 20


class Gen:
    def __init__(self, mode='fused', prof=False, opts=None):
        self.mode = mode
        self.prof = prof
        self.o = dict(poll_max=200000, nofallback=False)
        if opts: self.o.update(opts)
        self.a = Asm()
        self.vmseq = None

    def stamp(self, idx):
        if not self.prof: return
        a = self.a
        a(f"s_memrealtime {self.sT64}")
        a("s_waitcnt lgkmcnt(0)")
        a(f"v_writelane_b32 {self.vProf}, {self.sT64[0]}, {idx}")

    def stamp_dyn(self, sidx):
        if not self.prof: return
        a = self.a
        a(f"s_memrealtime {self.sT64}")
        a("s_waitcnt lgkmcnt(0)")
        a(f"s_mov_b32 m0, {sidx}")
        a(f"s_nop 3")
        a(f"v_writelane_b32 {self.vProf}, {self.sT64[0]}, m0")

    def prof_store(self, wave_sgpr, bias):
        if not self.prof: return
        a = self.a
        a(f"s_mul_i32 {self.sT64[0]}, s2, 12")
        a(f"s_add_u32 {self.sT64[0]}, {self.sT64[0]}, {wave_sgpr}")
        a(f"s_add_u32 {self.sT64[0]}, {self.sT64[0]}, {bias}")
        a(f"s_lshl_b32 {self.sT64[0]}, {self.sT64[0]}, 8")
        a(f"s_add_u32 {self.sT64[0]}, {self.sT64[0]}, {PROF_OFF}")
        a(f"v_mbcnt_lo_u32_b32 v1, -1, 0")
        a(f"v_mbcnt_hi_u32_b32 v1, -1, v1")
        a(f"v_lshlrev_b32 v1, 2, v1")
        a(f"v_add_u32 v1, {self.sT64[0]}, v1")
        a(f"s_mov_b64 exec, -1")
        a(f"global_store_dword v1, {self.vProf}, s[30:31]")

    def lds_spin(self, off, target, vt, vzero, st):
        a = self.a
        L = a.newlabel('spin')
        Lx = a.newlabel('spinx')
        a.label(L)
        a(f"ds_read_b32 {vt}, {vzero} offset:{off}")
        a("s_waitcnt lgkmcnt(0)")
        a(f"v_readfirstlane_b32 {st}, {vt}")
        a(f"s_cmp_ge_u32 {st}, {target}")
        a(f"s_cbranch_scc1 {Lx}")
        a("s_sleep 1")
        a(f"s_branch {L}")
        a.label(Lx)

    def lds_arrive(self, off, vzero, vone):
        a = self.a
        a("s_mov_b64 exec, 1")
        a(f"ds_add_u32 {vzero}, {vone} offset:{off}")
        a("s_mov_b64 exec, -1")

    def prologue(self):
        a = self.a
        self.sM = Reg('s', 32, 4); self.sIN = Reg('s', 36, 4); self.sOI = Reg('s', 40, 4)
        self.sDI = Reg('s', 44, 4); self.sAN = Reg('s', 48, 4); self.sOUT = Reg('s', 52, 4)
        self.sWS = Reg('s', 56, 4)
        self.pCEN = Reg('s', 14, 2); self.pWR = Reg('s', 18, 2); self.pWS = Reg('s', 20, 2)
        self.pWD = Reg('s', 22, 2); self.pWU = Reg('s', 24, 2); self.pDBG = Reg('s', 28, 2)
        a("s_cmp_ge_u32 s2, 256")
        a(f"s_cbranch_scc1 {self.Lend}")
        a("s_load_dwordx16 s[4:19], s[0:1], 0")
        a("s_load_dwordx8 s[20:27], s[0:1], 64")
        a("s_load_dwordx4 s[28:31], s[0:1], 96")
        a("v_lshrrev_b32 v1, 6, v0")
        a("v_and_b32 v0, 63, v0")
        for srd, n in ((self.sM, E * 32), (self.sIN, T * 4), (self.sOI, T * 4), (self.sDI, E * 2),
                       (self.sAN, T * 2), (self.sOUT, E * 32), (self.sWS, WSB)):
            a(f"s_mov_b32 {srd[2]}, {n}")
            a(f"s_mov_b32 {srd[3]}, 0x00020000")
        a(f"v_readfirstlane_b32 {self.sWave}, v1")
        a("s_waitcnt lgkmcnt(0)")
        for srd, src in ((self.sM, 4), (self.sIN, 6), (self.sOI, 8), (self.sDI, 10), (self.sAN, 12),
                         (self.sOUT, 26), (self.sWS, 30)):
            a(f"s_mov_b32 {srd[0]}, s{src}")
            a(f"s_mov_b32 {srd[1]}, s{src+1}")

    def tags_from_nonce(self, sN):
        a = self.a
        a(f"s_and_b32 {self.sT0}, {sN}, 7")
        a(f"s_lshl_b32 {self.sT0}, {self.sT0}, 10")
        a(f"s_lshr_b32 {self.sTA1}, {sN}, 3")
        a(f"s_lshl_b32 {self.sTA1}, {self.sTA1}, 15")
        a(f"s_and_b32 {self.sTB1}, {sN}, 0xffff8000")

    def producer(self, sP):
        a = self.a
        V = Alloc('v', 2, 168)
        S = Alloc('s', 62, 92)
        vLane = Reg('v', 0)
        vIn = [[V(f'in{r}{k}', 4) for k in range(2)] for r in range(R)]
        vOut = [[V(f'out{r}{k}', 4) for k in range(2)] for r in range(R)]
        vAng = [[V(f'ang{r}{k}', 2) for k in range(2)] for r in range(R)]
        vZero = V('zero'); vOne = V('one'); vOffI = V('offi'); vOffA = V('offa')
        vRd = V('rd'); vCn = V('cn'); vSt = V('st'); vSlotA = V('slota'); vSlotB = V('slotb')
        vInv = V('inv'); vT0 = V('t0'); vT0m = V('t0m'); vTA1 = V('ta1'); vTB1 = V('tb1'); vt = V('t')
        m = V.mark()
        W = [V(f'w{i}', 2) for i in range(8)]
        Bk = [V(f'b{i}') for i in range(8)]
        Rk = [V(f'r{i}') for i in range(8)]
        Pa = [V(f'pa{i}') for i in range(8)]
        V.reset(m)
        Ln = [V(f'ln{i}', 4) for i in range(8)]
        Cn = [V(f'cnt{i}') for i in range(8)]
        vq = [V(f'q{i}') for i in range(4)]
        if self.prof:
            self.vProf = V('prof'); a(f"v_mov_b32 {self.vProf}, 0")
        self.pv_high = V.high
        sNeg = S('neg625'); sMagic = S('magic'); sOffI = S('offi'); sOffA = S('offa'); so = S('so')
        st = S('st'); sStB = S('stb'); s7fff = S('m7fff'); sN = S('nonce')
        self.sT0 = S('T0'); self.sTA1 = S('TA1'); self.sTB1 = S('TB1')
        sSave = S('save', 2)
        self.stamp(0)
        a(f"v_lshlrev_b32 {vOffI}, 4, {vLane}")
        a(f"s_mul_i32 {st}, {sP}, 2000")
        a(f"v_add_u32 {vOffI}, {st}, {vOffI}")
        a(f"v_lshrrev_b32 {vOffA}, 1, {vOffI}")
        a(f"s_mul_i32 {sOffI}, s2, 40000")
        a(f"s_mul_i32 {sOffA}, s2, 20000")
        M61 = (1 << 61) - 1
        a(f"s_mov_b32 {sSave[0]}, 0xffffffff")
        a(f"s_mov_b32 {sSave[1]}, 0x{M61 >> 32:x}")
        for r in range(R):
            for k in range(2):
                if k == 1: a(f"s_mov_b64 exec, {sSave}")
                a(f"s_add_u32 {so}, {sOffI}, {r*8000 + k*1024}")
                a(f"buffer_load_dwordx4 {vOut[r][k]}, {vOffI}, {self.sOI}, {so} offen")
                a(f"buffer_load_dwordx4 {vIn[r][k]}, {vOffI}, {self.sIN}, {so} offen")
                a(f"s_add_u32 {so}, {sOffA}, {r*4000 + k*512}")
                a(f"buffer_load_dwordx2 {vAng[r][k]}, {vOffA}, {self.sAN}, {so} offen")
                if k == 1: a("s_mov_b64 exec, -1")
        a(f"v_mov_b32 {vZero}, 0")
        a(f"v_mov_b32 {vOne}, 1")
        a(f"s_movk_i32 {sNeg}, -625")
        a(f"s_mov_b32 {sMagic}, {MAGIC}")
        a(f"s_movk_i32 {s7fff}, 0x7fff")
        a(f"s_lshl_b32 {st}, {sP}, 8")
        a(f"v_lshlrev_b32 {vCn}, 2, {vLane}")
        a(f"v_add_u32 {vt}, {st}, {vCn}")
        a(f"ds_write_b32 {vt}, {vZero} offset:{PC}")
        vPCz = V('pcz')
        a(f"v_mov_b32 {vPCz}, {vt}")
        a(f"v_mov_b32 {vq[0]}, 0")
        a(f"v_mov_b32 {vq[1]}, 0")
        a(f"s_cmp_lg_u32 {sP}, 0")
        Lz = a.newlabel('pz')
        a(f"s_cbranch_scc1 {Lz}")
        a("s_mov_b64 exec, 1")
        a(f"ds_write_b64 {vZero}, {Reg('v', vq[0].i, 2)} offset:{I_CNT}")
        a("s_mov_b64 exec, -1")
        a.label(Lz)
        a(f"v_lshrrev_b32 {vt}, 3, {vLane}")
        a(f"s_lshl_b32 {st}, {sP}, 6")
        a(f"v_add_u32 {vt}, {st}, {vt}")
        a(f"v_and_b32 {vSlotA}, 7, {vLane}")
        a(f"v_mul_u32_u24 {vRd}, {PBS}, {vt}")
        a(f"v_lshl_add_u32 {vRd}, {vSlotA}, 4, {vRd}")
        a(f"v_lshlrev_b32 {vCn}, 2, {vt}")
        a(f"v_lshlrev_b32 {vSt}, 15, {vt}")
        a(f"v_lshl_add_u32 {vSt}, {vSlotA}, 4, {vSt}")
        a(f"v_lshlrev_b32 {vSlotA}, 1, {vSlotA}")
        a(f"v_add_u32 {vSlotB}, 1, {vSlotA}")
        a(f"v_mov_b32 {vInv}, 0x{INV:x}")
        a(f"s_lshl_b32 {sStB}, s2, 7")
        a("s_waitcnt lgkmcnt(0)")
        a("s_barrier")
        self.stamp(1)
        for r in range(R):
            if r > 0:
                self.lds_spin(S_CNT, 4 * r, vt, vZero, st)
            n_younger = (R - 1 - r) * 6 + r * 8
            a(f"s_waitcnt vmcnt({min(n_younger, 63)})")
            self.stamp(2 + 4 * r)
            for k in range(2):
                if k == 1: a(f"s_mov_b64 exec, {sSave}")
                for j in range(4):
                    i = k * 4 + j
                    o = vOut[r][k][j]; n_ = vIn[r][k][j]; ang = vAng[r][k][j >> 1]
                    a(f"v_mul_hi_u32_u24 {Bk[i]}, {sMagic}, {o}")
                    a(f"v_mad_i32_i24 {W[i][0]}, {Bk[i]}, {sNeg}, {o}")
                    a(f"v_lshlrev_b32 {Pa[i]}, 2, {Bk[i]}")
                    a(f"ds_add_rtn_u32 {Rk[i]}, {Pa[i]}, {vOne} offset:{PC}")
                    a(f"v_lshl_or_b32 {W[i][0]}, {n_}, 14, {W[i][0]}")
                    if j & 1: a(f"v_bfe_u32 {W[i][1]}, {ang}, 16, 15")
                    else: a(f"v_and_b32 {W[i][1]}, 0x7fff, {ang}")
                    a(f"v_mul_u32_u24 {Pa[i]}, {PBS}, {Bk[i]}")
                if k == 1: a("s_mov_b64 exec, -1")
            for k in range(2):
                if k == 1: a(f"s_mov_b64 exec, {sSave}")
                for j in range(4):
                    i = k * 4 + j
                    if j == 0: a("s_waitcnt lgkmcnt(4)")
                    a(f"v_min_u32 {Rk[i]}, 32, {Rk[i]}")
                    a(f"v_lshl_add_u32 {Pa[i]}, {Rk[i]}, 3, {Pa[i]}")
                    a(f"ds_write_b64 {Pa[i]}, {W[i]} offset:{PB}")
                if k == 1: a("s_mov_b64 exec, -1")
            self.lds_arrive(I_CNT, vZero, vOne)
            self.lds_spin(I_CNT, 4 * (r + 1), vt, vZero, st)
            self.stamp(3 + 4 * r)
            for it in range(8):
                a(f"ds_read_b32 {Cn[it]}, {vCn} offset:{PC + it*32}")
                a(f"ds_read_b64 {Ln[it][0:2]}, {vRd} offset:{PB + it*8*PBS}")
                a(f"ds_read_b64 {Ln[it][2:4]}, {vRd} offset:{PB + it*8*PBS + 8}")
                if it == 3: a("s_waitcnt lgkmcnt(3)")
            if r == 0:
                if self.mode == 'split':
                    a(f"s_mov_b32 {sN}, 0x12345679")
                else:
                    Ln_ = a.newlabel('pn'); Lnx = a.newlabel('pnx')
                    a.label(Ln_)
                    a(f"ds_read_b32 {vt}, {vZero} offset:{NONCE}")
                    a("s_waitcnt lgkmcnt(0)")
                    a(f"v_readfirstlane_b32 {sN}, {vt}")
                    a(f"s_cmp_lg_u32 {sN}, 0")
                    a(f"s_cbranch_scc1 {Lnx}")
                    a("s_sleep 1")
                    a(f"s_branch {Ln_}")
                    a.label(Lnx)
                self.tags_from_nonce(sN)
                a(f"v_mov_b32 {vT0}, {self.sT0}")
                a(f"v_or_b32 {vT0m}, 0x2000, {vT0}")
                a(f"v_mov_b32 {vTA1}, {self.sTA1}")
                a(f"v_mov_b32 {vTB1}, {self.sTB1}")
            a("s_waitcnt lgkmcnt(0)")
            a(f"ds_write_b32 {vPCz}, {vZero} offset:{PC}")
            a(f"v_max3_u32 {vq[0]}, {Cn[0]}, {Cn[1]}, {Cn[2]}")
            a(f"v_max3_u32 {vq[1]}, {Cn[3]}, {Cn[4]}, {Cn[5]}")
            a(f"v_max3_u32 {vq[0]}, {vq[0]}, {Cn[6]}, {Cn[7]}")
            a(f"v_max_u32 {vq[0]}, {vq[0]}, {vq[1]}")
            a(f"v_cmp_lt_u32 vcc, 16, {vq[0]}")
            Lrare = f"p_rare_{r}"; Lback = f"p_back_{r}"
            a(f"s_cbranch_vccnz {Lrare}")
            a.label(Lback)
            self.lds_arrive(S_CNT, vZero, vOne)
            a(f"s_add_u32 {so}, {sStB}, {(r*256) << 15}")
            for it in range(8):
                L = Ln[it]; c = Cn[it]
                a(f"v_cmp_lt_u32 vcc, 16, {c}")
                a(f"v_cndmask_b32 {vq[0]}, {vT0}, {vT0m}, vcc")
                a(f"v_cmp_lt_u32 vcc, {vSlotA}, {c}")
                a(f"v_cndmask_b32 {L[0]}, {vInv}, {L[0]}, vcc")
                a(f"v_cmp_lt_u32 vcc, {vSlotB}, {c}")
                a(f"v_cndmask_b32 {L[2]}, {vInv}, {L[2]}, vcc")
                a(f"v_or_b32 {L[0]}, {vq[0]}, {L[0]}")
                a(f"v_or_b32 {L[2]}, {vq[0]}, {L[2]}")
                a(f"v_and_or_b32 {L[1]}, {L[1]}, {s7fff}, {vTA1}")
                a(f"v_and_or_b32 {L[3]}, {L[3]}, {s7fff}, {vTB1}")
                a(f"buffer_store_dwordx4 {L}, {vSt}, {self.sWS}, {so} offen sc1")
                if it < 7: a(f"s_add_u32 {so}, {so}, {8 << 15}")
            self.stamp(4 + 4 * r)
            self.late.append((self._p_rare, (r, Lrare, Lback, Ln, Cn, vq, vRd, vSt, vSlotA, vSlotB, vInv, vT0, vT0m,
                                             vTA1, vTB1, s7fff, sStB, so, sSave, st)))
        self.prof_store(sP, 8)
        a("s_endpgm")

    def _p_rare(self, r, Lrare, Lback, Ln, Cn, vq, vRd, vSt, vSlotA, vSlotB, vInv, vT0, vT0m, vTA1, vTB1, s7fff,
                sStB, so, sSave, st):
        a = self.a
        a.label(Lrare)
        q = Reg('v', vq[0].i, 4)
        assert vq[0].i % 2 == 0
        for it in range(8):
            c = Cn[it]
            Ls = a.newlabel('prs')
            a(f"v_cmp_lt_u32 vcc, 16, {c}")
            a(f"s_cbranch_vccz {Ls}")
            a(f"s_mov_b64 exec, vcc")
            a(f"ds_read_b64 {q[0:2]}, {vRd} offset:{PB + it*8*PBS + 128}")
            a(f"ds_read_b64 {q[2:4]}, {vRd} offset:{PB + it*8*PBS + 136}")
            a("s_waitcnt lgkmcnt(0)")
            tmp = Reg('v', 1)
            a(f"v_subrev_u32 {tmp}, 16, {c}")
            a(f"v_cmp_lt_u32 vcc, {vSlotA}, {tmp}")
            a(f"v_cndmask_b32 {q[0]}, {vInv}, {q[0]}, vcc")
            a(f"v_cmp_lt_u32 vcc, {vSlotB}, {tmp}")
            a(f"v_cndmask_b32 {q[2]}, {vInv}, {q[2]}, vcc")
            a(f"v_cmp_lt_u32 vcc, 32, {c}")
            a(f"v_cndmask_b32 {tmp}, {vT0}, {vT0m}, vcc")
            a(f"v_or_b32 {q[0]}, {tmp}, {q[0]}")
            a(f"v_or_b32 {q[2]}, {tmp}, {q[2]}")
            a(f"v_and_or_b32 {q[1]}, {q[1]}, {s7fff}, {vTA1}")
            a(f"v_and_or_b32 {q[3]}, {q[3]}, {s7fff}, {vTB1}")
            a(f"s_add_u32 {so}, {sStB}, {((r*256 + it*8) << 15) + TUP2}")
            a(f"buffer_store_dwordx4 {q}, {vSt}, {self.sWS}, {so} offen sc1")
            a("s_nop 1")
            a(f"s_mov_b64 exec, -1")
            a.label(Ls)
        a(f"s_branch {Lback}")

    def vm_issue(self, tag):
        self.a.lines.append(f"; @ISSUE {tag}")

    def vm_wait(self, tag):
        self.a.lines.append(f"; @WAIT {tag}")

    def resolve_vm(self, start, end):
        lines = self.a.lines
        idx = list(range(start, end))
        n = len(idx)
        for pos, i in enumerate(idx):
            l = lines[i]
            if l.startswith("; @WAIT"):
                tag = l.split()[2]
                cnt = 0; found = False
                for back in range(1, n + 1):
                    ll = lines[idx[(pos - back) % n]]
                    if ll.startswith("; @ISSUE"):
                        if ll.split()[2] == tag:
                            found = True; break
                        cnt += 1
                assert found, tag
                lines[i] = f"s_waitcnt vmcnt({min(cnt, 63)})"

    def consumer(self, sCw):
        a = self.a
        V = Alloc('v', 2, 168)
        S = Alloc('s', 62, 92)
        vLane = Reg('v', 0)
        acc = [[V(f'acc{j}{l}', 4) for l in range(2)] for j in range(5)]
        rows = [V(f'row{i}', 4) for i in range(8)]
        X = [V(f'x{i}', 4) for i in range(4)]
        tup = [V(f'tup{i}', 4) for i in range(4)]
        D1 = [V(f'd1{i}', 4) for i in range(2)]
        Bo = [V(f'bo{i}', 4) for i in range(2)]
        Wa = V('wa', 4); Wb = V('wb', 4)
        vIdx = V('idx'); vOff = V('off'); vTau = V('tau'); vHalf = V('half16')
        vTupC = V('tupc'); vIdxC = V('idxc'); vIdxN = V('idxn'); vTagS = V('tags'); vOnes = V('ones')
        vLine = V('line'); vLineP = V('linep'); vZero = V('zero'); vOne = V('one'); v784 = V('c784')
        vCntA = V('cnta'); vC = V('c')
        it_ = [V(f't{i}') for i in range(10)]
        rbfB = [V(f'rbf{j}', 2) for j in range(5)]
        if self.prof:
            self.vProf = V('prof'); a(f"v_mov_b32 {self.vProf}, 0")
        self.cv_high = V.high
        sCnt = [S(f'cnt{j}') for j in range(5)]
        sCntN = [S(f'cntn{j}') for j in range(5)]
        sIt = S('it'); sRem = S('rem'); st = S('st'); st2 = S('st2')
        self.sT0 = S('T0'); self.sTA1 = S('TA1'); self.sTB1 = S('TB1')
        sMaskHi = S('maskhi'); s1C00 = S('m1c00'); sSelT = S('selt'); sSelLo = S('sello'); sSelHi = S('selhi')
        s0F = S('m0f'); sNot31 = S('not31'); sCCi = S('cci'); sCBi = S('cbi'); sD = S('d'); sNext = S('next')
        sPoff = S('poff'); sSoff = S('soff'); sFail = Reg('s', 26); sPoll = Reg('s', 27)
        self.c_sMaskHi = sMaskHi; self.c_s1C00 = s1C00
        self.c_T0 = self.sT0; self.c_TA1 = self.sTA1; self.c_TB1 = self.sTB1
        self.c_vZero = vZero; self.c_vOne = vOne
        sMore = [Reg('s', 4 + 2 * k, 2) for k in range(4)]
        sSave = Reg('s', 12, 2)
        sTarget = Reg('s', 16); sE0 = Reg('s', 17)
        self.stamp(0)
        sN = st2
        if self.mode == 'fused':
            Lnn = a.newlabel('nn')
            a(f"s_cmp_lg_u32 {sCw}, 0")
            a(f"s_cbranch_scc1 {Lnn}")
            a(f"s_and_b32 {st}, s2, 31")
            a(f"s_cmp_lg_u32 {st}, 0")
            a(f"s_cbranch_scc1 {Lnn}")
            a(f"s_memrealtime {sSave}")
            a("s_waitcnt lgkmcnt(0)")
            a(f"s_or_b32 {st}, {sSave[0]}, 1")
            a(f"v_mov_b32 {it_[0]}, {st}")
            a(f"v_mov_b32 {it_[1]}, 0")
            a(f"v_mov_b32 {it_[2]}, 0")
            assert it_[0].i % 2 == 0
            a("s_mov_b64 exec, 1")
            a(f"global_atomic_cmpswap {it_[3]}, {it_[2]}, {Reg('v', it_[0].i, 2)}, {self.pDBG} sc0 sc1")
            a("s_mov_b64 exec, -1")
            a.label(Lnn)
        t0, t1, t2, t3 = it_[4], it_[5], it_[6], it_[7]
        a(f"v_and_b32 {t0}, 15, {vLane}")
        a(f"v_lshrrev_b32 {t1}, 4, {vLane}")
        a(f"v_lshl_or_b32 {vTagS}, {t0}, 16, {t0}")
        a(f"v_lshrrev_b32 {t2}, 2, {t0}")
        a(f"v_lshlrev_b32 {t2}, 3, {t2}")
        a(f"v_and_b32 {t3}, 3, {t0}")
        a(f"v_add_u32 {vTau}, {t2}, {t3}")
        a(f"v_lshrrev_b32 {t3}, 5, {vLane}")
        a(f"v_lshl_add_u32 {vTau}, {t3}, 2, {vTau}")
        a(f"v_and_b32 {t3}, 1, {t1}")
        a(f"v_lshlrev_b32 {vHalf}, 4, {t3}")
        a(f"s_mul_i32 {st}, {sCw}, {5*GS}")
        a(f"s_add_u32 {st}, {st}, {CB + 2*CBS}")
        a(f"v_lshlrev_b32 {vTupC}, 6, {t1}")
        a(f"v_add_u32 {vTupC}, {st}, {vTupC}")
        a(f"v_lshlrev_b32 {vIdxC}, 3, {vTau}")
        a(f"v_add_u32 {vIdxC}, {st}, {vIdxC}")
        a(f"v_subrev_u32 {vIdxN}, {2*CBS}, {vIdxC}")
        a(f"v_mov_b32 {vOnes}, 0x00010001")
        a(f"v_mov_b32 {vZero}, 0")
        a(f"v_mov_b32 {vOne}, 1")
        a(f"v_mov_b32 {v784}, {GS}")
        a(f"s_lshl_b32 {st}, {sCw}, 12")
        a(f"v_lshlrev_b32 {vLine}, 4, {vLane}")
        a(f"v_add_u32 {vLine}, {st}, {vLine}")
        a(f"v_mov_b32 {vLineP}, {vLine}")
        a(f"v_min_u32 {vCntA}, 4, {vLane}")
        a(f"s_mul_i32 {st}, {sCw}, 5")
        a(f"v_add_u32 {vCntA}, {st}, {vCntA}")
        a(f"v_lshlrev_b32 {vCntA}, 2, {vCntA}")
        wtmp = X[0]
        wraw = [rows[j >> 2][j & 3] for j in range(8)]
        a(f"v_lshlrev_b32 {t2}, 4, {vHalf}")
        a(f"v_lshl_add_u32 {t2}, {t0}, 1, {t2}")
        for j in range(8):
            a(f"global_load_ushort {wraw[j]}, {t2}, {self.pWD} offset:{j*32}")
        a(f"s_mul_i32 {sE0}, s2, 625")
        a(f"s_mul_i32 {st}, {sCw}, 80")
        a(f"s_add_u32 {sE0}, {sE0}, {st}")
        a(f"v_add_u32 {t3}, {sE0}, {t0}")
        a(f"v_lshlrev_b32 {t3}, 1, {t3}")
        dd = [X[1][0], X[1][1], X[1][2], X[1][3], X[2][0]]
        for j in range(5):
            a(f"buffer_load_ushort {dd[j]}, {t3}, {self.sDI}, 0 offen offset:{j*32}")
        cen = X[3]
        a(f"v_lshlrev_b32 {t3}, 3, {t1}")
        a(f"v_and_b32 {t3}, 8, {t3}")
        for j in range(4):
            a(f"global_load_ushort {cen[j]}, {t3}, {self.pCEN} offset:{j*2}")
        a(f"s_lshl_b32 {st}, {sCw}, 10")
        a(f"v_lshlrev_b32 {t3}, 4, {vLane}")
        a(f"v_add_u32 {t3}, {st}, {t3}")
        z = tup[0]
        for i in range(4): a(f"v_mov_b32 {z[i]}, 0")
        nfull = (3 * CBS) // 8192
        a(f"v_add_u32 {t3}, {CB}, {t3}")
        for i in range(nfull):
            a(f"ds_write_b128 {t3}, {z}")
            a(f"v_add_u32 {t3}, 8192, {t3}")
        a(f"v_cmp_gt_u32 vcc, {LDS_END}, {t3}")
        a("s_and_saveexec_b64 " + f"{sSave}, vcc")
        Lz = a.newlabel('cz')
        a(f"s_cbranch_execz {Lz}")
        a(f"ds_write_b128 {t3}, {z}")
        a.label(Lz)
        a(f"s_mov_b64 exec, {sSave}")
        Lz2 = a.newlabel('cz')
        a(f"s_cmp_lg_u32 {sCw}, 0")
        a(f"s_cbranch_scc1 {Lz2}")
        a(f"v_lshlrev_b32 {t3}, 3, {vLane}")
        a(f"ds_write_b64 {t3}, {z[0:2]} offset:8")
        a(f"s_mov_b64 exec, 7")
        a(f"ds_write_b64 {t3}, {z[0:2]} offset:520")
        a(f"s_mov_b64 exec, -1")
        a.label(Lz2)
        for j in range(5):
            for l in range(2):
                for i in range(4): a(f"v_mov_b32 {acc[j][l][i]}, 0")
        a(f"s_mov_b32 {sMaskHi}, 0xffff8000")
        a(f"s_movk_i32 {s1C00}, 0x1c00")
        a(f"s_mov_b32 {sSelT}, 0x0c040c00")
        a(f"s_mov_b32 {sSelLo}, 0x05040100")
        a(f"s_mov_b32 {sSelHi}, 0x07060302")
        a(f"s_mov_b32 {s0F}, 0x000f000f")
        a(f"s_mov_b32 {sNot31}, 0xffffffe0")
        a(f"s_mov_b32 {sFail}, 0")
        for j in range(5):
            a(f"s_mov_b32 {sCnt[j]}, 0")
            a(f"s_mov_b32 {sCntN[j]}, 0")
        a("s_waitcnt lgkmcnt(0)")
        a("s_barrier")
        self.stamp(1)
        if self.mode == 'fused':
            Lw = a.newlabel('nw'); Ld = a.newlabel('nd'); Lp = a.newlabel('np'); Lpl = a.newlabel('npl')
            a(f"s_cmp_lg_u32 {sCw}, 0")
            a(f"s_cbranch_scc1 {Lw}")
            a(f"s_and_b32 {st}, s2, 31")
            a(f"s_cmp_lg_u32 {st}, 0")
            a(f"s_cbranch_scc1 {Lp}")
            a("s_waitcnt vmcnt(0)")
            a(f"v_readfirstlane_b32 {sN}, {it_[3]}")
            a(f"v_readfirstlane_b32 {st}, {it_[0]}")
            a(f"s_cmp_eq_u32 {sN}, 0")
            a(f"s_cselect_b32 {sN}, {st}, {sN}")
            a(f"s_branch {Lpl}")
            a.label(Lp)
            a(f"s_mov_b32 {sPoll}, 0")
            Lq = a.newlabel('nq')
            a.label(Lq)
            a("s_mov_b64 exec, 1")
            a(f"global_load_dword {it_[3]}, {vZero}, {self.pDBG} sc0 sc1")
            a("s_mov_b64 exec, -1")
            a("s_waitcnt vmcnt(0)")
            a(f"v_readfirstlane_b32 {sN}, {it_[3]}")
            a(f"s_cmp_lg_u32 {sN}, 0")
            a(f"s_cbranch_scc1 {Lpl}")
            a(f"s_add_u32 {sPoll}, {sPoll}, 1")
            a(f"s_cmp_lt_u32 {sPoll}, {self.o['poll_max']}")
            a(f"s_cbranch_scc1 {Lq}")
            a(f"s_mov_b32 {sN}, 1")
            a(f"s_mov_b32 {sFail}, 1")
            a.label(Lpl)
            a(f"v_mov_b32 {it_[3]}, {sN}")
            a("s_mov_b64 exec, 1")
            a(f"ds_write_b32 {vZero}, {it_[3]} offset:{NONCE}")
            a("s_mov_b64 exec, -1")
            a(f"s_branch {Ld}")
            a.label(Lw)
            Lw2 = a.newlabel('nw2')
            a.label(Lw2)
            a(f"ds_read_b32 {it_[3]}, {vZero} offset:{NONCE}")
            a("s_waitcnt lgkmcnt(0)")
            a(f"v_readfirstlane_b32 {sN}, {it_[3]}")
            a(f"s_cmp_lg_u32 {sN}, 0")
            a(f"s_cbranch_scc1 {Ld}")
            a("s_sleep 1")
            a(f"s_branch {Lw2}")
            a.label(Ld)
        else:
            a(f"s_mov_b32 {sN}, 0x12345679")
        self.tags_from_nonce(sN)
        a("s_waitcnt vmcnt(0)")
        for i in range(4):
            a(f"v_lshl_or_b32 {wtmp[i]}, {wraw[2*i+1]}, 16, {wraw[2*i]}")
        a(f"v_cmp_gt_u32 vcc, 32, {vLane}")
        for i in range(4):
            a(f"v_cndmask_b32 {Wa[i]}, 0, {wtmp[i]}, vcc")
        a(f"v_cmp_le_u32 vcc, 32, {vLane}")
        for i in range(4):
            a(f"v_cndmask_b32 {Wb[i]}, 0, {wtmp[i]}, vcc")
        for i in range(4): a(f"v_lshlrev_b32 {cen[i]}, 16, {cen[i]}")
        a(f"v_cmp_gt_u32 {sSave}, 32, {vLane}")
        for j in range(5):
            self.rbf_operand(dd[j], cen, rbfB[j], it_, sSave)
        self.stamp(2)
        a(f"s_lshl_b32 {sPoff}, s2, 15")
        a(f"s_mov_b32 {sCCi}, {CC}")
        a(f"s_mov_b32 {sCBi}, {CB}")
        a(f"s_mov_b32 {sNext}, 0")
        a(f"s_mov_b32 {sD}, {-2*CBS}")
        Lpp = a.newlabel('pp'); Lppx = a.newlabel('ppx')
        a(f"s_mov_b32 {sPoll}, 0")
        a.label(Lpp)
        a(f"buffer_load_dwordx4 {X[3]}, {vLine}, {self.sWS}, {sPoff} offen offset:3072 sc1")
        a("s_waitcnt vmcnt(0)")
        self.tagcheck(X[3], it_)
        a(f"s_cbranch_vccz {Lppx}")
        a(f"s_add_u32 {sPoll}, {sPoll}, 1")
        a(f"s_cmp_lt_u32 {sPoll}, {self.o['poll_max']}")
        a("s_sleep 2")
        a(f"s_cbranch_scc1 {Lpp}")
        a.label(Lppx)
        for k in range(3):
            a(f"buffer_load_dwordx4 {X[k]}, {vLine}, {self.sWS}, {sPoff} offen offset:{k*1024} sc1")
        a(f"s_add_u32 {sSoff}, {sPoff}, {TUP2}")
        a(f"s_add_u32 {sPoff}, {sPoff}, {256 << 15}")
        a(f"s_mov_b32 {sIt}, -1")
        a(f"v_mov_b32 {vIdx}, 0")
        a("s_waitcnt vmcnt(0)")
        self.stamp(3)

        Lloop = 'c_loop'
        a.label(Lloop)
        start = len(a.lines)
        PINS = {0: [0, 1], 1: [2, 3]}
        PSEC = 6
        PLD = {9: [0, 1], 10: [2, 3]}
        for p in range(16):
            a.comment(f"---- position {p}")
            j, blk = p // 3, p % 3
            real = p < 15
            tgt = p + 7
            a("s_waitcnt lgkmcnt(0)")
            if p == 9:
                for jj in range(5):
                    a(f"v_readlane_b32 {sCntN[jj]}, {vC}, {jj}")
                a(f"s_max_u32 {st}, {sCntN[0]}, {sCntN[1]}")
                a(f"s_max_u32 {st2}, {sCntN[2]}, {sCntN[3]}")
                a(f"s_max_u32 {st}, {st}, {sCntN[4]}")
                a(f"s_max_u32 {st}, {st}, {st2}")
                a(f"s_cmp_gt_u32 {st}, 96")
                a(f"s_cselect_b32 {st}, 1, 0")
                a(f"s_or_b32 {sFail}, {sFail}, {st}")
                for jj in range(5):
                    a(f"s_min_u32 {sCntN[jj]}, {sCntN[jj]}, 96")
            if real:
                LsA = a.newlabel('ska')
                a(f"s_cmp_gt_i32 {sCnt[j]}, {32*blk}")
                a(f"s_cbranch_scc0 {LsA}")
                for x in range(4):
                    a(f"ds_read_b128 {tup[x]}, {vTupC} offset:{j*GS + blk*256 + x*16}")
                a.label(LsA)
            if tgt != 15:
                tj, tb = (tgt % 16) // 3, (tgt % 16) % 3
                cn = sCnt[tj] if tgt < 15 else sCntN[tj]
                a(f"v_lshrrev_b32 {vOff}, 9, {vIdx}")
                a(f"s_sub_i32 {sRem}, {cn}, {32*tb}")
                a(f"v_and_or_b32 {vOff}, {vOff}, {sNot31}, {vHalf}")
                a(f"v_cmp_gt_i32 vcc, {sRem}, {vTau}")
                a(f"v_cndmask_b32 {vOff}, {OOB}, {vOff}, vcc")
                a(f"buffer_load_dwordx4 {rows[tgt % 8]}, {vOff}, {self.sM}, 0 offen")
                self.vm_issue(f"G{tgt % 16}")
            nt = p + 8
            if nt != 15 and p != 8:
                ntj, ntb = (nt % 16) // 3, (nt % 16) % 3
                base = vIdxC if nt < 15 else vIdxN
                if p == 15:
                    base = vIdxN; ntj, ntb = 7 // 3, 7 % 3
                a(f"ds_read_b32 {vIdx}, {base} offset:{ntj*GS + ntb*256}")
                idx_after = 1
            else:
                idx_after = 0
            if p in PLD:
                for k in PLD[p]:
                    a(f"buffer_load_dwordx4 {X[k]}, {vLineP}, {self.sWS}, {sPoff} offen offset:{k*1024} sc1")
                    self.vm_issue(f"P{k}")
            if real:
                LsB = a.newlabel('skb')
                a(f"s_cmp_gt_i32 {sCnt[j]}, {32*blk}")
                a(f"s_cbranch_scc0 {LsB}")
                self.vm_wait(f"G{p}")
                rw = rows[p % 8]
                a(f"v_mfma_f32_16x16x32_bf16 {D1[0]}, {rw}, {Wa}, 0")
                a(f"v_mfma_f32_16x16x32_bf16 {D1[1]}, {rw}, {Wb}, 0")
                a(f"s_waitcnt lgkmcnt({idx_after})")
                tq = it_
                for x in range(4):
                    tp = tup[x]
                    y = tq[x]
                    a(f"v_perm_b32 {y}, {tp[2]}, {tp[0]}, {sSelT}")
                    a(f"v_bitop3_b32 {y}, {y}, {vTagS}, {s0F} bitop3:0x28")
                    a(f"v_pk_sub_u16 {y}, {vOnes}, {y} clamp")
                    a(f"v_perm_b32 {Bo[0][x]}, {tp[3]}, {tp[1]}, {sSelLo}")
                    a(f"v_perm_b32 {Bo[1][x]}, {tp[3]}, {tp[1]}, {sSelHi}")
                    a(f"v_pk_mul_lo_u16 {Bo[0][x]}, {Bo[0][x]}, {y}")
                    a(f"v_pk_mul_lo_u16 {Bo[1][x]}, {Bo[1][x]}, {y}")
                a(f"v_cvt_pk_bf16_f32 {rw[0]}, {D1[0][0]}, {D1[0][1]}")
                a(f"v_cvt_pk_bf16_f32 {rw[1]}, {D1[0][2]}, {D1[0][3]}")
                a(f"v_cvt_pk_bf16_f32 {rw[2]}, {D1[1][0]}, {D1[1][1]}")
                a(f"v_cvt_pk_bf16_f32 {rw[3]}, {D1[1][2]}, {D1[1][3]}")
                a(f"v_mfma_f32_16x16x32_bf16 {acc[j][0]}, {rw}, {Bo[0]}, {acc[j][0]}")
                a(f"v_mfma_f32_16x16x32_bf16 {acc[j][1]}, {rw}, {Bo[1]}, {acc[j][1]}")
                a.label(LsB)
            if p in PINS:
                Lsk = a.newlabel('noins')
                a(f"s_cmp_lt_i32 {sIt}, 4")
                a(f"s_cbranch_scc0 {Lsk}_a")
                for k in PINS[p]:
                    self.vm_wait(f"P{k}")
                    Lchk = f"c_chk_{k}"; Lrp = f"c_rp_{k}"
                    a.label(Lchk)
                    self.tagcheck(X[k], it_)
                    a(f"s_cbranch_vccnz {Lrp}")
                    a.label(Lchk + "_ok")
                    self.late.append((self._repoll, (k, Lrp, Lchk, X[k], vLine, sSoff, sPoll, sFail, it_, False, None)))
                    self.insert(X[k], it_, vOne, v784, sCCi, sCBi, sSave)
                    a(f"v_and_b32 {it_[0]}, 0x2000, {X[k][0]}")
                    a(f"v_cmp_ne_u32 vcc, 0, {it_[0]}")
                    a(f"s_mov_b64 {sMore[k]}, vcc")
                    a(f"v_cndmask_b32 {it_[8 + (k & 1)]}, {OOB}, {vLine}, vcc")
                Lgo = f"{Lsk}_b"
                a(f"s_branch {Lgo}")
                a.label(f"{Lsk}_a")
                for k in PINS[p]:
                    a(f"v_mov_b32 {it_[8 + (k & 1)]}, {OOB}")
                    a(f"s_mov_b64 {sMore[k]}, 0")
                a.label(Lgo)
                for k in PINS[p]:
                    a(f"buffer_load_dwordx4 {X[k]}, {it_[8 + (k & 1)]}, {self.sWS}, {sSoff} offen offset:{k*1024} sc1")
                    self.vm_issue(f"S{k}")
            if p == PSEC:
                Lns = a.newlabel('nosec')
                a(f"s_or_b64 {sSave}, {sMore[0]}, {sMore[1]}")
                a(f"s_or_b64 vcc, {sMore[2]}, {sMore[3]}")
                a(f"s_or_b64 {sSave}, {sSave}, vcc")
                a(f"s_cbranch_scc1 c_sec")
                a.label("c_sec_back")
                self.sec_lines_at = len(a.lines)
                self.vm_wait("S0"); self.secwait = [len(a.lines) - 1]
                self.vm_wait("S1"); self.secwait.append(len(a.lines) - 1)
                self.vm_wait("S2"); self.secwait.append(len(a.lines) - 1)
                self.vm_wait("S3"); self.secwait.append(len(a.lines) - 1)
                Lna = a.newlabel('noarr')
                a(f"s_cmp_lt_i32 {sIt}, 4")
                a(f"s_cbranch_scc0 {Lna}")
                self.lds_arrive(CB_CNT, vZero, vOne)
                a.label(Lna)
            if p == 8:
                Lno = a.newlabel('nowait'); Lgo = a.newlabel('gowait')
                a(f"s_cmp_lt_i32 {sIt}, 4")
                a(f"s_cbranch_scc0 {Lno}")
                a(f"s_add_u32 {sTarget}, {sIt}, 2")
                a(f"s_lshl_b32 {sTarget}, {sTarget}, 3")
                self.lds_spin(CB_CNT, sTarget, it_[0], vZero, st)
                a(f"v_add_u32 {it_[0]}, {sCCi}, {vCntA}")
                a(f"ds_read_b32 {vC}, {it_[0]}")
                a("s_mov_b64 exec, 31")
                a(f"ds_write_b32 {it_[0]}, {vZero}")
                a("s_mov_b64 exec, -1")
                a(f"s_branch {Lgo}")
                a.label(Lno)
                a(f"v_mov_b32 {vC}, 0")
                a.label(Lgo)
                a(f"ds_read_b32 {vIdx}, {vIdxN} offset:0")
            if self.prof and p in (1, 6, 8, 15):
                slot = {1: 0, 6: 1, 8: 2, 15: 3}[p]
                a(f"s_lshl_b32 {st}, {sIt}, 2")
                a(f"s_add_u32 {st}, {st}, {8 + slot}")
                self.stamp_dyn(st)
        a(f"v_add_u32 {vTupC}, {sD}, {vTupC}")
        a(f"v_mov_b32 {vIdxC}, {vIdxN}")
        a(f"s_add_u32 {st}, {sNext}, {CBS}")
        a(f"s_cmp_eq_u32 {st}, {3*CBS}")
        a(f"s_cselect_b32 {st}, 0, {st}")
        a(f"s_sub_i32 {sD}, {st}, {sNext}")
        a(f"s_mov_b32 {sNext}, {st}")
        a(f"v_add_u32 {vIdxN}, {sD}, {vIdxN}")
        a(f"s_add_u32 {sCBi}, {sNext}, {CB}")
        a(f"s_add_u32 {sCCi}, {sCCi}, 160")
        a(f"s_cmp_eq_u32 {sCCi}, {CC + 480}")
        a(f"s_cselect_b32 {sCCi}, {CC}, {sCCi}")
        for jj in range(5):
            a(f"s_mov_b32 {sCnt[jj]}, {sCntN[jj]}")
        a(f"s_add_u32 {sPoff}, {sPoff}, {256 << 15}")
        a(f"s_add_u32 {sSoff}, {sSoff}, {256 << 15}")
        a(f"s_add_i32 {sIt}, {sIt}, 1")
        Lk = a.newlabel('keep')
        a(f"s_cmp_lt_i32 {sIt}, 3")
        a(f"s_cbranch_scc1 {Lk}")
        a(f"v_mov_b32 {vLineP}, {OOB}")
        a.label(Lk)
        a(f"s_cmp_le_i32 {sIt}, 4")
        a(f"s_cbranch_scc1 {Lloop}")
        end = len(a.lines)
        self.resolve_vm(start, end)
        secw = []
        for i in self.secwait:
            secw.append(a.lines[i]); a.lines[i] = "; (secondary wait moved out of line)"
        self.late.append((self._secondary, (X, it_, vOne, v784, sCCi, sCBi, sMore, vLine, sSoff, sPoll, sFail, secw,
                                            vZero)))
        self.stamp(40)
        self.epilogue(acc, rows, X, tup, D1, Bo, rbfB, it_, vLane, vZero, sE0, sCw, sFail, st, st2, sSave, vOne)
        self.stamp(41)
        self.prof_store(sCw, 0)
        a("s_endpgm")

    def rbf_operand(self, d, cen, dst, tt, sQ):
        a = self.a
        t = [tt[0], tt[1], tt[2], tt[3]]; u = tt[4]; dv = tt[5]
        a(f"v_lshlrev_b32 {dv}, 16, {d}")
        for i in range(4): a(f"v_sub_f32 {t[i]}, {dv}, {cen[i]}")
        def rnd():
            for h in range(2):
                a(f"v_cvt_pk_bf16_f32 {u}, {t[2*h]}, {t[2*h+1]}")
                a(f"v_lshlrev_b32 {t[2*h]}, 16, {u}")
                a(f"v_and_b32 {t[2*h+1]}, 0xffff0000, {u}")
        rnd()
        for i in range(4): a(f"v_mul_f32 {t[i]}, {t[i]}, {t[i]}")
        rnd()
        for i in range(4): a(f"v_mul_f32 {t[i]}, 0xc1200000, {t[i]}")
        rnd()
        for i in range(4): a(f"v_mul_f32 {t[i]}, 0x3fb8aa3b, {t[i]}")
        for i in range(4): a(f"v_exp_f32 {t[i]}, {t[i]}")
        a(f"v_cvt_pk_bf16_f32 {dst[0]}, {t[0]}, {t[1]}")
        a(f"v_cvt_pk_bf16_f32 {dst[1]}, {t[2]}, {t[3]}")
        a(f"v_cndmask_b32 {dst[0]}, 0, {dst[0]}, {sQ}")
        a(f"v_cndmask_b32 {dst[1]}, 0, {dst[1]}, {sQ}")

    def tagcheck(self, x, tt):
        a = self.a
        a(f"v_xor_b32 {tt[6]}, {self.c_TA1}, {x[1]}")
        a(f"v_xor_b32 {tt[7]}, {self.c_TB1}, {x[3]}")
        a(f"v_bitop3_b32 {tt[0]}, {x[0]}, {x[2]}, {self.c_T0} bitop3:0x7e")
        a(f"v_bitop3_b32 {tt[1]}, {tt[6]}, {tt[7]}, {self.c_sMaskHi} bitop3:0xa8")
        a(f"v_and_or_b32 {tt[0]}, {tt[0]}, {self.c_s1C00}, {tt[1]}")
        a(f"v_cmp_ne_u32 vcc, 0, {tt[0]}")

    def insert(self, x, tt, vOne, v784, sCCi, sCBi, sSave, sub=None):
        a = self.a
        ex = sub if sub is not None else '-1'
        g = [tt[0], tt[1]]; rk = [tt[2], tt[3]]; c0 = [tt[4], tt[5]]; ang = [tt[6], tt[7]]
        w0 = [x[0], x[2]]; w1 = [x[1], x[3]]
        masks = []
        for h in range(2):
            a(f"v_bfe_u32 {g[h]}, {w0[h]}, 4, 6")
            a(f"v_lshlrev_b32 {ang[h]}, 16, {ang[h]}")
            a(f"v_lshl_add_u32 {rk[h]}, {g[h]}, 2, {sCCi}")
            a(f"v_mul_f32 {ang[h]}, 0x3e22f983, {ang[h]}")
        sv = [Reg('s', 92 + 2 * h, 2) for h in range(2)]
        for h in range(2):
            a(f"v_cmp_gt_u32 {sv[h]}, {self.c_sLim}, {w0[h]}")
        for h in range(2):
            a(f"v_fract_f32 {ang[h]}, {ang[h]}")
        for h in range(2):
            if sub is not None:
                a(f"s_and_b64 {sv[h]}, {sv[h]}, {sub}")
            a(f"s_mov_b64 exec, {sv[h]}")
            L = a.newlabel('ia')
            a(f"s_cbranch_execz {L}")
            a(f"ds_add_rtn_u32 {rk[h]}, {rk[h]}, {vOne}")
            a.label(L)
        a(f"s_mov_b64 exec, {ex}")
        for h in range(2):
            a(f"v_cos_f32 {c0[h]}, {ang[h]}")
            a(f"v_mad_u32_u24 {g[h]}, {g[h]}, {v784}, {sCBi}")
        for h in range(2):
            a(f"v_mul_f32 {ang[h]}, {c0[h]}, {c0[h]}")
            a(f"v_fma_f32 {ang[h]}, {ang[h]}, 2.0, -1.0")
            a(f"v_cvt_pk_bf16_f32 {w1[h]}, {c0[h]}, {ang[h]}")
        a("s_waitcnt lgkmcnt(0)")
        for h in range(2):
            a(f"v_min_u32 {rk[h]}, 96, {rk[h]}")
            a(f"v_lshl_add_u32 {g[h]}, {rk[h]}, 3, {g[h]}")
        for h in range(2):
            a(f"s_mov_b64 exec, {sv[h]}")
            L = a.newlabel('iw')
            a(f"s_cbranch_execz {L}")
            a(f"ds_write_b64 {g[h]}, {Reg('v', w0[h].i, 2)}")
            a.label(L)
        a(f"s_mov_b64 exec, {ex}")

    def _repoll(self, k, Lrp, Lchk, x, vLine, sSoff, sPoll, sFail, tt, secondary, sub):
        a = self.a
        a.label(Lrp)
        a(f"s_mov_b32 {sPoll}, 0")
        L = a.newlabel('rpl')
        a.label(L)
        a("s_sleep 1")
        a(f"s_sub_u32 {self.c_st}, {sSoff}, {TUP2}")
        a(f"buffer_load_dwordx4 {x}, {vLine}, {self.sWS}, {self.c_st} offen offset:{k*1024} sc1")
        a("s_waitcnt vmcnt(0)")
        self.tagcheck(x, tt)
        a(f"s_cbranch_vccz {Lchk}_ok")
        a(f"s_add_u32 {sPoll}, {sPoll}, 1")
        a(f"s_cmp_lt_u32 {sPoll}, {self.o['poll_max']}")
        a(f"s_cbranch_scc1 {L}")
        a(f"s_mov_b32 {sFail}, 1")
        a(f"ds_write_b32 {self.c_vZero}, {self.c_vOne} offset:{FAIL}")
        a(f"v_mov_b32 {tt[0]}, 0x{INV:x}")
        a(f"v_cndmask_b32 {x[0]}, {x[0]}, {tt[0]}, vcc")
        a(f"v_cndmask_b32 {x[2]}, {x[2]}, {tt[0]}, vcc")
        a(f"s_branch {Lchk}_ok")

    def _secondary(self, X, tt, vOne, v784, sCCi, sCBi, sMore, vLine, sSoff, sPoll, sFail, secw, vZero):
        a = self.a
        a.label("c_sec")
        for k in range(4):
            Ln = a.newlabel('sn')
            a(f"s_cmp_eq_u64 {sMore[k]}, 0")
            a(f"s_cbranch_scc1 {Ln}")
            a(secw[k])
            a(f"s_mov_b64 exec, {sMore[k]}")
            a(f"s_mov_b32 {sPoll}, 0")
            Lc = a.newlabel('sc'); Lok = a.newlabel('sok')
            a.label(Lc)
            self.tagcheck(X[k], tt)
            a(f"s_cbranch_vccz {Lok}")
            a(f"s_add_u32 {sPoll}, {sPoll}, 1")
            a(f"s_cmp_lt_u32 {sPoll}, {self.o['poll_max']}")
            Lto = a.newlabel('sto')
            a(f"s_cbranch_scc0 {Lto}")
            a("s_sleep 1")
            a(f"buffer_load_dwordx4 {X[k]}, {vLine}, {self.sWS}, {sSoff} offen offset:{k*1024} sc1")
            a("s_waitcnt vmcnt(0)")
            a(f"s_branch {Lc}")
            a.label(Lto)
            a(f"s_mov_b32 {sFail}, 1")
            a(f"v_mov_b32 {tt[0]}, 0x{INV:x}")
            a(f"v_cndmask_b32 {X[k][0]}, {X[k][0]}, {tt[0]}, vcc")
            a(f"v_cndmask_b32 {X[k][2]}, {X[k][2]}, {tt[0]}, vcc")
            a.label(Lok)
            a(f"v_and_b32 {tt[0]}, 0x2000, {X[k][0]}")
            a(f"v_cmp_ne_u32 vcc, 0, {tt[0]}")
            a(f"s_cmp_lg_u64 vcc, 0")
            a(f"s_cselect_b32 {self.c_st}, 1, 0")
            a(f"s_or_b32 {sFail}, {sFail}, {self.c_st}")
            self.insert(X[k], tt, vOne, v784, sCCi, sCBi, None, sub=sMore[k])
            a("s_mov_b64 exec, -1")
            a.label(Ln)
        a(f"s_cmp_eq_u32 {sFail}, 0")
        a(f"s_cbranch_scc1 c_sec_back")
        a(f"ds_write_b32 {vZero}, {vOne} offset:{FAIL}")
        a(f"s_branch c_sec_back")

    def epilogue(self, acc, rows, X, tup, D1, Bo, rbfB, tt, vLane, vZero, sE0, sCw, sFail, st, st2, sSave, vOne):
        a = self.a
        A0 = X[0][0:2]; A1 = X[0][2:4]; AG = X[1][0:2]; AU = X[1][2:4]
        mrow = [rows[j][0:2] for j in range(5)]
        t0, t1, t2, t3 = tt[0], tt[1], tt[2], tt[3]
        a("s_waitcnt vmcnt(0) lgkmcnt(0)")
        a(f"ds_read_b32 {t0}, {vZero} offset:{FAIL}")
        a("s_waitcnt lgkmcnt(0)")
        a(f"v_readfirstlane_b32 {st}, {t0}")
        a(f"s_or_b32 {sFail}, {sFail}, {st}")
        a(f"s_cmp_eq_u32 {sFail}, 0")
        a(f"s_cbranch_scc1 c_nofail")
        a(f"global_store_dword {vZero}, {vOne}, {self.pDBG} offset:16")
        a.label("c_nofail")
        a(f"v_and_b32 {t0}, 15, {vLane}")
        a(f"v_lshrrev_b32 {t1}, 4, {vLane}")
        a(f"v_add_u32 {t2}, {sE0}, {t0}")
        a(f"v_lshlrev_b32 {t2}, 5, {t2}")
        a(f"v_lshl_add_u32 {t2}, {t1}, 3, {t2}")
        for j in range(5):
            a(f"buffer_load_dwordx2 {mrow[j]}, {t2}, {self.sM}, 0 offen offset:{j*512}")
        a(f"v_and_b32 {t3}, 1, {t1}")
        a(f"v_lshlrev_b32 {t3}, 8, {t3}")
        a(f"v_lshl_add_u32 {t3}, {t0}, 1, {t3}")
        raw = [rows[5 + (i >> 2)][i & 3] for i in range(12)] + [X[2][i] for i in range(4)]
        for jj in range(4):
            a(f"global_load_ushort {raw[jj]}, {t3}, {self.pWS} offset:{jj*64}")
            a(f"global_load_ushort {raw[4 + jj]}, {t3}, {self.pWS} offset:{jj*64 + 32}")
        a(f"v_and_b32 {t3}, 1, {t1}")
        a(f"v_lshlrev_b32 {t3}, 7, {t3}")
        a(f"v_lshl_add_u32 {t3}, {t0}, 1, {t3}")
        for jj in range(4):
            a(f"global_load_ushort {raw[8 + jj]}, {t3}, {self.pWR} offset:{jj*32}")
        a(f"v_lshlrev_b32 {t3}, 7, {t1}")
        a(f"v_lshl_add_u32 {t3}, {t0}, 1, {t3}")
        for jj in range(4):
            a(f"global_load_ushort {raw[12 + jj]}, {t3}, {self.pWU} offset:{jj*32}")
        a(f"s_mul_i32 {st}, {sCw}, 80")
        a(f"v_add_u32 {tt[4]}, {st}, {t0}")
        a("s_waitcnt vmcnt(0)")
        for x, A in enumerate((A0, A1, AG, AU)):
            for h in range(2):
                a(f"v_lshl_or_b32 {A[h]}, {raw[4*x + 2*h + 1]}, 16, {raw[4*x + 2*h]}")
        G0 = tup[0]; G1 = tup[1]; GT = tup[2]; U = tup[3]
        for j in range(5):
            a(f"v_mfma_f32_16x16x16_bf16 {G0}, {A0}, {rbfB[j]}, 0")
            a(f"v_mfma_f32_16x16x16_bf16 {G1}, {A1}, {rbfB[j]}, 0")
            a(f"v_mfma_f32_16x16x16_bf16 {GT}, {AG}, {rbfB[j]}, 0")
            for i in range(4):
                a(f"v_mul_f32 {G0[i]}, {G0[i]}, {acc[j][0][i]}")
            for i in range(4):
                a(f"v_fma_f32 {G0[i]}, {G1[i]}, {acc[j][1][i]}, {G0[i]}")
            ag = D1[0][0:2]
            a(f"v_cvt_pk_bf16_f32 {ag[0]}, {G0[0]}, {G0[1]}")
            a(f"v_cvt_pk_bf16_f32 {ag[1]}, {G0[2]}, {G0[3]}")
            a(f"v_mfma_f32_16x16x16_bf16 {U}, {AU}, {ag}, 0")
            mm = Bo[0]
            a(f"v_lshlrev_b32 {mm[0]}, 16, {mrow[j][0]}")
            a(f"v_and_b32 {mm[1]}, 0xffff0000, {mrow[j][0]}")
            a(f"v_lshlrev_b32 {mm[2]}, 16, {mrow[j][1]}")
            a(f"v_and_b32 {mm[3]}, 0xffff0000, {mrow[j][1]}")
            for i in range(4):
                a(f"v_fma_f32 {mm[i]}, {U[i]}, {GT[i]}, {mm[i]}")
            o = Bo[1][0:2] if j % 2 == 0 else Bo[1][2:4]
            a(f"v_cvt_pk_bf16_f32 {o[0]}, {mm[0]}, {mm[1]}")
            a(f"v_cvt_pk_bf16_f32 {o[1]}, {mm[2]}, {mm[3]}")
            if j == 4:
                a(f"v_add_u32 {tt[5]}, 64, {tt[4]}")
                a(f"v_cmp_gt_u32 vcc, 625, {tt[5]}")
                a(f"v_cndmask_b32 {t2}, {OOB}, {t2}, vcc")
            a(f"buffer_store_dwordx2 {o}, {t2}, {self.sOUT}, 0 offen offset:{j*512}")

    def kernel(self, label, role):
        a = self.a
        self.late = []
        self.Lend = label + '_end'
        self.sWave = Reg('s', 60); self.sT64 = Reg('s', 98, 2)
        self.c_sLim = Reg('s', 61); self.c_st = Reg('s', 96)
        a.lines.append(f".globl {label}")
        a.lines.append(".p2align 8")
        a.lines.append(f".type {label},@function")
        a.label(label)
        self.prologue()
        if role == 'both':
            a(f"s_cmp_ge_u32 {self.sWave}, 8")
            a(f"s_cbranch_scc1 {label}_prod")
        if role in ('both', 'cons'):
            self.c_sMaskHi = None
            self._consumer_wrap()
        if role in ('both', 'prod'):
            a.label(f"{label}_prod")
            if role == 'both':
                a(f"s_sub_u32 {self.sWave}, {self.sWave}, 8")
            self.producer(self.sWave)
        for fn, args in self.late: fn(*args)
        a.label(self.Lend)
        a("s_endpgm")

    def _consumer_wrap(self):
        a = self.a
        a(f"s_mov_b32 {self.c_sLim}, 0x{LIM:x}")
        self.consumer(self.sWave)

    def build(self):
        hdr = open('cdna_kernels/' + NAME + '.s.ref').read().split('\n')
        head = [l for l in hdr if l.startswith(';') and '@launch' not in l]
        out = list(head)
        K = NAME + '_kernel'
        if self.mode == 'fused':
            out.append(f"; @launch grid=(256,1,1) block=(768,1,1) lds={LDS_END}")
            kerns = [(K, 'both')]
        else:
            out.append(f"; @launch kernel=prod_kernel grid=(256,1,1) block=(256,1,1) lds={LDS_END}")
            out.append(f"; @launch kernel={K} grid=(256,1,1) block=(512,1,1) lds={LDS_END}")
            kerns = [('prod_kernel', 'prod'), (K, 'cons')]
        out.append('.amdgcn_target "amdgcn-amd-amdhsa--gfx950"')
        out.append('.text')
        body = ''
        for label, role in kerns:
            self.a = Asm()
            self.a.nlabel = 1000 * len(body)
            self.kernel(label, role)
            body += self.a.finalize()
            print(f"{label}: {len(self.a.lines)} lines, nops {self.a.nops}", file=sys.stderr)
        out.append(body)
        out.append('.section .rodata,"a"')
        for label, role in kerns:
            out.append(f""".p2align 6
.amdhsa_kernel {label}
  .amdhsa_next_free_vgpr 168
  .amdhsa_next_free_sgpr 102
  .amdhsa_accum_offset 168
  .amdhsa_group_segment_fixed_size 0
  .amdhsa_kernarg_size 112
  .amdhsa_user_sgpr_count 2
  .amdhsa_user_sgpr_kernarg_segment_ptr 1
  .amdhsa_system_sgpr_workgroup_id_x 1
.end_amdhsa_kernel""")
        return '\n'.join(out) + '\n'


if __name__ == '__main__':
    import argparse
    ap = argparse.ArgumentParser()
    ap.add_argument('--mode', default='fused')
    ap.add_argument('--prof', action='store_true')
    ap.add_argument('-o', default='cdna_kernels/' + NAME + '.s')
    args = ap.parse_args()
    g = Gen(args.mode, args.prof)
    s = g.build()
    open(args.o, 'w').write(s)
```

```python
import sys, re
sys.path.insert(0, 'gen')
from asmlib import *

NAME = 'standalone__molecular_angular_gemnet__graph'

E = 160000; T = 2560000
NB = 256; EPB = 625; R = 5; CH = 10000; RT = 2000
MAGIC = 6871948
I_CNT, S_CNT, CB_CNT, NONCE, FAIL, OVF_CNT = 0, 4, 8, 12, 16, 20
CC = 64
PC = 544
OVF = 1568
PB = 2592
PBS = 144
STG = 39680
CB = 56064
GS = 784
CBS = 31360
LDS_END = 150144
TUP2 = 41943040
WSB = 83886080
LIM = 0x9C400000
INV = 0xFFFFFFF0
INVPRE = 0x0FFFFFFF
OOB = '1.0'
PROF_OFF = 100 << 20
INV2PI = 0x3e22f983
NPOS = 15
NSLOT = 16
DG = 7


class Gen:
    def __init__(self, prof=False, opts=None):
        self.prof = prof
        self.o = dict(poll_max=60000, pl=(11, 12), psec=5, pwait=8, ldflags='', tupflags='sc1', force_fail=False)
        if opts: self.o.update(opts)
        self.a = Asm()

    def stamp(self, idx):
        if not self.prof: return
        a = self.a
        a(f"s_memrealtime {self.sT64}")
        a("s_waitcnt lgkmcnt(0)")
        a(f"v_writelane_b32 {self.vProf}, {self.sT64[0]}, {idx}")

    def stamp_dyn(self, sidx):
        if not self.prof: return
        a = self.a
        a(f"s_memrealtime {self.sT64}")
        a("s_waitcnt lgkmcnt(0)")
        a(f"s_mov_b32 m0, {sidx}")
        a(f"s_nop 3")
        a(f"v_writelane_b32 {self.vProf}, {self.sT64[0]}, m0")

    def prof_store(self, wave_sgpr, bias):
        if not self.prof: return
        a = self.a
        a(f"s_mul_i32 {self.sT64[0]}, s2, 12")
        a(f"s_add_u32 {self.sT64[0]}, {self.sT64[0]}, {wave_sgpr}")
        a(f"s_add_u32 {self.sT64[0]}, {self.sT64[0]}, {bias}")
        a(f"s_lshl_b32 {self.sT64[0]}, {self.sT64[0]}, 8")
        a(f"s_add_u32 {self.sT64[0]}, {self.sT64[0]}, {PROF_OFF}")
        a(f"v_mbcnt_lo_u32_b32 v1, -1, 0")
        a(f"v_mbcnt_hi_u32_b32 v1, -1, v1")
        a(f"v_lshlrev_b32 v1, 2, v1")
        a(f"v_add_u32 v1, {self.sT64[0]}, v1")
        a(f"s_mov_b64 exec, -1")
        a(f"global_store_dword v1, {self.vProf}, s[30:31]")

    def lds_spin(self, off, target, vt, vzero, st):
        a = self.a
        L = a.newlabel('spin')
        Lx = a.newlabel('spinx')
        a.label(L)
        a(f"ds_read_b32 {vt}, {vzero} offset:{off}")
        a("s_waitcnt lgkmcnt(0)")
        a(f"v_readfirstlane_b32 {st}, {vt}")
        a(f"s_cmp_ge_u32 {st}, {target}")
        a(f"s_cbranch_scc1 {Lx}")
        a("s_sleep 1")
        a(f"s_branch {L}")
        a.label(Lx)

    def lds_arrive(self, off, vzero, vone):
        a = self.a
        a("s_mov_b64 exec, 1")
        a(f"ds_add_u32 {vzero}, {vone} offset:{off}")
        a("s_mov_b64 exec, -1")

    def srd(self, reg, src, n):
        a = self.a
        a(f"s_mov_b32 {reg[0]}, s{src}")
        a(f"s_mov_b32 {reg[1]}, s{src+1}")
        a(f"s_mov_b32 {reg[2]}, {n}")
        a(f"s_mov_b32 {reg[3]}, 0x00020000")

    def tags_from_nonce(self, sN, sT0, sTA1, sTB1):
        a = self.a
        a(f"s_and_b32 {sT0}, {sN}, 7")
        a(f"s_lshl_b32 {sT0}, {sT0}, 1")
        a(f"s_lshr_b32 {sTA1}, {sN}, 3")
        a(f"s_lshl_b32 {sTA1}, {sTA1}, 16")
        a(f"s_and_b32 {sTB1}, {sN}, 0xffff0000")

    def producer(self, sP):
        a = self.a
        V = Alloc('v', 2, 167)
        S = Alloc('s', 62, 96)
        vLane = Reg('v', 0)
        sOI = Reg('s', 40, 4); sIN = Reg('s', 36, 4); sAN = Reg('s', 48, 4); sWS = Reg('s', 56, 4)
        NS = 3
        vIn = [[V(f'in{r}{k}', 4) for k in range(2)] for r in range(NS)]
        vOut = [[V(f'out{r}{k}', 4) for k in range(2)] for r in range(NS)]
        vAng = [[V(f'ang{r}{k}', 2) for k in range(2)] for r in range(NS)]
        vZero = V('zero'); vOne = V('one'); vOffI = V('offi'); vOffA = V('offa')
        vRd = V('rd'); vCn = V('cn'); vSt = V('st'); vSlotA = V('slota'); vSlotB = V('slotb')
        vInv = V('inv'); vT0 = V('t0'); vT0m = V('t0m'); vTA1 = V('ta1'); vTB1 = V('tb1'); vt = V('t')
        vPCz = V('pcz'); vKey = V('key'); vOv = V('ov'); vM = V('m')
        m = V.mark()
        W = [V(f'w{i}', 2) for i in range(8)]
        BR = [V(f'br{i}', 2) for i in range(8)]
        Pa = [V(f'pa{i}') for i in range(8)]
        An = [V(f'an{i}') for i in range(8)]
        V.reset(m)
        Ln = [V(f'ln{i}', 4) for i in range(8)]
        Cn = [V(f'cnt{i}') for i in range(8)]
        vq = V('q', 4); ent = V('ent', 4); fl = [V('fl0'), V('fl1')]
        sNeg = S('neg625'); sMagic = S('magic'); sOffI = S('offi'); sOffA = S('offa'); so = S('so')
        st = S('st'); sStB = S('stb'); sFFFF = S('mffff'); sN = S('nonce'); sOvS = S('ovs'); sOvE = S('ove')
        sT0 = S('T0'); sTA1 = S('TA1'); sTB1 = S('TB1'); sE = S('e'); sLost = S('lost')
        sSave = S('save', 2)
        sm = [S(f'm{i}', 2) for i in range(6)]
        flg = self.o['ldflags']

        def issue_loads(r):
            q = r % NS
            for k in range(2):
                if k == 1: a(f"s_mov_b64 exec, {sSave}")
                a(f"s_add_u32 {so}, {sOffI}, {r*8000 + k*1024}")
                a(f"buffer_load_dwordx4 {vOut[q][k]}, {vOffI}, {sOI}, {so} offen {flg}")
                a(f"buffer_load_dwordx4 {vIn[q][k]}, {vOffI}, {sIN}, {so} offen {flg}")
                a(f"s_add_u32 {so}, {sOffA}, {r*4000 + k*512}")
                a(f"buffer_load_dwordx2 {vAng[q][k]}, {vOffA}, {sAN}, {so} offen {flg}")
                if k == 1: a("s_mov_b64 exec, -1")

        a(f"v_lshlrev_b32 {vOffI}, 4, {vLane}")
        a(f"s_mul_i32 {st}, {sP}, 2000")
        a(f"v_add_u32 {vOffI}, {st}, {vOffI}")
        a(f"v_lshrrev_b32 {vOffA}, 1, {vOffI}")
        a(f"s_mul_i32 {sOffI}, s2, 40000")
        a(f"s_mul_i32 {sOffA}, s2, 20000")
        M61 = (1 << 61) - 1
        a(f"s_mov_b32 {sSave[0]}, 0xffffffff")
        a(f"s_mov_b32 {sSave[1]}, 0x{M61 >> 32:x}")
        a("s_waitcnt lgkmcnt(0)")
        self.stamp(51)
        self.srd(sOI, 8, T * 4); self.srd(sIN, 6, T * 4); self.srd(sAN, 12, T * 2)
        issue_loads(0)
        issue_loads(1)
        self.srd(sWS, 30, WSB)
        self.stamp(53)
        a(f"v_mov_b32 {vZero}, 0")
        a(f"v_mov_b32 {vOne}, 1")
        a(f"s_movk_i32 {sNeg}, -625")
        a(f"s_mov_b32 {sMagic}, {MAGIC}")
        a(f"s_mov_b32 {sFFFF}, 0xffff")
        a(f"s_mov_b32 {sOvS}, 0")
        a(f"s_lshl_b32 {st}, {sP}, 8")
        a(f"v_lshlrev_b32 {vCn}, 2, {vLane}")
        a(f"v_add_u32 {vPCz}, {st}, {vCn}")
        a(f"ds_write_b32 {vPCz}, {vZero} offset:{PC}")
        a(f"v_lshrrev_b32 {vt}, 3, {vLane}")
        a(f"s_lshl_b32 {st}, {sP}, 6")
        a(f"v_add_u32 {vt}, {st}, {vt}")
        a(f"v_and_b32 {vSlotA}, 7, {vLane}")
        a(f"v_mul_u32_u24 {vRd}, {PBS}, {vt}")
        a(f"v_lshl_add_u32 {vRd}, {vSlotA}, 4, {vRd}")
        a(f"v_lshlrev_b32 {vCn}, 2, {vt}")
        a(f"v_lshlrev_b32 {vSt}, 15, {vt}")
        a(f"v_lshl_add_u32 {vSt}, {vSlotA}, 4, {vSt}")
        a(f"v_lshlrev_b32 {vSlotA}, 1, {vSlotA}")
        a(f"v_add_u32 {vSlotB}, 1, {vSlotA}")
        a(f"v_lshlrev_b32 {vKey}, 8, {vt}")
        a(f"v_add_u32 {vKey}, {vKey}, {vSlotA}")
        a(f"v_add_u32 {vKey}, 16, {vKey}")
        a(f"v_mov_b32 {vInv}, 0x{INVPRE:x}")
        a(f"s_lshl_b32 {sStB}, s2, 7")
        self.stamp(52)
        a("s_waitcnt lgkmcnt(0)")
        a("s_barrier")
        self.stamp(1)
        for r in range(R):
            q = r % NS
            if r + 2 < R: issue_loads(r + 2)
            if r > 0:
                self.lds_spin(S_CNT, 4 * r, vt, vZero, st)
            ny = 0
            seq = ['L0', 'L1']
            for rr in range(R):
                if rr + 2 < R: seq.append(f'L{rr+2}')
                if rr == r: break
                seq.append('St')
            pos = seq.index(f'L{r}')
            ny = sum(6 if x[0] == 'L' else 8 for x in seq[pos + 1:])
            a(f"s_waitcnt vmcnt({min(ny, 63)})")
            self.stamp(2 + 4 * r)
            for k in range(2):
                if k == 1: a(f"s_mov_b64 exec, {sSave}")
                I = [k * 4 + j for j in range(4)]
                o = [vOut[q][k][j] for j in range(4)]; n_ = [vIn[q][k][j] for j in range(4)]
                for j, i in enumerate(I): a(f"v_mul_hi_u32_u24 {BR[i][0]}, {sMagic}, {o[j]}")
                for j, i in enumerate(I): a(f"v_lshlrev_b32 {Pa[i]}, 2, {BR[i][0]}")
                for j, i in enumerate(I): a(f"ds_add_rtn_u32 {BR[i][1]}, {Pa[i]}, {vOne} offset:{PC}")
                for j, i in enumerate(I):
                    ang = vAng[q][k][j >> 1]
                    if j & 1: a(f"v_and_b32 {An[i]}, 0xffff0000, {ang}")
                    else: a(f"v_lshlrev_b32 {An[i]}, 16, {ang}")
                for j, i in enumerate(I): a(f"v_mul_f32 {An[i]}, 0x{INV2PI:x}, {An[i]}")
                for j, i in enumerate(I): a(f"v_mad_i32_i24 {W[i][0]}, {BR[i][0]}, {sNeg}, {o[j]}")
                for j, i in enumerate(I): a(f"v_fract_f32 {An[i]}, {An[i]}")
                for j, i in enumerate(I): a(f"v_lshl_or_b32 {W[i][0]}, {n_[j]}, 10, {W[i][0]}")
                for j, i in enumerate(I): a(f"v_cos_f32 {An[i]}, {An[i]}")
                for j, i in enumerate(I): a(f"v_mul_u32_u24 {Pa[i]}, {PBS}, {BR[i][0]}")
                for j, i in enumerate(I): a(f"v_cvt_f16_f32 {W[i][1]}, {An[i]}")
                if k == 1: a("s_mov_b64 exec, -1")
            for k in range(2):
                if k == 1: a(f"s_mov_b64 exec, {sSave}")
                I = [k * 4 + j for j in range(4)]
                a(f"s_waitcnt lgkmcnt({4 if k == 0 else 4})")
                for i in I: a(f"v_min_u32 {An[i]}, 16, {BR[i][1]}")
                for i in I: a(f"v_lshl_add_u32 {Pa[i]}, {An[i]}, 3, {Pa[i]}")
                for i in I: a(f"ds_write_b64 {Pa[i]}, {W[i]} offset:{PB}")
                if k == 0:
                    a(f"v_max3_u32 {vM}, {BR[0][1]}, {BR[1][1]}, {BR[2][1]}")
                    a(f"v_max_u32 {vM}, {vM}, {BR[3][1]}")
                else:
                    a(f"v_max3_u32 {vM}, {vM}, {BR[4][1]}, {BR[5][1]}")
                    a(f"v_max3_u32 {vM}, {vM}, {BR[6][1]}, {BR[7][1]}")
                    a("s_mov_b64 exec, -1")
            a(f"v_cmp_le_u32 vcc, 16, {vM}")
            Lo = f"p_ovf_{r}"
            a(f"s_cbranch_vccnz {Lo}")
            a.label(Lo + "_back")
            self.late.append((self._p_ovf, (Lo, W, BR, vOne, vZero, vt, vM, sSave, sOvS, sm[0])))
            a("s_waitcnt lgkmcnt(0)")
            self.lds_arrive(I_CNT, vZero, vOne)
            self.lds_spin(I_CNT, 4 * (r + 1), vt, vZero, st)
            self.stamp(3 + 4 * r)
            a(f"ds_read_b32 {vOv}, {vZero} offset:{OVF_CNT}")
            for it in range(8):
                a(f"ds_read_b32 {Cn[it]}, {vCn} offset:{PC + it*32}")
                a(f"ds_read_b128 {Ln[it]}, {vRd} offset:{PB + it*8*PBS}")
                if it == 5: a("s_waitcnt lgkmcnt(8)")
            if r == 0:
                Ln_ = a.newlabel('pn'); Lnx = a.newlabel('pnx')
                a.label(Ln_)
                a(f"ds_read_b32 {vt}, {vZero} offset:{NONCE}")
                a("s_waitcnt lgkmcnt(0)")
                a(f"v_readfirstlane_b32 {sN}, {vt}")
                a(f"s_cmp_lg_u32 {sN}, 0")
                a(f"s_cbranch_scc1 {Lnx}")
                a("s_sleep 1")
                a(f"s_branch {Ln_}")
                a.label(Lnx)
                self.tags_from_nonce(sN, sT0, sTA1, sTB1)
                a(f"v_mov_b32 {vT0}, {sT0}")
                a(f"v_or_b32 {vT0m}, 1, {vT0}")
                a(f"v_mov_b32 {vTA1}, {sTA1}")
                a(f"v_mov_b32 {vTB1}, {sTB1}")
            a("s_waitcnt lgkmcnt(0)")
            a(f"ds_write_b32 {vPCz}, {vZero} offset:{PC}")
            a(f"v_readfirstlane_b32 {sOvE}, {vOv}")
            a(f"v_max3_u32 {vM}, {Cn[0]}, {Cn[1]}, {Cn[2]}")
            a(f"v_max3_u32 {vt}, {Cn[3]}, {Cn[4]}, {Cn[5]}")
            a(f"v_max3_u32 {vM}, {vM}, {Cn[6]}, {Cn[7]}")
            a(f"v_max_u32 {vM}, {vM}, {vt}")
            a(f"v_cmp_lt_u32 vcc, 16, {vM}")
            Lrare = f"p_rare_{r}"; Lback = f"p_back_{r}"
            a(f"s_cbranch_vccnz {Lrare}")
            a.label(Lback)
            a(f"s_mov_b32 {sOvS}, {sOvE}")
            self.lds_arrive(S_CNT, vZero, vOne)
            a(f"s_add_u32 {so}, {sStB}, {(r*256) << 15}")
            for i2 in range(4):
                P = [2 * i2, 2 * i2 + 1]
                for h, it in enumerate(P):
                    c = Cn[it]
                    a(f"v_cmp_lt_u32 {sm[3*h]}, 16, {c}")
                    a(f"v_cmp_lt_u32 {sm[3*h+1]}, {vSlotA}, {c}")
                    a(f"v_cmp_lt_u32 {sm[3*h+2]}, {vSlotB}, {c}")
                for h, it in enumerate(P):
                    L = Ln[it]
                    a(f"v_and_or_b32 {L[1]}, {L[1]}, {sFFFF}, {vTA1}")
                    a(f"v_and_or_b32 {L[3]}, {L[3]}, {sFFFF}, {vTB1}")
                for h, it in enumerate(P):
                    L = Ln[it]
                    a(f"v_cndmask_b32 {fl[h]}, {vT0}, {vT0m}, {sm[3*h]}")
                    a(f"v_cndmask_b32 {L[0]}, {vInv}, {L[0]}, {sm[3*h+1]}")
                    a(f"v_cndmask_b32 {L[2]}, {vInv}, {L[2]}, {sm[3*h+2]}")
                for h, it in enumerate(P):
                    L = Ln[it]
                    a(f"v_lshl_or_b32 {L[0]}, {L[0]}, 4, {fl[h]}")
                    a(f"v_lshl_or_b32 {L[2]}, {L[2]}, 4, {vT0}")
                for h, it in enumerate(P):
                    a(f"buffer_store_dwordx4 {Ln[it]}, {vSt}, {sWS}, {so} offen sc1")
                    if it < 7: a(f"s_add_u32 {so}, {so}, {8 << 15}")
            self.stamp(4 + 4 * r)
            self.late.append((self._p_rare, (r, Lrare, Lback, Cn, vq, ent, vSt, vSlotA, vSlotB, vInv, vT0, vT0m,
                                             vTA1, vTB1, sFFFF, sStB, so, sm, st, sWS, vKey, vt, vM, sOvS, sOvE,
                                             sE, sLost, vZero)))
        self.prof_store(sP, 8)
        a("s_endpgm")

    def _p_ovf(self, Lo, W, BR, vOne, vZero, vt, vM, sSave, sOvS, sx):
        a = self.a
        a.label(Lo)
        for i in range(8):
            Ls = a.newlabel('po')
            a(f"v_cmp_le_u32 vcc, 16, {BR[i][1]}")
            if i >= 4: a(f"s_and_b64 vcc, vcc, {sSave}")
            a(f"s_cbranch_vccz {Ls}")
            a(f"s_mov_b64 exec, vcc")
            a(f"ds_add_rtn_u32 {vt}, {vZero}, {vOne} offset:{OVF_CNT}")
            a(f"v_min_u32 {vM}, 255, {BR[i][1]}")
            a(f"v_lshl_or_b32 {vM}, {BR[i][0]}, 8, {vM}")
            a("s_waitcnt lgkmcnt(0)")
            a(f"v_subrev_u32 {BR[i][1]}, {sOvS}, {vt}")
            a(f"v_and_b32 {vt}, 63, {vt}")
            a(f"v_cmp_gt_u32 vcc, 64, {BR[i][1]}")
            a(f"v_lshlrev_b32 {vt}, 4, {vt}")
            a(f"s_and_b64 exec, exec, vcc")
            a(f"ds_write_b64 {vt}, {W[i]} offset:{OVF}")
            a(f"ds_write_b32 {vt}, {vM} offset:{OVF + 8}")
            a(f"s_mov_b64 exec, -1")
            a.label(Ls)
        a(f"s_branch {Lo}_back")

    def _p_rare(self, r, Lrare, Lback, Cn, vq, ent, vSt, vSlotA, vSlotB, vInv, vT0, vT0m, vTA1, vTB1, sFFFF,
                sStB, so, sm, st, sWS, vKey, vt, vM, sOvS, sOvE, sE, sLost, vZero):
        a = self.a
        a.label(Lrare)
        a(f"s_sub_u32 {st}, {sOvE}, {sOvS}")
        a(f"s_cmp_gt_u32 {st}, 64")
        a(f"s_cselect_b32 {sLost}, -1, 0")
        for it in range(8):
            c = Cn[it]
            Ls = a.newlabel('prs')
            a(f"v_cmp_lt_u32 vcc, 16, {c}")
            a(f"s_cbranch_vccz {Ls}")
            a(f"s_mov_b64 exec, vcc")
            a(f"v_mov_b32 {vq[0]}, {vInv}")
            a(f"v_mov_b32 {vq[1]}, 0")
            a(f"v_mov_b32 {vq[2]}, {vInv}")
            a(f"v_mov_b32 {vq[3]}, 0")
            a(f"v_add_u32 {vt}, {it*8*256}, {vKey}")
            a(f"s_mov_b32 {sE}, {sOvS}")
            a(f"s_add_u32 {st}, {sOvS}, 64")
            a(f"s_min_u32 {st}, {st}, {sOvE}")
            Ll = a.newlabel('prl'); Lx = a.newlabel('prx')
            a.label(Ll)
            a(f"s_cmp_ge_u32 {sE}, {st}")
            a(f"s_cbranch_scc1 {Lx}")
            a(f"s_and_b32 {so}, {sE}, 63")
            a(f"s_lshl_b32 {so}, {so}, 4")
            a(f"v_mov_b32 {vM}, {so}")
            a(f"ds_read_b128 {ent}, {vM} offset:{OVF}")
            a("s_waitcnt lgkmcnt(0)")
            a(f"v_cmp_eq_u32 {sm[0]}, {ent[2]}, {vt}")
            a(f"v_subrev_u32 {ent[2]}, 1, {ent[2]}")
            a(f"v_cmp_eq_u32 {sm[1]}, {ent[2]}, {vt}")
            a(f"s_add_u32 {sE}, {sE}, 1")
            a(f"v_cndmask_b32 {vq[0]}, {vq[0]}, {ent[0]}, {sm[0]}")
            a(f"v_cndmask_b32 {vq[1]}, {vq[1]}, {ent[1]}, {sm[0]}")
            a(f"v_cndmask_b32 {vq[2]}, {vq[2]}, {ent[0]}, {sm[1]}")
            a(f"v_cndmask_b32 {vq[3]}, {vq[3]}, {ent[1]}, {sm[1]}")
            a(f"s_branch {Ll}")
            a.label(Lx)
            a(f"v_cmp_lt_u32 vcc, 32, {c}")
            a(f"s_cmp_lg_u32 {sLost}, 0")
            a(f"s_cselect_b64 {sm[0]}, exec, vcc")
            a(f"v_cndmask_b32 {vM}, {vT0}, {vT0m}, {sm[0]}")
            a(f"v_lshl_or_b32 {vq[0]}, {vq[0]}, 4, {vM}")
            a(f"v_lshl_or_b32 {vq[2]}, {vq[2]}, 4, {vT0}")
            a(f"v_and_or_b32 {vq[1]}, {vq[1]}, {sFFFF}, {vTA1}")
            a(f"v_and_or_b32 {vq[3]}, {vq[3]}, {sFFFF}, {vTB1}")
            a(f"s_add_u32 {so}, {sStB}, {((r*256 + it*8) << 15) + TUP2}")
            a(f"buffer_store_dwordx4 {vq}, {vSt}, {sWS}, {so} offen sc1")
            a("s_nop 1")
            a(f"s_mov_b64 exec, -1")
            a.label(Ls)
        a(f"s_branch {Lback}")

    def vm_issue(self, tag):
        self.a.lines.append(f"; @ISSUE {tag}")

    def vm_wait(self, tag):
        self.a.lines.append(f"; @WAIT {tag}")

    def resolve_vm(self, start, end):
        lines = self.a.lines
        idx = list(range(start, end))
        n = len(idx)
        for pos, i in enumerate(idx):
            l = lines[i]
            if l.startswith("; @WAIT"):
                tag = l.split()[2]
                cnt = 0; found = False
                for back in range(1, n + 1):
                    ll = lines[idx[(pos - back) % n]]
                    if ll.startswith("; @ISSUE"):
                        if ll.split()[2] == tag:
                            found = True; break
                        cnt += 1
                assert found, tag
                lines[i] = f"s_waitcnt vmcnt({min(cnt, 63)})"

    def consumer(self, sCw):
        a = self.a
        o = self.o
        V = Alloc('v', 2, 167)
        S = Alloc('s', 62, 96)
        vLane = Reg('v', 0)
        sM = Reg('s', 32, 4); sDI = Reg('s', 44, 4); sOUT = Reg('s', 52, 4); sWS = Reg('s', 56, 4)
        sOI = Reg('s', 40, 4); sIN = Reg('s', 36, 4); sAN = Reg('s', 48, 4)
        pCEN = Reg('s', 14, 2); pWR = Reg('s', 18, 2); pWS = Reg('s', 20, 2)
        pWD = Reg('s', 22, 2); pWU = Reg('s', 24, 2); pDBG = Reg('s', 28, 2)
        acc = [[V(f'acc{j}{l}', 4) for l in range(2)] for j in range(5)]
        rows = [V(f'row{i}', 4) for i in range(8)]
        X = [V(f'x{i}', 4) for i in range(4)]
        D1 = [V(f'd1{i}', 4) for i in range(2)]
        Bq = [[V(f'b{s}{l}', 4) for l in range(2)] for s in range(2)]
        Wa = V('wa', 4); Wb = V('wb', 4)
        rbfB = [V(f'rbf{j}', 2) for j in range(5)]
        Aop = [V(f'aop{i}', 2) for i in range(4)]
        vT = V('tup', 2)
        vIdx = V('idx'); vOff = V('off'); vTau = [V(f'tau{b}') for b in range(3)]; vHalf = V('half16')
        vIdxC = V('idxc'); vIdxN = V('idxn'); vTupC = V('tupc'); vTupN = V('tupn')
        vAddr = V('addr'); vC16 = V('c16'); vK = V('k'); vShift = V('shift'); vBrd = V('brd')
        vLine = V('line'); vLineP = V('linep'); vZero = V('zero'); vOne = V('one'); v784 = V('c784')
        vCntA = V('cnta'); vC = V('c'); vMoff = V('moff')
        self.cv_high = V.high
        tt = [D1[0][i] for i in range(4)] + [D1[1][i] for i in range(4)]
        sv2 = [V('sx0'), V('sx1')]
        tt = tt + sv2
        sCnt = [S(f'cnt{j}') for j in range(5)]
        sCntN = [S(f'cntn{j}') for j in range(5)]
        sIt = S('it'); st = S('st'); st2 = S('st2')
        sT0 = S('T0'); sTA1 = S('TA1'); sTB1 = S('TB1')
        sMaskHi = S('maskhi'); s0E = S('m0e'); sF0 = S('mf0')
        sNot31 = S('not31'); sCCi = S('cci'); sCBi = S('cbi'); sD = S('d'); sNext = S('next')
        sPoff = S('poff'); sSoff = S('soff'); sRet = S('ret'); sLim = S('lim')
        sFail = Reg('s', 61); sPoll = Reg('s', 97)
        sMore = [Reg('s', 4 + 2 * k, 2) for k in range(4)]
        sSave = Reg('s', 12, 2); sTarget = Reg('s', 16); sE0 = Reg('s', 17)
        self.c = dict(T0=sT0, TA1=sTA1, TB1=sTB1, MaskHi=sMaskHi, s0E=s0E, Lim=sLim, st=Reg('s', 96), vZero=vZero,
                      vOne=vOne, v784=v784, sCCi=sCCi, sCBi=sCBi, sFail=sFail, sPoll=sPoll, sWS=sWS, vLine=vLine,
                      sSoff=sSoff, tt=tt, X=X, sMore=sMore, sRet=sRet)
        t0, t1, t2, t3 = tt[4], tt[5], tt[6], tt[7]
        a(f"v_and_b32 {t0}, 15, {vLane}")
        a(f"v_lshrrev_b32 {t1}, 4, {vLane}")
        a(f"v_lshrrev_b32 {t2}, 2, {t0}")
        a(f"v_lshlrev_b32 {t2}, 3, {t2}")
        a(f"v_and_b32 {t3}, 3, {t0}")
        a(f"v_add_u32 {vTau[0]}, {t2}, {t3}")
        a(f"v_lshrrev_b32 {t3}, 5, {vLane}")
        a(f"v_lshl_add_u32 {vTau[0]}, {t3}, 2, {vTau[0]}")
        a(f"v_add_u32 {vTau[1]}, 32, {vTau[0]}")
        a(f"v_add_u32 {vTau[2]}, 64, {vTau[0]}")
        a(f"v_lshlrev_b32 {vShift}, 4, {t3}")
        a(f"v_and_b32 {t3}, 1, {t1}")
        a(f"v_lshlrev_b32 {vHalf}, 4, {t3}")
        a(f"v_mov_b32 {vZero}, 0")
        a(f"v_mov_b32 {vOne}, 1")
        a("s_waitcnt lgkmcnt(0)")
        self.stamp(51)
        self.srd(sM, 4, E * 32); self.srd(sDI, 10, E * 2); self.srd(sWS, 30, WSB); self.srd(sOUT, 26, E * 32)
        self.srd(sOI, 8, T * 4); self.srd(sIN, 6, T * 4); self.srd(sAN, 12, T * 2)
        sN = st2
        nv = X[3]
        Lnn = a.newlabel('nn')
        a(f"s_cmp_lg_u32 {sCw}, 0")
        a(f"s_cbranch_scc1 {Lnn}")
        a(f"s_and_b32 {st}, s2, 31")
        a(f"s_cmp_lg_u32 {st}, 0")
        a(f"s_cbranch_scc1 {Lnn}")
        a(f"s_memrealtime {sSave}")
        a("s_waitcnt lgkmcnt(0)")
        a(f"s_or_b32 {st}, {sSave[0]}, 1")
        a(f"v_mov_b32 {nv[0]}, {st}")
        a(f"v_mov_b32 {nv[1]}, 0")
        a("s_mov_b64 exec, 1")
        a(f"global_atomic_cmpswap {nv[2]}, {vZero}, {nv[0:2]}, {pDBG} sc0 sc1")
        a("s_mov_b64 exec, -1")
        a.label(Lnn)
        wraw = [rows[j >> 2][j & 3] for j in range(8)]
        a(f"v_lshlrev_b32 {t2}, 4, {vHalf}")
        a(f"v_lshl_add_u32 {t2}, {t0}, 1, {t2}")
        for j in range(8):
            a(f"global_load_ushort {wraw[j]}, {t2}, {pWD} offset:{j*32}")
        a(f"s_mul_i32 {sE0}, s2, 625")
        a(f"s_mul_i32 {st}, {sCw}, 80")
        a(f"s_add_u32 {sE0}, {sE0}, {st}")
        a(f"v_add_u32 {t3}, {sE0}, {t0}")
        a(f"v_lshlrev_b32 {vMoff}, 5, {t3}")
        a(f"v_lshl_add_u32 {vMoff}, {t1}, 3, {vMoff}")
        a(f"v_lshlrev_b32 {t3}, 1, {t3}")
        dd = [rows[2][0], rows[2][1], rows[2][2], rows[2][3], rows[3][0]]
        for j in range(5):
            a(f"buffer_load_ushort {dd[j]}, {t3}, {sDI}, 0 offen offset:{j*32}")
        cen = rows[4]
        a(f"v_lshlrev_b32 {t3}, 3, {t1}")
        a(f"v_and_b32 {t3}, 8, {t3}")
        for j in range(4):
            a(f"global_load_ushort {cen[j]}, {t3}, {pCEN} offset:{j*2}")
        raw = [rows[5 + (i >> 2)][i & 3] for i in range(12)] + [X[2][i] for i in range(4)]
        a(f"v_and_b32 {t3}, 1, {t1}")
        a(f"v_lshlrev_b32 {t3}, 8, {t3}")
        a(f"v_lshl_add_u32 {t3}, {t0}, 1, {t3}")
        for jj in range(4):
            a(f"global_load_ushort {raw[jj]}, {t3}, {pWS} offset:{jj*64}")
            a(f"global_load_ushort {raw[4 + jj]}, {t3}, {pWS} offset:{jj*64 + 32}")
        a(f"v_and_b32 {t3}, 1, {t1}")
        a(f"v_lshlrev_b32 {t3}, 7, {t3}")
        a(f"v_lshl_add_u32 {t3}, {t0}, 1, {t3}")
        for jj in range(4):
            a(f"global_load_ushort {raw[8 + jj]}, {t3}, {pWR} offset:{jj*32}")
        a(f"v_lshlrev_b32 {t3}, 7, {t1}")
        a(f"v_lshl_add_u32 {t3}, {t0}, 1, {t3}")
        for jj in range(4):
            a(f"global_load_ushort {raw[12 + jj]}, {t3}, {pWU} offset:{jj*32}")
        self.stamp(53)
        a(f"s_lshl_b32 {st}, {sCw}, 10")
        a(f"v_lshlrev_b32 {t3}, 4, {vLane}")
        a(f"v_add_u32 {t3}, {st}, {t3}")
        z = X[0]
        for i in range(4): a(f"v_mov_b32 {z[i]}, 0")
        ZB = LDS_END - STG
        nfull = ZB // 8192
        a(f"v_add_u32 {t3}, {STG}, {t3}")
        for i in range(nfull):
            a(f"ds_write_b128 {t3}, {z} offset:{(i & 3) * 8192}")
            if (i & 3) == 3: a(f"v_add_u32 {t3}, {4*8192}, {t3}")
        rem_off = (nfull & 3) * 8192
        a(f"v_cmp_gt_u32 vcc, {LDS_END - rem_off}, {t3}")
        a(f"s_and_saveexec_b64 {sSave}, vcc")
        Lz = a.newlabel('cz')
        a(f"s_cbranch_execz {Lz}")
        a(f"ds_write_b128 {t3}, {z} offset:{rem_off}")
        a.label(Lz)
        a(f"s_mov_b64 exec, {sSave}")
        Lz2 = a.newlabel('cz')
        a(f"s_cmp_lg_u32 {sCw}, 0")
        a(f"s_cbranch_scc1 {Lz2}")
        a(f"v_lshlrev_b32 {t3}, 3, {vLane}")
        a(f"ds_write_b64 {t3}, {z[0:2]} offset:0")
        a(f"s_mov_b64 exec, 15")
        a(f"ds_write_b64 {t3}, {z[0:2]} offset:512")
        a(f"s_mov_b64 exec, -1")
        a.label(Lz2)
        a(f"s_mul_i32 {st}, {sCw}, {5*GS}")
        a(f"s_add_u32 {st}, {st}, {CB}")
        a(f"v_lshlrev_b32 {vIdxC}, 3, {vTau[0]}")
        a(f"v_add_u32 {vIdxC}, {st}, {vIdxC}")
        a(f"v_add_u32 {vIdxN}, {CBS}, {vIdxC}")
        a(f"v_and_b32 {t2}, 31, {vLane}")
        a(f"v_lshlrev_b32 {vTupC}, 3, {t2}")
        a(f"v_add_u32 {vTupC}, {st}, {vTupC}")
        a(f"v_add_u32 {vTupN}, {CBS}, {vTupC}")
        a(f"s_lshl_b32 {st}, {sCw}, 11")
        a(f"s_add_u32 {st}, {st}, {STG}")
        a(f"v_lshlrev_b32 {vBrd}, 4, {vLane}")
        a(f"v_add_u32 {vBrd}, {st}, {vBrd}")
        a(f"v_lshrrev_b32 {t3}, 3, {t2}")
        a(f"v_lshlrev_b32 {vK}, 8, {t3}")
        a(f"v_and_b32 {t3}, 7, {t2}")
        a(f"v_lshl_add_u32 {vK}, {t3}, 1, {vK}")
        a(f"v_lshl_add_u32 {vK}, {vShift}, 6, {vK}")
        a(f"v_add_u32 {vK}, {st}, {vK}")
        a(f"v_mov_b32 {v784}, {GS}")
        a(f"s_lshl_b32 {st}, {sCw}, 12")
        a(f"v_lshlrev_b32 {vLine}, 4, {vLane}")
        a(f"v_add_u32 {vLine}, {st}, {vLine}")
        a(f"v_mov_b32 {vLineP}, {vLine}")
        a(f"v_min_u32 {vCntA}, 4, {vLane}")
        a(f"s_mul_i32 {st}, {sCw}, 5")
        a(f"v_add_u32 {vCntA}, {st}, {vCntA}")
        a(f"v_lshlrev_b32 {vCntA}, 2, {vCntA}")
        for j in range(5):
            for l in range(2):
                for i in range(4): a(f"v_mov_b32 {acc[j][l][i]}, 0")
        a(f"s_mov_b32 {sMaskHi}, 0xffff0000")
        a(f"s_mov_b32 {s0E}, 14")
        a(f"s_mov_b32 {sF0}, 0xf0")
        a(f"s_mov_b32 {sNot31}, 0xffffffe0")
        a(f"s_mov_b32 {sLim}, 0x{LIM:x}")
        a(f"s_mov_b32 {sFail}, {1 if o['force_fail'] else 0}")
        self.stamp(52)
        a("s_waitcnt lgkmcnt(0)")
        a("s_barrier")
        self.stamp(1)
        Lw = a.newlabel('nw'); Ld = a.newlabel('nd'); Lp = a.newlabel('np'); Lpl = a.newlabel('npl')
        a(f"s_cmp_lg_u32 {sCw}, 0")
        a(f"s_cbranch_scc1 {Lw}")
        a(f"s_and_b32 {st}, s2, 31")
        a(f"s_cmp_lg_u32 {st}, 0")
        a(f"s_cbranch_scc1 {Lp}")
        a("s_waitcnt vmcnt(0)")
        a(f"v_readfirstlane_b32 {sN}, {nv[2]}")
        a(f"v_readfirstlane_b32 {st}, {nv[0]}")
        a(f"s_cmp_eq_u32 {sN}, 0")
        a(f"s_cselect_b32 {sN}, {st}, {sN}")
        a(f"s_branch {Lpl}")
        a.label(Lp)
        a(f"s_mov_b32 {sPoll}, 0")
        Lq = a.newlabel('nq')
        a.label(Lq)
        a("s_mov_b64 exec, 1")
        a(f"global_load_dword {nv[2]}, {vZero}, {pDBG} sc0 sc1")
        a("s_mov_b64 exec, -1")
        a("s_waitcnt vmcnt(0)")
        a(f"v_readfirstlane_b32 {sN}, {nv[2]}")
        a(f"s_cmp_lg_u32 {sN}, 0")
        a(f"s_cbranch_scc1 {Lpl}")
        a(f"s_add_u32 {sPoll}, {sPoll}, 1")
        a(f"s_cmp_lt_u32 {sPoll}, {o['poll_max']}")
        a(f"s_cbranch_scc1 {Lq}")
        a(f"s_mov_b32 {sN}, 1")
        a(f"s_mov_b32 {sFail}, 1")
        a.label(Lpl)
        a(f"v_mov_b32 {nv[2]}, {sN}")
        a("s_mov_b64 exec, 1")
        a(f"ds_write_b32 {vZero}, {nv[2]} offset:{NONCE}")
        a("s_mov_b64 exec, -1")
        a(f"s_branch {Ld}")
        a.label(Lw)
        Lw2 = a.newlabel('nw2')
        a(f"s_mov_b32 {sN}, 0")
        a.label(Ld)
        a("s_waitcnt vmcnt(0)")
        wtmp = X[0]
        for i in range(4):
            a(f"v_lshl_or_b32 {wtmp[i]}, {wraw[2*i+1]}, 16, {wraw[2*i]}")
        a(f"v_cmp_gt_u32 vcc, 32, {vLane}")
        for i in range(4):
            a(f"v_cndmask_b32 {Wa[i]}, 0, {wtmp[i]}, vcc")
        a(f"v_cmp_le_u32 vcc, 32, {vLane}")
        for i in range(4):
            a(f"v_cndmask_b32 {Wb[i]}, 0, {wtmp[i]}, vcc")
        for jj in range(4):
            a(f"v_lshlrev_b32 {raw[4+jj]}, 16, {raw[4+jj]}")
        for jj in range(4):
            a(f"v_add_f32 {raw[4+jj]}, {raw[4+jj]}, {raw[4+jj]}")
        for jj in range(4):
            a(f"v_lshrrev_b32 {raw[4+jj]}, 16, {raw[4+jj]}")
        for x in range(4):
            for h in range(2):
                a(f"v_lshl_or_b32 {Aop[x][h]}, {raw[4*x + 2*h + 1]}, 16, {raw[4*x + 2*h]}")
        for i in range(4): a(f"v_lshlrev_b32 {cen[i]}, 16, {cen[i]}")
        a(f"v_cmp_gt_u32 {sSave}, 32, {vLane}")
        for j in range(5):
            self.rbf_operand(dd[j], cen, rbfB[j], tt, sSave)
        Lhave = a.newlabel('nh')
        a(f"s_cmp_lg_u32 {sN}, 0")
        a(f"s_cbranch_scc1 {Lhave}")
        a.label(Lw2)
        a(f"ds_read_b32 {tt[0]}, {vZero} offset:{NONCE}")
        a("s_waitcnt lgkmcnt(0)")
        a(f"v_readfirstlane_b32 {sN}, {tt[0]}")
        a(f"s_cmp_lg_u32 {sN}, 0")
        a(f"s_cbranch_scc1 {Lhave}")
        a("s_sleep 1")
        a(f"s_branch {Lw2}")
        a.label(Lhave)
        self.tags_from_nonce(sN, sT0, sTA1, sTB1)
        self.stamp(2)
        a(f"s_lshl_b32 {sPoff}, s2, 15")
        a(f"s_add_u32 {sSoff}, {sPoff}, {TUP2}")
        a(f"s_mov_b32 {sCCi}, {CC}")
        a(f"s_mov_b32 {sCBi}, {CB}")
        tf = o['tupflags']
        Lpp = a.newlabel('pp'); Lppx = a.newlabel('ppx')
        a(f"s_mov_b32 {sPoll}, 0")
        a(f"s_cmp_lg_u32 {sFail}, 0")
        a(f"s_cbranch_scc1 {Lppx}")
        a.label(Lpp)
        a(f"buffer_load_dwordx4 {X[3]}, {vLine}, {sWS}, {sPoff} offen offset:3072 {tf}")
        a("s_waitcnt vmcnt(0)")
        self.tagcheck(X[3])
        a(f"s_cbranch_vccz {Lppx}")
        a(f"s_add_u32 {sPoll}, {sPoll}, 1")
        a(f"s_cmp_lt_u32 {sPoll}, {o['poll_max']}")
        a("s_sleep 2")
        a(f"s_cbranch_scc1 {Lpp}")
        a(f"s_mov_b32 {sFail}, 1")
        a.label(Lppx)
        for k in range(4):
            a(f"buffer_load_dwordx4 {X[k]}, {vLine}, {sWS}, {sPoff} offen offset:{k*1024} {tf}")
        a("s_waitcnt vmcnt(0)")
        self.stamp(3)
        for k in range(4):
            self.primary_insert(k, 'pro')
            a(f"buffer_load_dwordx4 {X[k]}, {tt[8 + (k & 1)]}, {sWS}, {sSoff} offen offset:{k*1024} {tf}")
        a(f"s_mov_b32 {sRet}, 1")
        a("s_waitcnt vmcnt(0)")
        self.sec_check('c_sec_back_pro')
        a(f"s_mov_b32 {sRet}, 0")
        self.lds_arrive(CB_CNT, vZero, vOne)
        self.stamp(4)
        a(f"s_add_u32 {sPoff}, {sPoff}, {256 << 15}")
        a(f"s_add_u32 {sSoff}, {sSoff}, {256 << 15}")
        self.lds_spin(CB_CNT, 8, tt[0], vZero, st)
        self.read_counts_issue(vC, vCntA, CC, tt[0], dyn=None)
        ix = [Bq[1][0][i] for i in range(4)] + [Bq[1][1][i] for i in range(4)]
        for t in range(DG):
            a(f"ds_read_b32 {ix[t]}, {vIdxC} offset:{(t // 3)*GS + (t % 3)*256}")
        a(f"ds_read_b64 {vT}, {vTupC} offset:0")
        a("s_waitcnt lgkmcnt(0)")
        self.read_counts_use(vC, sCnt, sFail, st, st2)
        PL = o['pl']
        for t in range(DG):
            p = NSLOT - DG + t
            self.g_stage(ix[t], vOff, sNot31, vHalf, sCnt[t // 3], vTau[t % 3], rows[t % 8], sM)
            if p in PL:
                ks = [0, 1] if p == PL[0] else [2, 3]
                for k in ks:
                    a(f"buffer_load_dwordx4 {X[k]}, {vLineP}, {sWS}, {sPoff} offen offset:{k*1024} {tf}")
        self.s_stage(vT, vAddr, vC16, sF0, vK, vShift, vBrd, Bq[0], vZero)
        a(f"ds_read_b32 {vIdx}, {vIdxC} offset:{(DG // 3)*GS + (DG % 3)*256}")
        a(f"ds_read_b64 {vT}, {vTupC} offset:{256}")
        a(f"s_add_u32 {sPoff}, {sPoff}, {256 << 15}")
        a(f"s_mov_b32 {sCCi}, {CC + 160}")
        a(f"s_mov_b32 {sCBi}, {CB + CBS}")
        a(f"s_mov_b32 {sNext}, {CBS}")
        a(f"s_mov_b32 {sIt}, 0")
        self.stamp(5)

        Lloop = 'c_loop'
        a.label(Lloop)
        start = len(a.lines)
        PINS = {0: [0, 1], 1: [2, 3]}
        PSEC = o['psec']; PWAIT = o['pwait']
        for p in range(NSLOT):
            a.comment(f"---- slot {p}")
            real = p < NPOS
            j, blk = p // 3, p % 3
            a("s_waitcnt lgkmcnt(0)")
            if p == PWAIT + 1:
                self.read_counts_use(vC, sCntN, sFail, st, st2)
            rw = rows[p % 8]
            if real:
                Lsk1 = None
                if blk == 2:
                    Lsk1 = a.newlabel('sk1')
                    a(f"s_cmp_gt_u32 {sCnt[j]}, 64")
                    a(f"s_cbranch_scc0 {Lsk1}")
                self.vm_wait(f"G{p}")
                a(f"v_mfma_f32_16x16x32_bf16 {D1[0]}, {rw}, {Wa}, 0")
                a(f"v_mfma_f32_16x16x32_bf16 {D1[1]}, {rw}, {Wb}, 0")
                if Lsk1: a.label(Lsk1)
            if p == PWAIT:
                Lno = a.newlabel('nowait'); Lgo = a.newlabel('gowait')
                a(f"s_cmp_lt_i32 {sIt}, 4")
                a(f"s_cbranch_scc0 {Lno}")
                a(f"s_add_u32 {sTarget}, {sIt}, 2")
                a(f"s_lshl_b32 {sTarget}, {sTarget}, 3")
                self.lds_spin(CB_CNT, sTarget, vC, vZero, st)
                self.read_counts_issue(vC, vCntA, None, vAddr, dyn=sCCi)
                a(f"s_branch {Lgo}")
                a.label(Lno)
                a(f"v_mov_b32 {vC}, 0")
                a.label(Lgo)
            tgt = p + DG
            tq = tgt % NSLOT
            if tq < NPOS:
                cn = sCnt[tq // 3] if tgt < NSLOT else sCntN[tq // 3]
                self.g_stage(vIdx, vOff, sNot31, vHalf, cn, vTau[tq % 3], rows[tgt % 8], sM)
                self.vm_issue(f"G{tq}")
            nx = p + 1
            nq = nx % NSLOT
            if nq < NPOS:
                Lsk2 = None
                if nq % 3 == 2:
                    Lsk2 = a.newlabel('sk2')
                    a(f"s_cmp_gt_u32 {sCnt[nq // 3]}, 64")
                    a(f"s_cbranch_scc0 {Lsk2}")
                self.s_stage(vT, vAddr, vC16, sF0, vK, vShift, vBrd, Bq[nx & 1], vZero)
                if Lsk2: a.label(Lsk2)
            t2_ = tgt + 1
            q2 = t2_ % NSLOT
            if q2 < NPOS:
                base = vIdxC if t2_ < NSLOT else vIdxN
                a(f"ds_read_b32 {vIdx}, {base} offset:{(q2 // 3)*GS + (q2 % 3)*256}")
            s2_ = p + 2
            q2 = s2_ % NSLOT
            if q2 < NPOS:
                base = vTupC if s2_ < NSLOT else vTupN
                a(f"ds_read_b64 {vT}, {base} offset:{(q2 // 3)*GS + (q2 % 3)*256}")
            if p in PL:
                ks = [0, 1] if p == PL[0] else [2, 3]
                La = a.newlabel('pl'); Lb = a.newlabel('pl')
                a(f"s_cmp_eq_u32 {sIt}, 4")
                a(f"s_cbranch_scc1 {La}")
                for k in ks:
                    a(f"buffer_load_dwordx4 {X[k]}, {vLineP}, {sWS}, {sPoff} offen offset:{k*1024} {tf}")
                a(f"s_branch {Lb}")
                a.label(La)
                js = [0, 1] if p == PL[0] else [2, 3, 4]
                for jj in js:
                    a(f"buffer_load_dwordx2 {self.mrow(X, jj)}, {vMoff}, {sM}, 0 offen offset:{jj*512}")
                a.label(Lb)
                for k in ks: self.vm_issue(f"P{k}")
            if real:
                Lsk3 = None
                if blk == 2:
                    Lsk3 = a.newlabel('sk3')
                    a(f"s_cmp_gt_u32 {sCnt[j]}, 64")
                    a(f"s_cbranch_scc0 {Lsk3}")
                a(f"v_cvt_pk_bf16_f32 {rw[0]}, {D1[0][0]}, {D1[0][1]}")
                a(f"v_cvt_pk_bf16_f32 {rw[1]}, {D1[0][2]}, {D1[0][3]}")
                a(f"v_cvt_pk_bf16_f32 {rw[2]}, {D1[1][0]}, {D1[1][1]}")
                a(f"v_cvt_pk_bf16_f32 {rw[3]}, {D1[1][2]}, {D1[1][3]}")
                Bp = Bq[p & 1]
                a(f"v_mfma_f32_16x16x32_bf16 {acc[j][0]}, {rw}, {Bp[0]}, {acc[j][0]}")
                a(f"v_mfma_f32_16x16x32_bf16 {acc[j][1]}, {rw}, {Bp[1]}, {acc[j][1]}")
                if Lsk3: a.label(Lsk3)
            if p in PINS:
                Lsk = a.newlabel('noins')
                a(f"s_cmp_lt_i32 {sIt}, 4")
                a(f"s_cbranch_scc0 {Lsk}_a")
                for k in PINS[p]:
                    self.vm_wait(f"P{k}")
                    self.primary_insert(k, 'loop')
                Lgo = f"{Lsk}_b"
                a(f"s_branch {Lgo}")
                a.label(f"{Lsk}_a")
                for k in PINS[p]:
                    a(f"v_mov_b32 {tt[8 + (k & 1)]}, {OOB}")
                    a(f"s_mov_b64 {sMore[k]}, 0")
                a.label(Lgo)
                for k in PINS[p]:
                    a(f"buffer_load_dwordx4 {X[k]}, {tt[8 + (k & 1)]}, {sWS}, {sSoff} offen offset:{k*1024} {tf}")
                    self.vm_issue(f"S{k}")
            if p == PSEC:
                self.sec_check('c_sec_back')
                self.secwait = []
                for k in range(4):
                    self.vm_wait(f"S{k}"); self.secwait.append(len(a.lines) - 1)
                Lna = a.newlabel('noarr')
                a(f"s_cmp_lt_i32 {sIt}, 4")
                a(f"s_cbranch_scc0 {Lna}")
                self.lds_arrive(CB_CNT, vZero, vOne)
                a.label(Lna)
            if self.prof and p in (1, 5, 8, 14):
                slot = {1: 0, 5: 1, 8: 2, 14: 3}[p]
                a(f"s_lshl_b32 {st}, {sIt}, 2")
                a(f"s_add_u32 {st}, {st}, {8 + slot}")
                self.stamp_dyn(st)
        a(f"v_mov_b32 {vIdxC}, {vIdxN}")
        a(f"v_mov_b32 {vTupC}, {vTupN}")
        a(f"s_add_u32 {st}, {sNext}, {CBS}")
        a(f"s_cmp_eq_u32 {st}, {3*CBS}")
        a(f"s_cselect_b32 {st}, 0, {st}")
        a(f"s_sub_i32 {sD}, {st}, {sNext}")
        a(f"s_mov_b32 {sNext}, {st}")
        a(f"v_add_u32 {vIdxN}, {sD}, {vIdxN}")
        a(f"v_add_u32 {vTupN}, {sD}, {vTupN}")
        a(f"s_add_u32 {sCBi}, {sNext}, {CB}")
        a(f"s_add_u32 {sCCi}, {sCCi}, 160")
        a(f"s_cmp_eq_u32 {sCCi}, {CC + 480}")
        a(f"s_cselect_b32 {sCCi}, {CC}, {sCCi}")
        for jj in range(5):
            a(f"s_mov_b32 {sCnt[jj]}, {sCntN[jj]}")
        a(f"s_add_u32 {sPoff}, {sPoff}, {256 << 15}")
        a(f"s_add_u32 {sSoff}, {sSoff}, {256 << 15}")
        a(f"s_add_i32 {sIt}, {sIt}, 1")
        Lk = a.newlabel('keep')
        a(f"s_cmp_lt_i32 {sIt}, 3")
        a(f"s_cbranch_scc1 {Lk}")
        a(f"v_mov_b32 {vLineP}, {OOB}")
        a.label(Lk)
        a(f"s_cmp_le_i32 {sIt}, 4")
        a(f"s_cbranch_scc1 {Lloop}")
        end = len(a.lines)
        self.resolve_vm(start, end)
        secw = []
        for i in self.secwait:
            secw.append(a.lines[i]); a.lines[i] = "; (secondary wait moved out of line)"
        self.late.append((self._secondary, (secw,)))
        self.stamp(40)
        a("s_waitcnt vmcnt(0) lgkmcnt(0)")
        a(f"ds_read_b32 {tt[0]}, {vZero} offset:{FAIL}")
        a("s_waitcnt lgkmcnt(0)")
        a(f"v_readfirstlane_b32 {st}, {tt[0]}")
        a(f"s_or_b32 {sFail}, {sFail}, {st}")
        a(f"s_cmp_lg_u32 {sFail}, 0")
        a(f"s_cbranch_scc1 c_fallback")
        a.label("c_fb_back")
        self.late.append((self._fallback, (acc, rows, X, D1, Bq, Wa, Wb, vLane, vZero, vOne, vHalf, vTau, sE0, sCw,
                                            sOI, sIN, sAN, sM, st, st2, sSave, sMore, vMoff, pDBG, sIt, sD, sNext,
                                            vOff, vIdx, vAddr, vC16, vT)))
        self.epilogue(acc, X, D1, Bq, rbfB, Aop, tt, vLane, vMoff, sCw, sOUT, st, rows)
        self.stamp(41)
        self.prof_store(sCw, 0)
        a("s_endpgm")

    def mrow(self, X, j):
        return X[j >> 1][(j & 1) * 2:(j & 1) * 2 + 2]

    def g_stage(self, idx, vOff, sNot31, vHalf, cnt, tau, dst, sM):
        a = self.a
        a(f"v_cmp_gt_u32 vcc, {cnt}, {tau}")
        a(f"v_lshrrev_b32 {vOff}, 9, {idx}")
        a(f"v_and_or_b32 {vOff}, {vOff}, {sNot31}, {vHalf}")
        a(f"v_cndmask_b32 {vOff}, {OOB}, {vOff}, vcc")
        a(f"buffer_load_dwordx4 {dst}, {vOff}, {sM}, 0 offen")

    def s_stage(self, vT, vAddr, vC16, sF0, vK, vShift, vBrd, B, vZero):
        a = self.a
        a(f"v_and_or_b32 {vAddr}, {vT[0]}, {sF0}, {vK}")
        a(f"v_lshrrev_b32 {vC16}, {vShift}, {vT[1]}")
        a(f"ds_write_b16 {vAddr}, {vC16}")
        a(f"ds_read_b128 {B[0]}, {vBrd}")
        a(f"ds_read_b128 {B[1]}, {vBrd} offset:1024")
        a(f"ds_write_b16 {vAddr}, {vZero}")

    def read_counts_issue(self, vC, vCntA, static_cc, vt, dyn):
        a = self.a
        if dyn is None: a(f"v_add_u32 {vt}, {static_cc}, {vCntA}")
        else: a(f"v_add_u32 {vt}, {dyn}, {vCntA}")
        a(f"ds_read_b32 {vC}, {vt}")
        a("s_mov_b64 exec, 31")
        a(f"ds_write_b32 {vt}, {self.c['vZero']}")
        a("s_mov_b64 exec, -1")

    def read_counts_use(self, vC, dst, sFail, st, st2):
        a = self.a
        for jj in range(5):
            a(f"v_readlane_b32 {dst[jj]}, {vC}, {jj}")
        a(f"s_max_u32 {st}, {dst[0]}, {dst[1]}")
        a(f"s_max_u32 {st2}, {dst[2]}, {dst[3]}")
        a(f"s_max_u32 {st}, {st}, {dst[4]}")
        a(f"s_max_u32 {st}, {st}, {st2}")
        a(f"s_cmp_gt_u32 {st}, 96")
        a(f"s_cselect_b32 {st}, 1, 0")
        a(f"s_or_b32 {sFail}, {sFail}, {st}")
        for jj in range(5):
            a(f"s_min_u32 {dst[jj]}, {dst[jj]}, 96")

    def rbf_operand(self, d, cen, dst, tt, sQ):
        a = self.a
        t = [tt[0], tt[1], tt[2], tt[3]]; u = tt[4]; dv = tt[5]
        a(f"v_lshlrev_b32 {dv}, 16, {d}")
        for i in range(4): a(f"v_sub_f32 {t[i]}, {dv}, {cen[i]}")
        def rnd():
            for h in range(2):
                a(f"v_cvt_pk_bf16_f32 {u}, {t[2*h]}, {t[2*h+1]}")
                a(f"v_lshlrev_b32 {t[2*h]}, 16, {u}")
                a(f"v_and_b32 {t[2*h+1]}, 0xffff0000, {u}")
        rnd()
        for i in range(4): a(f"v_mul_f32 {t[i]}, {t[i]}, {t[i]}")
        rnd()
        for i in range(4): a(f"v_mul_f32 {t[i]}, 0xc1200000, {t[i]}")
        rnd()
        for i in range(4): a(f"v_mul_f32 {t[i]}, 0x3fb8aa3b, {t[i]}")
        for i in range(4): a(f"v_exp_f32 {t[i]}, {t[i]}")
        a(f"v_cvt_pk_bf16_f32 {dst[0]}, {t[0]}, {t[1]}")
        a(f"v_cvt_pk_bf16_f32 {dst[1]}, {t[2]}, {t[3]}")
        a(f"v_cndmask_b32 {dst[0]}, 0, {dst[0]}, {sQ}")
        a(f"v_cndmask_b32 {dst[1]}, 0, {dst[1]}, {sQ}")

    def tagcheck(self, x):
        a = self.a; c = self.c; tt = c['tt']
        a(f"v_xor_b32 {tt[6]}, {c['TA1']}, {x[1]}")
        a(f"v_xor_b32 {tt[7]}, {c['TB1']}, {x[3]}")
        a(f"v_bitop3_b32 {tt[0]}, {x[0]}, {x[2]}, {c['T0']} bitop3:0x7e")
        a(f"v_bitop3_b32 {tt[1]}, {tt[6]}, {tt[7]}, {c['MaskHi']} bitop3:0xa8")
        a(f"v_and_or_b32 {tt[0]}, {tt[0]}, {c['s0E']}, {tt[1]}")
        a(f"v_cmp_ne_u32 vcc, 0, {tt[0]}")

    def primary_insert(self, k, ctx):
        a = self.a; c = self.c; tt = c['tt']; X = c['X']
        Lchk = f"c_chk_{ctx}_{k}"; Lrp = f"c_rp_{ctx}_{k}"
        self.tagcheck(X[k])
        a(f"s_cbranch_vccnz {Lrp}")
        a.label(Lchk + "_ok")
        self.late.append((self._repoll, (k, Lrp, Lchk)))
        self.insert(X[k], more=(k,))

    def insert(self, x, sub=None, more=None):
        a = self.a; c = self.c; tt = c['tt']
        ex = sub if sub is not None else '-1'
        g = [tt[0], tt[1]]; rk = [tt[2], tt[3]]; c0 = [tt[4], tt[5]]; c1 = [tt[6], tt[7]]
        w0 = [x[0], x[2]]; w1 = [x[1], x[3]]
        sv = [Reg('s', 92 + 2 * h, 2) for h in range(2)]
        for h in range(2): a(f"v_cmp_gt_u32 {sv[h]}, {c['Lim']}, {w0[h]}")
        for h in range(2): a(f"v_bfe_u32 {g[h]}, {w0[h]}, 8, 6")
        for h in range(2): a(f"v_lshl_add_u32 {rk[h]}, {g[h]}, 2, {c['sCCi']}")
        for h in range(2):
            if sub is not None:
                a(f"s_and_b64 {sv[h]}, {sv[h]}, {sub}")
            a(f"s_mov_b64 exec, {sv[h]}")
            a(f"ds_add_rtn_u32 {rk[h]}, {rk[h]}, {c['vOne']}")
        a(f"s_mov_b64 exec, {ex}")
        for h in range(2): a(f"v_cvt_f32_f16 {c0[h]}, {w1[h]}")
        for h in range(2): a(f"v_fma_mix_f32 {c1[h]}, {w1[h]}, {w1[h]}, -0.5 op_sel_hi:[1,1,0]")
        for h in range(2): a(f"v_mad_u32_u24 {g[h]}, {g[h]}, {c['v784']}, {c['sCBi']}")
        for h in range(2): a(f"v_cvt_pk_bf16_f32 {w1[h]}, {c0[h]}, {c1[h]}")
        if more is not None:
            k = more[0]
            a(f"v_and_b32 {c0[0]}, 1, {x[0]}")
            a(f"v_cmp_ne_u32 vcc, 0, {c0[0]}")
            a(f"s_mov_b64 {c['sMore'][k]}, vcc")
            a(f"v_cndmask_b32 {tt[8 + (k & 1)]}, {OOB}, {c['vLine']}, vcc")
        a("s_waitcnt lgkmcnt(0)")
        for h in range(2): a(f"v_min_u32 {rk[h]}, 96, {rk[h]}")
        for h in range(2): a(f"v_lshl_add_u32 {g[h]}, {rk[h]}, 3, {g[h]}")
        for h in range(2):
            a(f"s_mov_b64 exec, {sv[h]}")
            a(f"ds_write_b64 {g[h]}, {Reg('v', w0[h].i, 2)}")
        a(f"s_mov_b64 exec, {ex}")

    def _repoll(self, k, Lrp, Lchk):
        a = self.a; c = self.c; tt = c['tt']; x = c['X'][k]
        a.label(Lrp)
        a(f"s_mov_b32 {c['sPoll']}, 0")
        L = a.newlabel('rpl'); Lto = a.newlabel('rpt')
        a(f"s_cmp_lg_u32 {c['sFail']}, 0")
        a(f"s_cbranch_scc1 {Lto}")
        a.label(L)
        a("s_sleep 1")
        a(f"s_sub_u32 {c['st']}, {c['sSoff']}, {TUP2}")
        a(f"buffer_load_dwordx4 {x}, {c['vLine']}, {c['sWS']}, {c['st']} offen offset:{k*1024} {self.o['tupflags']}")
        a("s_waitcnt vmcnt(0)")
        self.tagcheck(x)
        a(f"s_cbranch_vccz {Lchk}_ok")
        a(f"s_add_u32 {c['sPoll']}, {c['sPoll']}, 1")
        a(f"s_cmp_lt_u32 {c['sPoll']}, {self.o['poll_max']}")
        a(f"s_cbranch_scc1 {L}")
        a.label(Lto)
        a(f"s_mov_b32 {c['sFail']}, 1")
        a(f"ds_write_b32 {c['vZero']}, {c['vOne']} offset:{FAIL}")
        a(f"v_mov_b32 {tt[0]}, 0x{INV:x}")
        a(f"v_cndmask_b32 {x[0]}, {x[0]}, {tt[0]}, vcc")
        a(f"v_cndmask_b32 {x[2]}, {x[2]}, {tt[0]}, vcc")
        a(f"s_branch {Lchk}_ok")

    def sec_check(self, back):
        a = self.a; c = self.c; sMore = c['sMore']
        sx = Reg('s', 92, 2)
        a(f"s_or_b64 {sx}, {sMore[0]}, {sMore[1]}")
        a(f"s_or_b64 vcc, {sMore[2]}, {sMore[3]}")
        a(f"s_or_b64 {sx}, {sx}, vcc")
        a(f"s_cbranch_scc1 c_sec")
        a(f"s_cmp_lg_u32 {c['sFail']}, 0")
        a(f"s_cbranch_scc1 c_sec_pub")
        a.label(back)

    def _secondary(self, secw):
        a = self.a; c = self.c; tt = c['tt']; X = c['X']; sMore = c['sMore']; sFail = c['sFail']; sPoll = c['sPoll']
        a.label("c_sec")
        for k in range(4):
            Ln = a.newlabel('sn')
            a(f"s_cmp_eq_u64 {sMore[k]}, 0")
            a(f"s_cbranch_scc1 {Ln}")
            a(secw[k])
            a(f"s_mov_b64 exec, {sMore[k]}")
            a(f"s_mov_b32 {sPoll}, 0")
            Lc = a.newlabel('sc'); Lok = a.newlabel('sok')
            a.label(Lc)
            self.tagcheck(X[k])
            a(f"s_cbranch_vccz {Lok}")
            a(f"s_add_u32 {sPoll}, {sPoll}, 1")
            Lto = a.newlabel('sto')
            a(f"s_cmp_lg_u32 {sFail}, 0")
            a(f"s_cbranch_scc1 {Lto}")
            a(f"s_cmp_lt_u32 {sPoll}, {self.o['poll_max']}")
            a(f"s_cbranch_scc0 {Lto}")
            a("s_sleep 1")
            a(f"buffer_load_dwordx4 {X[k]}, {c['vLine']}, {c['sWS']}, {c['sSoff']} offen offset:{k*1024} {self.o['tupflags']}")
            a("s_waitcnt vmcnt(0)")
            a(f"s_branch {Lc}")
            a.label(Lto)
            a(f"s_mov_b32 {sFail}, 1")
            a(f"v_mov_b32 {tt[0]}, 0x{INV:x}")
            a(f"v_cndmask_b32 {X[k][0]}, {X[k][0]}, {tt[0]}, vcc")
            a(f"v_cndmask_b32 {X[k][2]}, {X[k][2]}, {tt[0]}, vcc")
            a.label(Lok)
            a(f"v_and_b32 {tt[0]}, 1, {X[k][0]}")
            a(f"v_cmp_ne_u32 vcc, 0, {tt[0]}")
            a(f"s_cmp_lg_u64 vcc, 0")
            a(f"s_cselect_b32 {c['st']}, 1, 0")
            a(f"s_or_b32 {sFail}, {sFail}, {c['st']}")
            self.insert(X[k], sub=sMore[k])
            a("s_mov_b64 exec, -1")
            a.label(Ln)
        a(f"s_cmp_eq_u32 {sFail}, 0")
        a(f"s_cbranch_scc1 c_sec_ret")
        a.label("c_sec_pub")
        a(f"ds_write_b32 {c['vZero']}, {c['vOne']} offset:{FAIL}")
        a.label("c_sec_ret")
        a(f"s_cmp_eq_u32 {c['sRet']}, 0")
        a(f"s_cbranch_scc1 c_sec_back")
        a(f"s_branch c_sec_back_pro")

    def _fallback(self, acc, rows, X, D1, Bq, Wa, Wb, vLane, vZero, vOne, vHalf, vTau, sE0, sCw, sOI, sIN, sAN, sM,
                  st, st2, sSave, sMore, vMoff, pDBG, sIt, sD, sNext, vOff, vIdx, vAddr, vC16, vT):
        a = self.a
        a.label("c_fallback")
        a(f"global_store_dword {vZero}, {vOne}, {pDBG} offset:16")
        for j in range(5):
            for l in range(2):
                for i in range(4): a(f"v_mov_b32 {acc[j][l][i]}, 0")
        sN = sIt
        sCh = sD
        sMask = sMore[0]; sLaneS = sNext; sLoc = Reg('s', 6); sTt = Reg('s', 7); sSel = sMore[2]; sSel2 = sMore[3]
        a(f"s_movk_i32 {sN}, 80")
        a(f"s_cmp_eq_u32 {sCw}, 7")
        a(f"s_cselect_b32 {sN}, 65, {sN}")
        a(f"s_mov_b32 {sCh}, 0")
        vL16 = vIdx; vI15 = vAddr
        a(f"v_lshlrev_b32 {vL16}, 4, {vLane}")
        a(f"v_and_b32 {vI15}, 15, {vLane}")
        for i in range(1, 4):
            a(f"v_mov_b32 {Bq[0][0][i]}, 0")
            a(f"v_mov_b32 {Bq[0][1][i]}, 0")
        a(f"v_cmp_eq_u32 {sSel}, 0, {vTau[0]}")
        Lc = "c_fb_chunk"
        a.label(Lc)
        a(f"buffer_load_dwordx4 {X[3]}, {vL16}, {sOI}, {sCh} offen")
        a("s_waitcnt vmcnt(0)")
        for cidx in range(4):
            Lh = f"c_fb_h{cidx}"; Ld = f"c_fb_d{cidx}"
            a(f"v_subrev_u32 {X[3][cidx]}, {sE0}, {X[3][cidx]}")
            a(f"v_cmp_gt_u32 {sMask}, {sN}, {X[3][cidx]}")
            a.label(Lh)
            a(f"s_cmp_eq_u64 {sMask}, 0")
            a(f"s_cbranch_scc1 {Ld}")
            a(f"s_ff1_i32_b64 {sLaneS}, {sMask}")
            a(f"s_bitset0_b64 {sMask}, {sLaneS}")
            a(f"s_nop 3")
            a(f"v_readlane_b32 {sLoc}, {X[3][cidx]}, {sLaneS}")
            a(f"s_lshl_b32 {sTt}, {sLaneS}, 4")
            a(f"s_add_u32 {sTt}, {sTt}, {sCh}")
            a(f"s_add_u32 {sTt}, {sTt}, {cidx*4}")
            a(f"v_mov_b32 {vOff}, {sTt}")
            a(f"v_lshrrev_b32 {vC16}, 1, {vOff}")
            a(f"buffer_load_dword {vT[0]}, {vOff}, {sIN}, 0 offen")
            a(f"buffer_load_ushort {vT[1]}, {vC16}, {sAN}, 0 offen")
            a("s_waitcnt vmcnt(0)")
            a(f"v_lshl_or_b32 {vOff}, {vT[0]}, 5, {vHalf}")
            a(f"v_cndmask_b32 {vOff}, {OOB}, {vOff}, {sSel}")
            a(f"buffer_load_dwordx4 {rows[0]}, {vOff}, {sM}, 0 offen")
            a(f"v_lshlrev_b32 {vT[1]}, 16, {vT[1]}")
            a(f"v_mul_f32 {vT[1]}, 0x{INV2PI:x}, {vT[1]}")
            a(f"v_fract_f32 {vT[1]}, {vT[1]}")
            a(f"v_cos_f32 {vT[1]}, {vT[1]}")
            a(f"s_and_b32 {st}, {sLoc}, 15")
            a(f"v_cmp_eq_u32 {sSel2}, {st}, {vLane}")
            a(f"v_fma_f32 {vT[0]}, {vT[1]}, {vT[1]}, -0.5")
            a(f"v_cvt_pk_bf16_f32 {vT[0]}, {vT[1]}, {vT[0]}")
            a(f"v_and_b32 {vT[1]}, 0xffff, {vT[0]}")
            a(f"v_lshrrev_b32 {vT[0]}, 16, {vT[0]}")
            a(f"v_cndmask_b32 {Bq[0][0][0]}, 0, {vT[1]}, {sSel2}")
            a(f"v_cndmask_b32 {Bq[0][1][0]}, 0, {vT[0]}, {sSel2}")
            a("s_waitcnt vmcnt(0)")
            rw = rows[0]
            a(f"v_mfma_f32_16x16x32_bf16 {D1[0]}, {rw}, {Wa}, 0")
            a(f"v_mfma_f32_16x16x32_bf16 {D1[1]}, {rw}, {Wb}, 0")
            a(f"v_cvt_pk_bf16_f32 {rw[0]}, {D1[0][0]}, {D1[0][1]}")
            a(f"v_cvt_pk_bf16_f32 {rw[1]}, {D1[0][2]}, {D1[0][3]}")
            a(f"v_cvt_pk_bf16_f32 {rw[2]}, {D1[1][0]}, {D1[1][1]}")
            a(f"v_cvt_pk_bf16_f32 {rw[3]}, {D1[1][2]}, {D1[1][3]}")
            a(f"s_lshr_b32 {st}, {sLoc}, 4")
            for j in range(5):
                Lj = a.newlabel('fbj')
                a(f"s_cmp_lg_u32 {st}, {j}")
                a(f"s_cbranch_scc1 {Lj}")
                a(f"v_mfma_f32_16x16x32_bf16 {acc[j][0]}, {rw}, {Bq[0][0]}, {acc[j][0]}")
                a(f"v_mfma_f32_16x16x32_bf16 {acc[j][1]}, {rw}, {Bq[0][1]}, {acc[j][1]}")
                a.label(Lj)
            a(f"s_branch {Lh}")
            a.label(Ld)
        a(f"s_add_u32 {sCh}, {sCh}, 1024")
        a(f"s_cmp_lt_u32 {sCh}, {T*4}")
        a(f"s_cbranch_scc1 {Lc}")
        for jj in range(5):
            a(f"buffer_load_dwordx2 {self.mrow(X, jj)}, {vMoff}, {sM}, 0 offen offset:{jj*512}")
        a("s_waitcnt vmcnt(0)")
        a("s_branch c_fb_back")

    def epilogue(self, acc, X, D1, Bq, rbfB, Aop, tt, vLane, vMoff, sCw, sOUT, st, rows):
        a = self.a
        A0, A1, AG, AU = Aop
        t0 = rows[7][0]; t1 = rows[7][1]
        a(f"v_and_b32 {t0}, 15, {vLane}")
        a(f"s_mul_i32 {st}, {sCw}, 80")
        a(f"v_add_u32 {t0}, {st}, {t0}")
        a(f"v_add_u32 {t0}, 64, {t0}")
        a(f"v_cmp_gt_u32 vcc, 625, {t0}")
        a(f"v_cndmask_b32 {t1}, {OOB}, {vMoff}, vcc")
        G0 = [rows[0], rows[1]]; G1 = [rows[2], rows[3]]; GT = [rows[4], rows[5]]; U = [D1[0], D1[1]]
        ag = [Bq[0][0][0:2], Bq[0][0][2:4]]
        mm = [Bq[0][1], Bq[1][0]]
        oo = [Bq[1][1][0:2], Bq[1][1][2:4]]

        def gm(j):
            s = j & 1
            a(f"v_mfma_f32_16x16x16_bf16 {G0[s]}, {A0}, {rbfB[j]}, 0")
            a(f"v_mfma_f32_16x16x16_bf16 {G1[s]}, {A1}, {rbfB[j]}, 0")
            a(f"v_mfma_f32_16x16x16_bf16 {GT[s]}, {AG}, {rbfB[j]}, 0")
        gm(0)
        for j in range(5):
            s = j & 1
            if j + 1 < 5: gm(j + 1)
            mrow = self.mrow(X, j)
            a(f"v_lshlrev_b32 {mm[s][0]}, 16, {mrow[0]}")
            a(f"v_and_b32 {mm[s][1]}, 0xffff0000, {mrow[0]}")
            a(f"v_lshlrev_b32 {mm[s][2]}, 16, {mrow[1]}")
            a(f"v_and_b32 {mm[s][3]}, 0xffff0000, {mrow[1]}")
            for i in range(4):
                a(f"v_mul_f32 {G0[s][i]}, {G0[s][i]}, {acc[j][0][i]}")
            for i in range(4):
                a(f"v_fma_f32 {G0[s][i]}, {G1[s][i]}, {acc[j][1][i]}, {G0[s][i]}")
            a(f"v_cvt_pk_bf16_f32 {ag[s][0]}, {G0[s][0]}, {G0[s][1]}")
            a(f"v_cvt_pk_bf16_f32 {ag[s][1]}, {G0[s][2]}, {G0[s][3]}")
            a(f"v_mfma_f32_16x16x16_bf16 {U[s]}, {AU}, {ag[s]}, 0")
            for i in range(4):
                a(f"v_fma_f32 {mm[s][i]}, {U[s][i]}, {GT[s][i]}, {mm[s][i]}")
            o = oo[s]
            a(f"v_cvt_pk_bf16_f32 {o[0]}, {mm[s][0]}, {mm[s][1]}")
            a(f"v_cvt_pk_bf16_f32 {o[1]}, {mm[s][2]}, {mm[s][3]}")
            off = t1 if j == 4 else vMoff
            a(f"buffer_store_dwordx2 {o}, {off}, {sOUT}, 0 offen offset:{j*512}")

    def kernel(self, label):
        a = self.a
        self.late = []
        self.Lend = label + '_end'
        self.sWave = Reg('s', 60); self.sT64 = Reg('s', 98, 2)
        self.vProf = Reg('v', 167)
        a.lines.append(f".globl {label}")
        a.lines.append(".p2align 8")
        a.lines.append(f".type {label},@function")
        a.label(label)
        a("s_cmp_ge_u32 s2, 256")
        a(f"s_cbranch_scc1 {self.Lend}")
        a("s_load_dwordx16 s[4:19], s[0:1], 0")
        a("s_load_dwordx8 s[20:27], s[0:1], 64")
        a("s_load_dwordx4 s[28:31], s[0:1], 96")
        if self.prof:
            a("s_memrealtime s[98:99]")
        a("v_lshrrev_b32 v1, 6, v0")
        a("v_and_b32 v0, 63, v0")
        a(f"v_readfirstlane_b32 {self.sWave}, v1")
        if self.prof:
            a("s_waitcnt lgkmcnt(0)")
            a("v_mov_b32 v167, 0")
            a("v_writelane_b32 v167, s98, 50")
        a(f"s_cmp_lt_u32 {self.sWave}, 8")
        a(f"s_cbranch_scc1 {label}_cons")
        a(f"s_sub_u32 {self.sWave}, {self.sWave}, 8")
        self.producer(self.sWave)
        a.label(f"{label}_cons")
        self.consumer(self.sWave)
        for fn, args in self.late: fn(*args)
        a.label(self.Lend)
        a("s_endpgm")

    def build(self):
        hdr = open('cdna_kernels/' + NAME + '.s.ref').read().split('\n')
        head = [l for l in hdr if l.startswith(';') and '@launch' not in l]
        out = list(head)
        K = NAME + '_kernel'
        out.append(f"; @launch grid=(256,1,1) block=(768,1,1) lds={LDS_END}")
        out.append('.amdgcn_target "amdgcn-amd-amdhsa--gfx950"')
        out.append('.text')
        self.kernel(K)
        body = self.a.finalize()
        print(f"{K}: {len(self.a.lines)} lines, nops {self.a.nops}", file=sys.stderr)
        out.append(body)
        out.append('.section .rodata,"a"')
        out.append(f""".p2align 6
.amdhsa_kernel {K}
  .amdhsa_next_free_vgpr 168
  .amdhsa_next_free_sgpr 102
  .amdhsa_accum_offset 168
  .amdhsa_group_segment_fixed_size 0
  .amdhsa_kernarg_size 112
  .amdhsa_user_sgpr_count 2
  .amdhsa_user_sgpr_kernarg_segment_ptr 1
  .amdhsa_system_sgpr_workgroup_id_x 1
.end_amdhsa_kernel""")
        return '\n'.join(out) + '\n'


if __name__ == '__main__':
    import argparse, ast
    ap = argparse.ArgumentParser()
    ap.add_argument('--prof', action='store_true')
    ap.add_argument('--opt', action='append', default=[])
    ap.add_argument('-o', default='cdna_kernels/' + NAME + '.s')
    args = ap.parse_args()
    opts = {}
    for kv in args.opt:
        k, v = kv.split('=', 1)
        try: v = ast.literal_eval(v)
        except Exception: pass
        opts[k] = v
    g = Gen(args.prof, opts)
    s = g.build()
    open(args.o, 'w').write(s)
```

```python
import sys, re
sys.path.insert(0, 'gen')
from asmlib import *

NAME = 'standalone__molecular_angular_gemnet__graph'

E = 160000; T = 2560000
NB = 256; EPB = 625; R = 5; CH = 10000; RT = 2000
MAGIC = 6871948
I_CNT, S_CNT, CB_CNT, NONCE, FAIL, OVF_CNT = 0, 4, 8, 12, 16, 20
CC = 64
PC = 544
OVF = 1568
PB = 2592
PBS = 144
STG = 39680
CB = 56064
GS = 784
CBS = 31360
LDS_END = 150144
TUP2 = 41943040
WSB = 83886080
LIM = 0x9C400000
INV = 0xFFFFFFF0
INVPRE = 0x0FFFFFFF
OOB = '1.0'
PROF_OFF = 100 << 20
INV2PI = 0x3e22f983
NPOS = 15
NSLOT = 16
import os
DG = int(os.environ.get("DG", 7))


class Gen:
    def __init__(self, prof=False, opts=None):
        self.prof = prof
        self.o = dict(poll_max=60000, pl=(11, 12), psec=5, pwait=8, ldflags='', tupflags='sc1', force_fail=False, gmask=0xffffffe0, gmode='', pprio=0, cprio=0)
        if opts: self.o.update(opts)
        self.a = Asm()

    def stamp(self, idx):
        if not self.prof: return
        a = self.a
        a(f"s_memrealtime {self.sT64}")
        a("s_waitcnt lgkmcnt(0)")
        a(f"v_writelane_b32 {self.vProf}, {self.sT64[0]}, {idx}")

    def stamp_dyn(self, sidx):
        if not self.prof: return
        a = self.a
        a(f"s_memrealtime {self.sT64}")
        a("s_waitcnt lgkmcnt(0)")
        a(f"s_mov_b32 m0, {sidx}")
        a(f"s_nop 3")
        a(f"v_writelane_b32 {self.vProf}, {self.sT64[0]}, m0")

    def prof_store(self, wave_sgpr, bias):
        if not self.prof: return
        a = self.a
        a(f"s_mul_i32 {self.sT64[0]}, s2, 12")
        a(f"s_add_u32 {self.sT64[0]}, {self.sT64[0]}, {wave_sgpr}")
        a(f"s_add_u32 {self.sT64[0]}, {self.sT64[0]}, {bias}")
        a(f"s_lshl_b32 {self.sT64[0]}, {self.sT64[0]}, 8")
        a(f"s_add_u32 {self.sT64[0]}, {self.sT64[0]}, {PROF_OFF}")
        a(f"v_mbcnt_lo_u32_b32 v1, -1, 0")
        a(f"v_mbcnt_hi_u32_b32 v1, -1, v1")
        a(f"v_lshlrev_b32 v1, 2, v1")
        a(f"v_add_u32 v1, {self.sT64[0]}, v1")
        a(f"s_mov_b64 exec, -1")
        a(f"global_store_dword v1, {self.vProf}, s[30:31]")

    def lds_spin(self, off, target, vt, vzero, st):
        a = self.a
        L = a.newlabel('spin')
        Lx = a.newlabel('spinx')
        a.label(L)
        a(f"ds_read_b32 {vt}, {vzero} offset:{off}")
        a("s_waitcnt lgkmcnt(0)")
        a(f"v_readfirstlane_b32 {st}, {vt}")
        a(f"s_cmp_ge_u32 {st}, {target}")
        a(f"s_cbranch_scc1 {Lx}")
        a("s_sleep 1")
        a(f"s_branch {L}")
        a.label(Lx)

    def lds_arrive(self, off, vzero, vone):
        a = self.a
        a("s_mov_b64 exec, 1")
        a(f"ds_add_u32 {vzero}, {vone} offset:{off}")
        a("s_mov_b64 exec, -1")

    def srd(self, reg, src, n):
        a = self.a
        a(f"s_mov_b32 {reg[0]}, s{src}")
        a(f"s_mov_b32 {reg[1]}, s{src+1}")
        a(f"s_mov_b32 {reg[2]}, {n}")
        a(f"s_mov_b32 {reg[3]}, 0x00020000")

    def tags_from_nonce(self, sN, sT0, sTA1, sTB1):
        a = self.a
        a(f"s_and_b32 {sT0}, {sN}, 7")
        a(f"s_lshl_b32 {sT0}, {sT0}, 1")
        a(f"s_lshr_b32 {sTA1}, {sN}, 3")
        a(f"s_lshl_b32 {sTA1}, {sTA1}, 16")
        a(f"s_and_b32 {sTB1}, {sN}, 0xffff0000")

    def producer(self, sP):
        a = self.a
        V = Alloc('v', 2, 167)
        S = Alloc('s', 62, 96)
        vLane = Reg('v', 0)
        sOI = Reg('s', 40, 4); sIN = Reg('s', 36, 4); sAN = Reg('s', 48, 4); sWS = Reg('s', 56, 4)
        NS = 3
        vIn = [[V(f'in{r}{k}', 4) for k in range(2)] for r in range(NS)]
        vOut = [[V(f'out{r}{k}', 4) for k in range(2)] for r in range(NS)]
        vAng = [[V(f'ang{r}{k}', 2) for k in range(2)] for r in range(NS)]
        vZero = V('zero'); vOne = V('one'); vOffI = V('offi'); vOffA = V('offa')
        vRd = V('rd'); vCn = V('cn'); vSt = V('st'); vSlotA = V('slota'); vSlotB = V('slotb')
        vInv = V('inv'); vT0 = V('t0'); vT0m = V('t0m'); vTA1 = V('ta1'); vTB1 = V('tb1'); vt = V('t')
        vPCz = V('pcz'); vKey = V('key'); vOv = V('ov'); vM = V('m')
        m = V.mark()
        W = [V(f'w{i}', 2) for i in range(8)]
        BR = [V(f'br{i}', 2) for i in range(8)]
        Pa = [V(f'pa{i}') for i in range(8)]
        An = [V(f'an{i}') for i in range(8)]
        V.reset(m)
        Ln = [V(f'ln{i}', 4) for i in range(8)]
        Cn = [V(f'cnt{i}') for i in range(8)]
        vq = V('q', 4); ent = V('ent', 4); fl = [V('fl0'), V('fl1')]
        sNeg = S('neg625'); sMagic = S('magic'); sOffI = S('offi'); sOffA = S('offa'); so = S('so')
        st = S('st'); sStB = S('stb'); sFFFF = S('mffff'); sN = S('nonce'); sOvS = S('ovs'); sOvE = S('ove')
        sT0 = S('T0'); sTA1 = S('TA1'); sTB1 = S('TB1'); sE = S('e'); sLost = S('lost')
        sSave = S('save', 2)
        sm = [S(f'm{i}', 2) for i in range(6)]
        flg = self.o['ldflags']
        if self.o['pprio']: a(f"s_setprio {self.o['pprio']}")

        def issue_loads(r):
            q = r % NS
            for k in range(2):
                if k == 1: a(f"s_mov_b64 exec, {sSave}")
                a(f"s_add_u32 {so}, {sOffI}, {r*8000 + k*1024}")
                a(f"buffer_load_dwordx4 {vOut[q][k]}, {vOffI}, {sOI}, {so} offen {flg}")
                a(f"buffer_load_dwordx4 {vIn[q][k]}, {vOffI}, {sIN}, {so} offen {flg}")
                a(f"s_add_u32 {so}, {sOffA}, {r*4000 + k*512}")
                a(f"buffer_load_dwordx2 {vAng[q][k]}, {vOffA}, {sAN}, {so} offen {flg}")
                if k == 1: a("s_mov_b64 exec, -1")

        a(f"v_lshlrev_b32 {vOffI}, 4, {vLane}")
        a(f"s_mul_i32 {st}, {sP}, 2000")
        a(f"v_add_u32 {vOffI}, {st}, {vOffI}")
        a(f"v_lshrrev_b32 {vOffA}, 1, {vOffI}")
        a(f"s_mul_i32 {sOffI}, s2, 40000")
        a(f"s_mul_i32 {sOffA}, s2, 20000")
        M61 = (1 << 61) - 1
        a(f"s_mov_b32 {sSave[0]}, 0xffffffff")
        a(f"s_mov_b32 {sSave[1]}, 0x{M61 >> 32:x}")
        a("s_waitcnt lgkmcnt(0)")
        self.stamp(51)
        self.srd(sOI, 8, T * 4); self.srd(sIN, 6, T * 4); self.srd(sAN, 12, T * 2)
        issue_loads(0)
        issue_loads(1)
        self.srd(sWS, 30, WSB)
        self.stamp(53)
        a(f"v_mov_b32 {vZero}, 0")
        a(f"v_mov_b32 {vOne}, 1")
        a(f"s_movk_i32 {sNeg}, -625")
        a(f"s_mov_b32 {sMagic}, {MAGIC}")
        a(f"s_mov_b32 {sFFFF}, 0xffff")
        a(f"s_mov_b32 {sOvS}, 0")
        a(f"s_lshl_b32 {st}, {sP}, 8")
        a(f"v_lshlrev_b32 {vCn}, 2, {vLane}")
        a(f"v_add_u32 {vPCz}, {st}, {vCn}")
        a(f"ds_write_b32 {vPCz}, {vZero} offset:{PC}")
        a(f"v_lshrrev_b32 {vt}, 3, {vLane}")
        a(f"s_lshl_b32 {st}, {sP}, 6")
        a(f"v_add_u32 {vt}, {st}, {vt}")
        a(f"v_and_b32 {vSlotA}, 7, {vLane}")
        a(f"v_mul_u32_u24 {vRd}, {PBS}, {vt}")
        a(f"v_lshl_add_u32 {vRd}, {vSlotA}, 4, {vRd}")
        a(f"v_lshlrev_b32 {vCn}, 2, {vt}")
        a(f"v_lshlrev_b32 {vSt}, 15, {vt}")
        a(f"v_lshl_add_u32 {vSt}, {vSlotA}, 4, {vSt}")
        a(f"v_lshlrev_b32 {vSlotA}, 1, {vSlotA}")
        a(f"v_add_u32 {vSlotB}, 1, {vSlotA}")
        a(f"v_lshlrev_b32 {vKey}, 8, {vt}")
        a(f"v_add_u32 {vKey}, {vKey}, {vSlotA}")
        a(f"v_add_u32 {vKey}, 16, {vKey}")
        a(f"v_mov_b32 {vInv}, 0x{INVPRE:x}")
        a(f"s_lshl_b32 {sStB}, s2, 7")
        self.stamp(52)
        a("s_waitcnt lgkmcnt(0)")
        a("s_barrier")
        self.stamp(1)
        for r in range(R):
            q = r % NS
            if r + 2 < R: issue_loads(r + 2)
            if r > 0:
                self.lds_spin(S_CNT, 4 * r, vt, vZero, st)
            ny = 0
            seq = ['L0', 'L1']
            for rr in range(R):
                if rr + 2 < R: seq.append(f'L{rr+2}')
                if rr == r: break
                seq.append('St')
            pos = seq.index(f'L{r}')
            ny = sum(6 if x[0] == 'L' else 8 for x in seq[pos + 1:])
            a(f"s_waitcnt vmcnt({min(ny, 63)})")
            self.stamp(2 + 4 * r)
            for k in range(2):
                if k == 1: a(f"s_mov_b64 exec, {sSave}")
                I = [k * 4 + j for j in range(4)]
                o = [vOut[q][k][j] for j in range(4)]; n_ = [vIn[q][k][j] for j in range(4)]
                for j, i in enumerate(I): a(f"v_mul_hi_u32_u24 {BR[i][0]}, {sMagic}, {o[j]}")
                for j, i in enumerate(I): a(f"v_lshlrev_b32 {Pa[i]}, 2, {BR[i][0]}")
                for j, i in enumerate(I): a(f"ds_add_rtn_u32 {BR[i][1]}, {Pa[i]}, {vOne} offset:{PC}")
                for j, i in enumerate(I):
                    ang = vAng[q][k][j >> 1]
                    if j & 1: a(f"v_and_b32 {An[i]}, 0xffff0000, {ang}")
                    else: a(f"v_lshlrev_b32 {An[i]}, 16, {ang}")
                for j, i in enumerate(I): a(f"v_mul_f32 {An[i]}, 0x{INV2PI:x}, {An[i]}")
                for j, i in enumerate(I): a(f"v_mad_i32_i24 {W[i][0]}, {BR[i][0]}, {sNeg}, {o[j]}")
                for j, i in enumerate(I): a(f"v_fract_f32 {An[i]}, {An[i]}")
                for j, i in enumerate(I): a(f"v_lshl_or_b32 {W[i][0]}, {n_[j]}, 10, {W[i][0]}")
                for j, i in enumerate(I): a(f"v_cos_f32 {An[i]}, {An[i]}")
                for j, i in enumerate(I): a(f"v_mul_u32_u24 {Pa[i]}, {PBS}, {BR[i][0]}")
                for j, i in enumerate(I): a(f"v_cvt_f16_f32 {W[i][1]}, {An[i]}")
                if k == 1: a("s_mov_b64 exec, -1")
            for k in range(2):
                if k == 1: a(f"s_mov_b64 exec, {sSave}")
                I = [k * 4 + j for j in range(4)]
                a(f"s_waitcnt lgkmcnt({4 if k == 0 else 4})")
                for i in I: a(f"v_min_u32 {An[i]}, 16, {BR[i][1]}")
                for i in I: a(f"v_lshl_add_u32 {Pa[i]}, {An[i]}, 3, {Pa[i]}")
                for i in I: a(f"ds_write_b64 {Pa[i]}, {W[i]} offset:{PB}")
                if k == 0:
                    a(f"v_max3_u32 {vM}, {BR[0][1]}, {BR[1][1]}, {BR[2][1]}")
                    a(f"v_max_u32 {vM}, {vM}, {BR[3][1]}")
                else:
                    a(f"v_max3_u32 {vM}, {vM}, {BR[4][1]}, {BR[5][1]}")
                    a(f"v_max3_u32 {vM}, {vM}, {BR[6][1]}, {BR[7][1]}")
                    a("s_mov_b64 exec, -1")
            a(f"v_cmp_le_u32 vcc, 16, {vM}")
            Lo = f"p_ovf_{r}"
            a(f"s_cbranch_vccnz {Lo}")
            a.label(Lo + "_back")
            self.late.append((self._p_ovf, (Lo, W, BR, vOne, vZero, vt, vM, sSave, sOvS, sm[0])))
            a("s_waitcnt lgkmcnt(0)")
            self.lds_arrive(I_CNT, vZero, vOne)
            self.lds_spin(I_CNT, 4 * (r + 1), vt, vZero, st)
            self.stamp(3 + 4 * r)
            a(f"ds_read_b32 {vOv}, {vZero} offset:{OVF_CNT}")
            for it in range(8):
                a(f"ds_read_b32 {Cn[it]}, {vCn} offset:{PC + it*32}")
                a(f"ds_read_b128 {Ln[it]}, {vRd} offset:{PB + it*8*PBS}")
                if it == 5: a("s_waitcnt lgkmcnt(8)")
            if r == 0:
                Ln_ = a.newlabel('pn'); Lnx = a.newlabel('pnx')
                a.label(Ln_)
                a(f"ds_read_b32 {vt}, {vZero} offset:{NONCE}")
                a("s_waitcnt lgkmcnt(0)")
                a(f"v_readfirstlane_b32 {sN}, {vt}")
                a(f"s_cmp_lg_u32 {sN}, 0")
                a(f"s_cbranch_scc1 {Lnx}")
                a("s_sleep 1")
                a(f"s_branch {Ln_}")
                a.label(Lnx)
                self.tags_from_nonce(sN, sT0, sTA1, sTB1)
                a(f"v_mov_b32 {vT0}, {sT0}")
                a(f"v_or_b32 {vT0m}, 1, {vT0}")
                a(f"v_mov_b32 {vTA1}, {sTA1}")
                a(f"v_mov_b32 {vTB1}, {sTB1}")
            a("s_waitcnt lgkmcnt(0)")
            a(f"ds_write_b32 {vPCz}, {vZero} offset:{PC}")
            a(f"v_readfirstlane_b32 {sOvE}, {vOv}")
            a(f"v_max3_u32 {vM}, {Cn[0]}, {Cn[1]}, {Cn[2]}")
            a(f"v_max3_u32 {vt}, {Cn[3]}, {Cn[4]}, {Cn[5]}")
            a(f"v_max3_u32 {vM}, {vM}, {Cn[6]}, {Cn[7]}")
            a(f"v_max_u32 {vM}, {vM}, {vt}")
            a(f"v_cmp_lt_u32 vcc, 16, {vM}")
            Lrare = f"p_rare_{r}"; Lback = f"p_back_{r}"
            a(f"s_cbranch_vccnz {Lrare}")
            a.label(Lback)
            a(f"s_mov_b32 {sOvS}, {sOvE}")
            self.lds_arrive(S_CNT, vZero, vOne)
            a(f"s_add_u32 {so}, {sStB}, {(r*256) << 15}")
            for i2 in range(4):
                P = [2 * i2, 2 * i2 + 1]
                for h, it in enumerate(P):
                    c = Cn[it]
                    a(f"v_cmp_lt_u32 {sm[3*h]}, 16, {c}")
                    a(f"v_cmp_lt_u32 {sm[3*h+1]}, {vSlotA}, {c}")
                    a(f"v_cmp_lt_u32 {sm[3*h+2]}, {vSlotB}, {c}")
                for h, it in enumerate(P):
                    L = Ln[it]
                    a(f"v_and_or_b32 {L[1]}, {L[1]}, {sFFFF}, {vTA1}")
                    a(f"v_and_or_b32 {L[3]}, {L[3]}, {sFFFF}, {vTB1}")
                for h, it in enumerate(P):
                    L = Ln[it]
                    a(f"v_cndmask_b32 {fl[h]}, {vT0}, {vT0m}, {sm[3*h]}")
                    a(f"v_cndmask_b32 {L[0]}, {vInv}, {L[0]}, {sm[3*h+1]}")
                    a(f"v_cndmask_b32 {L[2]}, {vInv}, {L[2]}, {sm[3*h+2]}")
                for h, it in enumerate(P):
                    L = Ln[it]
                    a(f"v_lshl_or_b32 {L[0]}, {L[0]}, 4, {fl[h]}")
                    a(f"v_lshl_or_b32 {L[2]}, {L[2]}, 4, {vT0}")
                for h, it in enumerate(P):
                    a(f"buffer_store_dwordx4 {Ln[it]}, {vSt}, {sWS}, {so} offen sc1")
                    if it < 7: a(f"s_add_u32 {so}, {so}, {8 << 15}")
            self.stamp(4 + 4 * r)
            self.late.append((self._p_rare, (r, Lrare, Lback, Cn, vq, ent, vSt, vSlotA, vSlotB, vInv, vT0, vT0m,
                                             vTA1, vTB1, sFFFF, sStB, so, sm, st, sWS, vKey, vt, vM, sOvS, sOvE,
                                             sE, sLost, vZero)))
        self.prof_store(sP, 8)
        a("s_endpgm")

    def _p_ovf(self, Lo, W, BR, vOne, vZero, vt, vM, sSave, sOvS, sx):
        a = self.a
        a.label(Lo)
        for i in range(8):
            Ls = a.newlabel('po')
            a(f"v_cmp_le_u32 vcc, 16, {BR[i][1]}")
            if i >= 4: a(f"s_and_b64 vcc, vcc, {sSave}")
            a(f"s_cbranch_vccz {Ls}")
            a(f"s_mov_b64 exec, vcc")
            a(f"ds_add_rtn_u32 {vt}, {vZero}, {vOne} offset:{OVF_CNT}")
            a(f"v_min_u32 {vM}, 255, {BR[i][1]}")
            a(f"v_lshl_or_b32 {vM}, {BR[i][0]}, 8, {vM}")
            a("s_waitcnt lgkmcnt(0)")
            a(f"v_subrev_u32 {BR[i][1]}, {sOvS}, {vt}")
            a(f"v_and_b32 {vt}, 63, {vt}")
            a(f"v_cmp_gt_u32 vcc, 64, {BR[i][1]}")
            a(f"v_lshlrev_b32 {vt}, 4, {vt}")
            a(f"s_and_b64 exec, exec, vcc")
            a(f"ds_write_b64 {vt}, {W[i]} offset:{OVF}")
            a(f"ds_write_b32 {vt}, {vM} offset:{OVF + 8}")
            a(f"s_mov_b64 exec, -1")
            a.label(Ls)
        a(f"s_branch {Lo}_back")

    def _p_rare(self, r, Lrare, Lback, Cn, vq, ent, vSt, vSlotA, vSlotB, vInv, vT0, vT0m, vTA1, vTB1, sFFFF,
                sStB, so, sm, st, sWS, vKey, vt, vM, sOvS, sOvE, sE, sLost, vZero):
        a = self.a
        a.label(Lrare)
        a(f"s_sub_u32 {st}, {sOvE}, {sOvS}")
        a(f"s_cmp_gt_u32 {st}, 64")
        a(f"s_cselect_b32 {sLost}, -1, 0")
        for it in range(8):
            c = Cn[it]
            Ls = a.newlabel('prs')
            a(f"v_cmp_lt_u32 vcc, 16, {c}")
            a(f"s_cbranch_vccz {Ls}")
            a(f"s_mov_b64 exec, vcc")
            a(f"v_mov_b32 {vq[0]}, {vInv}")
            a(f"v_mov_b32 {vq[1]}, 0")
            a(f"v_mov_b32 {vq[2]}, {vInv}")
            a(f"v_mov_b32 {vq[3]}, 0")
            a(f"v_add_u32 {vt}, {it*8*256}, {vKey}")
            a(f"s_mov_b32 {sE}, {sOvS}")
            a(f"s_add_u32 {st}, {sOvS}, 64")
            a(f"s_min_u32 {st}, {st}, {sOvE}")
            Ll = a.newlabel('prl'); Lx = a.newlabel('prx')
            a.label(Ll)
            a(f"s_cmp_ge_u32 {sE}, {st}")
            a(f"s_cbranch_scc1 {Lx}")
            a(f"s_and_b32 {so}, {sE}, 63")
            a(f"s_lshl_b32 {so}, {so}, 4")
            a(f"v_mov_b32 {vM}, {so}")
            a(f"ds_read_b128 {ent}, {vM} offset:{OVF}")
            a("s_waitcnt lgkmcnt(0)")
            a(f"v_cmp_eq_u32 {sm[0]}, {ent[2]}, {vt}")
            a(f"v_subrev_u32 {ent[2]}, 1, {ent[2]}")
            a(f"v_cmp_eq_u32 {sm[1]}, {ent[2]}, {vt}")
            a(f"s_add_u32 {sE}, {sE}, 1")
            a(f"v_cndmask_b32 {vq[0]}, {vq[0]}, {ent[0]}, {sm[0]}")
            a(f"v_cndmask_b32 {vq[1]}, {vq[1]}, {ent[1]}, {sm[0]}")
            a(f"v_cndmask_b32 {vq[2]}, {vq[2]}, {ent[0]}, {sm[1]}")
            a(f"v_cndmask_b32 {vq[3]}, {vq[3]}, {ent[1]}, {sm[1]}")
            a(f"s_branch {Ll}")
            a.label(Lx)
            a(f"v_cmp_lt_u32 vcc, 32, {c}")
            a(f"s_cmp_lg_u32 {sLost}, 0")
            a(f"s_cselect_b64 {sm[0]}, exec, vcc")
            a(f"v_cndmask_b32 {vM}, {vT0}, {vT0m}, {sm[0]}")
            a(f"v_lshl_or_b32 {vq[0]}, {vq[0]}, 4, {vM}")
            a(f"v_lshl_or_b32 {vq[2]}, {vq[2]}, 4, {vT0}")
            a(f"v_and_or_b32 {vq[1]}, {vq[1]}, {sFFFF}, {vTA1}")
            a(f"v_and_or_b32 {vq[3]}, {vq[3]}, {sFFFF}, {vTB1}")
            a(f"s_add_u32 {so}, {sStB}, {((r*256 + it*8) << 15) + TUP2}")
            a(f"buffer_store_dwordx4 {vq}, {vSt}, {sWS}, {so} offen sc1")
            a("s_nop 1")
            a(f"s_mov_b64 exec, -1")
            a.label(Ls)
        a(f"s_branch {Lback}")

    def vm_issue(self, tag):
        self.a.lines.append(f"; @ISSUE {tag}")

    def vm_wait(self, tag):
        self.a.lines.append(f"; @WAIT {tag}")

    def resolve_vm(self, start, end):
        lines = self.a.lines
        idx = list(range(start, end))
        n = len(idx)
        for pos, i in enumerate(idx):
            l = lines[i]
            if l.startswith("; @WAIT"):
                tag = l.split()[2]
                cnt = 0; found = False
                for back in range(1, n + 1):
                    ll = lines[idx[(pos - back) % n]]
                    if ll.startswith("; @ISSUE"):
                        if ll.split()[2] == tag:
                            found = True; break
                        cnt += 1
                assert found, tag
                lines[i] = f"s_waitcnt vmcnt({min(cnt, 63)})"

    def consumer(self, sCw):
        a = self.a
        o = self.o
        V = Alloc('v', 2, 167)
        S = Alloc('s', 62, 96)
        vLane = Reg('v', 0)
        sM = Reg('s', 32, 4); sDI = Reg('s', 44, 4); sOUT = Reg('s', 52, 4); sWS = Reg('s', 56, 4)
        sOI = Reg('s', 40, 4); sIN = Reg('s', 36, 4); sAN = Reg('s', 48, 4)
        pCEN = Reg('s', 14, 2); pWR = Reg('s', 18, 2); pWS = Reg('s', 20, 2)
        pWD = Reg('s', 22, 2); pWU = Reg('s', 24, 2); pDBG = Reg('s', 28, 2)
        acc = [[V(f'acc{j}{l}', 4) for l in range(2)] for j in range(5)]
        rows = [V(f'row{i}', 4) for i in range(8)]
        X = [V(f'x{i}', 4) for i in range(4)]
        D1 = [V(f'd1{i}', 4) for i in range(2)]
        Bq = [[V(f'b{s}{l}', 4) for l in range(2)] for s in range(2)]
        Wa = V('wa', 4); Wb = V('wb', 4)
        rbfB = [V(f'rbf{j}', 2) for j in range(5)]
        Aop = [V(f'aop{i}', 2) for i in range(4)]
        vT = V('tup', 2)
        vIdx = V('idx'); vOff = V('off'); vTau = [V(f'tau{b}') for b in range(3)]; vHalf = V('half16')
        vIdxC = V('idxc'); vIdxN = V('idxn'); vTupC = V('tupc'); vTupN = V('tupn')
        vAddr = V('addr'); vC16 = V('c16'); vK = V('k'); vShift = V('shift'); vBrd = V('brd')
        vLine = V('line'); vLineP = V('linep'); vZero = V('zero'); vOne = V('one'); v784 = V('c784')
        vCntA = V('cnta'); vC = V('c'); vMoff = V('moff')
        self.cv_high = V.high
        tt = [D1[0][i] for i in range(4)] + [D1[1][i] for i in range(4)]
        sv2 = [V('sx0'), V('sx1')]
        tt = tt + sv2
        sCnt = [S(f'cnt{j}') for j in range(5)]
        sCntN = [S(f'cntn{j}') for j in range(5)]
        sIt = S('it'); st = S('st'); st2 = S('st2')
        sT0 = S('T0'); sTA1 = S('TA1'); sTB1 = S('TB1')
        sMaskHi = S('maskhi'); s0E = S('m0e'); sF0 = S('mf0')
        sNot31 = S('not31'); sCCi = S('cci'); sCBi = S('cbi'); sD = S('d'); sNext = S('next')
        sPoff = S('poff'); sSoff = S('soff'); sRet = S('ret'); sLim = S('lim')
        sFail = Reg('s', 61); sPoll = Reg('s', 97)
        sMore = [Reg('s', 4 + 2 * k, 2) for k in range(4)]
        sSave = Reg('s', 12, 2); sTarget = Reg('s', 16); sE0 = Reg('s', 17)
        self.c = dict(T0=sT0, TA1=sTA1, TB1=sTB1, MaskHi=sMaskHi, s0E=s0E, Lim=sLim, st=Reg('s', 96), vZero=vZero,
                      vOne=vOne, v784=v784, sCCi=sCCi, sCBi=sCBi, sFail=sFail, sPoll=sPoll, sWS=sWS, vLine=vLine,
                      sSoff=sSoff, tt=tt, X=X, sMore=sMore, sRet=sRet)
        if o['cprio']: a(f"s_setprio {o['cprio']}")
        t0, t1, t2, t3 = tt[4], tt[5], tt[6], tt[7]
        a(f"v_and_b32 {t0}, 15, {vLane}")
        a(f"v_lshrrev_b32 {t1}, 4, {vLane}")
        a(f"v_lshrrev_b32 {t2}, 2, {t0}")
        a(f"v_lshlrev_b32 {t2}, 3, {t2}")
        a(f"v_and_b32 {t3}, 3, {t0}")
        a(f"v_add_u32 {vTau[0]}, {t2}, {t3}")
        a(f"v_lshrrev_b32 {t3}, 5, {vLane}")
        a(f"v_lshl_add_u32 {vTau[0]}, {t3}, 2, {vTau[0]}")
        a(f"v_add_u32 {vTau[1]}, 32, {vTau[0]}")
        a(f"v_add_u32 {vTau[2]}, 64, {vTau[0]}")
        a(f"v_lshlrev_b32 {vShift}, 4, {t3}")
        a(f"v_and_b32 {t3}, 1, {t1}")
        a(f"v_lshlrev_b32 {vHalf}, 4, {t3}")
        a(f"v_mov_b32 {vZero}, 0")
        a(f"v_mov_b32 {vOne}, 1")
        a("s_waitcnt lgkmcnt(0)")
        self.stamp(51)
        self.srd(sM, 4, E * 32); self.srd(sDI, 10, E * 2); self.srd(sWS, 30, WSB); self.srd(sOUT, 26, E * 32)
        self.srd(sOI, 8, T * 4); self.srd(sIN, 6, T * 4); self.srd(sAN, 12, T * 2)
        sN = st2
        nv = X[3]
        Lnn = a.newlabel('nn')
        a(f"s_cmp_lg_u32 {sCw}, 0")
        a(f"s_cbranch_scc1 {Lnn}")
        a(f"s_and_b32 {st}, s2, 31")
        a(f"s_cmp_lg_u32 {st}, 0")
        a(f"s_cbranch_scc1 {Lnn}")
        a(f"s_memrealtime {sSave}")
        a("s_waitcnt lgkmcnt(0)")
        a(f"s_or_b32 {st}, {sSave[0]}, 1")
        a(f"v_mov_b32 {nv[0]}, {st}")
        a(f"v_mov_b32 {nv[1]}, 0")
        a("s_mov_b64 exec, 1")
        a(f"global_atomic_cmpswap {nv[2]}, {vZero}, {nv[0:2]}, {pDBG} sc0 sc1")
        a("s_mov_b64 exec, -1")
        a.label(Lnn)
        wraw = [rows[j >> 2][j & 3] for j in range(8)]
        a(f"v_lshlrev_b32 {t2}, 4, {vHalf}")
        a(f"v_lshl_add_u32 {t2}, {t0}, 1, {t2}")
        for j in range(8):
            a(f"global_load_ushort {wraw[j]}, {t2}, {pWD} offset:{j*32}")
        a(f"s_mul_i32 {sE0}, s2, 625")
        a(f"s_mul_i32 {st}, {sCw}, 80")
        a(f"s_add_u32 {sE0}, {sE0}, {st}")
        a(f"v_add_u32 {t3}, {sE0}, {t0}")
        a(f"v_lshlrev_b32 {vMoff}, 5, {t3}")
        a(f"v_lshl_add_u32 {vMoff}, {t1}, 3, {vMoff}")
        a(f"v_lshlrev_b32 {t3}, 1, {t3}")
        dd = [rows[2][0], rows[2][1], rows[2][2], rows[2][3], rows[3][0]]
        for j in range(5):
            a(f"buffer_load_ushort {dd[j]}, {t3}, {sDI}, 0 offen offset:{j*32}")
        cen = rows[4]
        a(f"v_lshlrev_b32 {t3}, 3, {t1}")
        a(f"v_and_b32 {t3}, 8, {t3}")
        for j in range(4):
            a(f"global_load_ushort {cen[j]}, {t3}, {pCEN} offset:{j*2}")
        raw = [rows[5 + (i >> 2)][i & 3] for i in range(12)] + [X[2][i] for i in range(4)]
        a(f"v_and_b32 {t3}, 1, {t1}")
        a(f"v_lshlrev_b32 {t3}, 8, {t3}")
        a(f"v_lshl_add_u32 {t3}, {t0}, 1, {t3}")
        for jj in range(4):
            a(f"global_load_ushort {raw[jj]}, {t3}, {pWS} offset:{jj*64}")
            a(f"global_load_ushort {raw[4 + jj]}, {t3}, {pWS} offset:{jj*64 + 32}")
        a(f"v_and_b32 {t3}, 1, {t1}")
        a(f"v_lshlrev_b32 {t3}, 7, {t3}")
        a(f"v_lshl_add_u32 {t3}, {t0}, 1, {t3}")
        for jj in range(4):
            a(f"global_load_ushort {raw[8 + jj]}, {t3}, {pWR} offset:{jj*32}")
        a(f"v_lshlrev_b32 {t3}, 7, {t1}")
        a(f"v_lshl_add_u32 {t3}, {t0}, 1, {t3}")
        for jj in range(4):
            a(f"global_load_ushort {raw[12 + jj]}, {t3}, {pWU} offset:{jj*32}")
        self.stamp(53)
        a(f"s_lshl_b32 {st}, {sCw}, 10")
        a(f"v_lshlrev_b32 {t3}, 4, {vLane}")
        a(f"v_add_u32 {t3}, {st}, {t3}")
        z = X[0]
        for i in range(4): a(f"v_mov_b32 {z[i]}, 0")
        ZB = LDS_END - STG
        nfull = ZB // 8192
        a(f"v_add_u32 {t3}, {STG}, {t3}")
        for i in range(nfull):
            a(f"ds_write_b128 {t3}, {z} offset:{(i & 3) * 8192}")
            if (i & 3) == 3: a(f"v_add_u32 {t3}, {4*8192}, {t3}")
        rem_off = (nfull & 3) * 8192
        a(f"v_cmp_gt_u32 vcc, {LDS_END - rem_off}, {t3}")
        a(f"s_and_saveexec_b64 {sSave}, vcc")
        Lz = a.newlabel('cz')
        a(f"s_cbranch_execz {Lz}")
        a(f"ds_write_b128 {t3}, {z} offset:{rem_off}")
        a.label(Lz)
        a(f"s_mov_b64 exec, {sSave}")
        Lz2 = a.newlabel('cz')
        a(f"s_cmp_lg_u32 {sCw}, 0")
        a(f"s_cbranch_scc1 {Lz2}")
        a(f"v_lshlrev_b32 {t3}, 3, {vLane}")
        a(f"ds_write_b64 {t3}, {z[0:2]} offset:0")
        a(f"s_mov_b64 exec, 15")
        a(f"ds_write_b64 {t3}, {z[0:2]} offset:512")
        a(f"s_mov_b64 exec, -1")
        a.label(Lz2)
        a(f"s_mul_i32 {st}, {sCw}, {5*GS}")
        a(f"s_add_u32 {st}, {st}, {CB}")
        a(f"v_lshlrev_b32 {vIdxC}, 3, {vTau[0]}")
        a(f"v_add_u32 {vIdxC}, {st}, {vIdxC}")
        a(f"v_add_u32 {vIdxN}, {CBS}, {vIdxC}")
        a(f"v_and_b32 {t2}, 31, {vLane}")
        a(f"v_lshlrev_b32 {vTupC}, 3, {t2}")
        a(f"v_add_u32 {vTupC}, {st}, {vTupC}")
        a(f"v_add_u32 {vTupN}, {CBS}, {vTupC}")
        a(f"s_lshl_b32 {st}, {sCw}, 11")
        a(f"s_add_u32 {st}, {st}, {STG}")
        a(f"v_lshlrev_b32 {vBrd}, 4, {vLane}")
        a(f"v_add_u32 {vBrd}, {st}, {vBrd}")
        a(f"v_lshrrev_b32 {t3}, 3, {t2}")
        a(f"v_lshlrev_b32 {vK}, 8, {t3}")
        a(f"v_and_b32 {t3}, 7, {t2}")
        a(f"v_lshl_add_u32 {vK}, {t3}, 1, {vK}")
        a(f"v_lshl_add_u32 {vK}, {vShift}, 6, {vK}")
        a(f"v_add_u32 {vK}, {st}, {vK}")
        a(f"v_mov_b32 {v784}, {GS}")
        a(f"s_lshl_b32 {st}, {sCw}, 12")
        a(f"v_lshlrev_b32 {vLine}, 4, {vLane}")
        a(f"v_add_u32 {vLine}, {st}, {vLine}")
        a(f"v_mov_b32 {vLineP}, {vLine}")
        a(f"v_min_u32 {vCntA}, 4, {vLane}")
        a(f"s_mul_i32 {st}, {sCw}, 5")
        a(f"v_add_u32 {vCntA}, {st}, {vCntA}")
        a(f"v_lshlrev_b32 {vCntA}, 2, {vCntA}")
        for j in range(5):
            for l in range(2):
                for i in range(4): a(f"v_mov_b32 {acc[j][l][i]}, 0")
        a(f"s_mov_b32 {sMaskHi}, 0xffff0000")
        a(f"s_mov_b32 {s0E}, 14")
        a(f"s_mov_b32 {sF0}, 0xf0")
        a(f"s_mov_b32 {sNot31}, 0x{o['gmask']:x}")
        a(f"s_mov_b32 {sLim}, 0x{LIM:x}")
        a(f"s_mov_b32 {sFail}, {1 if o['force_fail'] else 0}")
        self.stamp(52)
        a("s_waitcnt lgkmcnt(0)")
        a("s_barrier")
        self.stamp(1)
        Lw = a.newlabel('nw'); Ld = a.newlabel('nd'); Lp = a.newlabel('np'); Lpl = a.newlabel('npl')
        a(f"s_cmp_lg_u32 {sCw}, 0")
        a(f"s_cbranch_scc1 {Lw}")
        a(f"s_and_b32 {st}, s2, 31")
        a(f"s_cmp_lg_u32 {st}, 0")
        a(f"s_cbranch_scc1 {Lp}")
        a("s_waitcnt vmcnt(0)")
        a(f"v_readfirstlane_b32 {sN}, {nv[2]}")
        a(f"v_readfirstlane_b32 {st}, {nv[0]}")
        a(f"s_cmp_eq_u32 {sN}, 0")
        a(f"s_cselect_b32 {sN}, {st}, {sN}")
        a(f"s_branch {Lpl}")
        a.label(Lp)
        a(f"s_mov_b32 {sPoll}, 0")
        Lq = a.newlabel('nq')
        a.label(Lq)
        a("s_mov_b64 exec, 1")
        a(f"global_load_dword {nv[2]}, {vZero}, {pDBG} sc0 sc1")
        a("s_mov_b64 exec, -1")
        a("s_waitcnt vmcnt(0)")
        a(f"v_readfirstlane_b32 {sN}, {nv[2]}")
        a(f"s_cmp_lg_u32 {sN}, 0")
        a(f"s_cbranch_scc1 {Lpl}")
        a(f"s_add_u32 {sPoll}, {sPoll}, 1")
        a(f"s_cmp_lt_u32 {sPoll}, {o['poll_max']}")
        a(f"s_cbranch_scc1 {Lq}")
        a(f"s_mov_b32 {sN}, 1")
        a(f"s_mov_b32 {sFail}, 1")
        a.label(Lpl)
        a(f"v_mov_b32 {nv[2]}, {sN}")
        a("s_mov_b64 exec, 1")
        a(f"ds_write_b32 {vZero}, {nv[2]} offset:{NONCE}")
        a("s_mov_b64 exec, -1")
        a(f"s_branch {Ld}")
        a.label(Lw)
        Lw2 = a.newlabel('nw2')
        a(f"s_mov_b32 {sN}, 0")
        a.label(Ld)
        a("s_waitcnt vmcnt(0)")
        wtmp = X[0]
        for i in range(4):
            a(f"v_lshl_or_b32 {wtmp[i]}, {wraw[2*i+1]}, 16, {wraw[2*i]}")
        a(f"v_cmp_gt_u32 vcc, 32, {vLane}")
        for i in range(4):
            a(f"v_cndmask_b32 {Wa[i]}, 0, {wtmp[i]}, vcc")
        a(f"v_cmp_le_u32 vcc, 32, {vLane}")
        for i in range(4):
            a(f"v_cndmask_b32 {Wb[i]}, 0, {wtmp[i]}, vcc")
        for jj in range(4):
            a(f"v_lshlrev_b32 {raw[4+jj]}, 16, {raw[4+jj]}")
        for jj in range(4):
            a(f"v_add_f32 {raw[4+jj]}, {raw[4+jj]}, {raw[4+jj]}")
        for jj in range(4):
            a(f"v_lshrrev_b32 {raw[4+jj]}, 16, {raw[4+jj]}")
        for x in range(4):
            for h in range(2):
                a(f"v_lshl_or_b32 {Aop[x][h]}, {raw[4*x + 2*h + 1]}, 16, {raw[4*x + 2*h]}")
        for i in range(4): a(f"v_lshlrev_b32 {cen[i]}, 16, {cen[i]}")
        a(f"v_cmp_gt_u32 {sSave}, 32, {vLane}")
        for j in range(5):
            self.rbf_operand(dd[j], cen, rbfB[j], tt, sSave)
        Lhave = a.newlabel('nh')
        a(f"s_cmp_lg_u32 {sN}, 0")
        a(f"s_cbranch_scc1 {Lhave}")
        a.label(Lw2)
        a(f"ds_read_b32 {tt[0]}, {vZero} offset:{NONCE}")
        a("s_waitcnt lgkmcnt(0)")
        a(f"v_readfirstlane_b32 {sN}, {tt[0]}")
        a(f"s_cmp_lg_u32 {sN}, 0")
        a(f"s_cbranch_scc1 {Lhave}")
        a("s_sleep 1")
        a(f"s_branch {Lw2}")
        a.label(Lhave)
        self.tags_from_nonce(sN, sT0, sTA1, sTB1)
        self.stamp(2)
        a(f"s_lshl_b32 {sPoff}, s2, 15")
        a(f"s_add_u32 {sSoff}, {sPoff}, {TUP2}")
        a(f"s_mov_b32 {sCCi}, {CC}")
        a(f"s_mov_b32 {sCBi}, {CB}")
        tf = o['tupflags']
        Lpp = a.newlabel('pp'); Lppx = a.newlabel('ppx')
        a(f"s_mov_b32 {sPoll}, 0")
        a(f"s_cmp_lg_u32 {sFail}, 0")
        a(f"s_cbranch_scc1 {Lppx}")
        a.label(Lpp)
        a(f"buffer_load_dwordx4 {X[3]}, {vLine}, {sWS}, {sPoff} offen offset:3072 {tf}")
        a("s_waitcnt vmcnt(0)")
        self.tagcheck(X[3])
        a(f"s_cbranch_vccz {Lppx}")
        a(f"s_add_u32 {sPoll}, {sPoll}, 1")
        a(f"s_cmp_lt_u32 {sPoll}, {o['poll_max']}")
        a("s_sleep 2")
        a(f"s_cbranch_scc1 {Lpp}")
        a(f"s_mov_b32 {sFail}, 1")
        a.label(Lppx)
        for k in range(4):
            a(f"buffer_load_dwordx4 {X[k]}, {vLine}, {sWS}, {sPoff} offen offset:{k*1024} {tf}")
        a("s_waitcnt vmcnt(0)")
        self.stamp(3)
        for k in range(4):
            self.primary_insert(k, 'pro')
            a(f"buffer_load_dwordx4 {X[k]}, {tt[8 + (k & 1)]}, {sWS}, {sSoff} offen offset:{k*1024} {tf}")
        a(f"s_mov_b32 {sRet}, 1")
        a("s_waitcnt vmcnt(0)")
        self.sec_check('c_sec_back_pro')
        a(f"s_mov_b32 {sRet}, 0")
        self.lds_arrive(CB_CNT, vZero, vOne)
        self.stamp(4)
        a(f"s_add_u32 {sPoff}, {sPoff}, {256 << 15}")
        a(f"s_add_u32 {sSoff}, {sSoff}, {256 << 15}")
        self.lds_spin(CB_CNT, 8, tt[0], vZero, st)
        self.read_counts_issue(vC, vCntA, CC, tt[0], dyn=None)
        ix = [Bq[1][0][i] for i in range(4)] + [Bq[1][1][i] for i in range(4)]
        for t in range(DG):
            a(f"ds_read_b32 {ix[t]}, {vIdxC} offset:{(t // 3)*GS + (t % 3)*256}")
        a(f"ds_read_b64 {vT}, {vTupC} offset:0")
        a("s_waitcnt lgkmcnt(0)")
        self.read_counts_use(vC, sCnt, sFail, st, st2)
        PL = o['pl']
        for t in range(DG):
            p = NSLOT - DG + t
            self.g_stage(ix[t], vOff, sNot31, vHalf, sCnt[t // 3], vTau[t % 3], rows[t % 8], sM)
            if p in PL:
                ks = [0, 1] if p == PL[0] else [2, 3]
                for k in ks:
                    a(f"buffer_load_dwordx4 {X[k]}, {vLineP}, {sWS}, {sPoff} offen offset:{k*1024} {tf}")
        self.s_stage(vT, vAddr, vC16, sF0, vK, vShift, vBrd, Bq[0], vZero)
        a(f"ds_read_b32 {vIdx}, {vIdxC} offset:{(DG // 3)*GS + (DG % 3)*256}")
        a(f"ds_read_b64 {vT}, {vTupC} offset:{256}")
        a(f"s_add_u32 {sPoff}, {sPoff}, {256 << 15}")
        a(f"s_mov_b32 {sCCi}, {CC + 160}")
        a(f"s_mov_b32 {sCBi}, {CB + CBS}")
        a(f"s_mov_b32 {sNext}, {CBS}")
        a(f"s_mov_b32 {sIt}, 0")
        self.stamp(5)

        Lloop = 'c_loop'
        a.label(Lloop)
        start = len(a.lines)
        PINS = {0: [0, 1], 1: [2, 3]}
        PSEC = o['psec']; PWAIT = o['pwait']
        for p in range(NSLOT):
            a.comment(f"---- slot {p}")
            real = p < NPOS
            j, blk = p // 3, p % 3
            a("s_waitcnt lgkmcnt(0)")
            if p == PWAIT + 1:
                self.read_counts_use(vC, sCntN, sFail, st, st2)
            rw = rows[p % 8]
            if real:
                Lsk1 = None
                if blk == 2:
                    Lsk1 = a.newlabel('sk1')
                    a(f"s_cmp_gt_u32 {sCnt[j]}, 64")
                    a(f"s_cbranch_scc0 {Lsk1}")
                self.vm_wait(f"G{p}")
                a(f"v_mfma_f32_16x16x32_bf16 {D1[0]}, {rw}, {Wa}, 0")
                a(f"v_mfma_f32_16x16x32_bf16 {D1[1]}, {rw}, {Wb}, 0")
                if Lsk1: a.label(Lsk1)
            if p == PWAIT:
                Lno = a.newlabel('nowait'); Lgo = a.newlabel('gowait')
                a(f"s_cmp_lt_i32 {sIt}, 4")
                a(f"s_cbranch_scc0 {Lno}")
                a(f"s_add_u32 {sTarget}, {sIt}, 2")
                a(f"s_lshl_b32 {sTarget}, {sTarget}, 3")
                self.lds_spin(CB_CNT, sTarget, vC, vZero, st)
                self.read_counts_issue(vC, vCntA, None, vAddr, dyn=sCCi)
                a(f"s_branch {Lgo}")
                a.label(Lno)
                a(f"v_mov_b32 {vC}, 0")
                a.label(Lgo)
            tgt = p + DG
            tq = tgt % NSLOT
            if tq < NPOS:
                cn = sCnt[tq // 3] if tgt < NSLOT else sCntN[tq // 3]
                self.g_stage(vIdx, vOff, sNot31, vHalf, cn, vTau[tq % 3], rows[tgt % 8], sM)
                self.vm_issue(f"G{tq}")
            nx = p + 1
            nq = nx % NSLOT
            if nq < NPOS:
                Lsk2 = None
                if nq % 3 == 2:
                    Lsk2 = a.newlabel('sk2')
                    a(f"s_cmp_gt_u32 {sCnt[nq // 3]}, 64")
                    a(f"s_cbranch_scc0 {Lsk2}")
                self.s_stage(vT, vAddr, vC16, sF0, vK, vShift, vBrd, Bq[nx & 1], vZero)
                if Lsk2: a.label(Lsk2)
            t2_ = tgt + 1
            q2 = t2_ % NSLOT
            if q2 < NPOS:
                base = vIdxC if t2_ < NSLOT else vIdxN
                a(f"ds_read_b32 {vIdx}, {base} offset:{(q2 // 3)*GS + (q2 % 3)*256}")
            s2_ = p + 2
            q2 = s2_ % NSLOT
            if q2 < NPOS:
                base = vTupC if s2_ < NSLOT else vTupN
                a(f"ds_read_b64 {vT}, {base} offset:{(q2 // 3)*GS + (q2 % 3)*256}")
            if p in PL:
                ks = [0, 1] if p == PL[0] else [2, 3]
                La = a.newlabel('pl'); Lb = a.newlabel('pl')
                a(f"s_cmp_eq_u32 {sIt}, 4")
                a(f"s_cbranch_scc1 {La}")
                for k in ks:
                    a(f"buffer_load_dwordx4 {X[k]}, {vLineP}, {sWS}, {sPoff} offen offset:{k*1024} {tf}")
                a(f"s_branch {Lb}")
                a.label(La)
                js = [0, 1] if p == PL[0] else [2, 3, 4]
                for jj in js:
                    a(f"buffer_load_dwordx2 {self.mrow(X, jj)}, {vMoff}, {sM}, 0 offen offset:{jj*512}")
                a.label(Lb)
                for k in ks: self.vm_issue(f"P{k}")
            if real:
                Lsk3 = None
                if blk == 2:
                    Lsk3 = a.newlabel('sk3')
                    a(f"s_cmp_gt_u32 {sCnt[j]}, 64")
                    a(f"s_cbranch_scc0 {Lsk3}")
                a(f"v_cvt_pk_bf16_f32 {rw[0]}, {D1[0][0]}, {D1[0][1]}")
                a(f"v_cvt_pk_bf16_f32 {rw[1]}, {D1[0][2]}, {D1[0][3]}")
                a(f"v_cvt_pk_bf16_f32 {rw[2]}, {D1[1][0]}, {D1[1][1]}")
                a(f"v_cvt_pk_bf16_f32 {rw[3]}, {D1[1][2]}, {D1[1][3]}")
                Bp = Bq[p & 1]
                a(f"v_mfma_f32_16x16x32_bf16 {acc[j][0]}, {rw}, {Bp[0]}, {acc[j][0]}")
                a(f"v_mfma_f32_16x16x32_bf16 {acc[j][1]}, {rw}, {Bp[1]}, {acc[j][1]}")
                if Lsk3: a.label(Lsk3)
            if p in PINS:
                Lsk = a.newlabel('noins')
                a(f"s_cmp_lt_i32 {sIt}, 4")
                a(f"s_cbranch_scc0 {Lsk}_a")
                for k in PINS[p]:
                    self.vm_wait(f"P{k}")
                    self.primary_insert(k, 'loop')
                Lgo = f"{Lsk}_b"
                a(f"s_branch {Lgo}")
                a.label(f"{Lsk}_a")
                for k in PINS[p]:
                    a(f"v_mov_b32 {tt[8 + (k & 1)]}, {OOB}")
                    a(f"s_mov_b64 {sMore[k]}, 0")
                a.label(Lgo)
                for k in PINS[p]:
                    a(f"buffer_load_dwordx4 {X[k]}, {tt[8 + (k & 1)]}, {sWS}, {sSoff} offen offset:{k*1024} {tf}")
                    self.vm_issue(f"S{k}")
            if p == PSEC:
                self.sec_check('c_sec_back')
                self.secwait = []
                for k in range(4):
                    self.vm_wait(f"S{k}"); self.secwait.append(len(a.lines) - 1)
                Lna = a.newlabel('noarr')
                a(f"s_cmp_lt_i32 {sIt}, 4")
                a(f"s_cbranch_scc0 {Lna}")
                self.lds_arrive(CB_CNT, vZero, vOne)
                a.label(Lna)
            if self.prof and p in (1, 5, 8, 14):
                slot = {1: 0, 5: 1, 8: 2, 14: 3}[p]
                a(f"s_lshl_b32 {st}, {sIt}, 2")
                a(f"s_add_u32 {st}, {st}, {8 + slot}")
                self.stamp_dyn(st)
        a(f"v_mov_b32 {vIdxC}, {vIdxN}")
        a(f"v_mov_b32 {vTupC}, {vTupN}")
        a(f"s_add_u32 {st}, {sNext}, {CBS}")
        a(f"s_cmp_eq_u32 {st}, {3*CBS}")
        a(f"s_cselect_b32 {st}, 0, {st}")
        a(f"s_sub_i32 {sD}, {st}, {sNext}")
        a(f"s_mov_b32 {sNext}, {st}")
        a(f"v_add_u32 {vIdxN}, {sD}, {vIdxN}")
        a(f"v_add_u32 {vTupN}, {sD}, {vTupN}")
        a(f"s_add_u32 {sCBi}, {sNext}, {CB}")
        a(f"s_add_u32 {sCCi}, {sCCi}, 160")
        a(f"s_cmp_eq_u32 {sCCi}, {CC + 480}")
        a(f"s_cselect_b32 {sCCi}, {CC}, {sCCi}")
        for jj in range(5):
            a(f"s_mov_b32 {sCnt[jj]}, {sCntN[jj]}")
        a(f"s_add_u32 {sPoff}, {sPoff}, {256 << 15}")
        a(f"s_add_u32 {sSoff}, {sSoff}, {256 << 15}")
        a(f"s_add_i32 {sIt}, {sIt}, 1")
        Lk = a.newlabel('keep')
        a(f"s_cmp_lt_i32 {sIt}, 3")
        a(f"s_cbranch_scc1 {Lk}")
        a(f"v_mov_b32 {vLineP}, {OOB}")
        a.label(Lk)
        a(f"s_cmp_le_i32 {sIt}, 4")
        a(f"s_cbranch_scc1 {Lloop}")
        end = len(a.lines)
        self.resolve_vm(start, end)
        secw = []
        for i in self.secwait:
            secw.append(a.lines[i]); a.lines[i] = "; (secondary wait moved out of line)"
        self.late.append((self._secondary, (secw,)))
        self.stamp(40)
        a("s_waitcnt vmcnt(0) lgkmcnt(0)")
        a(f"ds_read_b32 {tt[0]}, {vZero} offset:{FAIL}")
        a("s_waitcnt lgkmcnt(0)")
        a(f"v_readfirstlane_b32 {st}, {tt[0]}")
        a(f"s_or_b32 {sFail}, {sFail}, {st}")
        a(f"s_cmp_lg_u32 {sFail}, 0")
        a(f"s_cbranch_scc1 c_fallback")
        a.label("c_fb_back")
        self.late.append((self._fallback, (acc, rows, X, D1, Bq, Wa, Wb, vLane, vZero, vOne, vHalf, vTau, sE0, sCw,
                                            sOI, sIN, sAN, sM, st, st2, sSave, sMore, vMoff, pDBG, sIt, sD, sNext,
                                            vOff, vIdx, vAddr, vC16, vT)))
        self.epilogue(acc, X, D1, Bq, rbfB, Aop, tt, vLane, vMoff, sCw, sOUT, st, rows)
        self.stamp(41)
        self.prof_store(sCw, 0)
        a("s_endpgm")

    def mrow(self, X, j):
        return X[j >> 1][(j & 1) * 2:(j & 1) * 2 + 2]

    def g_stage(self, idx, vOff, sNot31, vHalf, cnt, tau, dst, sM):
        a = self.a
        a(f"v_cmp_gt_u32 vcc, {cnt}, {tau}")
        a(f"v_lshrrev_b32 {vOff}, 9, {idx}")
        a(f"v_and_or_b32 {vOff}, {vOff}, {sNot31}, {vHalf}")
        a(f"v_cndmask_b32 {vOff}, {OOB}, {vOff}, vcc")
        if self.o['gmode'] == 'oob': a(f"v_mov_b32 {vOff}, {OOB}")
        if self.o['gmode'] == 'none': a(f"s_nop 0")
        else: a(f"buffer_load_dwordx4 {dst}, {vOff}, {sM}, 0 offen")

    def s_stage(self, vT, vAddr, vC16, sF0, vK, vShift, vBrd, B, vZero):
        a = self.a
        a(f"v_and_or_b32 {vAddr}, {vT[0]}, {sF0}, {vK}")
        a(f"v_lshrrev_b32 {vC16}, {vShift}, {vT[1]}")
        a(f"ds_write_b16 {vAddr}, {vC16}")
        a(f"ds_read_b128 {B[0]}, {vBrd}")
        a(f"ds_read_b128 {B[1]}, {vBrd} offset:1024")
        a(f"ds_write_b16 {vAddr}, {vZero}")

    def read_counts_issue(self, vC, vCntA, static_cc, vt, dyn):
        a = self.a
        if dyn is None: a(f"v_add_u32 {vt}, {static_cc}, {vCntA}")
        else: a(f"v_add_u32 {vt}, {dyn}, {vCntA}")
        a(f"ds_read_b32 {vC}, {vt}")
        a("s_mov_b64 exec, 31")
        a(f"ds_write_b32 {vt}, {self.c['vZero']}")
        a("s_mov_b64 exec, -1")

    def read_counts_use(self, vC, dst, sFail, st, st2):
        a = self.a
        for jj in range(5):
            a(f"v_readlane_b32 {dst[jj]}, {vC}, {jj}")
        a(f"s_max_u32 {st}, {dst[0]}, {dst[1]}")
        a(f"s_max_u32 {st2}, {dst[2]}, {dst[3]}")
        a(f"s_max_u32 {st}, {st}, {dst[4]}")
        a(f"s_max_u32 {st}, {st}, {st2}")
        a(f"s_cmp_gt_u32 {st}, 96")
        a(f"s_cselect_b32 {st}, 1, 0")
        a(f"s_or_b32 {sFail}, {sFail}, {st}")
        for jj in range(5):
            a(f"s_min_u32 {dst[jj]}, {dst[jj]}, 96")

    def rbf_operand(self, d, cen, dst, tt, sQ):
        a = self.a
        t = [tt[0], tt[1], tt[2], tt[3]]; u = tt[4]; dv = tt[5]
        a(f"v_lshlrev_b32 {dv}, 16, {d}")
        for i in range(4): a(f"v_sub_f32 {t[i]}, {dv}, {cen[i]}")
        def rnd():
            for h in range(2):
                a(f"v_cvt_pk_bf16_f32 {u}, {t[2*h]}, {t[2*h+1]}")
                a(f"v_lshlrev_b32 {t[2*h]}, 16, {u}")
                a(f"v_and_b32 {t[2*h+1]}, 0xffff0000, {u}")
        rnd()
        for i in range(4): a(f"v_mul_f32 {t[i]}, {t[i]}, {t[i]}")
        rnd()
        for i in range(4): a(f"v_mul_f32 {t[i]}, 0xc1200000, {t[i]}")
        rnd()
        for i in range(4): a(f"v_mul_f32 {t[i]}, 0x3fb8aa3b, {t[i]}")
        for i in range(4): a(f"v_exp_f32 {t[i]}, {t[i]}")
        a(f"v_cvt_pk_bf16_f32 {dst[0]}, {t[0]}, {t[1]}")
        a(f"v_cvt_pk_bf16_f32 {dst[1]}, {t[2]}, {t[3]}")
        a(f"v_cndmask_b32 {dst[0]}, 0, {dst[0]}, {sQ}")
        a(f"v_cndmask_b32 {dst[1]}, 0, {dst[1]}, {sQ}")

    def tagcheck(self, x):
        a = self.a; c = self.c; tt = c['tt']
        a(f"v_xor_b32 {tt[6]}, {c['TA1']}, {x[1]}")
        a(f"v_xor_b32 {tt[7]}, {c['TB1']}, {x[3]}")
        a(f"v_bitop3_b32 {tt[0]}, {x[0]}, {x[2]}, {c['T0']} bitop3:0x7e")
        a(f"v_bitop3_b32 {tt[1]}, {tt[6]}, {tt[7]}, {c['MaskHi']} bitop3:0xa8")
        a(f"v_and_or_b32 {tt[0]}, {tt[0]}, {c['s0E']}, {tt[1]}")
        a(f"v_cmp_ne_u32 vcc, 0, {tt[0]}")

    def primary_insert(self, k, ctx):
        a = self.a; c = self.c; tt = c['tt']; X = c['X']
        Lchk = f"c_chk_{ctx}_{k}"; Lrp = f"c_rp_{ctx}_{k}"
        self.tagcheck(X[k])
        a(f"s_cbranch_vccnz {Lrp}")
        a.label(Lchk + "_ok")
        self.late.append((self._repoll, (k, Lrp, Lchk)))
        self.insert(X[k], more=(k,))

    def insert(self, x, sub=None, more=None):
        a = self.a; c = self.c; tt = c['tt']
        ex = sub if sub is not None else '-1'
        g = [tt[0], tt[1]]; rk = [tt[2], tt[3]]; c0 = [tt[4], tt[5]]; c1 = [tt[6], tt[7]]
        w0 = [x[0], x[2]]; w1 = [x[1], x[3]]
        sv = [Reg('s', 92 + 2 * h, 2) for h in range(2)]
        for h in range(2): a(f"v_cmp_gt_u32 {sv[h]}, {c['Lim']}, {w0[h]}")
        for h in range(2): a(f"v_bfe_u32 {g[h]}, {w0[h]}, 8, 6")
        for h in range(2): a(f"v_lshl_add_u32 {rk[h]}, {g[h]}, 2, {c['sCCi']}")
        for h in range(2):
            if sub is not None:
                a(f"s_and_b64 {sv[h]}, {sv[h]}, {sub}")
            a(f"s_mov_b64 exec, {sv[h]}")
            a(f"ds_add_rtn_u32 {rk[h]}, {rk[h]}, {c['vOne']}")
        a(f"s_mov_b64 exec, {ex}")
        for h in range(2): a(f"v_cvt_f32_f16 {c0[h]}, {w1[h]}")
        for h in range(2): a(f"v_fma_mix_f32 {c1[h]}, {w1[h]}, {w1[h]}, -0.5 op_sel_hi:[1,1,0]")
        for h in range(2): a(f"v_mad_u32_u24 {g[h]}, {g[h]}, {c['v784']}, {c['sCBi']}")
        for h in range(2): a(f"v_cvt_pk_bf16_f32 {w1[h]}, {c0[h]}, {c1[h]}")
        if more is not None:
            k = more[0]
            a(f"v_and_b32 {c0[0]}, 1, {x[0]}")
            a(f"v_cmp_ne_u32 vcc, 0, {c0[0]}")
            a(f"s_mov_b64 {c['sMore'][k]}, vcc")
            a(f"v_cndmask_b32 {tt[8 + (k & 1)]}, {OOB}, {c['vLine']}, vcc")
        a("s_waitcnt lgkmcnt(0)")
        for h in range(2): a(f"v_min_u32 {rk[h]}, 96, {rk[h]}")
        for h in range(2): a(f"v_lshl_add_u32 {g[h]}, {rk[h]}, 3, {g[h]}")
        for h in range(2):
            a(f"s_mov_b64 exec, {sv[h]}")
            a(f"ds_write_b64 {g[h]}, {Reg('v', w0[h].i, 2)}")
        a(f"s_mov_b64 exec, {ex}")

    def _repoll(self, k, Lrp, Lchk):
        a = self.a; c = self.c; tt = c['tt']; x = c['X'][k]
        a.label(Lrp)
        a(f"s_mov_b32 {c['sPoll']}, 0")
        L = a.newlabel('rpl'); Lto = a.newlabel('rpt')
        a(f"s_cmp_lg_u32 {c['sFail']}, 0")
        a(f"s_cbranch_scc1 {Lto}")
        a.label(L)
        a("s_sleep 1")
        a(f"s_sub_u32 {c['st']}, {c['sSoff']}, {TUP2}")
        a(f"buffer_load_dwordx4 {x}, {c['vLine']}, {c['sWS']}, {c['st']} offen offset:{k*1024} {self.o['tupflags']}")
        a("s_waitcnt vmcnt(0)")
        self.tagcheck(x)
        a(f"s_cbranch_vccz {Lchk}_ok")
        a(f"s_add_u32 {c['sPoll']}, {c['sPoll']}, 1")
        a(f"s_cmp_lt_u32 {c['sPoll']}, {self.o['poll_max']}")
        a(f"s_cbranch_scc1 {L}")
        a.label(Lto)
        a(f"s_mov_b32 {c['sFail']}, 1")
        a(f"ds_write_b32 {c['vZero']}, {c['vOne']} offset:{FAIL}")
        a(f"v_mov_b32 {tt[0]}, 0x{INV:x}")
        a(f"v_cndmask_b32 {x[0]}, {x[0]}, {tt[0]}, vcc")
        a(f"v_cndmask_b32 {x[2]}, {x[2]}, {tt[0]}, vcc")
        a(f"s_branch {Lchk}_ok")

    def sec_check(self, back):
        a = self.a; c = self.c; sMore = c['sMore']
        sx = Reg('s', 92, 2)
        a(f"s_or_b64 {sx}, {sMore[0]}, {sMore[1]}")
        a(f"s_or_b64 vcc, {sMore[2]}, {sMore[3]}")
        a(f"s_or_b64 {sx}, {sx}, vcc")
        a(f"s_cbranch_scc1 c_sec")
        a(f"s_cmp_lg_u32 {c['sFail']}, 0")
        a(f"s_cbranch_scc1 c_sec_pub")
        a.label(back)

    def _secondary(self, secw):
        a = self.a; c = self.c; tt = c['tt']; X = c['X']; sMore = c['sMore']; sFail = c['sFail']; sPoll = c['sPoll']
        a.label("c_sec")
        for k in range(4):
            Ln = a.newlabel('sn')
            a(f"s_cmp_eq_u64 {sMore[k]}, 0")
            a(f"s_cbranch_scc1 {Ln}")
            a(secw[k])
            a(f"s_mov_b64 exec, {sMore[k]}")
            a(f"s_mov_b32 {sPoll}, 0")
            Lc = a.newlabel('sc'); Lok = a.newlabel('sok')
            a.label(Lc)
            self.tagcheck(X[k])
            a(f"s_cbranch_vccz {Lok}")
            a(f"s_add_u32 {sPoll}, {sPoll}, 1")
            Lto = a.newlabel('sto')
            a(f"s_cmp_lg_u32 {sFail}, 0")
            a(f"s_cbranch_scc1 {Lto}")
            a(f"s_cmp_lt_u32 {sPoll}, {self.o['poll_max']}")
            a(f"s_cbranch_scc0 {Lto}")
            a("s_sleep 1")
            a(f"buffer_load_dwordx4 {X[k]}, {c['vLine']}, {c['sWS']}, {c['sSoff']} offen offset:{k*1024} {self.o['tupflags']}")
            a("s_waitcnt vmcnt(0)")
            a(f"s_branch {Lc}")
            a.label(Lto)
            a(f"s_mov_b32 {sFail}, 1")
            a(f"v_mov_b32 {tt[0]}, 0x{INV:x}")
            a(f"v_cndmask_b32 {X[k][0]}, {X[k][0]}, {tt[0]}, vcc")
            a(f"v_cndmask_b32 {X[k][2]}, {X[k][2]}, {tt[0]}, vcc")
            a.label(Lok)
            a(f"v_and_b32 {tt[0]}, 1, {X[k][0]}")
            a(f"v_cmp_ne_u32 vcc, 0, {tt[0]}")
            a(f"s_cmp_lg_u64 vcc, 0")
            a(f"s_cselect_b32 {c['st']}, 1, 0")
            a(f"s_or_b32 {sFail}, {sFail}, {c['st']}")
            self.insert(X[k], sub=sMore[k])
            a("s_mov_b64 exec, -1")
            a.label(Ln)
        a(f"s_cmp_eq_u32 {sFail}, 0")
        a(f"s_cbranch_scc1 c_sec_ret")
        a.label("c_sec_pub")
        a(f"ds_write_b32 {c['vZero']}, {c['vOne']} offset:{FAIL}")
        a.label("c_sec_ret")
        a(f"s_cmp_eq_u32 {c['sRet']}, 0")
        a(f"s_cbranch_scc1 c_sec_back")
        a(f"s_branch c_sec_back_pro")

    def _fallback(self, acc, rows, X, D1, Bq, Wa, Wb, vLane, vZero, vOne, vHalf, vTau, sE0, sCw, sOI, sIN, sAN, sM,
                  st, st2, sSave, sMore, vMoff, pDBG, sIt, sD, sNext, vOff, vIdx, vAddr, vC16, vT):
        a = self.a
        a.label("c_fallback")
        a(f"global_store_dword {vZero}, {vOne}, {pDBG} offset:16")
        for j in range(5):
            for l in range(2):
                for i in range(4): a(f"v_mov_b32 {acc[j][l][i]}, 0")
        sN = sIt
        sCh = sD
        sMask = sMore[0]; sLaneS = sNext; sLoc = Reg('s', 6); sTt = Reg('s', 7); sSel = sMore[2]; sSel2 = sMore[3]
        a(f"s_movk_i32 {sN}, 80")
        a(f"s_cmp_eq_u32 {sCw}, 7")
        a(f"s_cselect_b32 {sN}, 65, {sN}")
        a(f"s_mov_b32 {sCh}, 0")
        vL16 = vIdx; vI15 = vAddr
        a(f"v_lshlrev_b32 {vL16}, 4, {vLane}")
        a(f"v_and_b32 {vI15}, 15, {vLane}")
        for i in range(1, 4):
            a(f"v_mov_b32 {Bq[0][0][i]}, 0")
            a(f"v_mov_b32 {Bq[0][1][i]}, 0")
        a(f"v_cmp_eq_u32 {sSel}, 0, {vTau[0]}")
        Lc = "c_fb_chunk"
        a.label(Lc)
        a(f"buffer_load_dwordx4 {X[3]}, {vL16}, {sOI}, {sCh} offen")
        a("s_waitcnt vmcnt(0)")
        for cidx in range(4):
            Lh = f"c_fb_h{cidx}"; Ld = f"c_fb_d{cidx}"
            a(f"v_subrev_u32 {X[3][cidx]}, {sE0}, {X[3][cidx]}")
            a(f"v_cmp_gt_u32 {sMask}, {sN}, {X[3][cidx]}")
            a.label(Lh)
            a(f"s_cmp_eq_u64 {sMask}, 0")
            a(f"s_cbranch_scc1 {Ld}")
            a(f"s_ff1_i32_b64 {sLaneS}, {sMask}")
            a(f"s_bitset0_b64 {sMask}, {sLaneS}")
            a(f"s_nop 3")
            a(f"v_readlane_b32 {sLoc}, {X[3][cidx]}, {sLaneS}")
            a(f"s_lshl_b32 {sTt}, {sLaneS}, 4")
            a(f"s_add_u32 {sTt}, {sTt}, {sCh}")
            a(f"s_add_u32 {sTt}, {sTt}, {cidx*4}")
            a(f"v_mov_b32 {vOff}, {sTt}")
            a(f"v_lshrrev_b32 {vC16}, 1, {vOff}")
            a(f"buffer_load_dword {vT[0]}, {vOff}, {sIN}, 0 offen")
            a(f"buffer_load_ushort {vT[1]}, {vC16}, {sAN}, 0 offen")
            a("s_waitcnt vmcnt(0)")
            a(f"v_lshl_or_b32 {vOff}, {vT[0]}, 5, {vHalf}")
            a(f"v_cndmask_b32 {vOff}, {OOB}, {vOff}, {sSel}")
            a(f"buffer_load_dwordx4 {rows[0]}, {vOff}, {sM}, 0 offen")
            a(f"v_lshlrev_b32 {vT[1]}, 16, {vT[1]}")
            a(f"v_mul_f32 {vT[1]}, 0x{INV2PI:x}, {vT[1]}")
            a(f"v_fract_f32 {vT[1]}, {vT[1]}")
            a(f"v_cos_f32 {vT[1]}, {vT[1]}")
            a(f"s_and_b32 {st}, {sLoc}, 15")
            a(f"v_cmp_eq_u32 {sSel2}, {st}, {vLane}")
            a(f"v_fma_f32 {vT[0]}, {vT[1]}, {vT[1]}, -0.5")
            a(f"v_cvt_pk_bf16_f32 {vT[0]}, {vT[1]}, {vT[0]}")
            a(f"v_and_b32 {vT[1]}, 0xffff, {vT[0]}")
            a(f"v_lshrrev_b32 {vT[0]}, 16, {vT[0]}")
            a(f"v_cndmask_b32 {Bq[0][0][0]}, 0, {vT[1]}, {sSel2}")
            a(f"v_cndmask_b32 {Bq[0][1][0]}, 0, {vT[0]}, {sSel2}")
            a("s_waitcnt vmcnt(0)")
            rw = rows[0]
            a(f"v_mfma_f32_16x16x32_bf16 {D1[0]}, {rw}, {Wa}, 0")
            a(f"v_mfma_f32_16x16x32_bf16 {D1[1]}, {rw}, {Wb}, 0")
            a(f"v_cvt_pk_bf16_f32 {rw[0]}, {D1[0][0]}, {D1[0][1]}")
            a(f"v_cvt_pk_bf16_f32 {rw[1]}, {D1[0][2]}, {D1[0][3]}")
            a(f"v_cvt_pk_bf16_f32 {rw[2]}, {D1[1][0]}, {D1[1][1]}")
            a(f"v_cvt_pk_bf16_f32 {rw[3]}, {D1[1][2]}, {D1[1][3]}")
            a(f"s_lshr_b32 {st}, {sLoc}, 4")
            for j in range(5):
                Lj = a.newlabel('fbj')
                a(f"s_cmp_lg_u32 {st}, {j}")
                a(f"s_cbranch_scc1 {Lj}")
                a(f"v_mfma_f32_16x16x32_bf16 {acc[j][0]}, {rw}, {Bq[0][0]}, {acc[j][0]}")
                a(f"v_mfma_f32_16x16x32_bf16 {acc[j][1]}, {rw}, {Bq[0][1]}, {acc[j][1]}")
                a.label(Lj)
            a(f"s_branch {Lh}")
            a.label(Ld)
        a(f"s_add_u32 {sCh}, {sCh}, 1024")
        a(f"s_cmp_lt_u32 {sCh}, {T*4}")
        a(f"s_cbranch_scc1 {Lc}")
        for jj in range(5):
            a(f"buffer_load_dwordx2 {self.mrow(X, jj)}, {vMoff}, {sM}, 0 offen offset:{jj*512}")
        a("s_waitcnt vmcnt(0)")
        a("s_branch c_fb_back")

    def epilogue(self, acc, X, D1, Bq, rbfB, Aop, tt, vLane, vMoff, sCw, sOUT, st, rows):
        a = self.a
        A0, A1, AG, AU = Aop
        t0 = rows[7][0]; t1 = rows[7][1]
        a(f"v_and_b32 {t0}, 15, {vLane}")
        a(f"s_mul_i32 {st}, {sCw}, 80")
        a(f"v_add_u32 {t0}, {st}, {t0}")
        a(f"v_add_u32 {t0}, 64, {t0}")
        a(f"v_cmp_gt_u32 vcc, 625, {t0}")
        a(f"v_cndmask_b32 {t1}, {OOB}, {vMoff}, vcc")
        G0 = [rows[0], rows[1]]; G1 = [rows[2], rows[3]]; GT = [rows[4], rows[5]]; U = [D1[0], D1[1]]
        ag = [Bq[0][0][0:2], Bq[0][0][2:4]]
        mm = [Bq[0][1], Bq[1][0]]
        oo = [Bq[1][1][0:2], Bq[1][1][2:4]]

        def gm(j):
            s = j & 1
            a(f"v_mfma_f32_16x16x16_bf16 {G0[s]}, {A0}, {rbfB[j]}, 0")
            a(f"v_mfma_f32_16x16x16_bf16 {G1[s]}, {A1}, {rbfB[j]}, 0")
            a(f"v_mfma_f32_16x16x16_bf16 {GT[s]}, {AG}, {rbfB[j]}, 0")
        gm(0)
        for j in range(5):
            s = j & 1
            if j + 1 < 5: gm(j + 1)
            mrow = self.mrow(X, j)
            a(f"v_lshlrev_b32 {mm[s][0]}, 16, {mrow[0]}")
            a(f"v_and_b32 {mm[s][1]}, 0xffff0000, {mrow[0]}")
            a(f"v_lshlrev_b32 {mm[s][2]}, 16, {mrow[1]}")
            a(f"v_and_b32 {mm[s][3]}, 0xffff0000, {mrow[1]}")
            for i in range(4):
                a(f"v_mul_f32 {G0[s][i]}, {G0[s][i]}, {acc[j][0][i]}")
            for i in range(4):
                a(f"v_fma_f32 {G0[s][i]}, {G1[s][i]}, {acc[j][1][i]}, {G0[s][i]}")
            a(f"v_cvt_pk_bf16_f32 {ag[s][0]}, {G0[s][0]}, {G0[s][1]}")
            a(f"v_cvt_pk_bf16_f32 {ag[s][1]}, {G0[s][2]}, {G0[s][3]}")
            a(f"v_mfma_f32_16x16x16_bf16 {U[s]}, {AU}, {ag[s]}, 0")
            for i in range(4):
                a(f"v_fma_f32 {mm[s][i]}, {U[s][i]}, {GT[s][i]}, {mm[s][i]}")
            o = oo[s]
            a(f"v_cvt_pk_bf16_f32 {o[0]}, {mm[s][0]}, {mm[s][1]}")
            a(f"v_cvt_pk_bf16_f32 {o[1]}, {mm[s][2]}, {mm[s][3]}")
            off = t1 if j == 4 else vMoff
            a(f"buffer_store_dwordx2 {o}, {off}, {sOUT}, 0 offen offset:{j*512}")

    def kernel(self, label):
        a = self.a
        self.late = []
        self.Lend = label + '_end'
        self.sWave = Reg('s', 60); self.sT64 = Reg('s', 98, 2)
        self.vProf = Reg('v', 167)
        a.lines.append(f".globl {label}")
        a.lines.append(".p2align 8")
        a.lines.append(f".type {label},@function")
        a.label(label)
        a("s_cmp_ge_u32 s2, 256")
        a(f"s_cbranch_scc1 {self.Lend}")
        a("s_load_dwordx16 s[4:19], s[0:1], 0")
        a("s_load_dwordx8 s[20:27], s[0:1], 64")
        a("s_load_dwordx4 s[28:31], s[0:1], 96")
        if self.prof:
            a("s_memrealtime s[98:99]")
        a("v_lshrrev_b32 v1, 6, v0")
        a("v_and_b32 v0, 63, v0")
        a(f"v_readfirstlane_b32 {self.sWave}, v1")
        if self.prof:
            a("s_waitcnt lgkmcnt(0)")
            a("v_mov_b32 v167, 0")
            a("v_writelane_b32 v167, s98, 50")
        a(f"s_cmp_lt_u32 {self.sWave}, 8")
        a(f"s_cbranch_scc1 {label}_cons")
        a(f"s_sub_u32 {self.sWave}, {self.sWave}, 8")
        self.producer(self.sWave)
        a.label(f"{label}_cons")
        self.consumer(self.sWave)
        for fn, args in self.late: fn(*args)
        a.label(self.Lend)
        a("s_endpgm")

    def build(self):
        hdr = open('cdna_kernels/' + NAME + '.s.ref').read().split('\n')
        head = [l for l in hdr if l.startswith(';') and '@launch' not in l]
        out = list(head)
        K = NAME + '_kernel'
        out.append(f"; @launch grid=(256,1,1) block=(768,1,1) lds={LDS_END}")
        out.append('.amdgcn_target "amdgcn-amd-amdhsa--gfx950"')
        out.append('.text')
        self.kernel(K)
        body = self.a.finalize()
        print(f"{K}: {len(self.a.lines)} lines, nops {self.a.nops}", file=sys.stderr)
        out.append(body)
        out.append('.section .rodata,"a"')
        out.append(f""".p2align 6
.amdhsa_kernel {K}
  .amdhsa_next_free_vgpr 168
  .amdhsa_next_free_sgpr 102
  .amdhsa_accum_offset 168
  .amdhsa_group_segment_fixed_size 0
  .amdhsa_kernarg_size 112
  .amdhsa_user_sgpr_count 2
  .amdhsa_user_sgpr_kernarg_segment_ptr 1
  .amdhsa_system_sgpr_workgroup_id_x 1
.end_amdhsa_kernel""")
        return '\n'.join(out) + '\n'


if __name__ == '__main__':
    import argparse, ast
    ap = argparse.ArgumentParser()
    ap.add_argument('--prof', action='store_true')
    ap.add_argument('--opt', action='append', default=[])
    ap.add_argument('-o', default='cdna_kernels/' + NAME + '.s')
    args = ap.parse_args()
    opts = {}
    for kv in args.opt:
        k, v = kv.split('=', 1)
        try: v = ast.literal_eval(v)
        except Exception: pass
        opts[k] = v
    g = Gen(args.prof, opts)
    s = g.build()
    open(args.o, 'w').write(s)
```

```python
import sys, re, os
sys.path.insert(0, 'gen')
from asmlib import *

NAME = 'standalone__molecular_angular_gemnet__graph'

E = 160000; T = 2560000
MAGIC = 6871948
CB_CNT, FAIL = 8, 16
CC = 64
WSC = 512
EPW = 1024
STG = 3072
PB = 19456
PBS = 492
HDR = 188
BYT = 388
DUMP = 96
CB = PB
GS = 1552
CAP = 192
LDS_END = PB + 256 * PBS
NLINE = 4
WSB = NLINE * 256 * 32768
LIM = 0x9C400000
INV = 0xFFFFFFFF
GUARD = 1300
OOB = '1.0'
PROF_OFF = 100 << 20
INV2PI = 0x3e22f983
NBLK = 6
NPOS = 30
import struct
def f32(x): return struct.unpack('<I', struct.pack('<f', x))[0]


class Gen:
    def __init__(self, prof=False, opts=None):
        self.prof = prof
        self.o = dict(poll_max=60000, ldflags='', tupflags='sc1', stflags='sc1', outflags='sc1', force_fail=False,
                      up=3, dg=4, nr=6, gate='ack', l1at='after0', pins=(1, 2, 3, 4), psec=10, pwait=20,
                      lima=80000, psleep=1, gmask=0xffffffe0, mat='gap', optblk=4)
        if opts: self.o.update(opts)
        self.a = Asm()

    def stamp(self, idx):
        if not self.prof: return
        a = self.a
        a(f"s_memrealtime {self.sT64}")
        a("s_waitcnt lgkmcnt(0)")
        a(f"v_writelane_b32 {self.vProf}, {self.sT64[0]}, {idx}")

    def stamp_dyn(self, sidx):
        if not self.prof: return
        a = self.a
        a(f"s_memrealtime {self.sT64}")
        a("s_waitcnt lgkmcnt(0)")
        a(f"s_mov_b32 m0, {sidx}")
        a(f"s_nop 3")
        a(f"v_writelane_b32 {self.vProf}, {self.sT64[0]}, m0")

    def prof_store(self, wave_sgpr):
        if not self.prof: return
        a = self.a
        a(f"s_mul_i32 {self.sT64[0]}, s2, 12")
        a(f"s_add_u32 {self.sT64[0]}, {self.sT64[0]}, {wave_sgpr}")
        a(f"s_lshl_b32 {self.sT64[0]}, {self.sT64[0]}, 8")
        a(f"s_add_u32 {self.sT64[0]}, {self.sT64[0]}, {PROF_OFF}")
        a(f"v_mbcnt_lo_u32_b32 v1, -1, 0")
        a(f"v_mbcnt_hi_u32_b32 v1, -1, v1")
        a(f"v_lshlrev_b32 v1, 2, v1")
        a(f"v_add_u32 v1, {self.sT64[0]}, v1")
        a(f"s_mov_b64 exec, -1")
        a(f"global_store_dword v1, {self.vProf}, s[30:31]")

    def lds_spin(self, off, target, vt, vzero, st):
        a = self.a
        L = a.newlabel('spin')
        Lx = a.newlabel('spinx')
        a.label(L)
        a(f"ds_read_b32 {vt}, {vzero} offset:{off}")
        a("s_waitcnt lgkmcnt(0)")
        a(f"v_readfirstlane_b32 {st}, {vt}")
        a(f"s_cmp_ge_u32 {st}, {target}")
        a(f"s_cbranch_scc1 {Lx}")
        a("s_sleep 1")
        a(f"s_branch {L}")
        a.label(Lx)

    def lds_arrive(self, off, vzero, vone):
        a = self.a
        a("s_mov_b64 exec, 1")
        a(f"ds_add_u32 {vzero}, {vone} offset:{off}")
        a("s_mov_b64 exec, -1")

    def srd(self, reg, src, n):
        a = self.a
        a(f"s_mov_b32 {reg[0]}, s{src}")
        a(f"s_mov_b32 {reg[1]}, s{src+1}")
        a(f"s_mov_b32 {reg[2]}, {n}")
        a(f"s_mov_b32 {reg[3]}, 0x00020000")

    def vm_issue(self, tag, optional=False):
        self.a.lines.append(f"; @ISSUE{'?' if optional else ''} {tag}")

    def vm_wait(self, tag, linear=False):
        self.a.lines.append(f"; @WAIT{'L' if linear else ''} {tag}")

    def resolve_vm(self, start, end):
        lines = self.a.lines
        n = end - start
        for i in range(len(lines)):
            l = lines[i]
            if l.startswith("; @WAITL "):
                tag = l.split()[2]
                cnt = 0; found = False
                for back in range(i - 1, -1, -1):
                    ll = lines[back]
                    if ll.startswith("; @ISSUE"):
                        if ll.split()[2] == tag:
                            found = True; break
                        if not ll.startswith("; @ISSUE?"): cnt += 1
                assert found, tag
                lines[i] = f"s_waitcnt vmcnt({min(cnt, 63)})"
            elif l.startswith("; @WAIT "):
                assert start <= i < end
                tag = l.split()[2]
                cnt = 0; found = False
                pos = i - start
                for back in range(1, n + 1):
                    ll = lines[start + (pos - back) % n]
                    if ll.startswith("; @ISSUE"):
                        if ll.split()[2] == tag:
                            found = True; break
                        if not ll.startswith("; @ISSUE?"): cnt += 1
                assert found, tag
                lines[i] = f"s_waitcnt vmcnt({min(cnt, 63)})"

    def body(self, sW):
        a = self.a
        o = self.o
        DG = o['dg']; NR = o['nr']
        assert NPOS % NR == 0 and DG <= NR - 1 and DG <= 8
        V = Alloc('v', 2, 255)
        S = Alloc('s', 62, 98)
        vLane = Reg('v', 0)
        sM = Reg('s', 32, 4); sIN = Reg('s', 36, 4); sOI = Reg('s', 40, 4); sDI = Reg('s', 44, 4)
        sAN = Reg('s', 48, 4); sOUT = Reg('s', 52, 4); sWS = Reg('s', 56, 4)
        pCEN = Reg('s', 14, 2); pWR = Reg('s', 18, 2); pWS = Reg('s', 20, 2); pWD = Reg('s', 22, 2)
        pWU = Reg('s', 24, 2); pDBG = Reg('s', 28, 2)
        vZero = V('zero'); vOne = V('one')
        acc = [[V(f'acc{j}{l}', 4) for l in range(2)] for j in range(5)]
        Wa = V('wa', 4); Wb = V('wb', 4)
        rbfB = [V(f'rbf{j}', 2) for j in range(5)]
        Mr = [V(f'mr{j}', 2) for j in range(5)]
        vMoff = V('moff'); vLine = V('line'); vSel = V('sel'); vCB = V('cb')
        wraw = V('wraw', 2); dd = [V(f'dd{j}') for j in range(5)]; cenr = V('cenr', 2); raw = V('raw', 4)
        mk0 = V.mark()
        st = S('st'); st2 = S('st2'); so = S('so')
        sFail = Reg('s', 61); sPoll = S('poll'); sG0 = S('g0'); sE0 = S('e0')
        sNegT = S('negT'); sLim = S('lim'); sLimA = S('lima'); sGS = S('gs'); sHi = S('hi')
        smk0 = S.mark()
        Q = [dict(i=V(f'q{k}i', 4), o=V(f'q{k}o', 4), a=V(f'q{k}a', 2)) for k in range(5)]
        tb = V('tb', 4)
        tmp = [dict(mk=V(f'mk{s}', 4), sh=V(f'sh{s}', 4), old=V(f'old{s}', 4), by=V(f'by{s}', 4), inc=V(f'inc{s}', 4))
               for s in range(2)]
        vOffQ = V('offq'); vOffA = V('offa'); vPB = V('pb'); vC2048 = V('c2048'); vi = V('vi', 4); vt = V('vt'); vt2 = V('vt2')
        vTag = V('tag'); vRd = V('rd'); vRb = V('rb'); vRh = V('rh'); vSt = V('stv')
        Ln = [[V(f'ln{l}{i}', 4) for i in range(4)] for l in range(3)]
        Hd = [V(f'hd{i}') for i in range(4)]
        print('phase 1/2 vgprs', V.high, file=sys.stderr)
        sMagic = S('magic'); sNeg = S('neg'); s492 = S('c492'); sLimIn = S('limin'); sK18 = S('k18'); sCq = S('cq')
        sOffI = S('offi'); sOffA = S('offa'); sLast = S('last', 2); sSrc = S('src'); sM24 = S('m24')
        sm = [Reg('s', 4 + 2 * k, 2) for k in range(4)]
        sm4 = Reg('s', 12, 2)
        ld = o['ldflags']
        self.vmseq = []

        def load_quad(k):
            q = Q[k]
            if k == 4: a(f"s_mov_b64 exec, {sLast}")
            a(f"s_add_u32 {so}, {sOffI}, {k * 1024}")
            a(f"buffer_load_dwordx4 {q['o']}, {vOffQ}, {sOI}, {so} offen {ld}")
            a(f"buffer_load_dwordx4 {q['i']}, {vOffQ}, {sIN}, {so} offen {ld}")
            a(f"s_add_u32 {so}, {sOffA}, {k * 512}")
            a(f"buffer_load_dwordx2 {q['a']}, {vOffA}, {sAN}, {so} offen {ld}")
            if k == 4: a(f"s_mov_b64 exec, -1")
            self.vmseq += [f'Q{k}'] * 3

        def wait_for(tag):
            last = max(i for i, x in enumerate(self.vmseq) if x == tag)
            a(f"s_waitcnt vmcnt({min(len(self.vmseq) - 1 - last, 63)})")

        a(f"s_mul_i32 {st}, {sW}, 5120")
        a(f"v_lshlrev_b32 {vOffQ}, 4, {vLane}")
        a(f"v_add_u32 {vOffQ}, {st}, {vOffQ}")
        a(f"v_lshrrev_b32 {vOffA}, 1, {vOffQ}")
        a(f"s_mul_i32 {sOffI}, s2, 40000")
        a(f"s_mul_i32 {sOffA}, s2, 20000")
        a(f"s_cmp_eq_u32 {sW}, 7")
        a(f"s_cselect_b64 {sLast}, 15, -1")
        a(f"s_mul_i32 {sE0}, s2, 625")
        a(f"s_mul_i32 {st}, {sW}, 80")
        a(f"s_add_u32 {sE0}, {sE0}, {st}")
        a("s_waitcnt lgkmcnt(0)")
        self.stamp(51)
        self.srd(sOI, 8, T * 4); self.srd(sIN, 6, T * 4); self.srd(sAN, 12, T * 2)
        up = o['up']
        for k in range(min(up, 2)): load_quad(k)
        self.srd(sM, 4, E * 32); self.srd(sDI, 10, E * 2); self.srd(sOUT, 26, E * 32); self.srd(sWS, 30, WSB)
        for k in range(2, up): load_quad(k)
        a(f"s_mov_b32 {sG0}, s100")
        n_ = vt; q_ = vt2; t3 = tb[0]
        a(f"v_and_b32 {n_}, 15, {vLane}")
        a(f"v_lshrrev_b32 {q_}, 4, {vLane}")
        a(f"v_lshlrev_b32 {t3}, 3, {vLane}")
        a(f"global_load_dwordx2 {wraw}, {t3}, {pWD}")
        a(f"v_add_u32 {t3}, {sE0}, {n_}")
        a(f"v_lshlrev_b32 {vMoff}, 5, {t3}")
        a(f"v_lshl_add_u32 {vMoff}, {q_}, 3, {vMoff}")
        a(f"v_lshlrev_b32 {t3}, 1, {t3}")
        for j in range(5):
            a(f"buffer_load_ushort {dd[j]}, {t3}, {sDI}, 0 offen offset:{j*32}")
        a(f"v_lshlrev_b32 {t3}, 3, {q_}")
        a(f"v_and_b32 {t3}, 8, {t3}")
        a(f"global_load_dwordx2 {cenr}, {t3}, {pCEN}")
        Lw = [a.newlabel('ew') for _ in range(4)]; Lwx = a.newlabel('ewx')
        a(f"s_and_b32 {st2}, {sW}, 3")
        a(f"s_cmp_eq_u32 {st2}, 3")
        a(f"s_cbranch_scc1 {Lw[3]}")
        a(f"s_cmp_eq_u32 {st2}, 2")
        a(f"s_cbranch_scc1 {Lw[2]}")
        a(f"v_and_b32 {t3}, 1, {q_}")
        a(f"v_lshlrev_b32 {t3}, 8, {t3}")
        a(f"v_lshl_add_u32 {t3}, {n_}, 1, {t3}")
        a(f"s_lshl_b32 {st}, {st2}, 5")
        a(f"v_add_u32 {t3}, {st}, {t3}")
        for jj in range(4):
            a(f"global_load_ushort {raw[jj]}, {t3}, {pWS} offset:{jj*64}")
        a(f"s_branch {Lwx}")
        a.label(Lw[2])
        a(f"v_and_b32 {t3}, 1, {q_}")
        a(f"v_lshlrev_b32 {t3}, 7, {t3}")
        a(f"v_lshl_add_u32 {t3}, {n_}, 1, {t3}")
        for jj in range(4):
            a(f"global_load_ushort {raw[jj]}, {t3}, {pWR} offset:{jj*32}")
        a(f"s_branch {Lwx}")
        a.label(Lw[3])
        a(f"v_lshlrev_b32 {t3}, 7, {q_}")
        a(f"v_lshl_add_u32 {t3}, {n_}, 1, {t3}")
        for jj in range(4):
            a(f"global_load_ushort {raw[jj]}, {t3}, {pWU} offset:{jj*32}")
        a.label(Lwx)
        self.vmseq += ['sm'] * 11
        if o['mat'] == 'start':
            for jj in range(5):
                a(f"buffer_load_dwordx2 {Mr[jj]}, {vMoff}, {sM}, 0 offen offset:{jj*512}")
            self.vmseq += ['mr'] * 5
        self.stamp(53)
        for i in range(4): a(f"v_mov_b32 {vi[i]}, -1")
        a(f"s_mul_i32 {st}, {sW}, {32 * PBS}")
        a(f"s_add_u32 {st}, {st}, {PB}")
        a(f"v_lshlrev_b32 {vt}, 4, {vLane}")
        a(f"v_add_u32 {vt2}, {st}, {vt}")
        for i in range(15):
            a(f"ds_write_b128 {vt2}, {vi} offset:{i*1024}")
        a(f"s_mov_b64 exec, 0xffffff")
        a(f"ds_write_b128 {vt2}, {vi} offset:{15*1024}")
        a(f"s_mov_b32 exec_lo, -1")
        a(f"s_mov_b32 exec_hi, 0")
        a(f"s_movk_i32 {s492}, {PBS}")
        a(f"v_mov_b32 {vPB}, {st}")
        a(f"v_mad_u32_u24 {vt2}, {vLane}, {s492}, {vPB}")
        a(f"v_mov_b32 {vi[0]}, {1 << 18}")
        a(f"ds_write_b32 {vt2}, {vi[0]} offset:{HDR}")
        a(f"s_mov_b64 exec, -1")
        for i in range(4): a(f"v_mov_b32 {vi[i]}, 0")
        a(f"s_lshl_b32 {st}, {sW}, 11")
        a(f"s_add_u32 {st}, {st}, {STG}")
        a(f"v_add_u32 {vt2}, {st}, {vt}")
        a(f"ds_write_b128 {vt2}, {vi}")
        a(f"ds_write_b128 {vt2}, {vi} offset:1024")
        Lz = a.newlabel('z')
        a(f"s_cmp_lg_u32 {sW}, 0")
        a(f"s_cbranch_scc1 {Lz}")
        a(f"v_lshlrev_b32 {vt2}, 3, {vLane}")
        a(f"ds_write_b64 {vt2}, {vi[0:2]}")
        a.label(Lz)
        a(f"v_mov_b32 {vZero}, 0")
        a(f"v_mov_b32 {vOne}, 1")
        a(f"v_mov_b32 {vPB}, {PB}")
        a(f"v_mov_b32 {vCB}, {CB}")
        a(f"v_mov_b32 {vC2048}, 0x{f32(2048.0):x}")
        a(f"s_mov_b32 {sCq}, 0x{f32(2047.5):x}")
        a(f"s_mov_b32 {sMagic}, {MAGIC}")
        a(f"s_movk_i32 {sNeg}, -10000")
        a(f"s_mov_b32 {sLimIn}, {o['lima'] - 1}")
        a(f"s_mov_b32 {sK18}, {1 << 18}")
        a(f"s_mov_b32 {sHi}, 0xffff0000")
        a(f"s_mov_b32 {sLim}, 0x{LIM:x}")
        a(f"s_mov_b32 {sLimA}, 0x{o['lima'] << 14:x}")
        a(f"s_movk_i32 {sGS}, {GS}")
        a(f"s_mov_b32 {sM24}, 0x00ffffff")
        a(f"s_lshl_b32 {sSrc}, s2, 7")
        a(f"s_mov_b32 {sFail}, {1 if o['force_fail'] else 0}")
        a("s_lshr_b64 s[100:101], s[100:101], 8")
        a(f"s_sub_u32 {sNegT}, 3, s100")
        a(f"s_lshl_b32 {st}, s100, 8")
        a(f"s_xor_b32 {st}, {st}, s100")
        a(f"s_lshl_b32 {st2}, {st}, 16")
        a(f"s_xor_b32 {st}, {st}, {st2}")
        a(f"v_and_b32 {vt}, 3, {vLane}")
        a(f"v_lshlrev_b32 {vt}, 3, {vt}")
        a(f"v_lshrrev_b32 {vTag}, {vt}, {st}")
        a(f"v_lshlrev_b32 {vTag}, 24, {vTag}")
        a(f"v_mov_b32 {vt2}, 15")
        a(f"v_lshlrev_b32 {vt2}, {vt}, {vt2}")
        a(f"v_xor_b32 {vSel}, 0x0c0c0c0c, {vt2}")
        a(f"v_lshrrev_b32 {vt}, 3, {vLane}")
        a(f"s_lshl_b32 {st}, {sW}, 5")
        a(f"v_add_u32 {vt}, {st}, {vt}")
        a(f"v_and_b32 {vt2}, 7, {vLane}")
        a(f"v_mad_u32_u24 {vRh}, {vt}, {s492}, {vPB}")
        a(f"v_mad_u32_u24 {vRd}, {vt2}, 12, {vRh}")
        a(f"v_mad_u32_u24 {vRb}, {vt2}, 3, {vRh}")
        a(f"v_lshlrev_b32 {vSt}, 15, {vt}")
        a(f"v_lshl_add_u32 {vSt}, {vt2}, 4, {vSt}")
        a(f"s_lshl_b32 {st}, {sW}, 12")
        a(f"v_lshlrev_b32 {vLine}, 4, {vLane}")
        a(f"v_add_u32 {vLine}, {st}, {vLine}")
        for j in range(5):
            for l in range(2):
                for i in range(4): a(f"v_mov_b32 {acc[j][l][i]}, 0")
        a("s_waitcnt lgkmcnt(0)")
        a("s_barrier")
        self.stamp(1)

        def pre(k, s):
            q = Q[k]; w0 = q['i']; wb = q['o']; an = q['a']; t = tmp[s]
            mk, sh, old, by, inc = t['mk'], t['sh'], t['old'], t['by'], t['inc']
            if k == 4: a(f"s_mov_b64 exec, {sLast}")
            for j in range(4): a(f"v_mul_hi_u32_u24 {tb[j]}, {sMagic}, {wb[j]}")
            for j in range(4):
                if j & 1: a(f"v_and_b32 {by[j]}, {sHi}, {an[j >> 1]}")
                else: a(f"v_lshlrev_b32 {by[j]}, 16, {an[j >> 1]}")
            for j in range(4): a(f"v_sub_u32 {mk[j]}, {sLimIn}, {w0[j]}")
            for j in range(4): a(f"v_mul_f32 {by[j]}, 0x{INV2PI:x}, {by[j]}")
            for j in range(4): a(f"v_lshlrev_b32 {wb[j]}, 4, {wb[j]}")
            for j in range(4): a(f"v_ashrrev_i32 {mk[j]}, 31, {mk[j]}")
            for j in range(4): a(f"v_fract_f32 {by[j]}, {by[j]}")
            for j in range(4): a(f"v_mad_i32_i24 {wb[j]}, {tb[j]}, {sNeg}, {wb[j]}")
            for j in range(4): a(f"v_and_b32 {sh[j]}, 9, {mk[j]}")
            for j in range(4): a(f"v_cos_f32 {by[j]}, {by[j]}")
            for j in range(4): a(f"v_lshl_or_b32 {w0[j]}, {w0[j]}, 14, {wb[j]}")
            for j in range(4): a(f"v_lshl_or_b32 {inc[j]}, {vOne}, {sh[j]}, {sK18}")
            for j in range(4): a(f"v_mad_u32_u24 {wb[j]}, {tb[j]}, {s492}, {vPB}")
            if k >= 2: a("s_waitcnt lgkmcnt(8)")
            for j in range(4): a(f"ds_add_rtn_u32 {old[j]}, {wb[j]}, {inc[j]} offset:{HDR}")
            for j in range(4): a(f"v_fma_f32 {by[j]}, {by[j]}, {sCq}, {vC2048}")
            for j in range(4): a(f"v_cvt_u32_f32 {by[j]}, {by[j]}")
            for j in range(4): a(f"v_and_or_b32 {w0[j]}, {by[j]}, 15, {w0[j]}")
            for j in range(4): a(f"v_lshrrev_b32 {by[j]}, 4, {by[j]}")
            if k == 4: a(f"s_mov_b64 exec, -1")

        def post(k, s):
            q = Q[k]; w0 = q['i']; wb = q['o']; t = tmp[s]
            mk, sh, old, by, inc = t['mk'], t['sh'], t['old'], t['by'], t['inc']
            if k == 4: a(f"s_mov_b64 exec, {sLast}")
            for j in range(4): a(f"v_bfe_u32 {sh[j]}, {old[j]}, {sh[j]}, 9")
            for j in range(4): a(f"v_and_b32 {inc[j]}, 47, {mk[j]}")
            for j in range(4): a(f"v_lshrrev_b32 {old[j]}, 18, {old[j]}")
            for j in range(4): a(f"v_xad_u32 {sh[j]}, {sh[j]}, {mk[j]}, {inc[j]}")
            for j in range(4):
                a(f"v_cmp_le_u32 {sm[j]}, 48, {old[j]}")
            for j in range(4):
                a(f"v_cndmask_b32 {sh[j]}, {sh[j]}, {old[j]}, {sm[j]}")
            for j in range(4): a(f"v_min_u32 {sh[j]}, {DUMP}, {sh[j]}")
            for j in range(4): a(f"v_lshl_add_u32 {inc[j]}, {sh[j]}, 2, {wb[j]}")
            for j in range(4): a(f"v_add_u32 {sh[j]}, {sh[j]}, {wb[j]}")
            for j in range(4):
                a(f"ds_write_b32 {inc[j]}, {w0[j]}")
                a(f"ds_write_b8 {sh[j]}, {by[j]} offset:{BYT}")
            if k == 4: a(f"s_mov_b64 exec, -1")

        nxt = up
        for k in range(5):
            wait_for(f'Q{k}')
            if k == 0: self.stamp(2)
            pre(k, k & 1)
            if nxt < 5:
                load_quad(nxt); nxt += 1
            if k > 0:
                a("s_waitcnt lgkmcnt(4)" if k == 1 else "s_waitcnt lgkmcnt(4)")
                post(k - 1, (k - 1) & 1)
        a("s_waitcnt lgkmcnt(0)")
        post(4, 0)
        self.stamp(3)
        a("s_waitcnt lgkmcnt(0)")
        a("s_barrier")
        self.stamp(4)

        stf = o['stflags']
        wait_for('sm')
        def rd(l, it):
            L = Ln[l][it]
            a(f"ds_read_b96 {L[0:3]}, {vRd} offset:{it * 8 * PBS + l * 96}")
            a(f"ds_read_b32 {L[3]}, {vRb} offset:{it * 8 * PBS + l * 24 + BYT}")
        def store(L, l, it):
            a(f"v_bfi_b32 {L[3]}, {sM24}, {L[3]}, {vTag}")
            a(f"s_add_u32 {so}, {sSrc}, {(l * 256 + it * 8) << 15}")
            a(f"buffer_store_dwordx4 {L}, {vSt}, {sWS}, {so} offen {stf}")
        for it in range(4): rd(0, it)
        for it in range(2): rd(1, it)
        a("s_waitcnt lgkmcnt(4)")
        for it in range(4): store(Ln[0][it], 0, it)
        for it in range(2, 4): rd(1, it)
        for it in range(4): a(f"ds_read_b32 {Hd[it]}, {vRh} offset:{it * 8 * PBS + HDR}")
        a("s_waitcnt lgkmcnt(4)")
        self.stamp(5)
        for it in range(4): store(Ln[1][it], 1, it)
        for it in range(4): rd(2, it)
        a("s_waitcnt lgkmcnt(8)")
        a(f"s_mov_b32 {st}, {49 << 18}")
        a(f"s_mov_b32 {st2}, {73 << 18}")
        for it in range(4): a(f"v_cmp_le_u32 {sm[it]}, {st}, {Hd[it]}")
        a(f"v_max3_u32 {vt}, {Hd[0]}, {Hd[1]}, {Hd[2]}")
        a(f"v_max_u32 {vt}, {vt}, {Hd[3]}")
        a(f"v_cmp_le_u32 vcc, {st2}, {vt}")
        a("s_waitcnt lgkmcnt(0)")
        for it in range(4):
            Ls = a.newlabel('s2')
            a(f"s_cmp_eq_u64 {sm[it]}, 0")
            a(f"s_cbranch_scc1 {Ls}")
            a(f"s_mov_b64 exec, {sm[it]}")
            store(Ln[2][it], 2, it)
            a(f"s_mov_b64 exec, -1")
            a.label(Ls)
        a(f"s_cbranch_vccnz p_rare")
        a.label("p_rare_back")
        self.late.append((self._p_rare, (Ln, Hd, vRd, vRb, vSt, vTag, sM24, sSrc, so, st2, sWS, sm)))
        self.stamp(6)
        if o['mat'] == 'gap':
            for jj in range(5):
                a(f"buffer_load_dwordx2 {Mr[jj]}, {vMoff}, {sM}, 0 offen offset:{jj*512}")
        a("s_barrier")

        V.reset(mk0); S.reset(smk0)
        rows = [V(f'row{i}', 4) for i in range(NR)]
        X = [V(f'x{i}', 4) for i in range(4)]
        D1 = [V(f'd1{i}', 4) for i in range(2)]
        Bq = [[V(f'b{s}{l}', 4) for l in range(2)] for s in range(2)]
        vT = V('tup', 2)
        vIdx = V('idx'); vOff = V('off'); vTau = [V(f'tau{b}') for b in range(NBLK)]; vHalf = V('half16')
        vIdxC = V('idxc'); vIdxN = V('idxn'); vTupC = V('tupc'); vTupN = V('tupn')
        vAddr = V('addr'); vC0 = V('c0'); vC1 = V('c1'); vK = V('k'); vBrd = V('brd'); vK2 = V('k2')
        vCntA = V('cnta'); vC = V('c')
        tt = [V(f'tt{i}') for i in range(12)]
        X0 = [V(f'y{i}', 4) for i in range(4)]
        self.c3 = V('c3', 4)
        print('phase 3 vgprs', V.next, file=sys.stderr)
        sCnt = [S(f'cnt{j}') for j in range(5)]
        sCntN = [S(f'cntn{j}') for j in range(5)]
        sIt = S('it'); sF0 = S('mf0'); sNot31 = S('not31'); sK1 = S('k1'); sPoff = S('poff')
        sHiL = S('hil', 2); sHdr = S('hdr', 2); sv = [S(f'sv{h}', 2) for h in range(3)]
        sMore = [Reg('s', 4 + 2 * k, 2) for k in range(4)]
        sSave = Reg('s', 12, 2); sX = Reg('s', 16, 2)
        self.c = dict(NegT=sNegT, Sel=vSel, Lim=sLim, LimA=sLimA, GS=sGS, vCB=vCB, vZero=vZero, vOne=vOne,
                      sFail=sFail, sPoll=sPoll, sWS=sWS, vLine=vLine, sPoff=sPoff, tt=tt, X=X, sMore=sMore,
                      sv=sv, sHdr=sHdr, st=st, st2=st2, sX=sX, sSave=sSave)
        t0, t1, t2, t3 = tt[0], tt[1], tt[2], tt[3]
        a(f"v_and_b32 {t0}, 15, {vLane}")
        a(f"v_lshrrev_b32 {t1}, 4, {vLane}")
        a(f"v_lshrrev_b32 {t2}, 2, {t0}")
        a(f"v_lshlrev_b32 {t2}, 3, {t2}")
        a(f"v_and_b32 {t3}, 3, {t0}")
        a(f"v_add_u32 {vTau[0]}, {t2}, {t3}")
        a(f"v_lshrrev_b32 {t3}, 5, {vLane}")
        a(f"v_lshl_add_u32 {vTau[0]}, {t3}, 2, {vTau[0]}")
        for b in range(1, NBLK): a(f"v_add_u32 {vTau[b]}, {32 * b}, {vTau[0]}")
        a(f"v_and_b32 {t2}, 1, {t1}")
        a(f"v_lshlrev_b32 {vHalf}, 4, {t2}")
        vWr = vIdx
        a(f"v_lshlrev_b32 {vWr}, 4, {vHalf}")
        a(f"v_lshl_add_u32 {vWr}, {t0}, 1, {vWr}")
        a(f"s_mul_i32 {st}, {sW}, {10*GS}")
        a(f"s_add_u32 {st}, {st}, {CB}")
        a(f"v_lshlrev_b32 {vIdxC}, 3, {vTau[0]}")
        a(f"v_add_u32 {vIdxC}, {st}, {vIdxC}")
        a(f"v_add_u32 {vIdxN}, {GS}, {vIdxC}")
        a(f"v_and_b32 {t2}, 31, {vLane}")
        a(f"v_lshlrev_b32 {vTupC}, 3, {t2}")
        a(f"v_add_u32 {vTupC}, {st}, {vTupC}")
        a(f"v_add_u32 {vTupN}, {GS}, {vTupC}")
        a(f"s_lshl_b32 {st}, {sW}, 11")
        a(f"s_add_u32 {st}, {st}, {STG}")
        a(f"v_lshlrev_b32 {vBrd}, 4, {vLane}")
        a(f"v_add_u32 {vBrd}, {st}, {vBrd}")
        a(f"v_lshrrev_b32 {vK}, 3, {t2}")
        a(f"v_lshlrev_b32 {vK}, 8, {vK}")
        a(f"v_and_b32 {t2}, 7, {t2}")
        a(f"v_lshl_add_u32 {vK}, {t2}, 1, {vK}")
        a(f"v_lshl_add_u32 {vK}, {t3}, 10, {vK}")
        a(f"v_add_u32 {vK}, {st}, {vK}")
        a(f"v_min_u32 {vCntA}, 4, {vLane}")
        a(f"s_mul_i32 {st}, {sW}, 5")
        a(f"v_add_u32 {vCntA}, {st}, {vCntA}")
        a(f"v_lshlrev_b32 {vCntA}, 3, {vCntA}")
        a(f"s_mov_b32 {sF0}, 0xf0")
        a(f"s_mov_b32 {sNot31}, 0x{o['gmask']:x}")
        a(f"s_mov_b32 {sK1}, 0x{f32(1.0 / 2047.5):x}")
        a(f"v_mov_b32 {vK2}, 0x{f32((0.5 - 2048.0) / 2047.5):x}")
        a(f"s_mov_b32 {sHiL[0]}, 0")
        a(f"s_mov_b32 {sHiL[1]}, -1")
        a(f"s_mov_b32 {sHdr[0]}, 0x80808080")
        a(f"s_mov_b32 {sHdr[1]}, 0x80808080")
        a(f"v_lshlrev_b32 {t2}, 3, {vLane}")
        a(f"ds_write_b64 {t2}, {wraw} offset:{WSC}")
        wtmp = X[2]
        for i in range(4):
            a(f"ds_read_u16 {wtmp[i]}, {vWr} offset:{WSC + (2*i)*32}")
            a(f"ds_read_u16 {X[3][i]}, {vWr} offset:{WSC + (2*i+1)*32}")
        Ln1 = a.newlabel('nd')
        a(f"s_and_b32 {st2}, {sW}, 3")
        a(f"s_cmp_lg_u32 {st2}, 1")
        a(f"s_cbranch_scc1 {Ln1}")
        for jj in range(4): a(f"v_lshlrev_b32 {raw[jj]}, 16, {raw[jj]}")
        for jj in range(4): a(f"v_add_f32 {raw[jj]}, {raw[jj]}, {raw[jj]}")
        for jj in range(4): a(f"v_lshrrev_b32 {raw[jj]}, 16, {raw[jj]}")
        a.label(Ln1)
        for h in range(2):
            a(f"v_lshl_or_b32 {raw[2*h]}, {raw[2*h + 1]}, 16, {raw[2*h]}")
        a(f"v_mov_b32 {raw[1]}, {raw[2]}")
        a(f"s_lshl_b32 {st}, {st2}, 9")
        a(f"v_add_u32 {t2}, {st}, {t2}")
        a(f"ds_write_b64 {t2}, {raw[0:2]} offset:{EPW}")
        cen = X[0]
        a(f"v_lshlrev_b32 {cen[0]}, 16, {cenr[0]}")
        a(f"v_and_b32 {cen[1]}, {sHi}, {cenr[0]}")
        a(f"v_lshlrev_b32 {cen[2]}, 16, {cenr[1]}")
        a(f"v_and_b32 {cen[3]}, {sHi}, {cenr[1]}")
        a(f"s_not_b64 {sX}, {sHiL}")
        for j in range(5):
            self.rbf_operand(dd[j], cen, rbfB[j], tt[4:], sX)
        a("s_waitcnt lgkmcnt(0)")
        for i in range(4):
            a(f"v_lshl_or_b32 {wtmp[i]}, {X[3][i]}, 16, {wtmp[i]}")
        for i in range(4):
            a(f"v_cndmask_b32 {Wa[i]}, 0, {wtmp[i]}, {sX}")
        for i in range(4):
            a(f"v_cndmask_b32 {Wb[i]}, 0, {wtmp[i]}, {sHiL}")
        self.stamp(7)
        tf = o['tupflags']
        gate = o['gate']
        if gate == 'ack': a("s_waitcnt vmcnt(0)")
        elif isinstance(gate, int) and gate > 0:
            Lg = a.newlabel('gate'); Lgx = a.newlabel('gatex')
            a(f"s_mov_b32 {sPoll}, 0")
            a.label(Lg)
            a("s_memrealtime s[14:15]")
            a("s_waitcnt lgkmcnt(0)")
            a(f"s_sub_u32 {st}, s14, {sG0}")
            a(f"s_cmp_ge_u32 {st}, {gate}")
            a(f"s_cbranch_scc1 {Lgx}")
            a(f"s_add_u32 {sPoll}, {sPoll}, 1")
            a(f"s_cmp_lt_u32 {sPoll}, 100000")
            a(f"s_cbranch_scc1 {Lg}")
            a.label(Lgx)
        self.stamp(8)
        a(f"s_lshl_b32 {sPoff}, s2, 15")
        def load_line(dst, l, k, tag=None):
            if l == 0:
                a(f"buffer_load_dwordx4 {dst}, {vLine}, {sWS}, {sPoff} offen offset:{k*1024} {tf}")
            else:
                a(f"s_add_u32 {st}, {sPoff}, {(l * 256) << 15}")
                a(f"buffer_load_dwordx4 {dst}, {vLine}, {sWS}, {st} offen offset:{k*1024} {tf}")
            if tag: self.vm_issue(tag)
        for k in range(4): load_line(X0[k], 0, k, f'Z{k}')
        if o['l1at'] == 'with0':
            for k in range(4): load_line(X[k], 1, k, f'P{k}')
        for k in range(4):
            self.vm_wait(f'Z{k}', linear=True)
            if k == 0: self.stamp(9)
            self.checked(X0[k], 0, k, f'z{k}')
            if o['l1at'] == 'val0' and k == 3:
                for kk in range(4): load_line(X[kk], 1, kk, f'P{kk}')
            self.insert(X0[k], 0)
        if o['l1at'] == 'after0':
            for k in range(4): load_line(X[k], 1, k, f'P{k}')
        self.publish()
        self.stamp(10)
        a("s_waitcnt lgkmcnt(0)")
        a("s_barrier")
        self.stamp(11)
        self.read_counts_issue(vC, vCntA, CC)
        off = lambda p: (p // NBLK) * 2 * GS + (p % NBLK) * 256
        ix = [Bq[1][0][i] for i in range(4)] + [Bq[1][1][i] for i in range(4)]
        for t in range(DG):
            a(f"ds_read_b32 {ix[t]}, {vIdxC} offset:{off(t)}")
        a(f"ds_read_b64 {vT}, {vTupC} offset:0")
        a("s_waitcnt lgkmcnt(0)")
        self.read_counts_use(vC, sCnt, sFail, st, st2)
        OB = o['optblk']
        opt = lambda p: (p % NBLK) >= OB
        for t in range(DG):
            Lg = None
            if opt(t):
                Lg = a.newlabel('skg')
                a(f"s_cmp_gt_u32 {sCnt[t // NBLK]}, {32 * (t % NBLK)}")
                a(f"s_cbranch_scc0 {Lg}")
            self.g_stage(ix[t], vOff, sNot31, vHalf, sCnt[t // NBLK], vTau[t % NBLK], rows[t % NR], sM)
            self.vm_issue(f"G{t}", optional=Lg is not None)
            if Lg: a.label(Lg)
        sst = (vT, vAddr, vC0, vC1, sF0, vK, sK1, vK2, sHiL, vBrd)
        self.s_stage(*sst, Bq[0], vZero)
        a(f"ds_read_b32 {vIdx}, {vIdxC} offset:{off(DG)}")
        a(f"ds_read_b64 {vT}, {vTupC} offset:{off(1)}")
        a(f"s_mov_b32 {sIt}, 0")
        self.stamp(12)

        PINS = o['pins']; PSEC = o['psec']; PWAIT = o['pwait']
        assert max(PINS) < PSEC < PWAIT <= NPOS - DG - 2
        Lloop = 'c_loop'
        a.label(Lloop)
        start = len(a.lines)
        for p in range(NPOS):
            a.comment(f"---- slot {p}")
            j, blk = p // NBLK, p % NBLK
            a("s_waitcnt lgkmcnt(0)")
            if p == PWAIT + 1:
                self.read_counts_use(vC, sCntN, sFail, st, st2)
            rw = rows[p % NR]
            Lsk1 = None
            if opt(p):
                Lsk1 = a.newlabel('sk1')
                a(f"s_cmp_gt_u32 {sCnt[j]}, {32 * blk}")
                a(f"s_cbranch_scc0 {Lsk1}")
            self.vm_wait(f"G{p}")
            a(f"v_mfma_f32_16x16x32_bf16 {D1[0]}, {rw}, {Wa}, 0")
            a(f"v_mfma_f32_16x16x32_bf16 {D1[1]}, {rw}, {Wb}, 0")
            if Lsk1: a.label(Lsk1)
            if p == PWAIT:
                Lno = a.newlabel('nowait'); Lgo = a.newlabel('gowait')
                a(f"s_cmp_eq_u32 {sIt}, 0")
                a(f"s_cbranch_scc0 {Lno}")
                self.lds_spin(CB_CNT, 8, vC, vZero, st)
                self.read_counts_issue(vC, vCntA, CC + 4)
                a(f"s_branch {Lgo}")
                a.label(Lno)
                a(f"v_mov_b32 {vC}, 0")
                a.label(Lgo)
            tgt = p + DG
            tq = tgt % NPOS
            cn = sCnt[tq // NBLK] if tgt < NPOS else sCntN[tq // NBLK]
            Lg = None
            if opt(tq):
                Lg = a.newlabel('skg')
                a(f"s_cmp_gt_u32 {cn}, {32 * (tq % NBLK)}")
                a(f"s_cbranch_scc0 {Lg}")
            self.g_stage(vIdx, vOff, sNot31, vHalf, cn, vTau[tq % NBLK], rows[tgt % NR], sM)
            self.vm_issue(f"G{tq}", optional=Lg is not None)
            if Lg: a.label(Lg)
            nx = p + 1
            nq = nx % NPOS
            Lsk2 = None
            if opt(nq):
                cn2 = sCnt[nq // NBLK] if nx < NPOS else sCntN[nq // NBLK]
                Lsk2 = a.newlabel('sk2')
                a(f"s_cmp_gt_u32 {cn2}, {32 * (nq % NBLK)}")
                a(f"s_cbranch_scc0 {Lsk2}")
            self.s_stage(*sst, Bq[nx & 1], vZero)
            if Lsk2: a.label(Lsk2)
            t2_ = tgt + 1
            base = vIdxC if t2_ < NPOS else vIdxN
            a(f"ds_read_b32 {vIdx}, {base} offset:{off(t2_ % NPOS)}")
            s2_ = p + 2
            base = vTupC if s2_ < NPOS else vTupN
            a(f"ds_read_b64 {vT}, {base} offset:{off(s2_ % NPOS)}")
            Lsk3 = None
            if opt(p):
                Lsk3 = a.newlabel('sk3')
                a(f"s_cmp_gt_u32 {sCnt[j]}, {32 * blk}")
                a(f"s_cbranch_scc0 {Lsk3}")
            a(f"v_cvt_pk_bf16_f32 {rw[0]}, {D1[0][0]}, {D1[0][1]}")
            a(f"v_cvt_pk_bf16_f32 {rw[1]}, {D1[0][2]}, {D1[0][3]}")
            a(f"v_cvt_pk_bf16_f32 {rw[2]}, {D1[1][0]}, {D1[1][1]}")
            a(f"v_cvt_pk_bf16_f32 {rw[3]}, {D1[1][2]}, {D1[1][3]}")
            Bp = Bq[p & 1]
            a(f"v_mfma_f32_16x16x32_bf16 {acc[j][0]}, {rw}, {Bp[0]}, {acc[j][0]}")
            a(f"v_mfma_f32_16x16x32_bf16 {acc[j][1]}, {rw}, {Bp[1]}, {acc[j][1]}")
            if Lsk3: a.label(Lsk3)
            if p in PINS:
                k = PINS.index(p)
                Lsk = a.newlabel('noins')
                a(f"s_cmp_eq_u32 {sIt}, 0")
                a(f"s_cbranch_scc0 {Lsk}")
                self.vm_wait(f"P{k}", linear=True)
                self.checked(X[k], 1, k, f'p{k}')
                self.insert(X[k], 1, k=k)
                L = a.newlabel('sl')
                a(f"s_cmp_eq_u64 {sMore[k]}, 0")
                a(f"s_cbranch_scc1 {L}")
                a(f"s_add_u32 {st}, {sPoff}, {(2 * 256) << 15}")
                a(f"s_mov_b64 exec, {sMore[k]}")
                a(f"buffer_load_dwordx4 {X[k]}, {vLine}, {sWS}, {st} offen offset:{k*1024} {tf}")
                a(f"s_mov_b64 exec, -1")
                a.label(L)
                self.vm_issue(f"S{k}", optional=True)
                a.label(Lsk)
            if p == PSEC:
                Lna = a.newlabel('noarr')
                a(f"s_cmp_eq_u32 {sIt}, 0")
                a(f"s_cbranch_scc0 {Lna}")
                for k in range(4):
                    Ln_ = a.newlabel('sn')
                    a(f"s_cmp_eq_u64 {sMore[k]}, 0")
                    a(f"s_cbranch_scc1 {Ln_}")
                    self.vm_wait(f"S{k}", linear=True)
                    a(f"s_mov_b64 exec, {sMore[k]}")
                    self.checked(X[k], 2, k, f's{k}', sub=sMore[k])
                    self.insert(X[k], 2, sub=sMore[k])
                    a.label(Ln_)
                self.publish()
                a("s_waitcnt lgkmcnt(0)")
                self.lds_arrive(CB_CNT, vZero, vOne)
                a.label(Lna)
            if self.prof and p in (1, 5, 9, 14, 19, 24, 29):
                slot = (1, 5, 9, 14, 19, 24, 29).index(p)
                a(f"s_lshl_b32 {st}, {sIt}, 3")
                a(f"s_add_u32 {st}, {st}, {13 + slot}")
                self.stamp_dyn(st)
        a(f"v_mov_b32 {vIdxC}, {vIdxN}")
        a(f"v_mov_b32 {vTupC}, {vTupN}")
        for jj in range(5):
            a(f"s_mov_b32 {sCnt[jj]}, {sCntN[jj]}")
        a(f"s_add_u32 {sIt}, {sIt}, 1")
        a(f"s_cmp_le_u32 {sIt}, 1")
        a(f"s_cbranch_scc1 {Lloop}")
        end = len(a.lines)
        self.resolve_vm(start, end)
        self.stamp(40)
        a("s_waitcnt vmcnt(0) lgkmcnt(0)")
        a(f"ds_read_b32 {tt[0]}, {vZero} offset:{FAIL}")
        a("s_waitcnt lgkmcnt(0)")
        a(f"v_readfirstlane_b32 {st}, {tt[0]}")
        a(f"s_or_b32 {sFail}, {sFail}, {st}")
        a(f"s_cmp_lg_u32 {sFail}, 0")
        a(f"s_cbranch_scc1 c_fallback")
        a.label("c_fb_back")
        self.late.append((self._fallback, (acc, rows, X, D1, Bq, Wa, Wb, vLane, vZero, vOne, vHalf, vTau, sE0, sW,
                                            sOI, sIN, sAN, sM, st, st2, sMore, pDBG, sIt, sPoff, sPoll,
                                            vOff, vIdx, vAddr, vC0, vT, sv)))
        Aop = [X[0][0:2], X[0][2:4], X[1][0:2], X[1][2:4]]
        a(f"v_lshlrev_b32 {vIdx}, 3, {vLane}")
        for x in range(4):
            a(f"ds_read_b64 {Aop[x]}, {vIdx} offset:{EPW + x*512}")
        a("s_waitcnt lgkmcnt(0)")
        self.epilogue(acc, Mr, D1, Bq, rbfB, Aop, tt, vLane, vMoff, sW, sOUT, st, rows, X)
        self.stamp(41)
        Lgd = a.newlabel('gd'); Lgx = a.newlabel('gdx')
        a(f"s_mov_b32 {sPoll}, 0")
        a.label(Lgd)
        a("s_memrealtime s[14:15]")
        a("s_waitcnt lgkmcnt(0)")
        a(f"s_sub_u32 {st}, s14, {sG0}")
        a(f"s_cmp_ge_u32 {st}, {GUARD}")
        a(f"s_cbranch_scc1 {Lgx}")
        a(f"s_add_u32 {sPoll}, {sPoll}, 1")
        a(f"s_cmp_lt_u32 {sPoll}, 100000")
        a("s_sleep 4")
        a(f"s_cbranch_scc1 {Lgd}")
        a.label(Lgx)
        self.prof_store(sW)
        a("s_endpgm")

    def _p_rare(self, Ln, Hd, vRd, vRb, vSt, vTag, sM24, sSrc, so, s73, sWS, sm):
        a = self.a
        a.label("p_rare")
        for it in range(4):
            L = Ln[2][it]
            Ls = a.newlabel('pr')
            a(f"v_cmp_le_u32 vcc, {s73}, {Hd[it]}")
            a(f"s_cbranch_vccz {Ls}")
            a(f"s_mov_b64 exec, vcc")
            a(f"ds_read_b96 {L[0:3]}, {vRd} offset:{it * 8 * PBS + 3 * 96}")
            a(f"ds_read_b32 {L[3]}, {vRb} offset:{it * 8 * PBS + 3 * 24 + BYT}")
            a("s_waitcnt lgkmcnt(0)")
            a(f"v_bfi_b32 {L[3]}, {sM24}, {L[3]}, {vTag}")
            a(f"s_add_u32 {so}, {sSrc}, {(3 * 256 + it * 8) << 15}")
            a(f"buffer_store_dwordx4 {L}, {vSt}, {sWS}, {so} offen {self.o['stflags']}")
            a(f"s_mov_b64 exec, -1")
            a.label(Ls)
        a("s_branch p_rare_back")

    def publish(self):
        a = self.a; c = self.c
        L = a.newlabel('pub')
        a(f"s_cmp_eq_u32 {c['sFail']}, 0")
        a(f"s_cbranch_scc1 {L}")
        a(f"ds_write_b32 {c['vZero']}, {c['vOne']} offset:{FAIL}")
        a.label(L)

    def g_stage(self, idx, vOff, sNot31, vHalf, cnt, tau, dst, sM):
        a = self.a
        a(f"v_cmp_gt_u32 vcc, {cnt}, {tau}")
        a(f"v_lshrrev_b32 {vOff}, 9, {idx}")
        a(f"v_and_or_b32 {vOff}, {vOff}, {sNot31}, {vHalf}")
        a(f"v_cndmask_b32 {vOff}, {OOB}, {vOff}, vcc")
        a(f"buffer_load_dwordx4 {dst}, {vOff}, {sM}, 0 offen")

    def s_stage(self, vT, vAddr, vC0, vC1, sF0, vK, sK1, vK2, sHiL, vBrd, B, vZero):
        a = self.a
        a(f"v_and_b32 {vC0}, 15, {vT[0]}")
        a(f"v_lshl_or_b32 {vC0}, {vT[1]}, 4, {vC0}")
        a(f"v_cvt_f32_u32 {vC0}, {vC0}")
        a(f"v_and_or_b32 {vAddr}, {vT[0]}, {sF0}, {vK}")
        a(f"v_fma_f32 {vC0}, {vC0}, {sK1}, {vK2}")
        a(f"v_fma_f32 {vC1}, {vC0}, {vC0}, -0.5")
        a(f"v_cndmask_b32 {vC0}, {vC0}, {vC1}, {sHiL}")
        a(f"v_cvt_pk_bf16_f32 {vC0}, {vC0}, {vC0}")
        a(f"ds_write_b16 {vAddr}, {vC0}")
        a(f"ds_read_b128 {B[0]}, {vBrd}")
        a(f"ds_read_b128 {B[1]}, {vBrd} offset:1024")
        a(f"ds_write_b16 {vAddr}, {vZero}")

    def read_counts_issue(self, vC, vCntA, off):
        self.a(f"ds_read_b32 {vC}, {vCntA} offset:{off}")

    def read_counts_use(self, vC, dst, sFail, st, st2):
        a = self.a
        for jj in range(5):
            a(f"v_readlane_b32 {dst[jj]}, {vC}, {jj}")
        a(f"s_max_u32 {st}, {dst[0]}, {dst[1]}")
        a(f"s_max_u32 {st2}, {dst[2]}, {dst[3]}")
        a(f"s_max_u32 {st}, {st}, {dst[4]}")
        a(f"s_max_u32 {st}, {st}, {st2}")
        a(f"s_cmp_gt_u32 {st}, {CAP}")
        a(f"s_cselect_b32 {st}, 1, 0")
        a(f"s_or_b32 {sFail}, {sFail}, {st}")
        for jj in range(5):
            a(f"s_min_u32 {dst[jj]}, {dst[jj]}, {CAP}")

    def rbf_operand(self, d, cen, dst, tt, sQ):
        a = self.a
        t = [tt[0], tt[1], tt[2], tt[3]]; u = tt[4]; dv = tt[5]
        a(f"v_lshlrev_b32 {dv}, 16, {d}")
        for i in range(4): a(f"v_sub_f32 {t[i]}, {dv}, {cen[i]}")
        def rnd():
            for h in range(2):
                a(f"v_cvt_pk_bf16_f32 {u}, {t[2*h]}, {t[2*h+1]}")
                a(f"v_lshlrev_b32 {t[2*h]}, 16, {u}")
                a(f"v_and_b32 {t[2*h+1]}, 0xffff0000, {u}")
        rnd()
        for i in range(4): a(f"v_mul_f32 {t[i]}, {t[i]}, {t[i]}")
        rnd()
        for i in range(4): a(f"v_mul_f32 {t[i]}, 0xc1200000, {t[i]}")
        rnd()
        for i in range(4): a(f"v_mul_f32 {t[i]}, 0x3fb8aa3b, {t[i]}")
        for i in range(4): a(f"v_exp_f32 {t[i]}, {t[i]}")
        a(f"v_cvt_pk_bf16_f32 {dst[0]}, {t[0]}, {t[1]}")
        a(f"v_cvt_pk_bf16_f32 {dst[1]}, {t[2]}, {t[3]}")
        a(f"v_cndmask_b32 {dst[0]}, 0, {dst[0]}, {sQ}")
        a(f"v_cndmask_b32 {dst[1]}, 0, {dst[1]}, {sQ}")

    def tagcheck(self, x):
        a = self.a; c = self.c; tt = c['tt']
        u = tt[10]; w = tt[11]
        a(f"v_perm_b32 {u}, {x[3]}, {x[3]}, {c['Sel']}")
        a(f"v_or_b32_dpp {u}, {u}, {u} quad_perm:[1,0,3,2] row_mask:0xf bank_mask:0xf")
        a(f"v_or_b32_dpp {u}, {u}, {u} quad_perm:[2,3,0,1] row_mask:0xf bank_mask:0xf")
        a(f"v_lshlrev_b32 {w}, 8, {u}")
        a(f"v_xad_u32 {u}, {u}, {w}, {c['NegT']}")
        a(f"v_cmp_le_u32 vcc, 8, {u}")

    def checked(self, x, l, k, name, sub=None):
        a = self.a
        self.tagcheck(x)
        a(f"s_cbranch_vccnz c_rp_{name}")
        a.label(f"c_ok_{name}")
        self.late.append((self._repoll, (x, l, k, name, sub)))

    def _repoll(self, x, l, k, name, sub):
        a = self.a; c = self.c; tt = c['tt']
        ex = sub if sub is not None else '-1'
        a.label(f"c_rp_{name}")
        a(f"s_mov_b32 {c['sPoll']}, 0")
        L = a.newlabel('rpl'); Lto = a.newlabel('rpt')
        a(f"s_cmp_lg_u32 {c['sFail']}, 0")
        a(f"s_cbranch_scc1 {Lto}")
        a.label(L)
        a(f"s_sleep {self.o['psleep']}")
        a(f"s_mov_b64 exec, vcc")
        a(f"s_add_u32 {c['st']}, {c['sPoff']}, {(l * 256) << 15}")
        a(f"buffer_load_dwordx4 {x}, {c['vLine']}, {c['sWS']}, {c['st']} offen offset:{k*1024} {self.o['tupflags']}")
        a("s_waitcnt vmcnt(0)")
        self.tagcheck(x)
        a(f"s_mov_b64 exec, {ex}")
        a(f"s_cbranch_vccz c_ok_{name}")
        a(f"s_add_u32 {c['sPoll']}, {c['sPoll']}, 1")
        a(f"s_cmp_lt_u32 {c['sPoll']}, {self.o['poll_max']}")
        a(f"s_cbranch_scc1 {L}")
        a.label(Lto)
        a(f"s_mov_b32 {c['sFail']}, 1")
        a(f"v_mov_b32 {tt[0]}, -1")
        for h in range(3):
            a(f"v_cndmask_b32 {x[h]}, {x[h]}, {tt[0]}, vcc")
        a(f"s_branch c_ok_{name}")

    def insert(self, x, l, k=None, sub=None):
        a = self.a; c = self.c; tt = c['tt']; sv = c['sv']
        g = tt[0:3]; rk = tt[3:6]; cs = tt[6:9]
        for h in range(3): a(f"v_cmp_gt_u32 {sv[h]}, {c['Lim']}, {x[h]}")
        for h in range(3): a(f"v_bfe_u32 {g[h]}, {x[h]}, 8, 6")
        if l == 0:
            for h in range(3):
                a(f"v_cmp_le_u32 vcc, {c['LimA']}, {x[h]}")
                a(f"v_addc_co_u32 {g[h]}, vcc, {g[h]}, {g[h]}, vcc")
        else:
            for h in range(3): a(f"v_lshl_or_b32 {g[h]}, {g[h]}, 1, 1")
        if l == 1:
            a(f"s_andn2_b64 {sv[2]}, {sv[2]}, {c['sHdr']}")
            a(f"s_mov_b32 {c['st']}, {49 << 18}")
            a(f"s_mov_b32 {c['st2']}, {73 << 18}")
            a(f"v_cmp_le_u32 vcc, {c['st']}, {x[2]}")
            a(f"v_cmp_le_u32 {c['sX']}, {c['st2']}, {x[2]}")
        for h in range(3): a(f"v_lshl_add_u32 {rk[h]}, {g[h]}, 2, {CC}")
        for h in range(3):
            a(f"s_mov_b64 exec, {sv[h]}")
            a(f"ds_add_rtn_u32 {rk[h]}, {rk[h]}, {c['vOne']}")
        a(f"s_mov_b64 exec, -1")
        for h in range(3): a(f"v_bfe_u32 {cs[h]}, {x[3]}, {8 * h}, 8")
        for h in range(3): a(f"v_mad_u32_u24 {g[h]}, {g[h]}, {c['GS']}, {c['vCB']}")
        if l == 1:
            m = c['sMore'][k]
            a(f"s_and_b64 {m}, vcc, {c['sHdr']}")
            a(f"s_lshr_b64 {m}, {m}, 7")
            a(f"s_lshl_b64 {c['sSave']}, {m}, 8")
            a(f"s_sub_u32 {m[0]}, {c['sSave'][0]}, {m[0]}")
            a(f"s_subb_u32 {m[1]}, {c['sSave'][1]}, {m[1]}")
        a("s_waitcnt lgkmcnt(0)")
        for h in range(3): a(f"v_min_u32 {rk[h]}, {CAP}, {rk[h]}")
        for h in range(3): a(f"v_lshl_add_u32 {g[h]}, {rk[h]}, 3, {g[h]}")
        for h in range(3):
            a(f"s_mov_b64 exec, {sv[h]}")
            a(f"ds_write2_b32 {g[h]}, {x[h]}, {cs[h]} offset0:0 offset1:1")
        a(f"s_mov_b64 exec, -1")
        if l == 1:
            a(f"s_and_b64 {c['sX']}, {c['sX']}, {c['sHdr']}")
            a(f"s_cbranch_scc1 c_l3_{k}")
            a.label(f"c_l3_back_{k}")
            self.late.append((self._line3, (x, k)))

    def _line3(self, x, k):
        a = self.a; c = self.c; tt = c['tt']
        m = c['sX']; Y = self.c3
        a.label(f"c_l3_{k}")
        a(f"s_mov_b32 {c['st']}, {97 << 18}")
        a(f"v_cmp_le_u32 vcc, {c['st']}, {x[2]}")
        a(f"s_and_b64 vcc, vcc, {c['sHdr']}")
        a(f"s_cselect_b32 {c['st']}, 1, 0")
        a(f"s_or_b32 {c['sFail']}, {c['sFail']}, {c['st']}")
        a(f"s_lshr_b64 {m}, {m}, 7")
        a(f"s_lshl_b64 {c['sSave']}, {m}, 8")
        a(f"s_sub_u32 {m[0]}, {c['sSave'][0]}, {m[0]}")
        a(f"s_subb_u32 {m[1]}, {c['sSave'][1]}, {m[1]}")
        a(f"s_cmp_lg_u32 {c['sFail']}, 0")
        a(f"s_cbranch_scc1 c_l3_back_{k}")
        a(f"s_add_u32 {c['st']}, {c['sPoff']}, {(3 * 256) << 15}")
        a(f"s_mov_b64 exec, {m}")
        a(f"buffer_load_dwordx4 {Y}, {c['vLine']}, {c['sWS']}, {c['st']} offen offset:{k*1024} {self.o['tupflags']}")
        a("s_waitcnt vmcnt(0)")
        self.checked(Y, 3, k, f't{k}', sub=m)
        self.insert(Y, 3, sub=m)
        a(f"s_branch c_l3_back_{k}")

    def _fallback(self, acc, rows, X, D1, Bq, Wa, Wb, vLane, vZero, vOne, vHalf, vTau, sE0, sCw, sOI, sIN, sAN, sM,
                  st, st2, sMore, pDBG, sN, sCh, sLaneS, vOff, vIdx, vAddr, vC16, vT, sv):
        a = self.a
        a.label("c_fallback")
        a(f"global_store_dword {vZero}, {vOne}, {pDBG} offset:16")
        for j in range(5):
            for l in range(2):
                for i in range(4): a(f"v_mov_b32 {acc[j][l][i]}, 0")
        sMask = sMore[0]; sLoc = Reg('s', 6); sTt = Reg('s', 7); sSel = sMore[2]; sSel2 = sMore[3]
        a(f"s_movk_i32 {sN}, 80")
        a(f"s_cmp_eq_u32 {sCw}, 7")
        a(f"s_cselect_b32 {sN}, 65, {sN}")
        a(f"s_mov_b32 {sCh}, 0")
        vL16 = vIdx; vI15 = vAddr
        a(f"v_lshlrev_b32 {vL16}, 4, {vLane}")
        a(f"v_and_b32 {vI15}, 15, {vLane}")
        for i in range(1, 4):
            a(f"v_mov_b32 {Bq[0][0][i]}, 0")
            a(f"v_mov_b32 {Bq[0][1][i]}, 0")
        a(f"v_cmp_eq_u32 {sSel}, 0, {vTau[0]}")
        Lc = "c_fb_chunk"
        a.label(Lc)
        a(f"buffer_load_dwordx4 {X[3]}, {vL16}, {sOI}, {sCh} offen")
        a("s_waitcnt vmcnt(0)")
        for cidx in range(4):
            Lh = f"c_fb_h{cidx}"; Ld = f"c_fb_d{cidx}"
            a(f"v_subrev_u32 {X[3][cidx]}, {sE0}, {X[3][cidx]}")
            a(f"v_cmp_gt_u32 {sMask}, {sN}, {X[3][cidx]}")
            a.label(Lh)
            a(f"s_cmp_eq_u64 {sMask}, 0")
            a(f"s_cbranch_scc1 {Ld}")
            a(f"s_ff1_i32_b64 {sLaneS}, {sMask}")
            a(f"s_bitset0_b64 {sMask}, {sLaneS}")
            a(f"s_nop 3")
            a(f"v_readlane_b32 {sLoc}, {X[3][cidx]}, {sLaneS}")
            a(f"s_lshl_b32 {sTt}, {sLaneS}, 4")
            a(f"s_add_u32 {sTt}, {sTt}, {sCh}")
            a(f"s_add_u32 {sTt}, {sTt}, {cidx*4}")
            a(f"v_mov_b32 {vOff}, {sTt}")
            a(f"v_lshrrev_b32 {vC16}, 1, {vOff}")
            a(f"buffer_load_dword {vT[0]}, {vOff}, {sIN}, 0 offen")
            a(f"buffer_load_ushort {vT[1]}, {vC16}, {sAN}, 0 offen")
            a("s_waitcnt vmcnt(0)")
            a(f"v_lshl_or_b32 {vOff}, {vT[0]}, 5, {vHalf}")
            a(f"v_cndmask_b32 {vOff}, {OOB}, {vOff}, {sSel}")
            a(f"buffer_load_dwordx4 {rows[0]}, {vOff}, {sM}, 0 offen")
            a(f"v_lshlrev_b32 {vT[1]}, 16, {vT[1]}")
            a(f"v_mul_f32 {vT[1]}, 0x{INV2PI:x}, {vT[1]}")
            a(f"v_fract_f32 {vT[1]}, {vT[1]}")
            a(f"v_cos_f32 {vT[1]}, {vT[1]}")
            a(f"s_and_b32 {st}, {sLoc}, 15")
            a(f"v_cmp_eq_u32 {sSel2}, {st}, {vLane}")
            a(f"v_fma_f32 {vT[0]}, {vT[1]}, {vT[1]}, -0.5")
            a(f"v_cvt_pk_bf16_f32 {vT[0]}, {vT[1]}, {vT[0]}")
            a(f"v_and_b32 {vT[1]}, 0xffff, {vT[0]}")
            a(f"v_lshrrev_b32 {vT[0]}, 16, {vT[0]}")
            a(f"v_cndmask_b32 {Bq[0][0][0]}, 0, {vT[1]}, {sSel2}")
            a(f"v_cndmask_b32 {Bq[0][1][0]}, 0, {vT[0]}, {sSel2}")
            a("s_waitcnt vmcnt(0)")
            rw = rows[0]
            a(f"v_mfma_f32_16x16x32_bf16 {D1[0]}, {rw}, {Wa}, 0")
            a(f"v_mfma_f32_16x16x32_bf16 {D1[1]}, {rw}, {Wb}, 0")
            a(f"v_cvt_pk_bf16_f32 {rw[0]}, {D1[0][0]}, {D1[0][1]}")
            a(f"v_cvt_pk_bf16_f32 {rw[1]}, {D1[0][2]}, {D1[0][3]}")
            a(f"v_cvt_pk_bf16_f32 {rw[2]}, {D1[1][0]}, {D1[1][1]}")
            a(f"v_cvt_pk_bf16_f32 {rw[3]}, {D1[1][2]}, {D1[1][3]}")
            a(f"s_lshr_b32 {st}, {sLoc}, 4")
            for j in range(5):
                Lj = a.newlabel('fbj')
                a(f"s_cmp_lg_u32 {st}, {j}")
                a(f"s_cbranch_scc1 {Lj}")
                a(f"v_mfma_f32_16x16x32_bf16 {acc[j][0]}, {rw}, {Bq[0][0]}, {acc[j][0]}")
                a(f"v_mfma_f32_16x16x32_bf16 {acc[j][1]}, {rw}, {Bq[0][1]}, {acc[j][1]}")
                a.label(Lj)
            a(f"s_branch {Lh}")
            a.label(Ld)
        a(f"s_add_u32 {sCh}, {sCh}, 1024")
        a(f"s_cmp_lt_u32 {sCh}, {T*4}")
        a(f"s_cbranch_scc1 {Lc}")
        a("s_branch c_fb_back")

    def epilogue(self, acc, Mr, D1, Bq, rbfB, Aop, tt, vLane, vMoff, sCw, sOUT, st, rows, X):
        a = self.a
        A0, A1, AG, AU = Aop
        t0 = tt[0]; t1 = tt[1]
        a(f"v_and_b32 {t0}, 15, {vLane}")
        a(f"s_mul_i32 {st}, {sCw}, 80")
        a(f"v_add_u32 {t0}, {st}, {t0}")
        a(f"v_add_u32 {t0}, 64, {t0}")
        a(f"v_cmp_gt_u32 vcc, 625, {t0}")
        a(f"v_cndmask_b32 {t1}, {OOB}, {vMoff}, vcc")
        G0 = [rows[0], rows[1]]; G1 = [rows[2], rows[3]]; GT = [rows[4], rows[5]]; U = [D1[0], D1[1]]
        ag = [Bq[0][0][0:2], Bq[0][0][2:4]]
        mm = [Bq[0][1], Bq[1][0]]
        oo = [Bq[1][1][0:2], Bq[1][1][2:4]]

        def gm(j):
            s = j & 1
            a(f"v_mfma_f32_16x16x16_bf16 {G0[s]}, {A0}, {rbfB[j]}, 0")
            a(f"v_mfma_f32_16x16x16_bf16 {G1[s]}, {A1}, {rbfB[j]}, 0")
            a(f"v_mfma_f32_16x16x16_bf16 {GT[s]}, {AG}, {rbfB[j]}, 0")
        gm(0)
        for j in range(5):
            s = j & 1
            if j + 1 < 5: gm(j + 1)
            mrow = Mr[j]
            a(f"v_lshlrev_b32 {mm[s][0]}, 16, {mrow[0]}")
            a(f"v_and_b32 {mm[s][1]}, 0xffff0000, {mrow[0]}")
            a(f"v_lshlrev_b32 {mm[s][2]}, 16, {mrow[1]}")
            a(f"v_and_b32 {mm[s][3]}, 0xffff0000, {mrow[1]}")
            for i in range(4):
                a(f"v_mul_f32 {G0[s][i]}, {G0[s][i]}, {acc[j][0][i]}")
            for i in range(4):
                a(f"v_fma_f32 {G0[s][i]}, {G1[s][i]}, {acc[j][1][i]}, {G0[s][i]}")
            a(f"v_cvt_pk_bf16_f32 {ag[s][0]}, {G0[s][0]}, {G0[s][1]}")
            a(f"v_cvt_pk_bf16_f32 {ag[s][1]}, {G0[s][2]}, {G0[s][3]}")
            a(f"v_mfma_f32_16x16x16_bf16 {U[s]}, {AU}, {ag[s]}, 0")
            for i in range(4):
                a(f"v_fma_f32 {mm[s][i]}, {U[s][i]}, {GT[s][i]}, {mm[s][i]}")
            o = oo[s]
            a(f"v_cvt_pk_bf16_f32 {o[0]}, {mm[s][0]}, {mm[s][1]}")
            a(f"v_cvt_pk_bf16_f32 {o[1]}, {mm[s][2]}, {mm[s][3]}")
            off = t1 if j == 4 else vMoff
            a(f"buffer_store_dwordx2 {o}, {off}, {sOUT}, 0 offen offset:{j*512} {self.o.get('outflags', '')}")

    def kernel(self, label):
        a = self.a
        self.late = []
        self.Lend = label + '_end'
        self.sWave = Reg('s', 60); self.sT64 = Reg('s', 98, 2)
        self.vProf = Reg('v', 255)
        a.lines.append(f".globl {label}")
        a.lines.append(".p2align 8")
        a.lines.append(f".type {label},@function")
        a.label(label)
        a("s_cmp_ge_u32 s2, 256")
        a(f"s_cbranch_scc1 {self.Lend}")
        a("s_load_dwordx16 s[4:19], s[0:1], 0")
        a("s_load_dwordx8 s[20:27], s[0:1], 64")
        a("s_load_dwordx4 s[28:31], s[0:1], 96")
        a("s_memrealtime s[100:101]")
        if self.prof:
            a("s_memrealtime s[98:99]")
        a("v_lshrrev_b32 v1, 6, v0")
        a("v_and_b32 v0, 63, v0")
        a(f"v_readfirstlane_b32 {self.sWave}, v1")
        if self.prof:
            a("s_waitcnt lgkmcnt(0)")
            a("v_mov_b32 v255, 0")
            a("v_writelane_b32 v255, s98, 50")
        self.body(self.sWave)
        i = 0
        while i < len(self.late):
            fn, args = self.late[i]; fn(*args); i += 1
        a.label(self.Lend)
        a("s_endpgm")

    def build(self):
        hdr = open('cdna_kernels/' + NAME + '.s.ref').read().split('\n')
        head = [l for l in hdr if l.startswith(';') and '@launch' not in l]
        out = list(head)
        K = NAME + '_kernel'
        out.append(f"; @launch grid=(256,1,1) block=(512,1,1) lds={LDS_END}")
        out.append('.amdgcn_target "amdgcn-amd-amdhsa--gfx950"')
        out.append('.text')
        self.kernel(K)
        body = self.a.finalize()
        print(f"{K}: {len(self.a.lines)} lines, nops {self.a.nops}", file=sys.stderr)
        out.append(body)
        out.append('.section .rodata,"a"')
        out.append(f""".p2align 6
.amdhsa_kernel {K}
  .amdhsa_next_free_vgpr 256
  .amdhsa_next_free_sgpr 102
  .amdhsa_accum_offset 256
  .amdhsa_group_segment_fixed_size 0
  .amdhsa_kernarg_size 112
  .amdhsa_user_sgpr_count 2
  .amdhsa_user_sgpr_kernarg_segment_ptr 1
  .amdhsa_system_sgpr_workgroup_id_x 1
.end_amdhsa_kernel""")
        return '\n'.join(out) + '\n'


if __name__ == '__main__':
    import argparse, ast
    ap = argparse.ArgumentParser()
    ap.add_argument('--prof', action='store_true')
    ap.add_argument('--opt', action='append', default=[])
    ap.add_argument('-o', required=True)
    args = ap.parse_args()
    opts = {}
    for kv in args.opt:
        k, v = kv.split('=', 1)
        try: v = ast.literal_eval(v)
        except Exception: pass
        opts[k] = v
    g = Gen(args.prof, opts)
    s = g.build()
    open(args.o, 'w').write(s)
```

```python
import sys, re, os
sys.path.insert(0, 'gen')
from asmlib import *

NAME = 'standalone__molecular_angular_gemnet__graph'

E = 160000; T = 2560000
MAGIC = 6871948
CB_CNT, FAIL = 8, 16
CC = 64
WSC = 512
EPW = 1024
STG = 3072
PB = 19456
PBS = 492
HDR = 188
BYT = 388
DUMP = 96
CB = PB
GS = 1552
CAP = 192
LDS_END = PB + 256 * PBS
NLINE = 4
WSB = NLINE * 256 * 32768
LIM = 0x9C400000
INV = 0xFFFFFFFF
GUARD = 1300
OOB = '1.0'
PROF_OFF = 100 << 20
INV2PI = 0x3e22f983
NBLK = 6
NPOS = 30
import struct
def f32(x): return struct.unpack('<I', struct.pack('<f', x))[0]


class Gen:
    def __init__(self, prof=False, opts=None):
        self.prof = prof
        self.o = dict(poll_max=60000, ldflags='', tupflags='sc1', stflags='sc1', outflags='sc1', force_fail=False,
                      up=3, dg=4, nr=6, gate='ack0', pins=(8, 9, 10, 11), psec=16, pwait=22,
                      lima=80000, psleep=1, gmask=0xffffffe0, mat='gap', optblk=4,
                      q0n=3, q1n=6, l1s=('pre', 'post', 'post', 'post'), l2s='post', ppl=(2, 3, 4, 5),
                      pfa=0, pfmode='id', tlbw=0, rbfat='gap', gapat='pre')
        if opts: self.o.update(opts)
        self.a = Asm()

    def stamp(self, idx):
        if not self.prof: return
        a = self.a
        a(f"s_memrealtime {self.sT64}")
        a("s_waitcnt lgkmcnt(0)")
        a(f"v_writelane_b32 {self.vProf}, {self.sT64[0]}, {idx}")

    def stamp_dyn(self, sidx):
        if not self.prof: return
        a = self.a
        a(f"s_memrealtime {self.sT64}")
        a("s_waitcnt lgkmcnt(0)")
        a(f"s_mov_b32 m0, {sidx}")
        a(f"s_nop 3")
        a(f"v_writelane_b32 {self.vProf}, {self.sT64[0]}, m0")

    def prof_store(self, wave_sgpr):
        if not self.prof: return
        a = self.a
        a(f"s_mul_i32 {self.sT64[0]}, s2, 12")
        a(f"s_add_u32 {self.sT64[0]}, {self.sT64[0]}, {wave_sgpr}")
        a(f"s_lshl_b32 {self.sT64[0]}, {self.sT64[0]}, 8")
        a(f"s_add_u32 {self.sT64[0]}, {self.sT64[0]}, {PROF_OFF}")
        a(f"v_mbcnt_lo_u32_b32 v1, -1, 0")
        a(f"v_mbcnt_hi_u32_b32 v1, -1, v1")
        a(f"v_lshlrev_b32 v1, 2, v1")
        a(f"v_add_u32 v1, {self.sT64[0]}, v1")
        a(f"s_mov_b64 exec, -1")
        a(f"global_store_dword v1, {self.vProf}, s[30:31]")

    def lds_spin(self, off, target, vt, vzero, st):
        a = self.a
        L = a.newlabel('spin')
        Lx = a.newlabel('spinx')
        a.label(L)
        a(f"ds_read_b32 {vt}, {vzero} offset:{off}")
        a("s_waitcnt lgkmcnt(0)")
        a(f"v_readfirstlane_b32 {st}, {vt}")
        a(f"s_cmp_ge_u32 {st}, {target}")
        a(f"s_cbranch_scc1 {Lx}")
        a("s_sleep 1")
        a(f"s_branch {L}")
        a.label(Lx)

    def lds_arrive(self, off, vzero, vone):
        a = self.a
        a("s_mov_b64 exec, 1")
        a(f"ds_add_u32 {vzero}, {vone} offset:{off}")
        a("s_mov_b64 exec, -1")

    def srd(self, reg, src, n):
        a = self.a
        a(f"s_mov_b32 {reg[0]}, s{src}")
        a(f"s_mov_b32 {reg[1]}, s{src+1}")
        a(f"s_mov_b32 {reg[2]}, {n}")
        a(f"s_mov_b32 {reg[3]}, 0x00020000")

    def vm_issue(self, tag, optional=False):
        self.a.lines.append(f"; @ISSUE{'?' if optional else ''} {tag}")

    def vm_wait(self, tag, linear=False):
        self.a.lines.append(f"; @WAIT{'L' if linear else ''} {tag}")

    def resolve_vm(self, start, end):
        lines = self.a.lines
        n = end - start
        for i in range(len(lines)):
            l = lines[i]
            if l.startswith("; @WAITL "):
                tag = l.split()[2]
                cnt = 0; found = False
                for back in range(i - 1, -1, -1):
                    ll = lines[back]
                    if ll.startswith("; @ISSUE"):
                        if ll.split()[2] == tag:
                            found = True; break
                        if not ll.startswith("; @ISSUE?"): cnt += 1
                assert found, tag
                lines[i] = f"s_waitcnt vmcnt({min(cnt, 63)})"
            elif l.startswith("; @WAIT "):
                assert start <= i < end
                tag = l.split()[2]
                cnt = 0; found = False
                pos = i - start
                for back in range(1, n + 1):
                    ll = lines[start + (pos - back) % n]
                    if ll.startswith("; @ISSUE"):
                        if ll.split()[2] == tag:
                            found = True; break
                        if not ll.startswith("; @ISSUE?"): cnt += 1
                assert found, tag
                lines[i] = f"s_waitcnt vmcnt({min(cnt, 63)})"

    def body(self, sW):
        a = self.a
        o = self.o
        DG = o['dg']; NR = o['nr']
        assert NPOS % NR == 0 and DG <= NR - 1 and DG <= 8
        V = Alloc('v', 2, 255)
        S = Alloc('s', 62, 98)
        vLane = Reg('v', 0)
        sM = Reg('s', 32, 4); sIN = Reg('s', 36, 4); sOI = Reg('s', 40, 4); sDI = Reg('s', 44, 4)
        sAN = Reg('s', 48, 4); sOUT = Reg('s', 52, 4); sWS = Reg('s', 56, 4)
        pCEN = Reg('s', 14, 2); pWR = Reg('s', 18, 2); pWS = Reg('s', 20, 2); pWD = Reg('s', 22, 2)
        pWU = Reg('s', 24, 2); pDBG = Reg('s', 28, 2)
        vZero = V('zero'); vOne = V('one')
        acc = [[V(f'acc{j}{l}', 4) for l in range(2)] for j in range(5)]
        Wa = V('wa', 4); Wb = V('wb', 4)
        rbfB = [V(f'rbf{j}', 2) for j in range(5)]
        Mr = [V(f'mr{j}', 2) for j in range(5)]
        vMoff = V('moff'); vLine = V('line'); vSel = V('sel'); vCB = V('cb')
        wraw = V('wraw', 2); dd = [V(f'dd{j}') for j in range(5)]; cenr = V('cenr', 2); raw = V('raw', 4)
        Ln12 = [[V(f'ln{l}{i}', 4) for i in range(4)] for l in (1, 2)]
        vTag = V('tag'); vSt = V('stv'); vPf = V('pf'); vPfD = V('pfd')
        mk0 = V.mark()
        st = S('st'); st2 = S('st2'); so = S('so')
        sFail = Reg('s', 61); sPoll = S('poll'); sG0 = S('g0'); sE0 = S('e0')
        sNegT = S('negT'); sLim = S('lim'); sLimA = S('lima'); sGS = S('gs'); sHi = S('hi')
        sSrc = S('src'); sM24 = S('m24'); sPf = S('pf'); so2 = S('so2')
        sL2 = [Reg('s', 0, 2), Reg('s', 44, 2), Reg('s', 46, 2), S('l2d', 2)]
        smk0 = S.mark()
        Q = [dict(i=V(f'q{k}i', 4), o=V(f'q{k}o', 4), a=V(f'q{k}a', 2)) for k in range(5)]
        tb = V('tb', 4)
        tmp = [dict(mk=V(f'mk{s}', 4), sh=V(f'sh{s}', 4), old=V(f'old{s}', 4), by=V(f'by{s}', 4), inc=V(f'inc{s}', 4))
               for s in range(2)]
        vOffQ = V('offq'); vOffA = V('offa'); vPB = V('pb'); vC2048 = V('c2048'); vi = V('vi', 4); vt = V('vt'); vt2 = V('vt2')
        vRd = V('rd'); vRb = V('rb'); vRh = V('rh')
        Ln = [[V(f'ln0{i}', 4) for i in range(4)]] + Ln12
        Hd = [V(f'hd{i}') for i in range(4)]
        print('phase 1/2 vgprs', V.high, file=sys.stderr)
        sMagic = S('magic'); sNeg = S('neg'); s492 = S('c492'); sLimIn = S('limin'); sK18 = S('k18'); sCq = S('cq')
        sOffI = S('offi'); sOffA = S('offa'); sLast = S('last', 2)
        sm = [Reg('s', 4 + 2 * k, 2) for k in range(4)]
        sm4 = Reg('s', 12, 2)
        ld = o['ldflags']
        self.vmseq = []

        def load_part(k, part):
            q = Q[k]
            if part == 0:
                a(f"s_add_u32 {so}, {sOffI}, {k * 1024}")
                a(f"buffer_load_dwordx4 {q['o']}, {vOffQ}, {sOI}, {so} offen {ld}")
            elif part == 1:
                a(f"s_add_u32 {so}, {sOffI}, {k * 1024}")
                a(f"buffer_load_dwordx4 {q['i']}, {vOffQ}, {sIN}, {so} offen {ld}")
            else:
                a(f"s_add_u32 {so}, {sOffA}, {k * 512}")
                a(f"buffer_load_dwordx2 {q['a']}, {vOffA}, {sAN}, {so} offen {ld}")
            self.vmseq.append(f'Q{k}')

        def load_quad(k):
            if k == 4: a(f"s_mov_b64 exec, {sLast}")
            for part in range(3): load_part(k, part)
            if k == 4: a(f"s_mov_b64 exec, -1")

        def wait_for(tag):
            last = max(i for i, x in enumerate(self.vmseq) if x == tag)
            a(f"s_waitcnt vmcnt({min(len(self.vmseq) - 1 - last, 63)})")

        a(f"s_mul_i32 {st}, {sW}, 5120")
        a(f"v_lshlrev_b32 {vOffQ}, 4, {vLane}")
        a(f"v_add_u32 {vOffQ}, {st}, {vOffQ}")
        a(f"v_lshrrev_b32 {vOffA}, 1, {vOffQ}")
        a(f"s_mul_i32 {sOffI}, s2, 40000")
        a(f"s_mul_i32 {sOffA}, s2, 20000")
        a(f"s_cmp_eq_u32 {sW}, 7")
        a(f"s_cselect_b64 {sLast}, 15, -1")
        a(f"s_mul_i32 {sE0}, s2, 625")
        a(f"s_mul_i32 {st}, {sW}, 80")
        a(f"s_add_u32 {sE0}, {sE0}, {st}")
        a("s_waitcnt lgkmcnt(0)")
        self.stamp(51)
        self.srd(sOI, 8, T * 4); self.srd(sIN, 6, T * 4); self.srd(sAN, 12, T * 2)
        up = o['up']
        parts = [(k, part) for k in range(up) for part in range(3)]
        q0n = o['q0n']
        for k, part in parts[:q0n]: load_part(k, part)
        a(f"s_mov_b32 {sG0}, s100")
        for i in range(4): a(f"v_mov_b32 {vi[i]}, -1")
        a(f"s_mul_i32 {st}, {sW}, {32 * PBS}")
        a(f"s_add_u32 {st}, {st}, {PB}")
        a(f"v_lshlrev_b32 {vt}, 4, {vLane}")
        a(f"v_add_u32 {vt2}, {st}, {vt}")
        for i in range(15):
            a(f"ds_write_b128 {vt2}, {vi} offset:{i*1024}")
        a(f"s_mov_b64 exec, 0xffffff")
        a(f"ds_write_b128 {vt2}, {vi} offset:{15*1024}")
        a(f"s_mov_b32 exec_lo, -1")
        a(f"s_mov_b32 exec_hi, 0")
        a(f"s_movk_i32 {s492}, {PBS}")
        a(f"v_mov_b32 {vPB}, {st}")
        a(f"v_mad_u32_u24 {vt2}, {vLane}, {s492}, {vPB}")
        a(f"v_mov_b32 {vi[0]}, {1 << 18}")
        a(f"ds_write_b32 {vt2}, {vi[0]} offset:{HDR}")
        a(f"s_mov_b64 exec, -1")
        for i in range(4): a(f"v_mov_b32 {vi[i]}, 0")
        a(f"s_lshl_b32 {st}, {sW}, 11")
        a(f"s_add_u32 {st}, {st}, {STG}")
        a(f"v_add_u32 {vt2}, {st}, {vt}")
        a(f"ds_write_b128 {vt2}, {vi}")
        a(f"ds_write_b128 {vt2}, {vi} offset:1024")
        Lz = a.newlabel('z')
        a(f"s_cmp_lg_u32 {sW}, 0")
        a(f"s_cbranch_scc1 {Lz}")
        a(f"v_lshlrev_b32 {vt2}, 3, {vLane}")
        a(f"ds_write_b64 {vt2}, {vi[0:2]}")
        a.label(Lz)
        a(f"v_mov_b32 {vOne}, 1")
        a(f"v_mov_b32 {vPB}, {PB}")
        a(f"v_mov_b32 {vC2048}, 0x{f32(2048.0):x}")
        a(f"s_mov_b32 {sCq}, 0x{f32(2047.5):x}")
        a(f"s_mov_b32 {sMagic}, {MAGIC}")
        a(f"s_movk_i32 {sNeg}, -10000")
        a(f"s_mov_b32 {sLimIn}, {o['lima'] - 1}")
        a(f"s_mov_b32 {sK18}, {1 << 18}")
        a(f"s_mov_b32 {sHi}, 0xffff0000")
        a("s_waitcnt lgkmcnt(0)")
        a("s_barrier")
        self.stamp(1)
        q1n = max(q0n, o['q1n'])
        for k, part in parts[q0n:q1n]: load_part(k, part)
        self.srd(sM, 4, E * 32); self.srd(sDI, 10, E * 2); self.srd(sOUT, 26, E * 32); self.srd(sWS, 30, WSB)
        a(f"v_mov_b32 {vZero}, 0")
        a(f"v_mov_b32 {vCB}, {CB}")
        a(f"s_mov_b32 {sLim}, 0x{LIM:x}")
        a(f"s_mov_b32 {sLimA}, 0x{o['lima'] << 14:x}")
        a(f"s_movk_i32 {sGS}, {GS}")
        a(f"s_mov_b32 {sM24}, 0x00ffffff")
        a(f"s_lshl_b32 {sSrc}, s2, 7")
        a(f"s_mov_b32 {sFail}, {1 if o['force_fail'] else 0}")
        a("s_lshr_b64 s[100:101], s[100:101], 8")
        a(f"s_sub_u32 {sNegT}, 3, s100")
        a(f"s_lshl_b32 {st}, s100, 8")
        a(f"s_xor_b32 {st}, {st}, s100")
        a(f"s_lshl_b32 {st2}, {st}, 16")
        a(f"s_xor_b32 {st}, {st}, {st2}")
        a(f"v_and_b32 {vt}, 3, {vLane}")
        a(f"v_lshlrev_b32 {vt}, 3, {vt}")
        a(f"v_lshrrev_b32 {vTag}, {vt}, {st}")
        a(f"v_lshlrev_b32 {vTag}, 24, {vTag}")
        a(f"v_mov_b32 {vt2}, 15")
        a(f"v_lshlrev_b32 {vt2}, {vt}, {vt2}")
        a(f"v_xor_b32 {vSel}, 0x0c0c0c0c, {vt2}")
        a(f"v_lshrrev_b32 {vt}, 3, {vLane}")
        a(f"s_lshl_b32 {st}, {sW}, 5")
        a(f"v_add_u32 {vt}, {st}, {vt}")
        a(f"v_and_b32 {vt2}, 7, {vLane}")
        a(f"v_mad_u32_u24 {vRh}, {vt}, {s492}, {vPB}")
        a(f"v_mad_u32_u24 {vRd}, {vt2}, 12, {vRh}")
        a(f"v_mad_u32_u24 {vRb}, {vt2}, 3, {vRh}")
        a(f"v_lshlrev_b32 {vSt}, 15, {vt}")
        a(f"v_lshl_add_u32 {vSt}, {vt2}, 4, {vSt}")
        a(f"s_lshl_b32 {st}, {sW}, 12")
        a(f"v_lshlrev_b32 {vLine}, 4, {vLane}")
        a(f"v_add_u32 {vLine}, {st}, {vLine}")
        if o['tlbw']:
            a(f"s_lshl_b32 {st}, {sW}, 22")
            a(f"v_lshlrev_b32 {vt}, 20, {vLane}")
            a(f"v_add_u32 {vt}, {st}, {vt}")
            a(f"v_cmp_gt_u32 vcc, 4, {vLane}")
            a(f"v_cndmask_b32 {vt}, {OOB}, {vt}, vcc")
            a(f"buffer_load_dword {vPfD}, {vt}, {sWS}, 0 offen")
            self.vmseq.append('tlb')
        if o['pfa']:
            npf = o['pfa'] // 32
            a(f"v_lshlrev_b32 {vPf}, 7, {vLane}")
            a(f"v_cmp_gt_u32 vcc, {npf}, {vLane}")
            a(f"v_cndmask_b32 {vPf}, {OOB}, {vPf}, vcc")
            a(f"s_lshr_b32 {sPf}, s2, 3")
            a(f"s_mul_i32 {sPf}, {sPf}, {o['pfa'] * 128}")
            a(f"s_mul_i32 {st}, {sW}, {4 * npf * 128}")
            a(f"s_add_u32 {sPf}, {sPf}, {st}")
        for j in range(5):
            for l in range(2):
                for i in range(4): a(f"v_mov_b32 {acc[j][l][i]}, 0")
        for k, part in parts[q1n:]: load_part(k, part)
        n_ = vt; q_ = vt2; t3 = tb[0]
        a(f"v_and_b32 {n_}, 15, {vLane}")
        a(f"v_lshrrev_b32 {q_}, 4, {vLane}")
        a(f"v_lshlrev_b32 {t3}, 3, {vLane}")
        a(f"global_load_dwordx2 {wraw}, {t3}, {pWD}")
        a(f"v_add_u32 {t3}, {sE0}, {n_}")
        a(f"v_lshlrev_b32 {vMoff}, 5, {t3}")
        a(f"v_lshl_add_u32 {vMoff}, {q_}, 3, {vMoff}")
        a(f"v_lshlrev_b32 {t3}, 1, {t3}")
        for j in range(5):
            a(f"buffer_load_ushort {dd[j]}, {t3}, {sDI}, 0 offen offset:{j*32}")
        a(f"v_lshlrev_b32 {t3}, 3, {q_}")
        a(f"v_and_b32 {t3}, 8, {t3}")
        a(f"global_load_dwordx2 {cenr}, {t3}, {pCEN}")
        Lw = [a.newlabel('ew') for _ in range(4)]; Lwx = a.newlabel('ewx')
        a(f"s_and_b32 {st2}, {sW}, 3")
        a(f"s_cmp_eq_u32 {st2}, 3")
        a(f"s_cbranch_scc1 {Lw[3]}")
        a(f"s_cmp_eq_u32 {st2}, 2")
        a(f"s_cbranch_scc1 {Lw[2]}")
        a(f"v_and_b32 {t3}, 1, {q_}")
        a(f"v_lshlrev_b32 {t3}, 8, {t3}")
        a(f"v_lshl_add_u32 {t3}, {n_}, 1, {t3}")
        a(f"s_lshl_b32 {st}, {st2}, 5")
        a(f"v_add_u32 {t3}, {st}, {t3}")
        for jj in range(4):
            a(f"global_load_ushort {raw[jj]}, {t3}, {pWS} offset:{jj*64}")
        a(f"s_branch {Lwx}")
        a.label(Lw[2])
        a(f"v_and_b32 {t3}, 1, {q_}")
        a(f"v_lshlrev_b32 {t3}, 7, {t3}")
        a(f"v_lshl_add_u32 {t3}, {n_}, 1, {t3}")
        for jj in range(4):
            a(f"global_load_ushort {raw[jj]}, {t3}, {pWR} offset:{jj*32}")
        a(f"s_branch {Lwx}")
        a.label(Lw[3])
        a(f"v_lshlrev_b32 {t3}, 7, {q_}")
        a(f"v_lshl_add_u32 {t3}, {n_}, 1, {t3}")
        for jj in range(4):
            a(f"global_load_ushort {raw[jj]}, {t3}, {pWU} offset:{jj*32}")
        a.label(Lwx)
        self.vmseq += ['sm'] * 11
        if o['mat'] == 'start':
            for jj in range(5):
                a(f"buffer_load_dwordx2 {Mr[jj]}, {vMoff}, {sM}, 0 offen offset:{jj*512}")
            self.vmseq += ['mr'] * 5
        self.stamp(53)
        def pre(k, s):
            q = Q[k]; w0 = q['i']; wb = q['o']; an = q['a']; t = tmp[s]
            mk, sh, old, by, inc = t['mk'], t['sh'], t['old'], t['by'], t['inc']
            if k == 4: a(f"s_mov_b64 exec, {sLast}")
            for j in range(4): a(f"v_mul_hi_u32_u24 {tb[j]}, {sMagic}, {wb[j]}")
            for j in range(4):
                if j & 1: a(f"v_and_b32 {by[j]}, {sHi}, {an[j >> 1]}")
                else: a(f"v_lshlrev_b32 {by[j]}, 16, {an[j >> 1]}")
            for j in range(4): a(f"v_sub_u32 {mk[j]}, {sLimIn}, {w0[j]}")
            for j in range(4): a(f"v_mul_f32 {by[j]}, 0x{INV2PI:x}, {by[j]}")
            for j in range(4): a(f"v_lshlrev_b32 {wb[j]}, 4, {wb[j]}")
            for j in range(4): a(f"v_ashrrev_i32 {mk[j]}, 31, {mk[j]}")
            for j in range(4): a(f"v_fract_f32 {by[j]}, {by[j]}")
            for j in range(4): a(f"v_mad_i32_i24 {wb[j]}, {tb[j]}, {sNeg}, {wb[j]}")
            for j in range(4): a(f"v_and_b32 {sh[j]}, 9, {mk[j]}")
            for j in range(4): a(f"v_cos_f32 {by[j]}, {by[j]}")
            for j in range(4): a(f"v_lshl_or_b32 {w0[j]}, {w0[j]}, 14, {wb[j]}")
            for j in range(4): a(f"v_lshl_or_b32 {inc[j]}, {vOne}, {sh[j]}, {sK18}")
            for j in range(4): a(f"v_mad_u32_u24 {wb[j]}, {tb[j]}, {s492}, {vPB}")
            if k >= 2: a("s_waitcnt lgkmcnt(8)")
            for j in range(4): a(f"ds_add_rtn_u32 {old[j]}, {wb[j]}, {inc[j]} offset:{HDR}")
            for j in range(4): a(f"v_fma_f32 {by[j]}, {by[j]}, {sCq}, {vC2048}")
            for j in range(4): a(f"v_cvt_u32_f32 {by[j]}, {by[j]}")
            for j in range(4): a(f"v_and_or_b32 {w0[j]}, {by[j]}, 15, {w0[j]}")
            for j in range(4): a(f"v_lshrrev_b32 {by[j]}, 4, {by[j]}")
            if k == 4: a(f"s_mov_b64 exec, -1")

        def post(k, s):
            q = Q[k]; w0 = q['i']; wb = q['o']; t = tmp[s]
            mk, sh, old, by, inc = t['mk'], t['sh'], t['old'], t['by'], t['inc']
            if k == 4: a(f"s_mov_b64 exec, {sLast}")
            for j in range(4): a(f"v_bfe_u32 {sh[j]}, {old[j]}, {sh[j]}, 9")
            for j in range(4): a(f"v_and_b32 {inc[j]}, 47, {mk[j]}")
            for j in range(4): a(f"v_lshrrev_b32 {old[j]}, 18, {old[j]}")
            for j in range(4): a(f"v_xad_u32 {sh[j]}, {sh[j]}, {mk[j]}, {inc[j]}")
            for j in range(4):
                a(f"v_cmp_le_u32 {sm[j]}, 48, {old[j]}")
            for j in range(4):
                a(f"v_cndmask_b32 {sh[j]}, {sh[j]}, {old[j]}, {sm[j]}")
            for j in range(4): a(f"v_min_u32 {sh[j]}, {DUMP}, {sh[j]}")
            for j in range(4): a(f"v_lshl_add_u32 {inc[j]}, {sh[j]}, 2, {wb[j]}")
            for j in range(4): a(f"v_add_u32 {sh[j]}, {sh[j]}, {wb[j]}")
            for j in range(4):
                a(f"ds_write_b32 {inc[j]}, {w0[j]}")
                a(f"ds_write_b8 {sh[j]}, {by[j]} offset:{BYT}")
            if k == 4: a(f"s_mov_b64 exec, -1")

        nxt = up
        for k in range(5):
            wait_for(f'Q{k}')
            if k == 0: self.stamp(2)
            pre(k, k & 1)
            if nxt < 5:
                load_quad(nxt); nxt += 1
            if k > 0:
                a("s_waitcnt lgkmcnt(4)" if k == 1 else "s_waitcnt lgkmcnt(4)")
                post(k - 1, (k - 1) & 1)
        a("s_waitcnt lgkmcnt(0)")
        post(4, 0)
        self.stamp(3)
        a("s_waitcnt lgkmcnt(0)")
        a("s_barrier")
        self.stamp(4)

        stf = o['stflags']
        wait_for('sm')
        L1S = list(o['l1s']); L2S = o['l2s']
        aW = [tmp[0]['mk'][i] for i in range(4)]
        aB = [tmp[0]['sh'][i] for i in range(4)]
        TP = [[Reg('v', Q[l]['i'].i + 2 * it, 2) for it in range(4)] for l in range(3)]
        for l in range(3): assert Q[l]['o'].i == Q[l]['i'].i + 4
        a(f"v_and_b32 {aB[0]}, -4, {vRb}")
        a(f"v_add_u32 {aB[0]}, {BYT}, {aB[0]}")
        a(f"v_mov_b32 {aW[0]}, {vRd}")
        for it in range(1, 4):
            a(f"v_add_u32 {aW[it]}, {it * 8 * PBS}, {vRd}")
            a(f"v_add_u32 {aB[it]}, {it * 8 * PBS}, {aB[0]}")
        def rd(l, it):
            L = Ln[l][it]
            a(f"ds_read2_b32 {L[0:2]}, {aW[it]} offset0:{l * 24} offset1:{l * 24 + 1}")
            a(f"ds_read_b32 {L[2]}, {aW[it]} offset:{l * 96 + 8}")
            a(f"ds_read2_b32 {TP[l][it]}, {aB[it]} offset0:{l * 6} offset1:{l * 6 + 1}")
        def tag(l, it):
            a(f"v_alignbyte_b32 {Ln[l][it][3]}, {TP[l][it][1]}, {TP[l][it][0]}, {vRb}")
            a(f"v_bfi_b32 {Ln[l][it][3]}, {sM24}, {Ln[l][it][3]}, {vTag}")
        def store(l, it, name=None):
            a(f"s_add_u32 {so2}, {sSrc}, {(l * 256 + it * 8) << 15}")
            a(f"buffer_store_dwordx4 {Ln[l][it]}, {vSt}, {sWS}, {so2} offen {stf}")
            if name: self.vmseq.append(name)
        def store2(optional_tag=None):
            for it in range(4):
                Ls = a.newlabel('s2')
                a(f"s_cmp_eq_u64 {sL2[it]}, 0")
                a(f"s_cbranch_scc1 {Ls}")
                a(f"s_mov_b64 exec, {sL2[it]}")
                store(2, it)
                a(f"s_mov_b64 exec, -1")
                a.label(Ls)
        self.store_l = store; self.store2 = store2
        npf = o['pfa'] // 32
        def pf(i):
            if not o['pfa']: return
            a(f"buffer_load_dword {vPfD}, {vPf}, {sM}, {sPf} offen")
            a(f"s_add_u32 {sPf}, {sPf}, {npf * 128}")
            self.vmseq.append('pf')
        for it in range(4): rd(0, it)
        a("s_waitcnt lgkmcnt(6)")
        for it in range(2): tag(0, it)
        store(0, 0, 'L0'); pf(0)
        for it in range(2): rd(1, it)
        store(0, 1, 'L0'); pf(1)
        a("s_waitcnt lgkmcnt(6)")
        for it in range(2, 4): tag(0, it)
        store(0, 2, 'L0'); pf(2)
        store(0, 3, 'L0'); pf(3)
        for it in range(2, 4): rd(1, it)
        a("s_waitcnt lgkmcnt(6)")
        for it in range(4): a(f"ds_read_b32 {Hd[it]}, {vRh} offset:{it * 8 * PBS + HDR}")
        rd(2, 0)
        a("s_waitcnt lgkmcnt(3)")
        for it in range(1, 4): rd(2, it)
        self.stamp(5)
        a(f"s_mov_b32 {st}, {49 << 18}")
        a(f"s_mov_b32 {st2}, {73 << 18}")
        for it in range(4): a(f"v_cmp_le_u32 {sL2[it]}, {st}, {Hd[it]}")
        a(f"v_max3_u32 {vt}, {Hd[0]}, {Hd[1]}, {Hd[2]}")
        a(f"v_max_u32 {vt}, {vt}, {Hd[3]}")
        a(f"v_cmp_le_u32 vcc, {st2}, {vt}")
        for it in range(4): tag(1, it)
        a("s_waitcnt lgkmcnt(0)")
        for it in range(4): tag(2, it)
        a(f"s_cbranch_vccnz p_rare")
        a.label("p_rare_back")
        self.late.append((self._p_rare, (Hd, aW, aB, TP[0][0], vRb, vSt, vTag, sM24, sSrc, so2, st2, sWS, Ln[0][0])))
        if o['mat'] == 'gap':
            for jj in range(5):
                a(f"buffer_load_dwordx2 {Mr[jj]}, {vMoff}, {sM}, 0 offen offset:{jj*512}")
            self.vmseq += ['mr'] * 5
        a("s_barrier")
        for it in range(4):
            if L1S[it] == 'pre': store(1, it, 'L1')
        self.stamp(6)

        V.reset(mk0); S.reset(smk0)
        rows = [V(f'row{i}', 4) for i in range(NR)]
        X = [V(f'x{i}', 4) for i in range(4)]
        D1 = [V(f'd1{i}', 4) for i in range(2)]
        Bq = [[V(f'b{s}{l}', 4) for l in range(2)] for s in range(2)]
        vT = V('tup', 2)
        vIdx = V('idx'); vOff = V('off'); vTau = [V(f'tau{b}') for b in range(NBLK)]; vHalf = V('half16')
        vIdxC = V('idxc'); vIdxN = V('idxn'); vTupC = V('tupc'); vTupN = V('tupn')
        vAddr = V('addr'); vC0 = V('c0'); vC1 = V('c1'); vK = V('k'); vBrd = V('brd'); vK2 = V('k2')
        vCntA = V('cnta'); vC = V('c')
        tt = [V(f'tt{i}') for i in range(12)]
        X0 = [V(f'y{i}', 4) for i in range(4)]
        self.c3 = V('c3', 4)
        print('phase 3 vgprs', V.next, file=sys.stderr)
        sCnt = [S(f'cnt{j}') for j in range(5)]
        sCntN = [S(f'cntn{j}') for j in range(5)]
        sIt = S('it'); sF0 = S('mf0'); sNot31 = S('not31'); sK1 = S('k1'); sPoff = S('poff')
        sHiL = Reg('s', 24, 2); sHdr = Reg('s', 26, 2); sv = [Reg('s', 18 + 2 * h, 2) for h in range(3)]
        sMore = [Reg('s', 4 + 2 * k, 2) for k in range(4)]
        sSave = Reg('s', 12, 2); sX = Reg('s', 16, 2)
        self.c = dict(NegT=sNegT, Sel=vSel, Lim=sLim, LimA=sLimA, GS=sGS, vCB=vCB, vZero=vZero, vOne=vOne,
                      sFail=sFail, sPoll=sPoll, sWS=sWS, vLine=vLine, sPoff=sPoff, tt=tt, X=X, sMore=sMore,
                      sv=sv, sHdr=sHdr, st=st, st2=st2, sX=sX, sSave=sSave)
        t0, t1, t2, t3 = tt[0], tt[1], tt[2], tt[3]
        def gap_epw():
            Ln1 = a.newlabel('nd')
            a(f"s_and_b32 {st2}, {sW}, 3")
            a(f"s_cmp_lg_u32 {st2}, 1")
            a(f"s_cbranch_scc1 {Ln1}")
            for jj in range(4): a(f"v_lshlrev_b32 {raw[jj]}, 16, {raw[jj]}")
            for jj in range(4): a(f"v_add_f32 {raw[jj]}, {raw[jj]}, {raw[jj]}")
            for jj in range(4): a(f"v_lshrrev_b32 {raw[jj]}, 16, {raw[jj]}")
            a.label(Ln1)
            for h in range(2):
                a(f"v_lshl_or_b32 {raw[2*h]}, {raw[2*h + 1]}, 16, {raw[2*h]}")
            a(f"v_mov_b32 {raw[1]}, {raw[2]}")
            a(f"s_lshl_b32 {st}, {st2}, 9")
            a(f"v_lshl_add_u32 {tt[2]}, {vLane}, 3, {st}")
            a(f"ds_write_b64 {tt[2]}, {raw[0:2]} offset:{EPW}")
        def gap_rbf(js, cen):
            a(f"v_lshlrev_b32 {cen[0]}, 16, {cenr[0]}")
            a(f"v_and_b32 {cen[1]}, {sHi}, {cenr[0]}")
            a(f"v_lshlrev_b32 {cen[2]}, 16, {cenr[1]}")
            a(f"v_and_b32 {cen[3]}, {sHi}, {cenr[1]}")
            a(f"s_not_b64 {sX}, {sHiL}")
            for j in js:
                self.rbf_operand(dd[j], cen, rbfB[j], tt[4:], sX)
        def gap_work():
            a(f"v_and_b32 {t0}, 15, {vLane}")
            a(f"v_lshrrev_b32 {t1}, 4, {vLane}")
            a(f"v_lshrrev_b32 {t2}, 2, {t0}")
            a(f"v_lshlrev_b32 {t2}, 3, {t2}")
            a(f"v_and_b32 {t3}, 3, {t0}")
            a(f"v_add_u32 {vTau[0]}, {t2}, {t3}")
            a(f"v_lshrrev_b32 {t3}, 5, {vLane}")
            a(f"v_lshl_add_u32 {vTau[0]}, {t3}, 2, {vTau[0]}")
            for b in range(1, NBLK): a(f"v_add_u32 {vTau[b]}, {32 * b}, {vTau[0]}")
            a(f"v_and_b32 {t2}, 1, {t1}")
            a(f"v_lshlrev_b32 {vHalf}, 4, {t2}")
            vWr = vIdx
            a(f"v_lshlrev_b32 {vWr}, 4, {vHalf}")
            a(f"v_lshl_add_u32 {vWr}, {t0}, 1, {vWr}")
            a(f"s_mul_i32 {st}, {sW}, {10*GS}")
            a(f"s_add_u32 {st}, {st}, {CB}")
            a(f"v_lshlrev_b32 {vIdxC}, 3, {vTau[0]}")
            a(f"v_add_u32 {vIdxC}, {st}, {vIdxC}")
            a(f"v_add_u32 {vIdxN}, {GS}, {vIdxC}")
            a(f"v_and_b32 {t2}, 31, {vLane}")
            a(f"v_lshlrev_b32 {vTupC}, 3, {t2}")
            a(f"v_add_u32 {vTupC}, {st}, {vTupC}")
            a(f"v_add_u32 {vTupN}, {GS}, {vTupC}")
            a(f"s_lshl_b32 {st}, {sW}, 11")
            a(f"s_add_u32 {st}, {st}, {STG}")
            a(f"v_lshlrev_b32 {vBrd}, 4, {vLane}")
            a(f"v_add_u32 {vBrd}, {st}, {vBrd}")
            a(f"v_lshrrev_b32 {vK}, 3, {t2}")
            a(f"v_lshlrev_b32 {vK}, 8, {vK}")
            a(f"v_and_b32 {t2}, 7, {t2}")
            a(f"v_lshl_add_u32 {vK}, {t2}, 1, {vK}")
            a(f"v_lshl_add_u32 {vK}, {t3}, 10, {vK}")
            a(f"v_add_u32 {vK}, {st}, {vK}")
            a(f"v_min_u32 {vCntA}, 4, {vLane}")
            a(f"s_mul_i32 {st}, {sW}, 5")
            a(f"v_add_u32 {vCntA}, {st}, {vCntA}")
            a(f"v_lshlrev_b32 {vCntA}, 3, {vCntA}")
            a(f"s_mov_b32 {sF0}, 0xf0")
            a(f"s_mov_b32 {sNot31}, 0x{o['gmask']:x}")
            a(f"s_mov_b32 {sK1}, 0x{f32(1.0 / 2047.5):x}")
            a(f"v_mov_b32 {vK2}, 0x{f32((0.5 - 2048.0) / 2047.5):x}")
            a(f"s_mov_b32 {sHiL[0]}, 0")
            a(f"s_mov_b32 {sHiL[1]}, -1")
            a(f"s_mov_b32 {sHdr[0]}, 0x80808080")
            a(f"s_mov_b32 {sHdr[1]}, 0x80808080")
            a(f"v_lshlrev_b32 {t2}, 3, {vLane}")
            a(f"ds_write_b64 {t2}, {wraw} offset:{WSC}")
            wtmp = X[2]
            for i in range(4):
                a(f"ds_read_u16 {wtmp[i]}, {vWr} offset:{WSC + (2*i)*32}")
                a(f"ds_read_u16 {X[3][i]}, {vWr} offset:{WSC + (2*i+1)*32}")
            if o['rbfat'] == 'gap':
                gap_epw()
                gap_rbf(range(5), X[0])
            wtmp = X[2]
            a(f"s_not_b64 {sX}, {sHiL}")
            a("s_waitcnt lgkmcnt(0)")
            for i in range(4):
                a(f"v_lshl_or_b32 {wtmp[i]}, {X[3][i]}, 16, {wtmp[i]}")
            for i in range(4):
                a(f"v_cndmask_b32 {Wa[i]}, 0, {wtmp[i]}, {sX}")
            for i in range(4):
                a(f"v_cndmask_b32 {Wb[i]}, 0, {wtmp[i]}, {sHiL}")
            self.stamp(7)
        if o['gapat'] == 'pre': gap_work()
        tf = o['tupflags']
        gate = o['gate']
        if gate == 'ack': a("s_waitcnt vmcnt(0)")
        elif gate == 'ack0': wait_for('L0')
        elif isinstance(gate, int) and gate > 0:
            Lg = a.newlabel('gate'); Lgx = a.newlabel('gatex')
            a(f"s_mov_b32 {sPoll}, 0")
            a.label(Lg)
            a("s_memrealtime s[14:15]")
            a("s_waitcnt lgkmcnt(0)")
            a(f"s_sub_u32 {st}, s14, {sG0}")
            a(f"s_cmp_ge_u32 {st}, {gate}")
            a(f"s_cbranch_scc1 {Lgx}")
            a(f"s_add_u32 {sPoll}, {sPoll}, 1")
            a(f"s_cmp_lt_u32 {sPoll}, 100000")
            a(f"s_cbranch_scc1 {Lg}")
            a.label(Lgx)
        self.stamp(8)
        a(f"s_lshl_b32 {sPoff}, s2, 15")
        def load_line(dst, l, k, tag=None, optional=False):
            if l == 0:
                a(f"buffer_load_dwordx4 {dst}, {vLine}, {sWS}, {sPoff} offen offset:{k*1024} {tf}")
            else:
                a(f"s_add_u32 {st}, {sPoff}, {(l * 256) << 15}")
                a(f"buffer_load_dwordx4 {dst}, {vLine}, {sWS}, {st} offen offset:{k*1024} {tf}")
            if tag: self.vm_issue(tag, optional)
        def stores_at(where):
            for it in range(4):
                if L1S[it] == where:
                    store(1, it)
                    self.vm_issue(f'L1{it}', optional=isinstance(where, int))
            if L2S == where: store2()
        for k in range(4): load_line(X0[k], 0, k, f'Z{k}')
        stores_at('post')
        if o['gapat'] == 'post': gap_work()
        if 'val' in L1S or L2S == 'val':
            for k in range(4):
                self.vm_wait(f'Z{k}', linear=True)
                if k == 0: self.stamp(9)
                self.checked(X0[k], 0, k, f'z{k}')
            stores_at('val')
            for k in range(4): self.insert(X0[k], 0)
        else:
            for k in range(4):
                self.vm_wait(f'Z{k}', linear=True)
                if k == 0: self.stamp(9)
                self.checked(X0[k], 0, k, f'z{k}')
                self.insert(X0[k], 0)
        self.publish()
        self.stamp(10)
        a("s_waitcnt lgkmcnt(0)")
        a("s_barrier")
        self.stamp(11)
        self.read_counts_issue(vC, vCntA, CC)
        off = lambda p: (p // NBLK) * 2 * GS + (p % NBLK) * 256
        ix = [Bq[1][0][i] for i in range(4)] + [Bq[1][1][i] for i in range(4)]
        for t in range(DG):
            a(f"ds_read_b32 {ix[t]}, {vIdxC} offset:{off(t)}")
        a(f"ds_read_b64 {vT}, {vTupC} offset:0")
        a("s_waitcnt lgkmcnt(0)")
        self.read_counts_use(vC, sCnt, sFail, st, st2)
        OB = o['optblk']
        opt = lambda p: (p % NBLK) >= OB
        for t in range(DG):
            Lg = None
            if opt(t):
                Lg = a.newlabel('skg')
                a(f"s_cmp_gt_u32 {sCnt[t // NBLK]}, {32 * (t % NBLK)}")
                a(f"s_cbranch_scc0 {Lg}")
            self.g_stage(ix[t], vOff, sNot31, vHalf, sCnt[t // NBLK], vTau[t % NBLK], rows[t % NR], sM)
            self.vm_issue(f"G{t}", optional=Lg is not None)
            if Lg: a.label(Lg)
        sst = (vT, vAddr, vC0, vC1, sF0, vK, sK1, vK2, sHiL, vBrd)
        self.s_stage(*sst, Bq[0], vZero)
        a(f"ds_read_b32 {vIdx}, {vIdxC} offset:{off(DG)}")
        a(f"ds_read_b64 {vT}, {vTupC} offset:{off(1)}")
        a(f"s_mov_b32 {sIt}, 0")
        self.stamp(12)

        PINS = o['pins']; PSEC = o['psec']; PWAIT = o['pwait']; PPL = o['ppl']
        assert all(PPL[k] < PINS[k] for k in range(4))
        assert max(PINS) < PSEC < PWAIT <= NPOS - DG - 2
        Lloop = 'c_loop'
        a.label(Lloop)
        start = len(a.lines)
        for p in range(NPOS):
            a.comment(f"---- slot {p}")
            j, blk = p // NBLK, p % NBLK
            a("s_waitcnt lgkmcnt(0)")
            if p == PWAIT + 1:
                self.read_counts_use(vC, sCntN, sFail, st, st2)
            rw = rows[p % NR]
            Lsk1 = None
            if opt(p):
                Lsk1 = a.newlabel('sk1')
                a(f"s_cmp_gt_u32 {sCnt[j]}, {32 * blk}")
                a(f"s_cbranch_scc0 {Lsk1}")
            self.vm_wait(f"G{p}")
            a(f"v_mfma_f32_16x16x32_bf16 {D1[0]}, {rw}, {Wa}, 0")
            a(f"v_mfma_f32_16x16x32_bf16 {D1[1]}, {rw}, {Wb}, 0")
            if Lsk1: a.label(Lsk1)
            if p == PWAIT:
                Lno = a.newlabel('nowait'); Lgo = a.newlabel('gowait')
                a(f"s_cmp_eq_u32 {sIt}, 0")
                a(f"s_cbranch_scc0 {Lno}")
                self.lds_spin(CB_CNT, 8, vC, vZero, st)
                self.read_counts_issue(vC, vCntA, CC + 4)
                a(f"s_branch {Lgo}")
                a.label(Lno)
                a(f"v_mov_b32 {vC}, 0")
                a.label(Lgo)
            tgt = p + DG
            tq = tgt % NPOS
            cn = sCnt[tq // NBLK] if tgt < NPOS else sCntN[tq // NBLK]
            Lg = None
            if opt(tq):
                Lg = a.newlabel('skg')
                a(f"s_cmp_gt_u32 {cn}, {32 * (tq % NBLK)}")
                a(f"s_cbranch_scc0 {Lg}")
            self.g_stage(vIdx, vOff, sNot31, vHalf, cn, vTau[tq % NBLK], rows[tgt % NR], sM)
            self.vm_issue(f"G{tq}", optional=Lg is not None)
            if Lg: a.label(Lg)
            nx = p + 1
            nq = nx % NPOS
            Lsk2 = None
            if opt(nq):
                cn2 = sCnt[nq // NBLK] if nx < NPOS else sCntN[nq // NBLK]
                Lsk2 = a.newlabel('sk2')
                a(f"s_cmp_gt_u32 {cn2}, {32 * (nq % NBLK)}")
                a(f"s_cbranch_scc0 {Lsk2}")
            self.s_stage(*sst, Bq[nx & 1], vZero)
            if Lsk2: a.label(Lsk2)
            t2_ = tgt + 1
            base = vIdxC if t2_ < NPOS else vIdxN
            a(f"ds_read_b32 {vIdx}, {base} offset:{off(t2_ % NPOS)}")
            s2_ = p + 2
            base = vTupC if s2_ < NPOS else vTupN
            a(f"ds_read_b64 {vT}, {base} offset:{off(s2_ % NPOS)}")
            Lsk3 = None
            if opt(p):
                Lsk3 = a.newlabel('sk3')
                a(f"s_cmp_gt_u32 {sCnt[j]}, {32 * blk}")
                a(f"s_cbranch_scc0 {Lsk3}")
            a(f"v_cvt_pk_bf16_f32 {rw[0]}, {D1[0][0]}, {D1[0][1]}")
            a(f"v_cvt_pk_bf16_f32 {rw[1]}, {D1[0][2]}, {D1[0][3]}")
            a(f"v_cvt_pk_bf16_f32 {rw[2]}, {D1[1][0]}, {D1[1][1]}")
            a(f"v_cvt_pk_bf16_f32 {rw[3]}, {D1[1][2]}, {D1[1][3]}")
            Bp = Bq[p & 1]
            a(f"v_mfma_f32_16x16x32_bf16 {acc[j][0]}, {rw}, {Bp[0]}, {acc[j][0]}")
            a(f"v_mfma_f32_16x16x32_bf16 {acc[j][1]}, {rw}, {Bp[1]}, {acc[j][1]}")
            if Lsk3: a.label(Lsk3)
            if p in L1S or p == L2S or p in PPL:
                Lsk = a.newlabel('nost')
                a(f"s_cmp_eq_u32 {sIt}, 0")
                a(f"s_cbranch_scc0 {Lsk}")
                stores_at(p)
                if p in PPL:
                    k = PPL.index(p)
                    load_line(X[k], 1, k, f'P{k}', optional=True)
                a.label(Lsk)
            if isinstance(o['rbfat'], int) or isinstance(o['mat'], int):
                RB = o['rbfat'] if isinstance(o['rbfat'], int) else -100
                MA = o['mat'] if isinstance(o['mat'], int) else -100
                if p == MA or RB <= p < RB + 6:
                    Lsk = a.newlabel('norb')
                    a(f"s_cmp_eq_u32 {sIt}, 0")
                    a(f"s_cbranch_scc0 {Lsk}")
                    if p == MA:
                        for jj in range(5):
                            a(f"buffer_load_dwordx2 {Mr[jj]}, {vMoff}, {sM}, 0 offen offset:{jj*512}")
                            self.vm_issue(f'mr{jj}', optional=True)
                    if p == RB: gap_epw()
                    if RB < p < RB + 6: gap_rbf([p - RB - 1], X0[0])
                    a.label(Lsk)
            if p in PINS:
                k = PINS.index(p)
                Lsk = a.newlabel('noins')
                a(f"s_cmp_eq_u32 {sIt}, 0")
                a(f"s_cbranch_scc0 {Lsk}")
                self.vm_wait(f"P{k}", linear=True)
                self.checked(X[k], 1, k, f'p{k}')
                self.insert(X[k], 1, k=k)
                L = a.newlabel('sl')
                a(f"s_cmp_eq_u64 {sMore[k]}, 0")
                a(f"s_cbranch_scc1 {L}")
                a(f"s_add_u32 {st}, {sPoff}, {(2 * 256) << 15}")
                a(f"s_mov_b64 exec, {sMore[k]}")
                a(f"buffer_load_dwordx4 {X[k]}, {vLine}, {sWS}, {st} offen offset:{k*1024} {tf}")
                a(f"s_mov_b64 exec, -1")
                a.label(L)
                self.vm_issue(f"S{k}", optional=True)
                a.label(Lsk)
            if p == PSEC:
                Lna = a.newlabel('noarr')
                a(f"s_cmp_eq_u32 {sIt}, 0")
                a(f"s_cbranch_scc0 {Lna}")
                for k in range(4):
                    Ln_ = a.newlabel('sn')
                    a(f"s_cmp_eq_u64 {sMore[k]}, 0")
                    a(f"s_cbranch_scc1 {Ln_}")
                    self.vm_wait(f"S{k}", linear=True)
                    a(f"s_mov_b64 exec, {sMore[k]}")
                    self.checked(X[k], 2, k, f's{k}', sub=sMore[k])
                    self.insert(X[k], 2, sub=sMore[k])
                    a.label(Ln_)
                self.publish()
                a("s_waitcnt lgkmcnt(0)")
                self.lds_arrive(CB_CNT, vZero, vOne)
                a.label(Lna)
            if self.prof and p in (1, 5, 9, 14, 19, 24, 29):
                slot = (1, 5, 9, 14, 19, 24, 29).index(p)
                a(f"s_lshl_b32 {st}, {sIt}, 3")
                a(f"s_add_u32 {st}, {st}, {13 + slot}")
                self.stamp_dyn(st)
        a(f"v_mov_b32 {vIdxC}, {vIdxN}")
        a(f"v_mov_b32 {vTupC}, {vTupN}")
        for jj in range(5):
            a(f"s_mov_b32 {sCnt[jj]}, {sCntN[jj]}")
        a(f"s_add_u32 {sIt}, {sIt}, 1")
        a(f"s_cmp_le_u32 {sIt}, 1")
        a(f"s_cbranch_scc1 {Lloop}")
        end = len(a.lines)
        self.resolve_vm(start, end)
        self.stamp(40)
        a("s_waitcnt vmcnt(0) lgkmcnt(0)")
        a(f"ds_read_b32 {tt[0]}, {vZero} offset:{FAIL}")
        a("s_waitcnt lgkmcnt(0)")
        a(f"v_readfirstlane_b32 {st}, {tt[0]}")
        a(f"s_or_b32 {sFail}, {sFail}, {st}")
        a(f"s_cmp_lg_u32 {sFail}, 0")
        a(f"s_cbranch_scc1 c_fallback")
        a.label("c_fb_back")
        self.late.append((self._fallback, (acc, rows, X, D1, Bq, Wa, Wb, vLane, vZero, vOne, vHalf, vTau, sE0, sW,
                                            sOI, sIN, sAN, sM, st, st2, sMore, pDBG, sIt, sPoff, sPoll,
                                            vOff, vIdx, vAddr, vC0, vT, sv)))
        Aop = [X[0][0:2], X[0][2:4], X[1][0:2], X[1][2:4]]
        a(f"v_lshlrev_b32 {vIdx}, 3, {vLane}")
        for x in range(4):
            a(f"ds_read_b64 {Aop[x]}, {vIdx} offset:{EPW + x*512}")
        a("s_waitcnt lgkmcnt(0)")
        self.epilogue(acc, Mr, D1, Bq, rbfB, Aop, tt, vLane, vMoff, sW, sOUT, st, rows, X)
        self.stamp(41)
        Lgd = a.newlabel('gd'); Lgx = a.newlabel('gdx')
        a(f"s_mov_b32 {sPoll}, 0")
        a.label(Lgd)
        a("s_memrealtime s[14:15]")
        a("s_waitcnt lgkmcnt(0)")
        a(f"s_sub_u32 {st}, s14, {sG0}")
        a(f"s_cmp_ge_u32 {st}, {GUARD}")
        a(f"s_cbranch_scc1 {Lgx}")
        a(f"s_add_u32 {sPoll}, {sPoll}, 1")
        a(f"s_cmp_lt_u32 {sPoll}, 100000")
        a("s_sleep 4")
        a(f"s_cbranch_scc1 {Lgd}")
        a.label(Lgx)
        self.prof_store(sW)
        a("s_endpgm")

    def _p_rare(self, Hd, aW, aB, tp, vRb, vSt, vTag, sM24, sSrc, so, s73, sWS, L):
        a = self.a
        a.label("p_rare")
        for it in range(4):
            Ls = a.newlabel('pr')
            a(f"v_cmp_le_u32 vcc, {s73}, {Hd[it]}")
            a(f"s_cbranch_vccz {Ls}")
            a(f"s_mov_b64 exec, vcc")
            a("s_waitcnt vmcnt(0)")
            a(f"ds_read2_b32 {L[0:2]}, {aW[it]} offset0:{3 * 24} offset1:{3 * 24 + 1}")
            a(f"ds_read_b32 {L[2]}, {aW[it]} offset:{3 * 96 + 8}")
            a(f"ds_read2_b32 {tp}, {aB[it]} offset0:{3 * 6} offset1:{3 * 6 + 1}")
            a("s_waitcnt lgkmcnt(0)")
            a(f"v_alignbyte_b32 {L[3]}, {tp[1]}, {tp[0]}, {vRb}")
            a(f"v_bfi_b32 {L[3]}, {sM24}, {L[3]}, {vTag}")
            a(f"s_add_u32 {so}, {sSrc}, {(3 * 256 + it * 8) << 15}")
            a(f"buffer_store_dwordx4 {L}, {vSt}, {sWS}, {so} offen {self.o['stflags']}")
            a(f"s_mov_b64 exec, -1")
            a.label(Ls)
        a("s_branch p_rare_back")

    def publish(self):
        a = self.a; c = self.c
        L = a.newlabel('pub')
        a(f"s_cmp_eq_u32 {c['sFail']}, 0")
        a(f"s_cbranch_scc1 {L}")
        a(f"ds_write_b32 {c['vZero']}, {c['vOne']} offset:{FAIL}")
        a.label(L)

    def g_stage(self, idx, vOff, sNot31, vHalf, cnt, tau, dst, sM):
        a = self.a
        a(f"v_cmp_gt_u32 vcc, {cnt}, {tau}")
        a(f"v_lshrrev_b32 {vOff}, 9, {idx}")
        a(f"v_and_or_b32 {vOff}, {vOff}, {sNot31}, {vHalf}")
        a(f"v_cndmask_b32 {vOff}, {OOB}, {vOff}, vcc")
        a(f"buffer_load_dwordx4 {dst}, {vOff}, {sM}, 0 offen")

    def s_stage(self, vT, vAddr, vC0, vC1, sF0, vK, sK1, vK2, sHiL, vBrd, B, vZero):
        a = self.a
        a(f"v_and_b32 {vC0}, 15, {vT[0]}")
        a(f"v_lshl_or_b32 {vC0}, {vT[1]}, 4, {vC0}")
        a(f"v_cvt_f32_u32 {vC0}, {vC0}")
        a(f"v_and_or_b32 {vAddr}, {vT[0]}, {sF0}, {vK}")
        a(f"v_fma_f32 {vC0}, {vC0}, {sK1}, {vK2}")
        a(f"v_fma_f32 {vC1}, {vC0}, {vC0}, -0.5")
        a(f"v_cndmask_b32 {vC0}, {vC0}, {vC1}, {sHiL}")
        a(f"v_cvt_pk_bf16_f32 {vC0}, {vC0}, {vC0}")
        a(f"ds_write_b16 {vAddr}, {vC0}")
        a(f"ds_read_b128 {B[0]}, {vBrd}")
        a(f"ds_read_b128 {B[1]}, {vBrd} offset:1024")
        a(f"ds_write_b16 {vAddr}, {vZero}")

    def read_counts_issue(self, vC, vCntA, off):
        self.a(f"ds_read_b32 {vC}, {vCntA} offset:{off}")

    def read_counts_use(self, vC, dst, sFail, st, st2):
        a = self.a
        for jj in range(5):
            a(f"v_readlane_b32 {dst[jj]}, {vC}, {jj}")
        a(f"s_max_u32 {st}, {dst[0]}, {dst[1]}")
        a(f"s_max_u32 {st2}, {dst[2]}, {dst[3]}")
        a(f"s_max_u32 {st}, {st}, {dst[4]}")
        a(f"s_max_u32 {st}, {st}, {st2}")
        a(f"s_cmp_gt_u32 {st}, {CAP}")
        a(f"s_cselect_b32 {st}, 1, 0")
        a(f"s_or_b32 {sFail}, {sFail}, {st}")
        for jj in range(5):
            a(f"s_min_u32 {dst[jj]}, {dst[jj]}, {CAP}")

    def rbf_operand(self, d, cen, dst, tt, sQ):
        a = self.a
        t = [tt[0], tt[1], tt[2], tt[3]]; u = tt[4]; dv = tt[5]
        a(f"v_lshlrev_b32 {dv}, 16, {d}")
        for i in range(4): a(f"v_sub_f32 {t[i]}, {dv}, {cen[i]}")
        def rnd():
            for h in range(2):
                a(f"v_cvt_pk_bf16_f32 {u}, {t[2*h]}, {t[2*h+1]}")
                a(f"v_lshlrev_b32 {t[2*h]}, 16, {u}")
                a(f"v_and_b32 {t[2*h+1]}, 0xffff0000, {u}")
        rnd()
        for i in range(4): a(f"v_mul_f32 {t[i]}, {t[i]}, {t[i]}")
        rnd()
        for i in range(4): a(f"v_mul_f32 {t[i]}, 0xc1200000, {t[i]}")
        rnd()
        for i in range(4): a(f"v_mul_f32 {t[i]}, 0x3fb8aa3b, {t[i]}")
        for i in range(4): a(f"v_exp_f32 {t[i]}, {t[i]}")
        a(f"v_cvt_pk_bf16_f32 {dst[0]}, {t[0]}, {t[1]}")
        a(f"v_cvt_pk_bf16_f32 {dst[1]}, {t[2]}, {t[3]}")
        a(f"v_cndmask_b32 {dst[0]}, 0, {dst[0]}, {sQ}")
        a(f"v_cndmask_b32 {dst[1]}, 0, {dst[1]}, {sQ}")

    def tagcheck(self, x):
        a = self.a; c = self.c; tt = c['tt']
        u = tt[10]; w = tt[11]
        a(f"v_perm_b32 {u}, {x[3]}, {x[3]}, {c['Sel']}")
        a(f"v_or_b32_dpp {u}, {u}, {u} quad_perm:[1,0,3,2] row_mask:0xf bank_mask:0xf")
        a(f"v_or_b32_dpp {u}, {u}, {u} quad_perm:[2,3,0,1] row_mask:0xf bank_mask:0xf")
        a(f"v_lshlrev_b32 {w}, 8, {u}")
        a(f"v_xad_u32 {u}, {u}, {w}, {c['NegT']}")
        a(f"v_cmp_le_u32 vcc, 8, {u}")

    def checked(self, x, l, k, name, sub=None):
        a = self.a
        self.tagcheck(x)
        a(f"s_cbranch_vccnz c_rp_{name}")
        a.label(f"c_ok_{name}")
        self.late.append((self._repoll, (x, l, k, name, sub)))

    def _repoll(self, x, l, k, name, sub):
        a = self.a; c = self.c; tt = c['tt']
        ex = sub if sub is not None else '-1'
        a.label(f"c_rp_{name}")
        a(f"s_mov_b32 {c['sPoll']}, 0")
        L = a.newlabel('rpl'); Lto = a.newlabel('rpt')
        a(f"s_cmp_lg_u32 {c['sFail']}, 0")
        a(f"s_cbranch_scc1 {Lto}")
        a.label(L)
        a(f"s_sleep {self.o['psleep']}")
        a(f"s_mov_b64 exec, vcc")
        a(f"s_add_u32 {c['st']}, {c['sPoff']}, {(l * 256) << 15}")
        a(f"buffer_load_dwordx4 {x}, {c['vLine']}, {c['sWS']}, {c['st']} offen offset:{k*1024} {self.o['tupflags']}")
        a("s_waitcnt vmcnt(0)")
        self.tagcheck(x)
        a(f"s_mov_b64 exec, {ex}")
        a(f"s_cbranch_vccz c_ok_{name}")
        a(f"s_add_u32 {c['sPoll']}, {c['sPoll']}, 1")
        a(f"s_cmp_lt_u32 {c['sPoll']}, {self.o['poll_max']}")
        a(f"s_cbranch_scc1 {L}")
        a.label(Lto)
        a(f"s_mov_b32 {c['sFail']}, 1")
        a(f"v_mov_b32 {tt[0]}, -1")
        for h in range(3):
            a(f"v_cndmask_b32 {x[h]}, {x[h]}, {tt[0]}, vcc")
        a(f"s_branch c_ok_{name}")

    def insert(self, x, l, k=None, sub=None):
        a = self.a; c = self.c; tt = c['tt']; sv = c['sv']
        g = tt[0:3]; rk = tt[3:6]; cs = tt[6:9]
        for h in range(3): a(f"v_cmp_gt_u32 {sv[h]}, {c['Lim']}, {x[h]}")
        for h in range(3): a(f"v_bfe_u32 {g[h]}, {x[h]}, 8, 6")
        if l == 0:
            for h in range(3):
                a(f"v_cmp_le_u32 vcc, {c['LimA']}, {x[h]}")
                a(f"v_addc_co_u32 {g[h]}, vcc, {g[h]}, {g[h]}, vcc")
        else:
            for h in range(3): a(f"v_lshl_or_b32 {g[h]}, {g[h]}, 1, 1")
        if l == 1:
            a(f"s_andn2_b64 {sv[2]}, {sv[2]}, {c['sHdr']}")
            a(f"s_mov_b32 {c['st']}, {49 << 18}")
            a(f"s_mov_b32 {c['st2']}, {73 << 18}")
            a(f"v_cmp_le_u32 vcc, {c['st']}, {x[2]}")
            a(f"v_cmp_le_u32 {c['sX']}, {c['st2']}, {x[2]}")
        for h in range(3): a(f"v_lshl_add_u32 {rk[h]}, {g[h]}, 2, {CC}")
        for h in range(3):
            a(f"s_mov_b64 exec, {sv[h]}")
            a(f"ds_add_rtn_u32 {rk[h]}, {rk[h]}, {c['vOne']}")
        a(f"s_mov_b64 exec, -1")
        for h in range(3): a(f"v_bfe_u32 {cs[h]}, {x[3]}, {8 * h}, 8")
        for h in range(3): a(f"v_mad_u32_u24 {g[h]}, {g[h]}, {c['GS']}, {c['vCB']}")
        if l == 1:
            m = c['sMore'][k]
            a(f"s_and_b64 {m}, vcc, {c['sHdr']}")
            a(f"s_lshr_b64 {m}, {m}, 7")
            a(f"s_lshl_b64 {c['sSave']}, {m}, 8")
            a(f"s_sub_u32 {m[0]}, {c['sSave'][0]}, {m[0]}")
            a(f"s_subb_u32 {m[1]}, {c['sSave'][1]}, {m[1]}")
        a("s_waitcnt lgkmcnt(0)")
        for h in range(3): a(f"v_min_u32 {rk[h]}, {CAP}, {rk[h]}")
        for h in range(3): a(f"v_lshl_add_u32 {g[h]}, {rk[h]}, 3, {g[h]}")
        for h in range(3):
            a(f"s_mov_b64 exec, {sv[h]}")
            a(f"ds_write2_b32 {g[h]}, {x[h]}, {cs[h]} offset0:0 offset1:1")
        a(f"s_mov_b64 exec, -1")
        if l == 1:
            a(f"s_and_b64 {c['sX']}, {c['sX']}, {c['sHdr']}")
            a(f"s_cbranch_scc1 c_l3_{k}")
            a.label(f"c_l3_back_{k}")
            self.late.append((self._line3, (x, k)))

    def _line3(self, x, k):
        a = self.a; c = self.c; tt = c['tt']
        m = c['sX']; Y = self.c3
        a.label(f"c_l3_{k}")
        a(f"s_mov_b32 {c['st']}, {97 << 18}")
        a(f"v_cmp_le_u32 vcc, {c['st']}, {x[2]}")
        a(f"s_and_b64 vcc, vcc, {c['sHdr']}")
        a(f"s_cselect_b32 {c['st']}, 1, 0")
        a(f"s_or_b32 {c['sFail']}, {c['sFail']}, {c['st']}")
        a(f"s_lshr_b64 {m}, {m}, 7")
        a(f"s_lshl_b64 {c['sSave']}, {m}, 8")
        a(f"s_sub_u32 {m[0]}, {c['sSave'][0]}, {m[0]}")
        a(f"s_subb_u32 {m[1]}, {c['sSave'][1]}, {m[1]}")
        a(f"s_cmp_lg_u32 {c['sFail']}, 0")
        a(f"s_cbranch_scc1 c_l3_back_{k}")
        a(f"s_add_u32 {c['st']}, {c['sPoff']}, {(3 * 256) << 15}")
        a(f"s_mov_b64 exec, {m}")
        a(f"buffer_load_dwordx4 {Y}, {c['vLine']}, {c['sWS']}, {c['st']} offen offset:{k*1024} {self.o['tupflags']}")
        a("s_waitcnt vmcnt(0)")
        self.checked(Y, 3, k, f't{k}', sub=m)
        self.insert(Y, 3, sub=m)
        a(f"s_branch c_l3_back_{k}")

    def _fallback(self, acc, rows, X, D1, Bq, Wa, Wb, vLane, vZero, vOne, vHalf, vTau, sE0, sCw, sOI, sIN, sAN, sM,
                  st, st2, sMore, pDBG, sN, sCh, sLaneS, vOff, vIdx, vAddr, vC16, vT, sv):
        a = self.a
        a.label("c_fallback")
        a(f"global_store_dword {vZero}, {vOne}, {pDBG} offset:16")
        for j in range(5):
            for l in range(2):
                for i in range(4): a(f"v_mov_b32 {acc[j][l][i]}, 0")
        sMask = sMore[0]; sLoc = Reg('s', 6); sTt = Reg('s', 7); sSel = sMore[2]; sSel2 = sMore[3]
        a(f"s_movk_i32 {sN}, 80")
        a(f"s_cmp_eq_u32 {sCw}, 7")
        a(f"s_cselect_b32 {sN}, 65, {sN}")
        a(f"s_mov_b32 {sCh}, 0")
        vL16 = vIdx; vI15 = vAddr
        a(f"v_lshlrev_b32 {vL16}, 4, {vLane}")
        a(f"v_and_b32 {vI15}, 15, {vLane}")
        for i in range(1, 4):
            a(f"v_mov_b32 {Bq[0][0][i]}, 0")
            a(f"v_mov_b32 {Bq[0][1][i]}, 0")
        a(f"v_cmp_eq_u32 {sSel}, 0, {vTau[0]}")
        Lc = "c_fb_chunk"
        a.label(Lc)
        a(f"buffer_load_dwordx4 {X[3]}, {vL16}, {sOI}, {sCh} offen")
        a("s_waitcnt vmcnt(0)")
        for cidx in range(4):
            Lh = f"c_fb_h{cidx}"; Ld = f"c_fb_d{cidx}"
            a(f"v_subrev_u32 {X[3][cidx]}, {sE0}, {X[3][cidx]}")
            a(f"v_cmp_gt_u32 {sMask}, {sN}, {X[3][cidx]}")
            a.label(Lh)
            a(f"s_cmp_eq_u64 {sMask}, 0")
            a(f"s_cbranch_scc1 {Ld}")
            a(f"s_ff1_i32_b64 {sLaneS}, {sMask}")
            a(f"s_bitset0_b64 {sMask}, {sLaneS}")
            a(f"s_nop 3")
            a(f"v_readlane_b32 {sLoc}, {X[3][cidx]}, {sLaneS}")
            a(f"s_lshl_b32 {sTt}, {sLaneS}, 4")
            a(f"s_add_u32 {sTt}, {sTt}, {sCh}")
            a(f"s_add_u32 {sTt}, {sTt}, {cidx*4}")
            a(f"v_mov_b32 {vOff}, {sTt}")
            a(f"v_lshrrev_b32 {vC16}, 1, {vOff}")
            a(f"buffer_load_dword {vT[0]}, {vOff}, {sIN}, 0 offen")
            a(f"buffer_load_ushort {vT[1]}, {vC16}, {sAN}, 0 offen")
            a("s_waitcnt vmcnt(0)")
            a(f"v_lshl_or_b32 {vOff}, {vT[0]}, 5, {vHalf}")
            a(f"v_cndmask_b32 {vOff}, {OOB}, {vOff}, {sSel}")
            a(f"buffer_load_dwordx4 {rows[0]}, {vOff}, {sM}, 0 offen")
            a(f"v_lshlrev_b32 {vT[1]}, 16, {vT[1]}")
            a(f"v_mul_f32 {vT[1]}, 0x{INV2PI:x}, {vT[1]}")
            a(f"v_fract_f32 {vT[1]}, {vT[1]}")
            a(f"v_cos_f32 {vT[1]}, {vT[1]}")
            a(f"s_and_b32 {st}, {sLoc}, 15")
            a(f"v_cmp_eq_u32 {sSel2}, {st}, {vLane}")
            a(f"v_fma_f32 {vT[0]}, {vT[1]}, {vT[1]}, -0.5")
            a(f"v_cvt_pk_bf16_f32 {vT[0]}, {vT[1]}, {vT[0]}")
            a(f"v_and_b32 {vT[1]}, 0xffff, {vT[0]}")
            a(f"v_lshrrev_b32 {vT[0]}, 16, {vT[0]}")
            a(f"v_cndmask_b32 {Bq[0][0][0]}, 0, {vT[1]}, {sSel2}")
            a(f"v_cndmask_b32 {Bq[0][1][0]}, 0, {vT[0]}, {sSel2}")
            a("s_waitcnt vmcnt(0)")
            rw = rows[0]
            a(f"v_mfma_f32_16x16x32_bf16 {D1[0]}, {rw}, {Wa}, 0")
            a(f"v_mfma_f32_16x16x32_bf16 {D1[1]}, {rw}, {Wb}, 0")
            a(f"v_cvt_pk_bf16_f32 {rw[0]}, {D1[0][0]}, {D1[0][1]}")
            a(f"v_cvt_pk_bf16_f32 {rw[1]}, {D1[0][2]}, {D1[0][3]}")
            a(f"v_cvt_pk_bf16_f32 {rw[2]}, {D1[1][0]}, {D1[1][1]}")
            a(f"v_cvt_pk_bf16_f32 {rw[3]}, {D1[1][2]}, {D1[1][3]}")
            a(f"s_lshr_b32 {st}, {sLoc}, 4")
            for j in range(5):
                Lj = a.newlabel('fbj')
                a(f"s_cmp_lg_u32 {st}, {j}")
                a(f"s_cbranch_scc1 {Lj}")
                a(f"v_mfma_f32_16x16x32_bf16 {acc[j][0]}, {rw}, {Bq[0][0]}, {acc[j][0]}")
                a(f"v_mfma_f32_16x16x32_bf16 {acc[j][1]}, {rw}, {Bq[0][1]}, {acc[j][1]}")
                a.label(Lj)
            a(f"s_branch {Lh}")
            a.label(Ld)
        a(f"s_add_u32 {sCh}, {sCh}, 1024")
        a(f"s_cmp_lt_u32 {sCh}, {T*4}")
        a(f"s_cbranch_scc1 {Lc}")
        a("s_branch c_fb_back")

    def epilogue(self, acc, Mr, D1, Bq, rbfB, Aop, tt, vLane, vMoff, sCw, sOUT, st, rows, X):
        a = self.a
        A0, A1, AG, AU = Aop
        t0 = tt[0]; t1 = tt[1]
        a(f"v_and_b32 {t0}, 15, {vLane}")
        a(f"s_mul_i32 {st}, {sCw}, 80")
        a(f"v_add_u32 {t0}, {st}, {t0}")
        a(f"v_add_u32 {t0}, 64, {t0}")
        a(f"v_cmp_gt_u32 vcc, 625, {t0}")
        a(f"v_cndmask_b32 {t1}, {OOB}, {vMoff}, vcc")
        G0 = [rows[0], rows[1]]; G1 = [rows[2], rows[3]]; GT = [rows[4], rows[5]]; U = [D1[0], D1[1]]
        ag = [Bq[0][0][0:2], Bq[0][0][2:4]]
        mm = [Bq[0][1], Bq[1][0]]
        oo = [Bq[1][1][0:2], Bq[1][1][2:4]]

        def gm(j):
            s = j & 1
            a(f"v_mfma_f32_16x16x16_bf16 {G0[s]}, {A0}, {rbfB[j]}, 0")
            a(f"v_mfma_f32_16x16x16_bf16 {G1[s]}, {A1}, {rbfB[j]}, 0")
            a(f"v_mfma_f32_16x16x16_bf16 {GT[s]}, {AG}, {rbfB[j]}, 0")
        gm(0)
        for j in range(5):
            s = j & 1
            if j + 1 < 5: gm(j + 1)
            mrow = Mr[j]
            a(f"v_lshlrev_b32 {mm[s][0]}, 16, {mrow[0]}")
            a(f"v_and_b32 {mm[s][1]}, 0xffff0000, {mrow[0]}")
            a(f"v_lshlrev_b32 {mm[s][2]}, 16, {mrow[1]}")
            a(f"v_and_b32 {mm[s][3]}, 0xffff0000, {mrow[1]}")
            for i in range(4):
                a(f"v_mul_f32 {G0[s][i]}, {G0[s][i]}, {acc[j][0][i]}")
            for i in range(4):
                a(f"v_fma_f32 {G0[s][i]}, {G1[s][i]}, {acc[j][1][i]}, {G0[s][i]}")
            a(f"v_cvt_pk_bf16_f32 {ag[s][0]}, {G0[s][0]}, {G0[s][1]}")
            a(f"v_cvt_pk_bf16_f32 {ag[s][1]}, {G0[s][2]}, {G0[s][3]}")
            a(f"v_mfma_f32_16x16x16_bf16 {U[s]}, {AU}, {ag[s]}, 0")
            for i in range(4):
                a(f"v_fma_f32 {mm[s][i]}, {U[s][i]}, {GT[s][i]}, {mm[s][i]}")
            o = oo[s]
            a(f"v_cvt_pk_bf16_f32 {o[0]}, {mm[s][0]}, {mm[s][1]}")
            a(f"v_cvt_pk_bf16_f32 {o[1]}, {mm[s][2]}, {mm[s][3]}")
            off = t1 if j == 4 else vMoff
            a(f"buffer_store_dwordx2 {o}, {off}, {sOUT}, 0 offen offset:{j*512} {self.o.get('outflags', '')}")

    def kernel(self, label):
        a = self.a
        self.late = []
        self.Lend = label + '_end'
        self.sWave = Reg('s', 60); self.sT64 = Reg('s', 98, 2)
        self.vProf = Reg('v', 255)
        a.lines.append(f".globl {label}")
        a.lines.append(".p2align 8")
        a.lines.append(f".type {label},@function")
        a.label(label)
        a("s_cmp_ge_u32 s2, 256")
        a(f"s_cbranch_scc1 {self.Lend}")
        a("s_load_dwordx16 s[4:19], s[0:1], 0")
        a("s_load_dwordx8 s[20:27], s[0:1], 64")
        a("s_load_dwordx4 s[28:31], s[0:1], 96")
        a("s_memrealtime s[100:101]")
        if self.prof:
            a("s_memrealtime s[98:99]")
        a("v_lshrrev_b32 v1, 6, v0")
        a("v_and_b32 v0, 63, v0")
        a(f"v_readfirstlane_b32 {self.sWave}, v1")
        if self.prof:
            a("s_waitcnt lgkmcnt(0)")
            a("v_mov_b32 v255, 0")
            a("v_writelane_b32 v255, s98, 50")
        self.body(self.sWave)
        i = 0
        while i < len(self.late):
            fn, args = self.late[i]; fn(*args); i += 1
        a.label(self.Lend)
        a("s_endpgm")

    def build(self):
        hdr = open('cdna_kernels/' + NAME + '.s.ref').read().split('\n')
        head = [l for l in hdr if l.startswith(';') and '@launch' not in l]
        out = list(head)
        K = NAME + '_kernel'
        out.append(f"; @launch grid=(256,1,1) block=(512,1,1) lds={LDS_END}")
        out.append('.amdgcn_target "amdgcn-amd-amdhsa--gfx950"')
        out.append('.text')
        self.kernel(K)
        body = self.a.finalize()
        print(f"{K}: {len(self.a.lines)} lines, nops {self.a.nops}", file=sys.stderr)
        out.append(body)
        out.append('.section .rodata,"a"')
        out.append(f""".p2align 6
.amdhsa_kernel {K}
  .amdhsa_next_free_vgpr 256
  .amdhsa_next_free_sgpr 102
  .amdhsa_accum_offset 256
  .amdhsa_group_segment_fixed_size 0
  .amdhsa_kernarg_size 112
  .amdhsa_user_sgpr_count 2
  .amdhsa_user_sgpr_kernarg_segment_ptr 1
  .amdhsa_system_sgpr_workgroup_id_x 1
.end_amdhsa_kernel""")
        return '\n'.join(out) + '\n'


if __name__ == '__main__':
    import argparse, ast
    ap = argparse.ArgumentParser()
    ap.add_argument('--prof', action='store_true')
    ap.add_argument('--opt', action='append', default=[])
    ap.add_argument('-o', required=True)
    args = ap.parse_args()
    opts = {}
    for kv in args.opt:
        k, v = kv.split('=', 1)
        try: v = ast.literal_eval(v)
        except Exception: pass
        opts[k] = v
    g = Gen(args.prof, opts)
    s = g.build()
    open(args.o, 'w').write(s)
```

```python
import sys, re, os
sys.path.insert(0, 'gen')
from asmlib import *

NAME = 'standalone__molecular_angular_gemnet__graph'

E = 160000; T = 2560000
MAGIC = 6871948
CB_CNT, FAIL = 8, 16
CC = 64
WSC = 512
EPW = 1024
STG = 3072
PB = 19456
PBS = 492
HDR = 188
BYT = 388
DUMP = 96
CB = PB
GS = 1552
CAP = 192
LDS_END = PB + 256 * PBS
NLINE = 4
WSB = NLINE * 256 * 32768
LIM = 0x9C400000
INV = 0xFFFFFFFF
GUARD = 1300
OOB = '1.0'
PROF_OFF = 100 << 20
INV2PI = 0x3e22f983
NBLK = 6
NPOS = 30
import struct
def f32(x): return struct.unpack('<I', struct.pack('<f', x))[0]


class Gen:
    def __init__(self, prof=False, opts=None):
        self.prof = prof
        self.o = dict(poll_max=60000, ldflags='', tupflags='sc1', stflags='sc1', outflags='sc1', force_fail=False,
                      up=3, dg=4, nr=6, gate='ack0', pins=(8, 9, 10, 11), psec=16, pwait=22,
                      lima=80000, psleep=1, gmask=0xffffffe0, mat='gap', optblk=4,
                      q0n=3, q1n=6, l1s=('pre', 'post', 'post', 'post'), l2s='post', ppl=(2, 3, 4, 5),
                      pfa=0, pfmode='id', tlbw=0, rbfat='gap', gapat='pre')
        if opts: self.o.update(opts)
        self.a = Asm()

    def stamp(self, idx):
        if not self.prof: return
        a = self.a
        a(f"s_memrealtime {self.sT64}")
        a("s_waitcnt lgkmcnt(0)")
        a(f"v_writelane_b32 {self.vProf}, {self.sT64[0]}, {idx}")

    def stamp_dyn(self, sidx):
        if not self.prof: return
        a = self.a
        a(f"s_memrealtime {self.sT64}")
        a("s_waitcnt lgkmcnt(0)")
        a(f"s_mov_b32 m0, {sidx}")
        a(f"s_nop 3")
        a(f"v_writelane_b32 {self.vProf}, {self.sT64[0]}, m0")

    def prof_store(self, wave_sgpr):
        if not self.prof: return
        a = self.a
        a(f"s_mul_i32 {self.sT64[0]}, s2, 12")
        a(f"s_add_u32 {self.sT64[0]}, {self.sT64[0]}, {wave_sgpr}")
        a(f"s_lshl_b32 {self.sT64[0]}, {self.sT64[0]}, 8")
        a(f"s_add_u32 {self.sT64[0]}, {self.sT64[0]}, {PROF_OFF}")
        a(f"v_mbcnt_lo_u32_b32 v1, -1, 0")
        a(f"v_mbcnt_hi_u32_b32 v1, -1, v1")
        a(f"v_lshlrev_b32 v1, 2, v1")
        a(f"v_add_u32 v1, {self.sT64[0]}, v1")
        a(f"s_mov_b64 exec, -1")
        a(f"global_store_dword v1, {self.vProf}, s[30:31]")

    def lds_spin(self, off, target, vt, vzero, st):
        a = self.a
        L = a.newlabel('spin')
        Lx = a.newlabel('spinx')
        a.label(L)
        a(f"ds_read_b32 {vt}, {vzero} offset:{off}")
        a("s_waitcnt lgkmcnt(0)")
        a(f"v_readfirstlane_b32 {st}, {vt}")
        a(f"s_cmp_ge_u32 {st}, {target}")
        a(f"s_cbranch_scc1 {Lx}")
        a("s_sleep 1")
        a(f"s_branch {L}")
        a.label(Lx)

    def lds_arrive(self, off, vzero, vone):
        a = self.a
        a("s_mov_b64 exec, 1")
        a(f"ds_add_u32 {vzero}, {vone} offset:{off}")
        a("s_mov_b64 exec, -1")

    def srd(self, reg, src, n):
        a = self.a
        a(f"s_mov_b32 {reg[0]}, s{src}")
        a(f"s_mov_b32 {reg[1]}, s{src+1}")
        a(f"s_mov_b32 {reg[2]}, {n}")
        a(f"s_mov_b32 {reg[3]}, 0x00020000")

    def vm_issue(self, tag, optional=False):
        self.a.lines.append(f"; @ISSUE{'?' if optional else ''} {tag}")

    def vm_wait(self, tag, linear=False):
        self.a.lines.append(f"; @WAIT{'L' if linear else ''} {tag}")

    def resolve_vm(self, start, end):
        lines = self.a.lines
        n = end - start
        for i in range(len(lines)):
            l = lines[i]
            if l.startswith("; @WAITL "):
                tag = l.split()[2]
                cnt = 0; found = False
                for back in range(i - 1, -1, -1):
                    ll = lines[back]
                    if ll.startswith("; @ISSUE"):
                        if ll.split()[2] == tag:
                            found = True; break
                        if not ll.startswith("; @ISSUE?"): cnt += 1
                assert found, tag
                lines[i] = f"s_waitcnt vmcnt({min(cnt, 63)})"
            elif l.startswith("; @WAIT "):
                assert start <= i < end
                tag = l.split()[2]
                cnt = 0; found = False
                pos = i - start
                for back in range(1, n + 1):
                    ll = lines[start + (pos - back) % n]
                    if ll.startswith("; @ISSUE"):
                        if ll.split()[2] == tag:
                            found = True; break
                        if not ll.startswith("; @ISSUE?"): cnt += 1
                assert found, tag
                lines[i] = f"s_waitcnt vmcnt({min(cnt, 63)})"

    def body(self, sW):
        a = self.a
        o = self.o
        DG = o['dg']; NR = o['nr']
        assert NPOS % NR == 0 and DG <= NR - 1 and DG <= 8
        V = Alloc('v', 2, 255)
        S = Alloc('s', 62, 98)
        vLane = Reg('v', 0)
        sM = Reg('s', 32, 4); sIN = Reg('s', 36, 4); sOI = Reg('s', 40, 4); sDI = Reg('s', 44, 4)
        sAN = Reg('s', 48, 4); sOUT = Reg('s', 52, 4); sWS = Reg('s', 56, 4)
        pCEN = Reg('s', 14, 2); pWR = Reg('s', 18, 2); pWS = Reg('s', 20, 2); pWD = Reg('s', 22, 2)
        pWU = Reg('s', 24, 2); pDBG = Reg('s', 28, 2)
        vZero = V('zero'); vOne = V('one')
        acc = [[V(f'acc{j}{l}', 4) for l in range(2)] for j in range(5)]
        Wa = V('wa', 4); Wb = V('wb', 4)
        rbfB = [V(f'rbf{j}', 2) for j in range(5)]
        Mr = [V(f'mr{j}', 2) for j in range(5)]
        vMoff = V('moff'); vLine = V('line'); vSel = V('sel'); vCB = V('cb')
        wraw = V('wraw', 2); dd = [V(f'dd{j}') for j in range(5)]; cenr = V('cenr', 2); raw = V('raw', 4)
        Ln12 = [[V(f'ln{l}{i}', 4) for i in range(4)] for l in (1, 2)]
        vTag = V('tag'); vSt = V('stv'); vPf = V('pf'); vPfD = V('pfd')
        mk0 = V.mark()
        st = S('st'); st2 = S('st2'); so = S('so')
        sFail = Reg('s', 61); sPoll = S('poll'); sG0 = S('g0'); sE0 = S('e0')
        sNegT = S('negT'); sLim = S('lim'); sLimA = S('lima'); sGS = S('gs'); sHi = S('hi')
        sSrc = S('src'); sM24 = S('m24'); sPf = S('pf'); so2 = S('so2')
        sL2 = [Reg('s', 0, 2), Reg('s', 44, 2), Reg('s', 46, 2), S('l2d', 2)]
        smk0 = S.mark()
        Q = [dict(i=V(f'q{k}i', 4), o=V(f'q{k}o', 4), a=V(f'q{k}a', 2)) for k in range(5)]
        tb = V('tb', 4)
        tmp = [dict(mk=V(f'mk{s}', 4), sh=V(f'sh{s}', 4), old=V(f'old{s}', 4), by=V(f'by{s}', 4), inc=V(f'inc{s}', 4))
               for s in range(2)]
        vOffQ = V('offq'); vOffA = V('offa'); vPB = V('pb'); vC2048 = V('c2048'); vi = V('vi', 4); vt = V('vt'); vt2 = V('vt2')
        vRd = V('rd'); vRb = V('rb'); vRh = V('rh')
        Ln = [[V(f'ln0{i}', 4) for i in range(4)]] + Ln12
        Hd = [V(f'hd{i}') for i in range(4)]
        print('phase 1/2 vgprs', V.high, file=sys.stderr)
        sMagic = S('magic'); sNeg = S('neg'); s492 = S('c492'); sLimIn = S('limin'); sK18 = S('k18'); sCq = S('cq')
        sOffI = S('offi'); sOffA = S('offa'); sLast = S('last', 2)
        sm = [Reg('s', 4 + 2 * k, 2) for k in range(4)]
        sm4 = Reg('s', 12, 2)
        ld = o['ldflags']
        self.vmseq = []

        def load_part(k, part):
            q = Q[k]
            if part == 0:
                a(f"s_add_u32 {so}, {sOffI}, {k * 1024}")
                a(f"buffer_load_dwordx4 {q['o']}, {vOffQ}, {sOI}, {so} offen {ld}")
            elif part == 1:
                a(f"s_add_u32 {so}, {sOffI}, {k * 1024}")
                a(f"buffer_load_dwordx4 {q['i']}, {vOffQ}, {sIN}, {so} offen {ld}")
            else:
                a(f"s_add_u32 {so}, {sOffA}, {k * 512}")
                a(f"buffer_load_dwordx2 {q['a']}, {vOffA}, {sAN}, {so} offen {ld}")
            self.vmseq.append(f'Q{k}')

        def load_quad(k):
            if k == 4: a(f"s_mov_b64 exec, {sLast}")
            for part in range(3): load_part(k, part)
            if k == 4: a(f"s_mov_b64 exec, -1")

        def wait_for(tag):
            last = max(i for i, x in enumerate(self.vmseq) if x == tag)
            a(f"s_waitcnt vmcnt({min(len(self.vmseq) - 1 - last, 63)})")

        a(f"s_mul_i32 {st}, {sW}, 5120")
        a(f"v_lshlrev_b32 {vOffQ}, 4, {vLane}")
        a(f"v_add_u32 {vOffQ}, {st}, {vOffQ}")
        a(f"v_lshrrev_b32 {vOffA}, 1, {vOffQ}")
        a(f"s_mul_i32 {sOffI}, s2, 40000")
        a(f"s_mul_i32 {sOffA}, s2, 20000")
        a(f"s_cmp_eq_u32 {sW}, 7")
        a(f"s_cselect_b64 {sLast}, 15, -1")
        a(f"s_mul_i32 {sE0}, s2, 625")
        a(f"s_mul_i32 {st}, {sW}, 80")
        a(f"s_add_u32 {sE0}, {sE0}, {st}")
        a("s_waitcnt lgkmcnt(0)")
        self.stamp(51)
        self.srd(sOI, 8, T * 4); self.srd(sIN, 6, T * 4); self.srd(sAN, 12, T * 2)
        up = o['up']
        parts = [(k, part) for k in range(up) for part in range(3)]
        q0n = o['q0n']
        for k, part in parts[:q0n]: load_part(k, part)
        a(f"s_mov_b32 {sG0}, s100")
        for i in range(4): a(f"v_mov_b32 {vi[i]}, -1")
        a(f"s_mul_i32 {st}, {sW}, {32 * PBS}")
        a(f"s_add_u32 {st}, {st}, {PB}")
        a(f"v_lshlrev_b32 {vt}, 4, {vLane}")
        a(f"v_add_u32 {vt2}, {st}, {vt}")
        for i in range(15):
            a(f"ds_write_b128 {vt2}, {vi} offset:{i*1024}")
        a(f"s_mov_b64 exec, 0xffffff")
        a(f"ds_write_b128 {vt2}, {vi} offset:{15*1024}")
        a(f"s_mov_b32 exec_lo, -1")
        a(f"s_mov_b32 exec_hi, 0")
        a(f"s_movk_i32 {s492}, {PBS}")
        a(f"v_mov_b32 {vPB}, {st}")
        a(f"v_mad_u32_u24 {vt2}, {vLane}, {s492}, {vPB}")
        a(f"v_mov_b32 {vi[0]}, {1 << 18}")
        a(f"ds_write_b32 {vt2}, {vi[0]} offset:{HDR}")
        a(f"s_mov_b64 exec, -1")
        for i in range(4): a(f"v_mov_b32 {vi[i]}, 0")
        a(f"s_lshl_b32 {st}, {sW}, 11")
        a(f"s_add_u32 {st}, {st}, {STG}")
        a(f"v_add_u32 {vt2}, {st}, {vt}")
        a(f"ds_write_b128 {vt2}, {vi}")
        a(f"ds_write_b128 {vt2}, {vi} offset:1024")
        Lz = a.newlabel('z')
        a(f"s_cmp_lg_u32 {sW}, 0")
        a(f"s_cbranch_scc1 {Lz}")
        a(f"v_lshlrev_b32 {vt2}, 3, {vLane}")
        a(f"ds_write_b64 {vt2}, {vi[0:2]}")
        a.label(Lz)
        a(f"v_mov_b32 {vOne}, 1")
        a(f"v_mov_b32 {vPB}, {PB}")
        a(f"v_mov_b32 {vC2048}, 0x{f32(2048.0):x}")
        a(f"s_mov_b32 {sCq}, 0x{f32(2047.5):x}")
        a(f"s_mov_b32 {sMagic}, {MAGIC}")
        a(f"s_movk_i32 {sNeg}, -10000")
        a(f"s_mov_b32 {sLimIn}, {o['lima'] - 1}")
        a(f"s_mov_b32 {sK18}, {1 << 18}")
        a(f"s_mov_b32 {sHi}, 0xffff0000")
        a("s_waitcnt lgkmcnt(0)")
        a("s_barrier")
        self.stamp(1)
        q1n = max(q0n, o['q1n'])
        for k, part in parts[q0n:q1n]: load_part(k, part)
        self.srd(sM, 4, E * 32); self.srd(sDI, 10, E * 2); self.srd(sOUT, 26, E * 32); self.srd(sWS, 30, WSB)
        a(f"v_mov_b32 {vZero}, 0")
        a(f"v_mov_b32 {vCB}, {CB}")
        a(f"s_mov_b32 {sLim}, 0x{LIM:x}")
        a(f"s_mov_b32 {sLimA}, 0x{o['lima'] << 14:x}")
        a(f"s_movk_i32 {sGS}, {GS}")
        a(f"s_mov_b32 {sM24}, 0x00ffffff")
        a(f"s_lshl_b32 {sSrc}, s2, 7")
        a(f"s_mov_b32 {sFail}, {1 if o['force_fail'] else 0}")
        a("s_lshr_b64 s[100:101], s[100:101], 8")
        a(f"s_sub_u32 {sNegT}, 3, s100")
        a(f"s_lshl_b32 {st}, s100, 8")
        a(f"s_xor_b32 {st}, {st}, s100")
        a(f"s_lshl_b32 {st2}, {st}, 16")
        a(f"s_xor_b32 {st}, {st}, {st2}")
        a(f"v_and_b32 {vt}, 3, {vLane}")
        a(f"v_lshlrev_b32 {vt}, 3, {vt}")
        a(f"v_lshrrev_b32 {vTag}, {vt}, {st}")
        a(f"v_lshlrev_b32 {vTag}, 24, {vTag}")
        a(f"v_mov_b32 {vt2}, 15")
        a(f"v_lshlrev_b32 {vt2}, {vt}, {vt2}")
        a(f"v_xor_b32 {vSel}, 0x0c0c0c0c, {vt2}")
        a(f"v_lshrrev_b32 {vt}, 3, {vLane}")
        a(f"s_lshl_b32 {st}, {sW}, 5")
        a(f"v_add_u32 {vt}, {st}, {vt}")
        a(f"v_and_b32 {vt2}, 7, {vLane}")
        a(f"v_mad_u32_u24 {vRh}, {vt}, {s492}, {vPB}")
        a(f"v_mad_u32_u24 {vRd}, {vt2}, 12, {vRh}")
        a(f"v_mad_u32_u24 {vRb}, {vt2}, 3, {vRh}")
        a(f"v_lshlrev_b32 {vSt}, 15, {vt}")
        a(f"v_lshl_add_u32 {vSt}, {vt2}, 4, {vSt}")
        a(f"s_lshl_b32 {st}, {sW}, 12")
        a(f"v_lshlrev_b32 {vLine}, 4, {vLane}")
        a(f"v_add_u32 {vLine}, {st}, {vLine}")
        if o['tlbw']:
            a(f"s_lshl_b32 {st}, {sW}, 22")
            a(f"v_lshlrev_b32 {vt}, 20, {vLane}")
            a(f"v_add_u32 {vt}, {st}, {vt}")
            a(f"v_cmp_gt_u32 vcc, 4, {vLane}")
            a(f"v_cndmask_b32 {vt}, {OOB}, {vt}, vcc")
            a(f"buffer_load_dword {vPfD}, {vt}, {sWS}, 0 offen")
            self.vmseq.append('tlb')
        if o['pfa']:
            npf = o['pfa'] // 32
            a(f"v_lshlrev_b32 {vPf}, 7, {vLane}")
            a(f"v_cmp_gt_u32 vcc, {npf}, {vLane}")
            a(f"v_cndmask_b32 {vPf}, {OOB}, {vPf}, vcc")
            a(f"s_lshr_b32 {sPf}, s2, 3")
            a(f"s_mul_i32 {sPf}, {sPf}, {o['pfa'] * 128}")
            a(f"s_mul_i32 {st}, {sW}, {4 * npf * 128}")
            a(f"s_add_u32 {sPf}, {sPf}, {st}")
        for j in range(5):
            for l in range(2):
                for i in range(4): a(f"v_mov_b32 {acc[j][l][i]}, 0")
        for k, part in parts[q1n:]: load_part(k, part)
        n_ = vt; q_ = vt2; t3 = tb[0]
        a(f"v_and_b32 {n_}, 15, {vLane}")
        a(f"v_lshrrev_b32 {q_}, 4, {vLane}")
        a(f"v_lshlrev_b32 {t3}, 3, {vLane}")
        a(f"global_load_dwordx2 {wraw}, {t3}, {pWD}")
        a(f"v_add_u32 {t3}, {sE0}, {n_}")
        a(f"v_lshlrev_b32 {vMoff}, 5, {t3}")
        a(f"v_lshl_add_u32 {vMoff}, {q_}, 3, {vMoff}")
        a(f"v_lshlrev_b32 {t3}, 1, {t3}")
        for j in range(5):
            a(f"buffer_load_ushort {dd[j]}, {t3}, {sDI}, 0 offen offset:{j*32}")
        a(f"v_lshlrev_b32 {t3}, 3, {q_}")
        a(f"v_and_b32 {t3}, 8, {t3}")
        a(f"global_load_dwordx2 {cenr}, {t3}, {pCEN}")
        Lw = [a.newlabel('ew') for _ in range(4)]; Lwx = a.newlabel('ewx')
        a(f"s_and_b32 {st2}, {sW}, 3")
        a(f"s_cmp_eq_u32 {st2}, 3")
        a(f"s_cbranch_scc1 {Lw[3]}")
        a(f"s_cmp_eq_u32 {st2}, 2")
        a(f"s_cbranch_scc1 {Lw[2]}")
        a(f"v_and_b32 {t3}, 1, {q_}")
        a(f"v_lshlrev_b32 {t3}, 8, {t3}")
        a(f"v_lshl_add_u32 {t3}, {n_}, 1, {t3}")
        a(f"s_lshl_b32 {st}, {st2}, 5")
        a(f"v_add_u32 {t3}, {st}, {t3}")
        for jj in range(4):
            a(f"global_load_ushort {raw[jj]}, {t3}, {pWS} offset:{jj*64}")
        a(f"s_branch {Lwx}")
        a.label(Lw[2])
        a(f"v_and_b32 {t3}, 1, {q_}")
        a(f"v_lshlrev_b32 {t3}, 7, {t3}")
        a(f"v_lshl_add_u32 {t3}, {n_}, 1, {t3}")
        for jj in range(4):
            a(f"global_load_ushort {raw[jj]}, {t3}, {pWR} offset:{jj*32}")
        a(f"s_branch {Lwx}")
        a.label(Lw[3])
        a(f"v_lshlrev_b32 {t3}, 7, {q_}")
        a(f"v_lshl_add_u32 {t3}, {n_}, 1, {t3}")
        for jj in range(4):
            a(f"global_load_ushort {raw[jj]}, {t3}, {pWU} offset:{jj*32}")
        a.label(Lwx)
        self.vmseq += ['sm'] * 11
        if o['mat'] == 'start':
            for jj in range(5):
                a(f"buffer_load_dwordx2 {Mr[jj]}, {vMoff}, {sM}, 0 offen offset:{jj*512}")
            self.vmseq += ['mr'] * 5
        self.stamp(53)
        def pre(k, s):
            q = Q[k]; w0 = q['i']; wb = q['o']; an = q['a']; t = tmp[s]
            mk, sh, old, by, inc = t['mk'], t['sh'], t['old'], t['by'], t['inc']
            if k == 4: a(f"s_mov_b64 exec, {sLast}")
            for j in range(4): a(f"v_mul_hi_u32_u24 {tb[j]}, {sMagic}, {wb[j]}")
            for j in range(4):
                if j & 1: a(f"v_and_b32 {by[j]}, {sHi}, {an[j >> 1]}")
                else: a(f"v_lshlrev_b32 {by[j]}, 16, {an[j >> 1]}")
            for j in range(4): a(f"v_sub_u32 {mk[j]}, {sLimIn}, {w0[j]}")
            for j in range(4): a(f"v_mul_f32 {by[j]}, 0x{INV2PI:x}, {by[j]}")
            for j in range(4): a(f"v_lshlrev_b32 {wb[j]}, 4, {wb[j]}")
            for j in range(4): a(f"v_ashrrev_i32 {mk[j]}, 31, {mk[j]}")
            for j in range(4): a(f"v_fract_f32 {by[j]}, {by[j]}")
            for j in range(4): a(f"v_mad_i32_i24 {wb[j]}, {tb[j]}, {sNeg}, {wb[j]}")
            for j in range(4): a(f"v_and_b32 {sh[j]}, 9, {mk[j]}")
            for j in range(4): a(f"v_cos_f32 {by[j]}, {by[j]}")
            for j in range(4): a(f"v_lshl_or_b32 {w0[j]}, {w0[j]}, 14, {wb[j]}")
            for j in range(4): a(f"v_lshl_or_b32 {inc[j]}, {vOne}, {sh[j]}, {sK18}")
            for j in range(4): a(f"v_mad_u32_u24 {wb[j]}, {tb[j]}, {s492}, {vPB}")
            if k >= 2: a("s_waitcnt lgkmcnt(8)")
            for j in range(4): a(f"ds_add_rtn_u32 {old[j]}, {wb[j]}, {inc[j]} offset:{HDR}")
            for j in range(4): a(f"v_fma_f32 {by[j]}, {by[j]}, {sCq}, {vC2048}")
            for j in range(4): a(f"v_cvt_u32_f32 {by[j]}, {by[j]}")
            for j in range(4): a(f"v_and_or_b32 {w0[j]}, {by[j]}, 15, {w0[j]}")
            for j in range(4): a(f"v_lshrrev_b32 {by[j]}, 4, {by[j]}")
            if k == 4: a(f"s_mov_b64 exec, -1")

        def post(k, s):
            q = Q[k]; w0 = q['i']; wb = q['o']; t = tmp[s]
            mk, sh, old, by, inc = t['mk'], t['sh'], t['old'], t['by'], t['inc']
            if k == 4: a(f"s_mov_b64 exec, {sLast}")
            for j in range(4): a(f"v_bfe_u32 {sh[j]}, {old[j]}, {sh[j]}, 9")
            for j in range(4): a(f"v_and_b32 {inc[j]}, 47, {mk[j]}")
            for j in range(4): a(f"v_lshrrev_b32 {old[j]}, 18, {old[j]}")
            for j in range(4): a(f"v_xad_u32 {sh[j]}, {sh[j]}, {mk[j]}, {inc[j]}")
            for j in range(4):
                a(f"v_cmp_le_u32 {sm[j]}, 48, {old[j]}")
            for j in range(4):
                a(f"v_cndmask_b32 {sh[j]}, {sh[j]}, {old[j]}, {sm[j]}")
            for j in range(4): a(f"v_min_u32 {sh[j]}, {DUMP}, {sh[j]}")
            for j in range(4): a(f"v_lshl_add_u32 {inc[j]}, {sh[j]}, 2, {wb[j]}")
            for j in range(4): a(f"v_add_u32 {sh[j]}, {sh[j]}, {wb[j]}")
            for j in range(4):
                a(f"ds_write_b32 {inc[j]}, {w0[j]}")
                a(f"ds_write_b8 {sh[j]}, {by[j]} offset:{BYT}")
            if k == 4: a(f"s_mov_b64 exec, -1")

        nxt = up
        for k in range(5):
            wait_for(f'Q{k}')
            if k == 0: self.stamp(2)
            pre(k, k & 1)
            if nxt < 5:
                load_quad(nxt); nxt += 1
            if k > 0:
                a("s_waitcnt lgkmcnt(4)" if k == 1 else "s_waitcnt lgkmcnt(4)")
                post(k - 1, (k - 1) & 1)
        a("s_waitcnt lgkmcnt(0)")
        post(4, 0)
        self.stamp(3)
        a("s_waitcnt lgkmcnt(0)")
        a("s_barrier")
        self.stamp(4)

        stf = o['stflags']
        wait_for('sm')
        L1S = list(o['l1s']); L2S = o['l2s']
        aW = [tmp[0]['mk'][i] for i in range(4)]
        aB = [tmp[0]['sh'][i] for i in range(4)]
        TP = [[Reg('v', Q[l]['i'].i + 2 * it, 2) for it in range(4)] for l in range(3)]
        for l in range(3): assert Q[l]['o'].i == Q[l]['i'].i + 4
        a(f"v_and_b32 {aB[0]}, -4, {vRb}")
        a(f"v_add_u32 {aB[0]}, {BYT}, {aB[0]}")
        a(f"v_mov_b32 {aW[0]}, {vRd}")
        for it in range(1, 4):
            a(f"v_add_u32 {aW[it]}, {it * 8 * PBS}, {vRd}")
            a(f"v_add_u32 {aB[it]}, {it * 8 * PBS}, {aB[0]}")
        def rd(l, it):
            L = Ln[l][it]
            a(f"ds_read2_b32 {L[0:2]}, {aW[it]} offset0:{l * 24} offset1:{l * 24 + 1}")
            a(f"ds_read_b32 {L[2]}, {aW[it]} offset:{l * 96 + 8}")
            a(f"ds_read2_b32 {TP[l][it]}, {aB[it]} offset0:{l * 6} offset1:{l * 6 + 1}")
        def tag(l, it):
            a(f"v_alignbyte_b32 {Ln[l][it][3]}, {TP[l][it][1]}, {TP[l][it][0]}, {vRb}")
            a(f"v_bfi_b32 {Ln[l][it][3]}, {sM24}, {Ln[l][it][3]}, {vTag}")
        def store(l, it, name=None):
            a(f"s_add_u32 {so2}, {sSrc}, {(l * 256 + it * 8) << 15}")
            a(f"buffer_store_dwordx4 {Ln[l][it]}, {vSt}, {sWS}, {so2} offen {stf}")
            if name: self.vmseq.append(name)
        def store2(optional_tag=None):
            for it in range(4):
                Ls = a.newlabel('s2')
                a(f"s_cmp_eq_u64 {sL2[it]}, 0")
                a(f"s_cbranch_scc1 {Ls}")
                a(f"s_mov_b64 exec, {sL2[it]}")
                store(2, it)
                a(f"s_mov_b64 exec, -1")
                a.label(Ls)
        self.store_l = store; self.store2 = store2
        npf = o['pfa'] // 32
        def pf(i):
            if not o['pfa']: return
            a(f"buffer_load_dword {vPfD}, {vPf}, {sM}, {sPf} offen")
            a(f"s_add_u32 {sPf}, {sPf}, {npf * 128}")
            self.vmseq.append('pf')
        for it in range(4): rd(0, it)
        a("s_waitcnt lgkmcnt(6)")
        for it in range(2): tag(0, it)
        store(0, 0, 'L0'); pf(0)
        for it in range(2): rd(1, it)
        store(0, 1, 'L0'); pf(1)
        a("s_waitcnt lgkmcnt(6)")
        for it in range(2, 4): tag(0, it)
        store(0, 2, 'L0'); pf(2)
        store(0, 3, 'L0'); pf(3)
        for it in range(2, 4): rd(1, it)
        a("s_waitcnt lgkmcnt(6)")
        for it in range(4): a(f"ds_read_b32 {Hd[it]}, {vRh} offset:{it * 8 * PBS + HDR}")
        rd(2, 0)
        a("s_waitcnt lgkmcnt(3)")
        for it in range(1, 4): rd(2, it)
        self.stamp(5)
        a(f"s_mov_b32 {st}, {49 << 18}")
        a(f"s_mov_b32 {st2}, {73 << 18}")
        for it in range(4): a(f"v_cmp_le_u32 {sL2[it]}, {st}, {Hd[it]}")
        a(f"v_max3_u32 {vt}, {Hd[0]}, {Hd[1]}, {Hd[2]}")
        a(f"v_max_u32 {vt}, {vt}, {Hd[3]}")
        a(f"v_cmp_le_u32 vcc, {st2}, {vt}")
        for it in range(4): tag(1, it)
        a("s_waitcnt lgkmcnt(0)")
        for it in range(4): tag(2, it)
        a(f"s_cbranch_vccnz p_rare")
        a.label("p_rare_back")
        self.late.append((self._p_rare, (Hd, aW, aB, TP[0][0], vRb, vSt, vTag, sM24, sSrc, so2, st2, sWS, Ln[0][0])))
        if o['mat'] == 'gap':
            for jj in range(5):
                a(f"buffer_load_dwordx2 {Mr[jj]}, {vMoff}, {sM}, 0 offen offset:{jj*512}")
            self.vmseq += ['mr'] * 5
        a("s_barrier")
        for it in range(4):
            if L1S[it] == 'pre': store(1, it, 'L1')
        self.stamp(6)

        V.reset(mk0); S.reset(smk0)
        rows = [V(f'row{i}', 4) for i in range(NR)]
        X = [V(f'x{i}', 4) for i in range(4)]
        D1 = [V(f'd1{i}', 4) for i in range(2)]
        Bq = [[V(f'b{s}{l}', 4) for l in range(2)] for s in range(2)]
        vT = V('tup', 2)
        vIdx = V('idx'); vOff = V('off'); vTau = [V(f'tau{b}') for b in range(NBLK)]; vHalf = V('half16')
        vIdxC = V('idxc'); vIdxN = V('idxn'); vTupC = V('tupc'); vTupN = V('tupn')
        vAddr = V('addr'); vC0 = V('c0'); vC1 = V('c1'); vK = V('k'); vBrd = V('brd'); vK2 = V('k2')
        vCntA = V('cnta'); vC = V('c')
        tt = [V(f'tt{i}') for i in range(12)]
        X0 = [V(f'y{i}', 4) for i in range(4)]
        self.c3 = V('c3', 4)
        print('phase 3 vgprs', V.next, file=sys.stderr)
        sCnt = [S(f'cnt{j}') for j in range(5)]
        sCntN = [S(f'cntn{j}') for j in range(5)]
        sIt = S('it'); sF0 = S('mf0'); sNot31 = S('not31'); sK1 = S('k1'); sPoff = S('poff')
        sHiL = Reg('s', 24, 2); sHdr = Reg('s', 26, 2); sv = [Reg('s', 18 + 2 * h, 2) for h in range(3)]
        sMore = [Reg('s', 4 + 2 * k, 2) for k in range(4)]
        sSave = Reg('s', 12, 2); sX = Reg('s', 16, 2)
        self.c = dict(NegT=sNegT, Sel=vSel, Lim=sLim, LimA=sLimA, GS=sGS, vCB=vCB, vZero=vZero, vOne=vOne,
                      sFail=sFail, sPoll=sPoll, sWS=sWS, vLine=vLine, sPoff=sPoff, tt=tt, X=X, sMore=sMore,
                      sv=sv, sHdr=sHdr, st=st, st2=st2, sX=sX, sSave=sSave)
        t0, t1, t2, t3 = tt[0], tt[1], tt[2], tt[3]
        def gap_epw():
            Ln1 = a.newlabel('nd')
            a(f"s_and_b32 {st2}, {sW}, 3")
            a(f"s_cmp_lg_u32 {st2}, 1")
            a(f"s_cbranch_scc1 {Ln1}")
            for jj in range(4): a(f"v_lshlrev_b32 {raw[jj]}, 16, {raw[jj]}")
            for jj in range(4): a(f"v_add_f32 {raw[jj]}, {raw[jj]}, {raw[jj]}")
            for jj in range(4): a(f"v_lshrrev_b32 {raw[jj]}, 16, {raw[jj]}")
            a.label(Ln1)
            for h in range(2):
                a(f"v_lshl_or_b32 {raw[2*h]}, {raw[2*h + 1]}, 16, {raw[2*h]}")
            a(f"v_mov_b32 {raw[1]}, {raw[2]}")
            a(f"s_lshl_b32 {st}, {st2}, 9")
            a(f"v_lshl_add_u32 {tt[2]}, {vLane}, 3, {st}")
            a(f"ds_write_b64 {tt[2]}, {raw[0:2]} offset:{EPW}")
        def gap_rbf(js, cen):
            a(f"v_lshlrev_b32 {cen[0]}, 16, {cenr[0]}")
            a(f"v_and_b32 {cen[1]}, {sHi}, {cenr[0]}")
            a(f"v_lshlrev_b32 {cen[2]}, 16, {cenr[1]}")
            a(f"v_and_b32 {cen[3]}, {sHi}, {cenr[1]}")
            a(f"s_not_b64 {sX}, {sHiL}")
            for j in js:
                self.rbf_operand(dd[j], cen, rbfB[j], tt[4:], sX)
        def gap_work():
            a(f"v_and_b32 {t0}, 15, {vLane}")
            a(f"v_lshrrev_b32 {t1}, 4, {vLane}")
            a(f"v_lshrrev_b32 {t2}, 2, {t0}")
            a(f"v_lshlrev_b32 {t2}, 3, {t2}")
            a(f"v_and_b32 {t3}, 3, {t0}")
            a(f"v_add_u32 {vTau[0]}, {t2}, {t3}")
            a(f"v_lshrrev_b32 {t3}, 5, {vLane}")
            a(f"v_lshl_add_u32 {vTau[0]}, {t3}, 2, {vTau[0]}")
            for b in range(1, NBLK): a(f"v_add_u32 {vTau[b]}, {32 * b}, {vTau[0]}")
            a(f"v_and_b32 {t2}, 1, {t1}")
            a(f"v_lshlrev_b32 {vHalf}, 4, {t2}")
            vWr = vIdx
            a(f"v_lshlrev_b32 {vWr}, 4, {vHalf}")
            a(f"v_lshl_add_u32 {vWr}, {t0}, 1, {vWr}")
            a(f"s_mul_i32 {st}, {sW}, {10*GS}")
            a(f"s_add_u32 {st}, {st}, {CB}")
            a(f"v_lshlrev_b32 {vIdxC}, 3, {vTau[0]}")
            a(f"v_add_u32 {vIdxC}, {st}, {vIdxC}")
            a(f"v_add_u32 {vIdxN}, {GS}, {vIdxC}")
            a(f"v_and_b32 {t2}, 31, {vLane}")
            a(f"v_lshlrev_b32 {vTupC}, 3, {t2}")
            a(f"v_add_u32 {vTupC}, {st}, {vTupC}")
            a(f"v_add_u32 {vTupN}, {GS}, {vTupC}")
            a(f"s_lshl_b32 {st}, {sW}, 11")
            a(f"s_add_u32 {st}, {st}, {STG}")
            a(f"v_lshlrev_b32 {vBrd}, 4, {vLane}")
            a(f"v_add_u32 {vBrd}, {st}, {vBrd}")
            a(f"v_lshrrev_b32 {vK}, 3, {t2}")
            a(f"v_lshlrev_b32 {vK}, 8, {vK}")
            a(f"v_and_b32 {t2}, 7, {t2}")
            a(f"v_lshl_add_u32 {vK}, {t2}, 1, {vK}")
            a(f"v_lshl_add_u32 {vK}, {t3}, 10, {vK}")
            a(f"v_add_u32 {vK}, {st}, {vK}")
            a(f"v_min_u32 {vCntA}, 4, {vLane}")
            a(f"s_mul_i32 {st}, {sW}, 5")
            a(f"v_add_u32 {vCntA}, {st}, {vCntA}")
            a(f"v_lshlrev_b32 {vCntA}, 3, {vCntA}")
            a(f"s_mov_b32 {sF0}, 0xf0")
            a(f"s_mov_b32 {sNot31}, 0x{o['gmask']:x}")
            a(f"s_mov_b32 {sK1}, 0x{f32(1.0 / 2047.5):x}")
            a(f"v_mov_b32 {vK2}, 0x{f32((0.5 - 2048.0) / 2047.5):x}")
            a(f"s_mov_b32 {sHiL[0]}, 0")
            a(f"s_mov_b32 {sHiL[1]}, -1")
            a(f"s_mov_b32 {sHdr[0]}, 0x80808080")
            a(f"s_mov_b32 {sHdr[1]}, 0x80808080")
            a(f"v_lshlrev_b32 {t2}, 3, {vLane}")
            a(f"ds_write_b64 {t2}, {wraw} offset:{WSC}")
            wtmp = X[2]
            for i in range(4):
                a(f"ds_read_u16 {wtmp[i]}, {vWr} offset:{WSC + (2*i)*32}")
                a(f"ds_read_u16 {X[3][i]}, {vWr} offset:{WSC + (2*i+1)*32}")
            if o['rbfat'] == 'gap':
                gap_epw()
                gap_rbf(range(5), X[0])
            wtmp = X[2]
            a(f"s_not_b64 {sX}, {sHiL}")
            a("s_waitcnt lgkmcnt(0)")
            for i in range(4):
                a(f"v_lshl_or_b32 {wtmp[i]}, {X[3][i]}, 16, {wtmp[i]}")
            for i in range(4):
                a(f"v_cndmask_b32 {Wa[i]}, 0, {wtmp[i]}, {sX}")
            for i in range(4):
                a(f"v_cndmask_b32 {Wb[i]}, 0, {wtmp[i]}, {sHiL}")
            self.stamp(7)
        if o['gapat'] == 'pre': gap_work()
        tf = o['tupflags']
        gate = o['gate']
        if gate == 'ack': a("s_waitcnt vmcnt(0)")
        elif gate == 'ack0': wait_for('L0')
        elif isinstance(gate, int) and gate > 0:
            Lg = a.newlabel('gate'); Lgx = a.newlabel('gatex')
            a(f"s_mov_b32 {sPoll}, 0")
            a.label(Lg)
            a("s_memrealtime s[14:15]")
            a("s_waitcnt lgkmcnt(0)")
            a(f"s_sub_u32 {st}, s14, {sG0}")
            a(f"s_cmp_ge_u32 {st}, {gate}")
            a(f"s_cbranch_scc1 {Lgx}")
            a(f"s_add_u32 {sPoll}, {sPoll}, 1")
            a(f"s_cmp_lt_u32 {sPoll}, 100000")
            a(f"s_cbranch_scc1 {Lg}")
            a.label(Lgx)
        self.stamp(8)
        a(f"s_lshl_b32 {sPoff}, s2, 15")
        def load_line(dst, l, k, tag=None, optional=False):
            if l == 0:
                a(f"buffer_load_dwordx4 {dst}, {vLine}, {sWS}, {sPoff} offen offset:{k*1024} {tf}")
            else:
                a(f"s_add_u32 {st}, {sPoff}, {(l * 256) << 15}")
                a(f"buffer_load_dwordx4 {dst}, {vLine}, {sWS}, {st} offen offset:{k*1024} {tf}")
            if tag: self.vm_issue(tag, optional)
        def stores_at(where):
            for it in range(4):
                if L1S[it] == where:
                    store(1, it)
                    self.vm_issue(f'L1{it}', optional=isinstance(where, int))
            if L2S == where: store2()
        for k in range(4): load_line(X0[k], 0, k, f'Z{k}')
        stores_at('post')
        if o['gapat'] == 'post': gap_work()
        if 'val' in L1S or L2S == 'val':
            for k in range(4):
                self.vm_wait(f'Z{k}', linear=True)
                if k == 0: self.stamp(9)
                self.checked(X0[k], 0, k, f'z{k}')
            stores_at('val')
            for k in range(4): self.insert(X0[k], 0)
        else:
            for k in range(4):
                self.vm_wait(f'Z{k}', linear=True)
                if k == 0: self.stamp(9)
                self.checked(X0[k], 0, k, f'z{k}')
                self.insert(X0[k], 0)
        self.publish()
        self.stamp(10)
        a("s_waitcnt lgkmcnt(0)")
        a("s_barrier")
        self.stamp(11)
        self.read_counts_issue(vC, vCntA, CC)
        off = lambda p: (p // NBLK) * 2 * GS + (p % NBLK) * 256
        ix = [Bq[1][0][i] for i in range(4)] + [Bq[1][1][i] for i in range(4)]
        for t in range(DG):
            a(f"ds_read_b32 {ix[t]}, {vIdxC} offset:{off(t)}")
        a(f"ds_read_b64 {vT}, {vTupC} offset:0")
        a("s_waitcnt lgkmcnt(0)")
        self.read_counts_use(vC, sCnt, sFail, st, st2)
        OB = o['optblk']
        opt = lambda p: (p % NBLK) >= OB
        for t in range(DG):
            Lg = None
            if opt(t):
                Lg = a.newlabel('skg')
                a(f"s_cmp_gt_u32 {sCnt[t // NBLK]}, {32 * (t % NBLK)}")
                a(f"s_cbranch_scc0 {Lg}")
            self.g_stage(ix[t], vOff, sNot31, vHalf, sCnt[t // NBLK], vTau[t % NBLK], rows[t % NR], sM)
            self.vm_issue(f"G{t}", optional=Lg is not None)
            if Lg: a.label(Lg)
        sst = (vT, vAddr, vC0, vC1, sF0, vK, sK1, vK2, sHiL, vBrd)
        self.s_stage(*sst, Bq[0], vZero)
        a(f"ds_read_b32 {vIdx}, {vIdxC} offset:{off(DG)}")
        a(f"ds_read_b64 {vT}, {vTupC} offset:{off(1)}")
        a(f"s_mov_b32 {sIt}, 0")
        self.stamp(12)

        PINS = o['pins']; PSEC = o['psec']; PWAIT = o['pwait']; PPL = o['ppl']
        assert all(PPL[k] < PINS[k] for k in range(4))
        assert max(PINS) < PSEC < PWAIT <= NPOS - DG - 2
        Lloop = 'c_loop'
        a.label(Lloop)
        start = len(a.lines)
        for p in range(NPOS):
            a.comment(f"---- slot {p}")
            j, blk = p // NBLK, p % NBLK
            a("s_waitcnt lgkmcnt(0)")
            if p == PWAIT + 1:
                self.read_counts_use(vC, sCntN, sFail, st, st2)
            rw = rows[p % NR]
            Lsk1 = None
            if opt(p):
                Lsk1 = a.newlabel('sk1')
                a(f"s_cmp_gt_u32 {sCnt[j]}, {32 * blk}")
                a(f"s_cbranch_scc0 {Lsk1}")
            self.vm_wait(f"G{p}")
            a(f"v_mfma_f32_16x16x32_bf16 {D1[0]}, {rw}, {Wa}, 0")
            a(f"v_mfma_f32_16x16x32_bf16 {D1[1]}, {rw}, {Wb}, 0")
            if Lsk1: a.label(Lsk1)
            if p == PWAIT:
                Lno = a.newlabel('nowait'); Lgo = a.newlabel('gowait')
                a(f"s_cmp_eq_u32 {sIt}, 0")
                a(f"s_cbranch_scc0 {Lno}")
                self.lds_spin(CB_CNT, 8, vC, vZero, st)
                self.read_counts_issue(vC, vCntA, CC + 4)
                a(f"s_branch {Lgo}")
                a.label(Lno)
                a(f"v_mov_b32 {vC}, 0")
                a.label(Lgo)
            tgt = p + DG
            tq = tgt % NPOS
            cn = sCnt[tq // NBLK] if tgt < NPOS else sCntN[tq // NBLK]
            Lg = None
            if opt(tq):
                Lg = a.newlabel('skg')
                a(f"s_cmp_gt_u32 {cn}, {32 * (tq % NBLK)}")
                a(f"s_cbranch_scc0 {Lg}")
            self.g_stage(vIdx, vOff, sNot31, vHalf, cn, vTau[tq % NBLK], rows[tgt % NR], sM)
            self.vm_issue(f"G{tq}", optional=Lg is not None)
            if Lg: a.label(Lg)
            nx = p + 1
            nq = nx % NPOS
            Lsk2 = None
            if opt(nq):
                cn2 = sCnt[nq // NBLK] if nx < NPOS else sCntN[nq // NBLK]
                Lsk2 = a.newlabel('sk2')
                a(f"s_cmp_gt_u32 {cn2}, {32 * (nq % NBLK)}")
                a(f"s_cbranch_scc0 {Lsk2}")
            self.s_stage(*sst, Bq[nx & 1], vZero)
            if Lsk2: a.label(Lsk2)
            t2_ = tgt + 1
            base = vIdxC if t2_ < NPOS else vIdxN
            a(f"ds_read_b32 {vIdx}, {base} offset:{off(t2_ % NPOS)}")
            s2_ = p + 2
            base = vTupC if s2_ < NPOS else vTupN
            a(f"ds_read_b64 {vT}, {base} offset:{off(s2_ % NPOS)}")
            Lsk3 = None
            if opt(p):
                Lsk3 = a.newlabel('sk3')
                a(f"s_cmp_gt_u32 {sCnt[j]}, {32 * blk}")
                a(f"s_cbranch_scc0 {Lsk3}")
            a(f"v_cvt_pk_bf16_f32 {rw[0]}, {D1[0][0]}, {D1[0][1]}")
            a(f"v_cvt_pk_bf16_f32 {rw[1]}, {D1[0][2]}, {D1[0][3]}")
            a(f"v_cvt_pk_bf16_f32 {rw[2]}, {D1[1][0]}, {D1[1][1]}")
            a(f"v_cvt_pk_bf16_f32 {rw[3]}, {D1[1][2]}, {D1[1][3]}")
            Bp = Bq[p & 1]
            a(f"v_mfma_f32_16x16x32_bf16 {acc[j][0]}, {rw}, {Bp[0]}, {acc[j][0]}")
            a(f"v_mfma_f32_16x16x32_bf16 {acc[j][1]}, {rw}, {Bp[1]}, {acc[j][1]}")
            if Lsk3: a.label(Lsk3)
            if p in L1S or p == L2S or p in PPL:
                Lsk = a.newlabel('nost')
                a(f"s_cmp_eq_u32 {sIt}, 0")
                a(f"s_cbranch_scc0 {Lsk}")
                stores_at(p)
                if p in PPL:
                    k = PPL.index(p)
                    load_line(X[k], 1, k, f'P{k}', optional=True)
                a.label(Lsk)
            if isinstance(o['rbfat'], int) or isinstance(o['mat'], int):
                RB = o['rbfat'] if isinstance(o['rbfat'], int) else -100
                MA = o['mat'] if isinstance(o['mat'], int) else -100
                if p == MA or RB <= p < RB + 6:
                    Lsk = a.newlabel('norb')
                    a(f"s_cmp_eq_u32 {sIt}, 0")
                    a(f"s_cbranch_scc0 {Lsk}")
                    if p == MA:
                        for jj in range(5):
                            a(f"buffer_load_dwordx2 {Mr[jj]}, {vMoff}, {sM}, 0 offen offset:{jj*512}")
                            self.vm_issue(f'mr{jj}', optional=True)
                    if p == RB: gap_epw()
                    if RB < p < RB + 6: gap_rbf([p - RB - 1], X0[0])
                    a.label(Lsk)
            if p in PINS:
                k = PINS.index(p)
                Lsk = a.newlabel('noins')
                a(f"s_cmp_eq_u32 {sIt}, 0")
                a(f"s_cbranch_scc0 {Lsk}")
                self.vm_wait(f"P{k}", linear=True)
                self.checked(X[k], 1, k, f'p{k}')
                self.insert(X[k], 1, k=k)
                L = a.newlabel('sl')
                a(f"s_cmp_eq_u64 {sMore[k]}, 0")
                a(f"s_cbranch_scc1 {L}")
                a(f"s_add_u32 {st}, {sPoff}, {(2 * 256) << 15}")
                a(f"s_mov_b64 exec, {sMore[k]}")
                a(f"buffer_load_dwordx4 {X[k]}, {vLine}, {sWS}, {st} offen offset:{k*1024} {tf}")
                a(f"s_mov_b64 exec, -1")
                a.label(L)
                self.vm_issue(f"S{k}", optional=True)
                a.label(Lsk)
            if p == PSEC:
                Lna = a.newlabel('noarr')
                a(f"s_cmp_eq_u32 {sIt}, 0")
                a(f"s_cbranch_scc0 {Lna}")
                for k in range(4):
                    Ln_ = a.newlabel('sn')
                    a(f"s_cmp_eq_u64 {sMore[k]}, 0")
                    a(f"s_cbranch_scc1 {Ln_}")
                    self.vm_wait(f"S{k}", linear=True)
                    a(f"s_mov_b64 exec, {sMore[k]}")
                    self.checked(X[k], 2, k, f's{k}', sub=sMore[k])
                    self.insert(X[k], 2, sub=sMore[k])
                    a.label(Ln_)
                self.publish()
                a("s_waitcnt lgkmcnt(0)")
                self.lds_arrive(CB_CNT, vZero, vOne)
                a.label(Lna)
            if self.prof and p in (1, 5, 9, 14, 19, 24, 29):
                slot = (1, 5, 9, 14, 19, 24, 29).index(p)
                a(f"s_lshl_b32 {st}, {sIt}, 3")
                a(f"s_add_u32 {st}, {st}, {13 + slot}")
                self.stamp_dyn(st)
        a(f"v_mov_b32 {vIdxC}, {vIdxN}")
        a(f"v_mov_b32 {vTupC}, {vTupN}")
        for jj in range(5):
            a(f"s_mov_b32 {sCnt[jj]}, {sCntN[jj]}")
        a(f"s_add_u32 {sIt}, {sIt}, 1")
        a(f"s_cmp_le_u32 {sIt}, 1")
        a(f"s_cbranch_scc1 {Lloop}")
        end = len(a.lines)
        self.resolve_vm(start, end)
        self.stamp(40)
        a("s_waitcnt vmcnt(0) lgkmcnt(0)")
        a(f"ds_read_b32 {tt[0]}, {vZero} offset:{FAIL}")
        a("s_waitcnt lgkmcnt(0)")
        a(f"v_readfirstlane_b32 {st}, {tt[0]}")
        a(f"s_or_b32 {sFail}, {sFail}, {st}")
        a(f"s_cmp_lg_u32 {sFail}, 0")
        a(f"s_cbranch_scc1 c_fallback")
        a.label("c_fb_back")
        self.late.append((self._fallback, (acc, rows, X, D1, Bq, Wa, Wb, vLane, vZero, vOne, vHalf, vTau, sE0, sW,
                                            sOI, sIN, sAN, sM, st, st2, sMore, pDBG, sIt, sPoff, sPoll,
                                            vOff, vIdx, vAddr, vC0, vT, sv)))
        Aop = [X[0][0:2], X[0][2:4], X[1][0:2], X[1][2:4]]
        a(f"v_lshlrev_b32 {vIdx}, 3, {vLane}")
        for x in range(4):
            a(f"ds_read_b64 {Aop[x]}, {vIdx} offset:{EPW + x*512}")
        a("s_waitcnt lgkmcnt(0)")
        self.epilogue(acc, Mr, D1, Bq, rbfB, Aop, tt, vLane, vMoff, sW, sOUT, st, rows, X)
        self.stamp(41)
        Lgd = a.newlabel('gd'); Lgx = a.newlabel('gdx')
        a(f"s_mov_b32 {sPoll}, 0")
        a.label(Lgd)
        a("s_memrealtime s[14:15]")
        a("s_waitcnt lgkmcnt(0)")
        a(f"s_sub_u32 {st}, s14, {sG0}")
        a(f"s_cmp_ge_u32 {st}, {GUARD}")
        a(f"s_cbranch_scc1 {Lgx}")
        a(f"s_add_u32 {sPoll}, {sPoll}, 1")
        a(f"s_cmp_lt_u32 {sPoll}, 100000")
        a("s_sleep 4")
        a(f"s_cbranch_scc1 {Lgd}")
        a.label(Lgx)
        self.prof_store(sW)
        self.dbg_store(sW, pDBG)
        a("s_endpgm")

    def dbg_store(self, sW, pDBG):
        if not self.o.get('dbgprof'): return
        a = self.a
        L = a.newlabel('dbgx')
        a(f"s_cmp_lg_u32 {sW}, 0")
        a(f"s_cbranch_scc1 {L}")
        a("s_mov_b64 exec, 1")
        a("v_mov_b32 v2, 0")
        a(f"v_readlane_b32 s5, {self.vProf}, 50")
        spec = [(0, 50, 'min'), (1, 50, 'max'), (2, 2, 'max'), (3, 4, 'max'), (5, 9, 'max'), (6, 12, 'max'), (7, 40, 'max'), (8, 41, 'max'),
                (9, 2, 'sum'), (10, 4, 'sum'), (11, 9, 'sum'), (12, 12, 'sum'), (13, 19, 'sum'), (14, 40, 'sum'), (15, 41, 'sum')]
        for slot, ix, kind in spec:
            a(f"v_readlane_b32 s4, {self.vProf}, {ix}")
            if kind == 'min': a("s_not_b32 s4, s4")
            if kind == 'sum': a("s_sub_u32 s4, s4, s5")
            a("v_mov_b32 v1, s4")
            op = 'global_atomic_add' if kind == 'sum' else 'global_atomic_umax'
            a(f"{op} v2, v1, {pDBG} offset:{slot * 4}")
        a("s_waitcnt vmcnt(0)")
        a.label(L)

    def _p_rare(self, Hd, aW, aB, tp, vRb, vSt, vTag, sM24, sSrc, so, s73, sWS, L):
        a = self.a
        a.label("p_rare")
        for it in range(4):
            Ls = a.newlabel('pr')
            a(f"v_cmp_le_u32 vcc, {s73}, {Hd[it]}")
            a(f"s_cbranch_vccz {Ls}")
            a(f"s_mov_b64 exec, vcc")
            a("s_waitcnt vmcnt(0)")
            a(f"ds_read2_b32 {L[0:2]}, {aW[it]} offset0:{3 * 24} offset1:{3 * 24 + 1}")
            a(f"ds_read_b32 {L[2]}, {aW[it]} offset:{3 * 96 + 8}")
            a(f"ds_read2_b32 {tp}, {aB[it]} offset0:{3 * 6} offset1:{3 * 6 + 1}")
            a("s_waitcnt lgkmcnt(0)")
            a(f"v_alignbyte_b32 {L[3]}, {tp[1]}, {tp[0]}, {vRb}")
            a(f"v_bfi_b32 {L[3]}, {sM24}, {L[3]}, {vTag}")
            a(f"s_add_u32 {so}, {sSrc}, {(3 * 256 + it * 8) << 15}")
            a(f"buffer_store_dwordx4 {L}, {vSt}, {sWS}, {so} offen {self.o['stflags']}")
            a(f"s_mov_b64 exec, -1")
            a.label(Ls)
        a("s_branch p_rare_back")

    def publish(self):
        a = self.a; c = self.c
        L = a.newlabel('pub')
        a(f"s_cmp_eq_u32 {c['sFail']}, 0")
        a(f"s_cbranch_scc1 {L}")
        a(f"ds_write_b32 {c['vZero']}, {c['vOne']} offset:{FAIL}")
        a.label(L)

    def g_stage(self, idx, vOff, sNot31, vHalf, cnt, tau, dst, sM):
        a = self.a
        a(f"v_cmp_gt_u32 vcc, {cnt}, {tau}")
        a(f"v_lshrrev_b32 {vOff}, 9, {idx}")
        a(f"v_and_or_b32 {vOff}, {vOff}, {sNot31}, {vHalf}")
        a(f"v_cndmask_b32 {vOff}, {OOB}, {vOff}, vcc")
        a(f"buffer_load_dwordx4 {dst}, {vOff}, {sM}, 0 offen")

    def s_stage(self, vT, vAddr, vC0, vC1, sF0, vK, sK1, vK2, sHiL, vBrd, B, vZero):
        a = self.a
        a(f"v_and_b32 {vC0}, 15, {vT[0]}")
        a(f"v_lshl_or_b32 {vC0}, {vT[1]}, 4, {vC0}")
        a(f"v_cvt_f32_u32 {vC0}, {vC0}")
        a(f"v_and_or_b32 {vAddr}, {vT[0]}, {sF0}, {vK}")
        a(f"v_fma_f32 {vC0}, {vC0}, {sK1}, {vK2}")
        a(f"v_fma_f32 {vC1}, {vC0}, {vC0}, -0.5")
        a(f"v_cndmask_b32 {vC0}, {vC0}, {vC1}, {sHiL}")
        a(f"v_cvt_pk_bf16_f32 {vC0}, {vC0}, {vC0}")
        a(f"ds_write_b16 {vAddr}, {vC0}")
        a(f"ds_read_b128 {B[0]}, {vBrd}")
        a(f"ds_read_b128 {B[1]}, {vBrd} offset:1024")
        a(f"ds_write_b16 {vAddr}, {vZero}")

    def read_counts_issue(self, vC, vCntA, off):
        self.a(f"ds_read_b32 {vC}, {vCntA} offset:{off}")

    def read_counts_use(self, vC, dst, sFail, st, st2):
        a = self.a
        for jj in range(5):
            a(f"v_readlane_b32 {dst[jj]}, {vC}, {jj}")
        a(f"s_max_u32 {st}, {dst[0]}, {dst[1]}")
        a(f"s_max_u32 {st2}, {dst[2]}, {dst[3]}")
        a(f"s_max_u32 {st}, {st}, {dst[4]}")
        a(f"s_max_u32 {st}, {st}, {st2}")
        a(f"s_cmp_gt_u32 {st}, {CAP}")
        a(f"s_cselect_b32 {st}, 1, 0")
        a(f"s_or_b32 {sFail}, {sFail}, {st}")
        for jj in range(5):
            a(f"s_min_u32 {dst[jj]}, {dst[jj]}, {CAP}")

    def rbf_operand(self, d, cen, dst, tt, sQ):
        a = self.a
        t = [tt[0], tt[1], tt[2], tt[3]]; u = tt[4]; dv = tt[5]
        a(f"v_lshlrev_b32 {dv}, 16, {d}")
        for i in range(4): a(f"v_sub_f32 {t[i]}, {dv}, {cen[i]}")
        def rnd():
            for h in range(2):
                a(f"v_cvt_pk_bf16_f32 {u}, {t[2*h]}, {t[2*h+1]}")
                a(f"v_lshlrev_b32 {t[2*h]}, 16, {u}")
                a(f"v_and_b32 {t[2*h+1]}, 0xffff0000, {u}")
        rnd()
        for i in range(4): a(f"v_mul_f32 {t[i]}, {t[i]}, {t[i]}")
        rnd()
        for i in range(4): a(f"v_mul_f32 {t[i]}, 0xc1200000, {t[i]}")
        rnd()
        for i in range(4): a(f"v_mul_f32 {t[i]}, 0x3fb8aa3b, {t[i]}")
        for i in range(4): a(f"v_exp_f32 {t[i]}, {t[i]}")
        a(f"v_cvt_pk_bf16_f32 {dst[0]}, {t[0]}, {t[1]}")
        a(f"v_cvt_pk_bf16_f32 {dst[1]}, {t[2]}, {t[3]}")
        a(f"v_cndmask_b32 {dst[0]}, 0, {dst[0]}, {sQ}")
        a(f"v_cndmask_b32 {dst[1]}, 0, {dst[1]}, {sQ}")

    def tagcheck(self, x):
        a = self.a; c = self.c; tt = c['tt']
        u = tt[10]; w = tt[11]
        a(f"v_perm_b32 {u}, {x[3]}, {x[3]}, {c['Sel']}")
        a(f"v_or_b32_dpp {u}, {u}, {u} quad_perm:[1,0,3,2] row_mask:0xf bank_mask:0xf")
        a(f"v_or_b32_dpp {u}, {u}, {u} quad_perm:[2,3,0,1] row_mask:0xf bank_mask:0xf")
        a(f"v_lshlrev_b32 {w}, 8, {u}")
        a(f"v_xad_u32 {u}, {u}, {w}, {c['NegT']}")
        a(f"v_cmp_le_u32 vcc, 8, {u}")

    def checked(self, x, l, k, name, sub=None):
        a = self.a
        self.tagcheck(x)
        a(f"s_cbranch_vccnz c_rp_{name}")
        a.label(f"c_ok_{name}")
        self.late.append((self._repoll, (x, l, k, name, sub)))

    def _repoll(self, x, l, k, name, sub):
        a = self.a; c = self.c; tt = c['tt']
        ex = sub if sub is not None else '-1'
        a.label(f"c_rp_{name}")
        a(f"s_mov_b32 {c['sPoll']}, 0")
        L = a.newlabel('rpl'); Lto = a.newlabel('rpt')
        a(f"s_cmp_lg_u32 {c['sFail']}, 0")
        a(f"s_cbranch_scc1 {Lto}")
        a.label(L)
        a(f"s_sleep {self.o['psleep']}")
        a(f"s_mov_b64 exec, vcc")
        a(f"s_add_u32 {c['st']}, {c['sPoff']}, {(l * 256) << 15}")
        a(f"buffer_load_dwordx4 {x}, {c['vLine']}, {c['sWS']}, {c['st']} offen offset:{k*1024} {self.o['tupflags']}")
        a("s_waitcnt vmcnt(0)")
        self.tagcheck(x)
        a(f"s_mov_b64 exec, {ex}")
        a(f"s_cbranch_vccz c_ok_{name}")
        a(f"s_add_u32 {c['sPoll']}, {c['sPoll']}, 1")
        a(f"s_cmp_lt_u32 {c['sPoll']}, {self.o['poll_max']}")
        a(f"s_cbranch_scc1 {L}")
        a.label(Lto)
        a(f"s_mov_b32 {c['sFail']}, 1")
        a(f"v_mov_b32 {tt[0]}, -1")
        for h in range(3):
            a(f"v_cndmask_b32 {x[h]}, {x[h]}, {tt[0]}, vcc")
        a(f"s_branch c_ok_{name}")

    def insert(self, x, l, k=None, sub=None):
        a = self.a; c = self.c; tt = c['tt']; sv = c['sv']
        g = tt[0:3]; rk = tt[3:6]; cs = tt[6:9]
        for h in range(3): a(f"v_cmp_gt_u32 {sv[h]}, {c['Lim']}, {x[h]}")
        for h in range(3): a(f"v_bfe_u32 {g[h]}, {x[h]}, 8, 6")
        if l == 0:
            for h in range(3):
                a(f"v_cmp_le_u32 vcc, {c['LimA']}, {x[h]}")
                a(f"v_addc_co_u32 {g[h]}, vcc, {g[h]}, {g[h]}, vcc")
        else:
            for h in range(3): a(f"v_lshl_or_b32 {g[h]}, {g[h]}, 1, 1")
        if l == 1:
            a(f"s_andn2_b64 {sv[2]}, {sv[2]}, {c['sHdr']}")
            a(f"s_mov_b32 {c['st']}, {49 << 18}")
            a(f"s_mov_b32 {c['st2']}, {73 << 18}")
            a(f"v_cmp_le_u32 vcc, {c['st']}, {x[2]}")
            a(f"v_cmp_le_u32 {c['sX']}, {c['st2']}, {x[2]}")
        for h in range(3): a(f"v_lshl_add_u32 {rk[h]}, {g[h]}, 2, {CC}")
        for h in range(3):
            a(f"s_mov_b64 exec, {sv[h]}")
            a(f"ds_add_rtn_u32 {rk[h]}, {rk[h]}, {c['vOne']}")
        a(f"s_mov_b64 exec, -1")
        for h in range(3): a(f"v_bfe_u32 {cs[h]}, {x[3]}, {8 * h}, 8")
        for h in range(3): a(f"v_mad_u32_u24 {g[h]}, {g[h]}, {c['GS']}, {c['vCB']}")
        if l == 1:
            m = c['sMore'][k]
            a(f"s_and_b64 {m}, vcc, {c['sHdr']}")
            a(f"s_lshr_b64 {m}, {m}, 7")
            a(f"s_lshl_b64 {c['sSave']}, {m}, 8")
            a(f"s_sub_u32 {m[0]}, {c['sSave'][0]}, {m[0]}")
            a(f"s_subb_u32 {m[1]}, {c['sSave'][1]}, {m[1]}")
        a("s_waitcnt lgkmcnt(0)")
        for h in range(3): a(f"v_min_u32 {rk[h]}, {CAP}, {rk[h]}")
        for h in range(3): a(f"v_lshl_add_u32 {g[h]}, {rk[h]}, 3, {g[h]}")
        for h in range(3):
            a(f"s_mov_b64 exec, {sv[h]}")
            a(f"ds_write2_b32 {g[h]}, {x[h]}, {cs[h]} offset0:0 offset1:1")
        a(f"s_mov_b64 exec, -1")
        if l == 1:
            a(f"s_and_b64 {c['sX']}, {c['sX']}, {c['sHdr']}")
            a(f"s_cbranch_scc1 c_l3_{k}")
            a.label(f"c_l3_back_{k}")
            self.late.append((self._line3, (x, k)))

    def _line3(self, x, k):
        a = self.a; c = self.c; tt = c['tt']
        m = c['sX']; Y = self.c3
        a.label(f"c_l3_{k}")
        a(f"s_mov_b32 {c['st']}, {97 << 18}")
        a(f"v_cmp_le_u32 vcc, {c['st']}, {x[2]}")
        a(f"s_and_b64 vcc, vcc, {c['sHdr']}")
        a(f"s_cselect_b32 {c['st']}, 1, 0")
        a(f"s_or_b32 {c['sFail']}, {c['sFail']}, {c['st']}")
        a(f"s_lshr_b64 {m}, {m}, 7")
        a(f"s_lshl_b64 {c['sSave']}, {m}, 8")
        a(f"s_sub_u32 {m[0]}, {c['sSave'][0]}, {m[0]}")
        a(f"s_subb_u32 {m[1]}, {c['sSave'][1]}, {m[1]}")
        a(f"s_cmp_lg_u32 {c['sFail']}, 0")
        a(f"s_cbranch_scc1 c_l3_back_{k}")
        a(f"s_add_u32 {c['st']}, {c['sPoff']}, {(3 * 256) << 15}")
        a(f"s_mov_b64 exec, {m}")
        a(f"buffer_load_dwordx4 {Y}, {c['vLine']}, {c['sWS']}, {c['st']} offen offset:{k*1024} {self.o['tupflags']}")
        a("s_waitcnt vmcnt(0)")
        self.checked(Y, 3, k, f't{k}', sub=m)
        self.insert(Y, 3, sub=m)
        a(f"s_branch c_l3_back_{k}")

    def _fallback(self, acc, rows, X, D1, Bq, Wa, Wb, vLane, vZero, vOne, vHalf, vTau, sE0, sCw, sOI, sIN, sAN, sM,
                  st, st2, sMore, pDBG, sN, sCh, sLaneS, vOff, vIdx, vAddr, vC16, vT, sv):
        a = self.a
        a.label("c_fallback")
        a(f"global_store_dword {vZero}, {vOne}, {pDBG} offset:16")
        for j in range(5):
            for l in range(2):
                for i in range(4): a(f"v_mov_b32 {acc[j][l][i]}, 0")
        sMask = sMore[0]; sLoc = Reg('s', 6); sTt = Reg('s', 7); sSel = sMore[2]; sSel2 = sMore[3]
        a(f"s_movk_i32 {sN}, 80")
        a(f"s_cmp_eq_u32 {sCw}, 7")
        a(f"s_cselect_b32 {sN}, 65, {sN}")
        a(f"s_mov_b32 {sCh}, 0")
        vL16 = vIdx; vI15 = vAddr
        a(f"v_lshlrev_b32 {vL16}, 4, {vLane}")
        a(f"v_and_b32 {vI15}, 15, {vLane}")
        for i in range(1, 4):
            a(f"v_mov_b32 {Bq[0][0][i]}, 0")
            a(f"v_mov_b32 {Bq[0][1][i]}, 0")
        a(f"v_cmp_eq_u32 {sSel}, 0, {vTau[0]}")
        Lc = "c_fb_chunk"
        a.label(Lc)
        a(f"buffer_load_dwordx4 {X[3]}, {vL16}, {sOI}, {sCh} offen")
        a("s_waitcnt vmcnt(0)")
        for cidx in range(4):
            Lh = f"c_fb_h{cidx}"; Ld = f"c_fb_d{cidx}"
            a(f"v_subrev_u32 {X[3][cidx]}, {sE0}, {X[3][cidx]}")
            a(f"v_cmp_gt_u32 {sMask}, {sN}, {X[3][cidx]}")
            a.label(Lh)
            a(f"s_cmp_eq_u64 {sMask}, 0")
            a(f"s_cbranch_scc1 {Ld}")
            a(f"s_ff1_i32_b64 {sLaneS}, {sMask}")
            a(f"s_bitset0_b64 {sMask}, {sLaneS}")
            a(f"s_nop 3")
            a(f"v_readlane_b32 {sLoc}, {X[3][cidx]}, {sLaneS}")
            a(f"s_lshl_b32 {sTt}, {sLaneS}, 4")
            a(f"s_add_u32 {sTt}, {sTt}, {sCh}")
            a(f"s_add_u32 {sTt}, {sTt}, {cidx*4}")
            a(f"v_mov_b32 {vOff}, {sTt}")
            a(f"v_lshrrev_b32 {vC16}, 1, {vOff}")
            a(f"buffer_load_dword {vT[0]}, {vOff}, {sIN}, 0 offen")
            a(f"buffer_load_ushort {vT[1]}, {vC16}, {sAN}, 0 offen")
            a("s_waitcnt vmcnt(0)")
            a(f"v_lshl_or_b32 {vOff}, {vT[0]}, 5, {vHalf}")
            a(f"v_cndmask_b32 {vOff}, {OOB}, {vOff}, {sSel}")
            a(f"buffer_load_dwordx4 {rows[0]}, {vOff}, {sM}, 0 offen")
            a(f"v_lshlrev_b32 {vT[1]}, 16, {vT[1]}")
            a(f"v_mul_f32 {vT[1]}, 0x{INV2PI:x}, {vT[1]}")
            a(f"v_fract_f32 {vT[1]}, {vT[1]}")
            a(f"v_cos_f32 {vT[1]}, {vT[1]}")
            a(f"s_and_b32 {st}, {sLoc}, 15")
            a(f"v_cmp_eq_u32 {sSel2}, {st}, {vLane}")
            a(f"v_fma_f32 {vT[0]}, {vT[1]}, {vT[1]}, -0.5")
            a(f"v_cvt_pk_bf16_f32 {vT[0]}, {vT[1]}, {vT[0]}")
            a(f"v_and_b32 {vT[1]}, 0xffff, {vT[0]}")
            a(f"v_lshrrev_b32 {vT[0]}, 16, {vT[0]}")
            a(f"v_cndmask_b32 {Bq[0][0][0]}, 0, {vT[1]}, {sSel2}")
            a(f"v_cndmask_b32 {Bq[0][1][0]}, 0, {vT[0]}, {sSel2}")
            a("s_waitcnt vmcnt(0)")
            rw = rows[0]
            a(f"v_mfma_f32_16x16x32_bf16 {D1[0]}, {rw}, {Wa}, 0")
            a(f"v_mfma_f32_16x16x32_bf16 {D1[1]}, {rw}, {Wb}, 0")
            a(f"v_cvt_pk_bf16_f32 {rw[0]}, {D1[0][0]}, {D1[0][1]}")
            a(f"v_cvt_pk_bf16_f32 {rw[1]}, {D1[0][2]}, {D1[0][3]}")
            a(f"v_cvt_pk_bf16_f32 {rw[2]}, {D1[1][0]}, {D1[1][1]}")
            a(f"v_cvt_pk_bf16_f32 {rw[3]}, {D1[1][2]}, {D1[1][3]}")
            a(f"s_lshr_b32 {st}, {sLoc}, 4")
            for j in range(5):
                Lj = a.newlabel('fbj')
                a(f"s_cmp_lg_u32 {st}, {j}")
                a(f"s_cbranch_scc1 {Lj}")
                a(f"v_mfma_f32_16x16x32_bf16 {acc[j][0]}, {rw}, {Bq[0][0]}, {acc[j][0]}")
                a(f"v_mfma_f32_16x16x32_bf16 {acc[j][1]}, {rw}, {Bq[0][1]}, {acc[j][1]}")
                a.label(Lj)
            a(f"s_branch {Lh}")
            a.label(Ld)
        a(f"s_add_u32 {sCh}, {sCh}, 1024")
        a(f"s_cmp_lt_u32 {sCh}, {T*4}")
        a(f"s_cbranch_scc1 {Lc}")
        a("s_branch c_fb_back")

    def epilogue(self, acc, Mr, D1, Bq, rbfB, Aop, tt, vLane, vMoff, sCw, sOUT, st, rows, X):
        a = self.a
        A0, A1, AG, AU = Aop
        t0 = tt[0]; t1 = tt[1]
        a(f"v_and_b32 {t0}, 15, {vLane}")
        a(f"s_mul_i32 {st}, {sCw}, 80")
        a(f"v_add_u32 {t0}, {st}, {t0}")
        a(f"v_add_u32 {t0}, 64, {t0}")
        a(f"v_cmp_gt_u32 vcc, 625, {t0}")
        a(f"v_cndmask_b32 {t1}, {OOB}, {vMoff}, vcc")
        G0 = [rows[0], rows[1]]; G1 = [rows[2], rows[3]]; GT = [rows[4], rows[5]]; U = [D1[0], D1[1]]
        ag = [Bq[0][0][0:2], Bq[0][0][2:4]]
        mm = [Bq[0][1], Bq[1][0]]
        oo = [Bq[1][1][0:2], Bq[1][1][2:4]]

        def gm(j):
            s = j & 1
            a(f"v_mfma_f32_16x16x16_bf16 {G0[s]}, {A0}, {rbfB[j]}, 0")
            a(f"v_mfma_f32_16x16x16_bf16 {G1[s]}, {A1}, {rbfB[j]}, 0")
            a(f"v_mfma_f32_16x16x16_bf16 {GT[s]}, {AG}, {rbfB[j]}, 0")
        gm(0)
        for j in range(5):
            s = j & 1
            if j + 1 < 5: gm(j + 1)
            mrow = Mr[j]
            a(f"v_lshlrev_b32 {mm[s][0]}, 16, {mrow[0]}")
            a(f"v_and_b32 {mm[s][1]}, 0xffff0000, {mrow[0]}")
            a(f"v_lshlrev_b32 {mm[s][2]}, 16, {mrow[1]}")
            a(f"v_and_b32 {mm[s][3]}, 0xffff0000, {mrow[1]}")
            for i in range(4):
                a(f"v_mul_f32 {G0[s][i]}, {G0[s][i]}, {acc[j][0][i]}")
            for i in range(4):
                a(f"v_fma_f32 {G0[s][i]}, {G1[s][i]}, {acc[j][1][i]}, {G0[s][i]}")
            a(f"v_cvt_pk_bf16_f32 {ag[s][0]}, {G0[s][0]}, {G0[s][1]}")
            a(f"v_cvt_pk_bf16_f32 {ag[s][1]}, {G0[s][2]}, {G0[s][3]}")
            a(f"v_mfma_f32_16x16x16_bf16 {U[s]}, {AU}, {ag[s]}, 0")
            for i in range(4):
                a(f"v_fma_f32 {mm[s][i]}, {U[s][i]}, {GT[s][i]}, {mm[s][i]}")
            o = oo[s]
            a(f"v_cvt_pk_bf16_f32 {o[0]}, {mm[s][0]}, {mm[s][1]}")
            a(f"v_cvt_pk_bf16_f32 {o[1]}, {mm[s][2]}, {mm[s][3]}")
            off = t1 if j == 4 else vMoff
            a(f"buffer_store_dwordx2 {o}, {off}, {sOUT}, 0 offen offset:{j*512} {self.o.get('outflags', '')}")

    def kernel(self, label):
        a = self.a
        self.late = []
        self.Lend = label + '_end'
        self.sWave = Reg('s', 60); self.sT64 = Reg('s', 98, 2)
        self.vProf = Reg('v', 255)
        a.lines.append(f".globl {label}")
        a.lines.append(".p2align 8")
        a.lines.append(f".type {label},@function")
        a.label(label)
        a("s_cmp_ge_u32 s2, 256")
        a(f"s_cbranch_scc1 {self.Lend}")
        a("s_load_dwordx16 s[4:19], s[0:1], 0")
        a("s_load_dwordx8 s[20:27], s[0:1], 64")
        a("s_load_dwordx4 s[28:31], s[0:1], 96")
        a("s_memrealtime s[100:101]")
        if self.prof:
            a("s_memrealtime s[98:99]")
        a("v_lshrrev_b32 v1, 6, v0")
        a("v_and_b32 v0, 63, v0")
        a(f"v_readfirstlane_b32 {self.sWave}, v1")
        if self.prof:
            a("s_waitcnt lgkmcnt(0)")
            a("v_mov_b32 v255, 0")
            a("v_writelane_b32 v255, s98, 50")
        self.body(self.sWave)
        i = 0
        while i < len(self.late):
            fn, args = self.late[i]; fn(*args); i += 1
        a.label(self.Lend)
        a("s_endpgm")

    def build(self):
        hdr = open('cdna_kernels/' + NAME + '.s.ref').read().split('\n')
        head = [l for l in hdr if l.startswith(';') and '@launch' not in l]
        out = list(head)
        K = NAME + '_kernel'
        out.append(f"; @launch grid=(256,1,1) block=(512,1,1) lds={LDS_END}")
        out.append('.amdgcn_target "amdgcn-amd-amdhsa--gfx950"')
        out.append('.text')
        self.kernel(K)
        body = self.a.finalize()
        print(f"{K}: {len(self.a.lines)} lines, nops {self.a.nops}", file=sys.stderr)
        out.append(body)
        out.append('.section .rodata,"a"')
        out.append(f""".p2align 6
.amdhsa_kernel {K}
  .amdhsa_next_free_vgpr 256
  .amdhsa_next_free_sgpr 102
  .amdhsa_accum_offset 256
  .amdhsa_group_segment_fixed_size 0
  .amdhsa_kernarg_size 112
  .amdhsa_user_sgpr_count 2
  .amdhsa_user_sgpr_kernarg_segment_ptr 1
  .amdhsa_system_sgpr_workgroup_id_x 1
.end_amdhsa_kernel""")
        return '\n'.join(out) + '\n'


if __name__ == '__main__':
    import argparse, ast
    ap = argparse.ArgumentParser()
    ap.add_argument('--prof', action='store_true')
    ap.add_argument('--opt', action='append', default=[])
    ap.add_argument('-o', required=True)
    args = ap.parse_args()
    opts = {}
    for kv in args.opt:
        k, v = kv.split('=', 1)
        try: v = ast.literal_eval(v)
        except Exception: pass
        opts[k] = v
    g = Gen(args.prof or bool(opts.get('dbgprof')), opts)
    s = g.build()
    open(args.o, 'w').write(s)
```

```python
import sys, re, os
sys.path.insert(0, 'gen')
from asmlib import *

NAME = 'standalone__molecular_angular_gemnet__graph'

E = 160000; T = 2560000
MAGIC = 6871948
CB_CNT, FAIL, TKT = 8, 16, 24
CC = 64
WSC = 512
EPW = 1024
STG = 3072
PB = 19456
PBS = 492
HDR = 188
BYT = 388
DUMP = 96
CB = PB
GS = 1552
CAP = 192
LDS_END = PB + 256 * PBS
NLINE = 4
WSB = NLINE * 256 * 32768
LIM = 0x9C400000
INV = 0xFFFFFFFF
GUARD = 1300
OOB = '1.0'
PROF_OFF = 100 << 20
INV2PI = 0x3e22f983
NBLK = 6
NPOS = 30
import struct
def f32(x): return struct.unpack('<I', struct.pack('<f', x))[0]


class Gen:
    def __init__(self, prof=False, opts=None):
        self.prof = prof
        self.o = dict(poll_max=60000, ldflags='', tupflags='sc1', stflags='sc1', outflags='sc1', force_fail=False,
                      up=3, dg=4, nr=6, gate='ack0', pins=(8, 9, 10, 11), psec=16, pwait=22,
                      lima=80000, psleep=1, gmask=0xffffffe0, mat='gap', optblk=4,
                      q0n=3, q1n=6, l1s=('pre', 'post', 'post', 'post'), l2s='post', ppl=(2, 3, 4, 5),
                      pf=None, pfat=('post0',), pfmode='id', pfflags='', tlbw=0, rbfat='gap', gapat='pre', sat='loop')
        if opts: self.o.update(opts)
        self.a = Asm()

    def stamp(self, idx):
        if not self.prof: return
        a = self.a
        a(f"s_memrealtime {self.sT64}")
        a("s_waitcnt lgkmcnt(0)")
        a(f"v_writelane_b32 {self.vProf}, {self.sT64[0]}, {idx}")

    def stamp_dyn(self, sidx):
        if not self.prof: return
        a = self.a
        a(f"s_memrealtime {self.sT64}")
        a("s_waitcnt lgkmcnt(0)")
        a(f"s_mov_b32 m0, {sidx}")
        a(f"s_nop 3")
        a(f"v_writelane_b32 {self.vProf}, {self.sT64[0]}, m0")

    def prof_store(self, wave_sgpr):
        if not self.prof: return
        a = self.a
        a(f"s_mul_i32 {self.sT64[0]}, s2, 12")
        a(f"s_add_u32 {self.sT64[0]}, {self.sT64[0]}, {wave_sgpr}")
        a(f"s_lshl_b32 {self.sT64[0]}, {self.sT64[0]}, 8")
        a(f"s_add_u32 {self.sT64[0]}, {self.sT64[0]}, {PROF_OFF}")
        a(f"v_mbcnt_lo_u32_b32 v1, -1, 0")
        a(f"v_mbcnt_hi_u32_b32 v1, -1, v1")
        a(f"v_lshlrev_b32 v1, 2, v1")
        a(f"v_add_u32 v1, {self.sT64[0]}, v1")
        a(f"s_mov_b64 exec, -1")
        a(f"global_store_dword v1, {self.vProf}, s[30:31]")

    def lds_spin(self, off, target, vt, vzero, st):
        a = self.a
        L = a.newlabel('spin')
        Lx = a.newlabel('spinx')
        a.label(L)
        a(f"ds_read_b32 {vt}, {vzero} offset:{off}")
        a("s_waitcnt lgkmcnt(0)")
        a(f"v_readfirstlane_b32 {st}, {vt}")
        a(f"s_cmp_ge_u32 {st}, {target}")
        a(f"s_cbranch_scc1 {Lx}")
        a("s_sleep 1")
        a(f"s_branch {L}")
        a.label(Lx)

    def lds_arrive(self, off, vzero, vone):
        a = self.a
        a("s_mov_b64 exec, 1")
        a(f"ds_add_u32 {vzero}, {vone} offset:{off}")
        a("s_mov_b64 exec, -1")

    def srd(self, reg, src, n):
        a = self.a
        a(f"s_mov_b32 {reg[0]}, s{src}")
        a(f"s_mov_b32 {reg[1]}, s{src+1}")
        a(f"s_mov_b32 {reg[2]}, {n}")
        a(f"s_mov_b32 {reg[3]}, 0x00020000")

    def vm_issue(self, tag, optional=False):
        self.a.lines.append(f"; @ISSUE{'?' if optional else ''} {tag}")

    def vm_wait(self, tag, linear=False):
        self.a.lines.append(f"; @WAIT{'L' if linear else ''} {tag}")

    def resolve_vm(self, start, end):
        lines = self.a.lines
        n = end - start
        for i in range(len(lines)):
            l = lines[i]
            if l.startswith("; @WAITL "):
                tag = l.split()[2]
                cnt = 0; found = False
                for back in range(i - 1, -1, -1):
                    ll = lines[back]
                    if ll.startswith("; @ISSUE"):
                        if ll.split()[2] == tag:
                            found = True; break
                        if not ll.startswith("; @ISSUE?"): cnt += 1
                assert found, tag
                lines[i] = f"s_waitcnt vmcnt({min(cnt, 63)})"
            elif l.startswith("; @WAIT "):
                assert start <= i < end
                tag = l.split()[2]
                cnt = 0; found = False
                pos = i - start
                for back in range(1, n + 1):
                    ll = lines[start + (pos - back) % n]
                    if ll.startswith("; @ISSUE"):
                        if ll.split()[2] == tag:
                            found = True; break
                        if not ll.startswith("; @ISSUE?"): cnt += 1
                assert found, tag
                lines[i] = f"s_waitcnt vmcnt({min(cnt, 63)})"

    def body(self, sW):
        a = self.a
        o = self.o
        DG = o['dg']; NR = o['nr']
        assert NPOS % NR == 0 and DG <= NR - 1 and DG <= 8
        V = Alloc('v', 2, 255)
        S = Alloc('s', 62, 98)
        vLane = Reg('v', 0)
        sM = Reg('s', 32, 4); sIN = Reg('s', 36, 4); sOI = Reg('s', 40, 4); sDI = Reg('s', 44, 4)
        sAN = Reg('s', 48, 4); sOUT = Reg('s', 52, 4); sWS = Reg('s', 56, 4)
        pCEN = Reg('s', 14, 2); pWR = Reg('s', 18, 2); pWS = Reg('s', 20, 2); pWD = Reg('s', 22, 2)
        pWU = Reg('s', 24, 2); pDBG = Reg('s', 28, 2)
        vZero = V('zero'); vOne = V('one')
        acc = [[V(f'acc{j}{l}', 4) for l in range(2)] for j in range(5)]
        Wa = V('wa', 4); Wb = V('wb', 4)
        rbfB = [V(f'rbf{j}', 2) for j in range(5)]
        Mr = [V(f'mr{j}', 2) for j in range(5)]
        vMoff = V('moff'); vLine = V('line'); vSel = V('sel'); vCB = V('cb')
        wraw = V('wraw', 2); dd = [V(f'dd{j}') for j in range(5)]; cenr = V('cenr', 2); raw = V('raw', 4)
        Ln12 = [[V(f'ln{l}{i}', 4) for i in range(4)] for l in (1, 2)]
        vTag = V('tag'); vSt = V('stv'); vPf = V('pf'); vPfD = V('pfd')
        mk0 = V.mark()
        st = S('st'); st2 = S('st2'); so = S('so')
        sFail = Reg('s', 61); sPoll = S('poll'); sG0 = S('g0'); sE0 = S('e0')
        sNegT = S('negT'); sLim = S('lim'); sLimA = S('lima'); sGS = S('gs'); sHi = S('hi')
        sSrc = S('src'); sM24 = S('m24'); sPf = S('pf'); so2 = S('so2')
        sL2 = [Reg('s', 0, 2), Reg('s', 44, 2), Reg('s', 46, 2), S('l2d', 2)]
        smk0 = S.mark()
        Q = [dict(i=V(f'q{k}i', 4), o=V(f'q{k}o', 4), a=V(f'q{k}a', 2)) for k in range(5)]
        tb = V('tb', 4)
        tmp = [dict(mk=V(f'mk{s}', 4), sh=V(f'sh{s}', 4), old=V(f'old{s}', 4), by=V(f'by{s}', 4), inc=V(f'inc{s}', 4))
               for s in range(2)]
        vOffQ = V('offq'); vOffA = V('offa'); vPB = V('pb'); vC2048 = V('c2048'); vi = V('vi', 4); vt = V('vt'); vt2 = V('vt2')
        vRd = V('rd'); vRb = V('rb'); vRh = V('rh')
        Ln = [[V(f'ln0{i}', 4) for i in range(4)]] + Ln12
        Hd = [V(f'hd{i}') for i in range(4)]
        print('phase 1/2 vgprs', V.high, file=sys.stderr)
        sMagic = S('magic'); sNeg = S('neg'); s492 = S('c492'); sLimIn = S('limin'); sK18 = S('k18'); sCq = S('cq')
        sOffI = S('offi'); sOffA = S('offa'); sLast = S('last', 2)
        sm = [Reg('s', 4 + 2 * k, 2) for k in range(4)]
        sm4 = Reg('s', 12, 2)
        ld = o['ldflags']
        self.vmseq = []

        def load_part(k, part):
            q = Q[k]
            if part == 0:
                a(f"s_add_u32 {so}, {sOffI}, {k * 1024}")
                a(f"buffer_load_dwordx4 {q['o']}, {vOffQ}, {sOI}, {so} offen {ld}")
            elif part == 1:
                a(f"s_add_u32 {so}, {sOffI}, {k * 1024}")
                a(f"buffer_load_dwordx4 {q['i']}, {vOffQ}, {sIN}, {so} offen {ld}")
            else:
                a(f"s_add_u32 {so}, {sOffA}, {k * 512}")
                a(f"buffer_load_dwordx2 {q['a']}, {vOffA}, {sAN}, {so} offen {ld}")
            self.vmseq.append(f'Q{k}')

        def load_quad(k):
            if k == 4: a(f"s_mov_b64 exec, {sLast}")
            for part in range(3): load_part(k, part)
            if k == 4: a(f"s_mov_b64 exec, -1")

        def wait_for(tag):
            last = max(i for i, x in enumerate(self.vmseq) if x == tag)
            cnt = sum(1 for x in self.vmseq[last + 1:] if not x.endswith('?'))
            a(f"s_waitcnt vmcnt({min(cnt, 63)})")

        a(f"s_mul_i32 {st}, {sW}, 5120")
        a(f"v_lshlrev_b32 {vOffQ}, 4, {vLane}")
        a(f"v_add_u32 {vOffQ}, {st}, {vOffQ}")
        a(f"v_lshrrev_b32 {vOffA}, 1, {vOffQ}")
        a(f"s_mul_i32 {sOffI}, s2, 40000")
        a(f"s_mul_i32 {sOffA}, s2, 20000")
        a(f"s_cmp_eq_u32 {sW}, 7")
        a(f"s_cselect_b64 {sLast}, 15, -1")
        a(f"s_mul_i32 {sE0}, s2, 625")
        a(f"s_mul_i32 {st}, {sW}, 80")
        a(f"s_add_u32 {sE0}, {sE0}, {st}")
        a("s_waitcnt lgkmcnt(0)")
        self.stamp(51)
        self.srd(sOI, 8, T * 4); self.srd(sIN, 6, T * 4); self.srd(sAN, 12, T * 2)
        up = o['up']
        parts = [(k, part) for k in range(up) for part in range(3)]
        q0n = o['q0n']
        for k, part in parts[:q0n]: load_part(k, part)
        a(f"s_mov_b32 {sG0}, s100")
        for i in range(4): a(f"v_mov_b32 {vi[i]}, -1")
        a(f"s_mul_i32 {st}, {sW}, {32 * PBS}")
        a(f"s_add_u32 {st}, {st}, {PB}")
        a(f"v_lshlrev_b32 {vt}, 4, {vLane}")
        a(f"v_add_u32 {vt2}, {st}, {vt}")
        for i in range(15):
            a(f"ds_write_b128 {vt2}, {vi} offset:{i*1024}")
        a(f"s_mov_b64 exec, 0xffffff")
        a(f"ds_write_b128 {vt2}, {vi} offset:{15*1024}")
        a(f"s_mov_b32 exec_lo, -1")
        a(f"s_mov_b32 exec_hi, 0")
        a(f"s_movk_i32 {s492}, {PBS}")
        a(f"v_mov_b32 {vPB}, {st}")
        a(f"v_mad_u32_u24 {vt2}, {vLane}, {s492}, {vPB}")
        a(f"v_mov_b32 {vi[0]}, {1 << 18}")
        a(f"ds_write_b32 {vt2}, {vi[0]} offset:{HDR}")
        a(f"s_mov_b64 exec, -1")
        for i in range(4): a(f"v_mov_b32 {vi[i]}, 0")
        a(f"s_lshl_b32 {st}, {sW}, 11")
        a(f"s_add_u32 {st}, {st}, {STG}")
        a(f"v_add_u32 {vt2}, {st}, {vt}")
        a(f"ds_write_b128 {vt2}, {vi}")
        a(f"ds_write_b128 {vt2}, {vi} offset:1024")
        Lz = a.newlabel('z')
        a(f"s_cmp_lg_u32 {sW}, 0")
        a(f"s_cbranch_scc1 {Lz}")
        a(f"v_lshlrev_b32 {vt2}, 3, {vLane}")
        a(f"ds_write_b64 {vt2}, {vi[0:2]}")
        a.label(Lz)
        a(f"v_mov_b32 {vOne}, 1")
        a(f"v_mov_b32 {vPB}, {PB}")
        a(f"v_mov_b32 {vC2048}, 0x{f32(2048.0):x}")
        a(f"s_mov_b32 {sCq}, 0x{f32(2047.5):x}")
        a(f"s_mov_b32 {sMagic}, {MAGIC}")
        a(f"s_movk_i32 {sNeg}, -10000")
        a(f"s_mov_b32 {sLimIn}, {o['lima'] - 1}")
        a(f"s_mov_b32 {sK18}, {1 << 18}")
        a(f"s_mov_b32 {sHi}, 0xffff0000")
        a("s_waitcnt lgkmcnt(0)")
        a("s_barrier")
        self.stamp(1)
        q1n = max(q0n, o['q1n'])
        for k, part in parts[q0n:q1n]: load_part(k, part)
        self.srd(sM, 4, E * 32); self.srd(sDI, 10, E * 2); self.srd(sOUT, 26, E * 32); self.srd(sWS, 30, WSB)
        a(f"v_mov_b32 {vZero}, 0")
        a(f"v_mov_b32 {vCB}, {CB}")
        a(f"s_mov_b32 {sLim}, 0x{LIM:x}")
        a(f"s_mov_b32 {sLimA}, 0x{o['lima'] << 14:x}")
        a(f"s_movk_i32 {sGS}, {GS}")
        a(f"s_mov_b32 {sM24}, 0x00ffffff")
        a(f"s_lshl_b32 {sSrc}, s2, 7")
        a(f"s_mov_b32 {sFail}, {1 if o['force_fail'] else 0}")
        a("s_lshr_b64 s[100:101], s[100:101], 8")
        a(f"s_sub_u32 {sNegT}, 3, s100")
        a(f"s_lshl_b32 {st}, s100, 8")
        a(f"s_xor_b32 {st}, {st}, s100")
        a(f"s_lshl_b32 {st2}, {st}, 16")
        a(f"s_xor_b32 {st}, {st}, {st2}")
        a(f"v_and_b32 {vt}, 3, {vLane}")
        a(f"v_lshlrev_b32 {vt}, 3, {vt}")
        a(f"v_lshrrev_b32 {vTag}, {vt}, {st}")
        a(f"v_lshlrev_b32 {vTag}, 24, {vTag}")
        a(f"v_mov_b32 {vt2}, 15")
        a(f"v_lshlrev_b32 {vt2}, {vt}, {vt2}")
        a(f"v_xor_b32 {vSel}, 0x0c0c0c0c, {vt2}")
        a(f"v_lshrrev_b32 {vt}, 3, {vLane}")
        a(f"s_lshl_b32 {st}, {sW}, 5")
        a(f"v_add_u32 {vt}, {st}, {vt}")
        a(f"v_and_b32 {vt2}, 7, {vLane}")
        a(f"v_mad_u32_u24 {vRh}, {vt}, {s492}, {vPB}")
        a(f"v_mad_u32_u24 {vRd}, {vt2}, 12, {vRh}")
        a(f"v_mad_u32_u24 {vRb}, {vt2}, 3, {vRh}")
        a(f"v_lshlrev_b32 {vSt}, 15, {vt}")
        a(f"v_lshl_add_u32 {vSt}, {vt2}, 4, {vSt}")
        a(f"s_lshl_b32 {st}, {sW}, 12")
        a(f"v_lshlrev_b32 {vLine}, 4, {vLane}")
        a(f"v_add_u32 {vLine}, {st}, {vLine}")
        if o['tlbw']:
            a(f"s_lshl_b32 {st}, {sW}, 22")
            a(f"v_lshlrev_b32 {vt}, 20, {vLane}")
            a(f"v_add_u32 {vt}, {st}, {vt}")
            a(f"v_cmp_gt_u32 vcc, 4, {vLane}")
            a(f"v_cndmask_b32 {vt}, {OOB}, {vt}, vcc")
            a(f"buffer_load_dword {vPfD}, {vt}, {sWS}, 0 offen")
            self.vmseq.append('tlb')
        PF = o['pf']
        if PF:
            pfl = PF; pfi = len(o['pfat'])
            a(f"v_lshlrev_b32 {vPf}, 7, {vLane}")
            if pfl < 64:
                a(f"v_cmp_gt_u32 vcc, {pfl}, {vLane}")
                a(f"v_cndmask_b32 {vPf}, {OOB}, {vPf}, vcc")
            a(f"s_lshr_b32 {sPf}, s2, 3")
            if o['pfmode'] == 'xcc':
                Lt = a.newlabel('tk')
                a(f"s_cmp_lg_u32 {sW}, 0")
                a(f"s_cbranch_scc1 {Lt}")
                a(f"s_getreg_b32 {st}, hwreg(HW_REG_XCC_ID, 0, 3)")
                a(f"s_lshl_b32 {st}, {st}, 3")
                a(f"v_mov_b32 {vPfD}, {st}")
                a(f"s_mov_b64 exec, 1")
                a(f"global_atomic_add {vPfD}, {vPfD}, {vOne}, {pDBG} offset:128 sc0")
                a(f"s_mov_b64 exec, -1")
                a.label(Lt)
                self.vmseq.append('tk?')
        for j in range(5):
            for l in range(2):
                for i in range(4): a(f"v_mov_b32 {acc[j][l][i]}, 0")
        for k, part in parts[q1n:]: load_part(k, part)
        n_ = vt; q_ = vt2; t3 = tb[0]
        a(f"v_and_b32 {n_}, 15, {vLane}")
        a(f"v_lshrrev_b32 {q_}, 4, {vLane}")
        a(f"v_lshlrev_b32 {t3}, 3, {vLane}")
        a(f"global_load_dwordx2 {wraw}, {t3}, {pWD}")
        a(f"v_add_u32 {t3}, {sE0}, {n_}")
        a(f"v_lshlrev_b32 {vMoff}, 5, {t3}")
        a(f"v_lshl_add_u32 {vMoff}, {q_}, 3, {vMoff}")
        a(f"v_lshlrev_b32 {t3}, 1, {t3}")
        for j in range(5):
            a(f"buffer_load_ushort {dd[j]}, {t3}, {sDI}, 0 offen offset:{j*32}")
        a(f"v_lshlrev_b32 {t3}, 3, {q_}")
        a(f"v_and_b32 {t3}, 8, {t3}")
        a(f"global_load_dwordx2 {cenr}, {t3}, {pCEN}")
        Lw = [a.newlabel('ew') for _ in range(4)]; Lwx = a.newlabel('ewx')
        a(f"s_and_b32 {st2}, {sW}, 3")
        a(f"s_cmp_eq_u32 {st2}, 3")
        a(f"s_cbranch_scc1 {Lw[3]}")
        a(f"s_cmp_eq_u32 {st2}, 2")
        a(f"s_cbranch_scc1 {Lw[2]}")
        a(f"v_and_b32 {t3}, 1, {q_}")
        a(f"v_lshlrev_b32 {t3}, 8, {t3}")
        a(f"v_lshl_add_u32 {t3}, {n_}, 1, {t3}")
        a(f"s_lshl_b32 {st}, {st2}, 5")
        a(f"v_add_u32 {t3}, {st}, {t3}")
        for jj in range(4):
            a(f"global_load_ushort {raw[jj]}, {t3}, {pWS} offset:{jj*64}")
        a(f"s_branch {Lwx}")
        a.label(Lw[2])
        a(f"v_and_b32 {t3}, 1, {q_}")
        a(f"v_lshlrev_b32 {t3}, 7, {t3}")
        a(f"v_lshl_add_u32 {t3}, {n_}, 1, {t3}")
        for jj in range(4):
            a(f"global_load_ushort {raw[jj]}, {t3}, {pWR} offset:{jj*32}")
        a(f"s_branch {Lwx}")
        a.label(Lw[3])
        a(f"v_lshlrev_b32 {t3}, 7, {q_}")
        a(f"v_lshl_add_u32 {t3}, {n_}, 1, {t3}")
        for jj in range(4):
            a(f"global_load_ushort {raw[jj]}, {t3}, {pWU} offset:{jj*32}")
        a.label(Lwx)
        self.vmseq += ['sm'] * 11
        if o['mat'] == 'start':
            for jj in range(5):
                a(f"buffer_load_dwordx2 {Mr[jj]}, {vMoff}, {sM}, 0 offen offset:{jj*512}")
            self.vmseq += ['mr'] * 5
        self.stamp(53)
        def pre(k, s):
            q = Q[k]; w0 = q['i']; wb = q['o']; an = q['a']; t = tmp[s]
            mk, sh, old, by, inc = t['mk'], t['sh'], t['old'], t['by'], t['inc']
            if k == 4: a(f"s_mov_b64 exec, {sLast}")
            for j in range(4): a(f"v_mul_hi_u32_u24 {tb[j]}, {sMagic}, {wb[j]}")
            for j in range(4):
                if j & 1: a(f"v_and_b32 {by[j]}, {sHi}, {an[j >> 1]}")
                else: a(f"v_lshlrev_b32 {by[j]}, 16, {an[j >> 1]}")
            for j in range(4): a(f"v_sub_u32 {mk[j]}, {sLimIn}, {w0[j]}")
            for j in range(4): a(f"v_mul_f32 {by[j]}, 0x{INV2PI:x}, {by[j]}")
            for j in range(4): a(f"v_lshlrev_b32 {wb[j]}, 4, {wb[j]}")
            for j in range(4): a(f"v_ashrrev_i32 {mk[j]}, 31, {mk[j]}")
            for j in range(4): a(f"v_fract_f32 {by[j]}, {by[j]}")
            for j in range(4): a(f"v_mad_i32_i24 {wb[j]}, {tb[j]}, {sNeg}, {wb[j]}")
            for j in range(4): a(f"v_and_b32 {sh[j]}, 9, {mk[j]}")
            for j in range(4): a(f"v_cos_f32 {by[j]}, {by[j]}")
            for j in range(4): a(f"v_lshl_or_b32 {w0[j]}, {w0[j]}, 14, {wb[j]}")
            for j in range(4): a(f"v_lshl_or_b32 {inc[j]}, {vOne}, {sh[j]}, {sK18}")
            for j in range(4): a(f"v_mad_u32_u24 {wb[j]}, {tb[j]}, {s492}, {vPB}")
            if k >= 2: a("s_waitcnt lgkmcnt(8)")
            for j in range(4): a(f"ds_add_rtn_u32 {old[j]}, {wb[j]}, {inc[j]} offset:{HDR}")
            for j in range(4): a(f"v_fma_f32 {by[j]}, {by[j]}, {sCq}, {vC2048}")
            for j in range(4): a(f"v_cvt_u32_f32 {by[j]}, {by[j]}")
            for j in range(4): a(f"v_and_or_b32 {w0[j]}, {by[j]}, 15, {w0[j]}")
            for j in range(4): a(f"v_lshrrev_b32 {by[j]}, 4, {by[j]}")
            if k == 4: a(f"s_mov_b64 exec, -1")

        def post(k, s):
            q = Q[k]; w0 = q['i']; wb = q['o']; t = tmp[s]
            mk, sh, old, by, inc = t['mk'], t['sh'], t['old'], t['by'], t['inc']
            if k == 4: a(f"s_mov_b64 exec, {sLast}")
            for j in range(4): a(f"v_bfe_u32 {sh[j]}, {old[j]}, {sh[j]}, 9")
            for j in range(4): a(f"v_and_b32 {inc[j]}, 47, {mk[j]}")
            for j in range(4): a(f"v_lshrrev_b32 {old[j]}, 18, {old[j]}")
            for j in range(4): a(f"v_xad_u32 {sh[j]}, {sh[j]}, {mk[j]}, {inc[j]}")
            for j in range(4):
                a(f"v_cmp_le_u32 {sm[j]}, 48, {old[j]}")
            for j in range(4):
                a(f"v_cndmask_b32 {sh[j]}, {sh[j]}, {old[j]}, {sm[j]}")
            for j in range(4): a(f"v_min_u32 {sh[j]}, {DUMP}, {sh[j]}")
            for j in range(4): a(f"v_lshl_add_u32 {inc[j]}, {sh[j]}, 2, {wb[j]}")
            for j in range(4): a(f"v_add_u32 {sh[j]}, {sh[j]}, {wb[j]}")
            for j in range(4):
                a(f"ds_write_b32 {inc[j]}, {w0[j]}")
                a(f"ds_write_b8 {sh[j]}, {by[j]} offset:{BYT}")
            if k == 4: a(f"s_mov_b64 exec, -1")

        def pf_base():
            if o['pfmode'] == 'xcc':
                a(f"ds_read_b32 {vPfD}, {vZero} offset:{TKT}")
                a("s_waitcnt lgkmcnt(0)")
                a(f"v_readfirstlane_b32 {st}, {vPfD}")
                a(f"s_sub_u32 {st2}, {st}, 1")
                a(f"s_and_b32 {st2}, {st2}, 31")
                a(f"s_cmp_eq_u32 {st}, 0")
                a(f"s_cselect_b32 {sPf}, {sPf}, {st2}")
            a(f"s_mul_i32 {sPf}, {sPf}, {8 * pfl * pfi * 128}")
            a(f"s_mul_i32 {st}, {sW}, {pfl * pfi * 128}")
            a(f"s_add_u32 {sPf}, {sPf}, {st}")
        self.pfn = 0
        def pf1():
            if self.pfn == 0: pf_base()
            assert self.pfn < pfi
            a(f"buffer_load_dword {vPfD}, {vPf}, {sM}, {sPf} offen {o['pfflags']}")
            a(f"s_add_u32 {sPf}, {sPf}, {pfl * 128}")
            self.vmseq.append('pf')
            self.vm_issue(f'pf{self.pfn}')
            self.pfn += 1
        def pf_at(where):
            if not PF: return
            for w in o['pfat']:
                if w == where: pf1()
        self.pf_at = pf_at
        def ticket_publish():
            Lt = a.newlabel('tkp')
            a(f"s_cmp_lg_u32 {sW}, 0")
            a(f"s_cbranch_scc1 {Lt}")
            last = max(i for i, x in enumerate(self.vmseq) if x == 'tk?')
            a(f"s_waitcnt vmcnt({min(sum(1 for x in self.vmseq[last + 1:]), 63)})")
            a(f"v_add_u32 {vPfD}, 1, {vPfD}")
            a(f"s_mov_b64 exec, 1")
            a(f"ds_write_b32 {vZero}, {vPfD} offset:{TKT}")
            a(f"s_mov_b64 exec, -1")
            a.label(Lt)
        nxt = up
        for k in range(5):
            wait_for(f'Q{k}')
            if k == 0: self.stamp(2)
            pre(k, k & 1)
            if nxt < 5:
                load_quad(nxt); nxt += 1
            if PF and o['pfmode'] == 'xcc' and k == o.get('tkat', 1): ticket_publish()
            pf_at(f'k{k}')
            if k > 0:
                a("s_waitcnt lgkmcnt(4)" if k == 1 else "s_waitcnt lgkmcnt(4)")
                post(k - 1, (k - 1) & 1)
        a("s_waitcnt lgkmcnt(0)")
        post(4, 0)
        self.stamp(3)
        a("s_waitcnt lgkmcnt(0)")
        a("s_barrier")
        self.stamp(4)

        stf = o['stflags']
        wait_for('sm')
        L1S = list(o['l1s']); L2S = o['l2s']
        aW = [tmp[0]['mk'][i] for i in range(4)]
        aB = [tmp[0]['sh'][i] for i in range(4)]
        TP = [[Reg('v', Q[l]['i'].i + 2 * it, 2) for it in range(4)] for l in range(3)]
        for l in range(3): assert Q[l]['o'].i == Q[l]['i'].i + 4
        a(f"v_and_b32 {aB[0]}, -4, {vRb}")
        a(f"v_add_u32 {aB[0]}, {BYT}, {aB[0]}")
        a(f"v_mov_b32 {aW[0]}, {vRd}")
        for it in range(1, 4):
            a(f"v_add_u32 {aW[it]}, {it * 8 * PBS}, {vRd}")
            a(f"v_add_u32 {aB[it]}, {it * 8 * PBS}, {aB[0]}")
        def rd(l, it):
            L = Ln[l][it]
            a(f"ds_read2_b32 {L[0:2]}, {aW[it]} offset0:{l * 24} offset1:{l * 24 + 1}")
            a(f"ds_read_b32 {L[2]}, {aW[it]} offset:{l * 96 + 8}")
            a(f"ds_read2_b32 {TP[l][it]}, {aB[it]} offset0:{l * 6} offset1:{l * 6 + 1}")
        def tag(l, it):
            a(f"v_alignbyte_b32 {Ln[l][it][3]}, {TP[l][it][1]}, {TP[l][it][0]}, {vRb}")
            a(f"v_bfi_b32 {Ln[l][it][3]}, {sM24}, {Ln[l][it][3]}, {vTag}")
        def store(l, it, name=None):
            a(f"s_add_u32 {so2}, {sSrc}, {(l * 256 + it * 8) << 15}")
            a(f"buffer_store_dwordx4 {Ln[l][it]}, {vSt}, {sWS}, {so2} offen {stf}")
            if name: self.vmseq.append(name)
        def store2(optional_tag=None):
            for it in range(4):
                Ls = a.newlabel('s2')
                a(f"s_cmp_eq_u64 {sL2[it]}, 0")
                a(f"s_cbranch_scc1 {Ls}")
                a(f"s_mov_b64 exec, {sL2[it]}")
                store(2, it)
                a(f"s_mov_b64 exec, -1")
                a.label(Ls)
        self.store_l = store; self.store2 = store2
        for it in range(4): rd(0, it)
        a("s_waitcnt lgkmcnt(6)")
        for it in range(2): tag(0, it)
        store(0, 0, 'L0')
        for it in range(2): rd(1, it)
        store(0, 1, 'L0')
        a("s_waitcnt lgkmcnt(6)")
        for it in range(2, 4): tag(0, it)
        store(0, 2, 'L0')
        store(0, 3, 'L0')
        pf_at('post0')
        for it in range(2, 4): rd(1, it)
        a("s_waitcnt lgkmcnt(6)")
        for it in range(4): a(f"ds_read_b32 {Hd[it]}, {vRh} offset:{it * 8 * PBS + HDR}")
        rd(2, 0)
        a("s_waitcnt lgkmcnt(3)")
        for it in range(1, 4): rd(2, it)
        self.stamp(5)
        a(f"s_mov_b32 {st}, {49 << 18}")
        a(f"s_mov_b32 {st2}, {73 << 18}")
        for it in range(4): a(f"v_cmp_le_u32 {sL2[it]}, {st}, {Hd[it]}")
        a(f"v_max3_u32 {vt}, {Hd[0]}, {Hd[1]}, {Hd[2]}")
        a(f"v_max_u32 {vt}, {vt}, {Hd[3]}")
        a(f"v_cmp_le_u32 vcc, {st2}, {vt}")
        for it in range(4): tag(1, it)
        a("s_waitcnt lgkmcnt(0)")
        for it in range(4): tag(2, it)
        a(f"s_cbranch_vccnz p_rare")
        a.label("p_rare_back")
        self.late.append((self._p_rare, (Hd, aW, aB, TP[0][0], vRb, vSt, vTag, sM24, sSrc, so2, st2, sWS, Ln[0][0])))
        if o['mat'] == 'gap':
            for jj in range(5):
                a(f"buffer_load_dwordx2 {Mr[jj]}, {vMoff}, {sM}, 0 offen offset:{jj*512}")
            self.vmseq += ['mr'] * 5
        a("s_barrier")
        for it in range(4):
            if L1S[it] == 'pre': store(1, it, 'L1')
        if L2S == 'pre': store2()
        pf_at('gap')
        self.stamp(6)

        V.reset(mk0); S.reset(smk0)
        rows = [V(f'row{i}', 4) for i in range(NR)]
        X = [V(f'x{i}', 4) for i in range(4)]
        D1 = [V(f'd1{i}', 4) for i in range(2)]
        Bq = [[V(f'b{s}{l}', 4) for l in range(2)] for s in range(2)]
        vT = V('tup', 2)
        vIdx = V('idx'); vOff = V('off'); vTau = [V(f'tau{b}') for b in range(NBLK)]; vHalf = V('half16')
        vIdxC = V('idxc'); vIdxN = V('idxn'); vTupC = V('tupc'); vTupN = V('tupn')
        vAddr = V('addr'); vC0 = V('c0'); vC1 = V('c1'); vK = V('k'); vBrd = V('brd'); vK2 = V('k2')
        vCntA = V('cnta'); vC = V('c')
        tt = [V(f'tt{i}') for i in range(12)]
        if o['sat'] == 'pre': X0 = [V(f'y{i}', 4) for i in range(4)]
        else: X0 = rows[0:4]
        self.c3 = V('c3', 4)
        print('phase 3 vgprs', V.next, file=sys.stderr)
        sCnt = [S(f'cnt{j}') for j in range(5)]
        sCntN = [S(f'cntn{j}') for j in range(5)]
        sIt = S('it'); sF0 = S('mf0'); sNot31 = S('not31'); sK1 = S('k1'); sPoff = S('poff')
        sHiL = Reg('s', 24, 2); sHdr = Reg('s', 26, 2); sv = [Reg('s', 18 + 2 * h, 2) for h in range(3)]
        sMore = [Reg('s', 4 + 2 * k, 2) for k in range(4)]
        sSave = Reg('s', 12, 2); sX = Reg('s', 16, 2)
        self.c = dict(NegT=sNegT, Sel=vSel, Lim=sLim, LimA=sLimA, GS=sGS, vCB=vCB, vZero=vZero, vOne=vOne,
                      sFail=sFail, sPoll=sPoll, sWS=sWS, vLine=vLine, sPoff=sPoff, tt=tt, X=X, sMore=sMore,
                      sv=sv, sHdr=sHdr, st=st, st2=st2, sX=sX, sSave=sSave)
        t0, t1, t2, t3 = tt[0], tt[1], tt[2], tt[3]
        def gap_epw():
            Ln1 = a.newlabel('nd')
            a(f"s_and_b32 {st2}, {sW}, 3")
            a(f"s_cmp_lg_u32 {st2}, 1")
            a(f"s_cbranch_scc1 {Ln1}")
            for jj in range(4): a(f"v_lshlrev_b32 {raw[jj]}, 16, {raw[jj]}")
            for jj in range(4): a(f"v_add_f32 {raw[jj]}, {raw[jj]}, {raw[jj]}")
            for jj in range(4): a(f"v_lshrrev_b32 {raw[jj]}, 16, {raw[jj]}")
            a.label(Ln1)
            for h in range(2):
                a(f"v_lshl_or_b32 {raw[2*h]}, {raw[2*h + 1]}, 16, {raw[2*h]}")
            a(f"v_mov_b32 {raw[1]}, {raw[2]}")
            a(f"s_lshl_b32 {st}, {st2}, 9")
            a(f"v_lshl_add_u32 {tt[2]}, {vLane}, 3, {st}")
            a(f"ds_write_b64 {tt[2]}, {raw[0:2]} offset:{EPW}")
        def gap_rbf(js, cen):
            a(f"v_lshlrev_b32 {cen[0]}, 16, {cenr[0]}")
            a(f"v_and_b32 {cen[1]}, {sHi}, {cenr[0]}")
            a(f"v_lshlrev_b32 {cen[2]}, 16, {cenr[1]}")
            a(f"v_and_b32 {cen[3]}, {sHi}, {cenr[1]}")
            a(f"s_not_b64 {sX}, {sHiL}")
            for j in js:
                self.rbf_operand(dd[j], cen, rbfB[j], tt[4:], sX)
        def gap_work():
            a(f"v_and_b32 {t0}, 15, {vLane}")
            a(f"v_lshrrev_b32 {t1}, 4, {vLane}")
            a(f"v_lshrrev_b32 {t2}, 2, {t0}")
            a(f"v_lshlrev_b32 {t2}, 3, {t2}")
            a(f"v_and_b32 {t3}, 3, {t0}")
            a(f"v_add_u32 {vTau[0]}, {t2}, {t3}")
            a(f"v_lshrrev_b32 {t3}, 5, {vLane}")
            a(f"v_lshl_add_u32 {vTau[0]}, {t3}, 2, {vTau[0]}")
            for b in range(1, NBLK): a(f"v_add_u32 {vTau[b]}, {32 * b}, {vTau[0]}")
            a(f"v_and_b32 {t2}, 1, {t1}")
            a(f"v_lshlrev_b32 {vHalf}, 4, {t2}")
            vWr = vIdx
            a(f"v_lshlrev_b32 {vWr}, 4, {vHalf}")
            a(f"v_lshl_add_u32 {vWr}, {t0}, 1, {vWr}")
            a(f"s_mul_i32 {st}, {sW}, {10*GS}")
            a(f"s_add_u32 {st}, {st}, {CB}")
            a(f"v_lshlrev_b32 {vIdxC}, 3, {vTau[0]}")
            a(f"v_add_u32 {vIdxC}, {st}, {vIdxC}")
            a(f"v_add_u32 {vIdxN}, {GS}, {vIdxC}")
            a(f"v_and_b32 {t2}, 31, {vLane}")
            a(f"v_lshlrev_b32 {vTupC}, 3, {t2}")
            a(f"v_add_u32 {vTupC}, {st}, {vTupC}")
            a(f"v_add_u32 {vTupN}, {GS}, {vTupC}")
            a(f"s_lshl_b32 {st}, {sW}, 11")
            a(f"s_add_u32 {st}, {st}, {STG}")
            a(f"v_lshlrev_b32 {vBrd}, 4, {vLane}")
            a(f"v_add_u32 {vBrd}, {st}, {vBrd}")
            a(f"v_lshrrev_b32 {vK}, 3, {t2}")
            a(f"v_lshlrev_b32 {vK}, 8, {vK}")
            a(f"v_and_b32 {t2}, 7, {t2}")
            a(f"v_lshl_add_u32 {vK}, {t2}, 1, {vK}")
            a(f"v_lshl_add_u32 {vK}, {t3}, 10, {vK}")
            a(f"v_add_u32 {vK}, {st}, {vK}")
            a(f"v_min_u32 {vCntA}, 4, {vLane}")
            a(f"s_mul_i32 {st}, {sW}, 5")
            a(f"v_add_u32 {vCntA}, {st}, {vCntA}")
            a(f"v_lshlrev_b32 {vCntA}, 3, {vCntA}")
            a(f"s_mov_b32 {sF0}, 0xf0")
            a(f"s_mov_b32 {sNot31}, 0x{o['gmask']:x}")
            a(f"s_mov_b32 {sK1}, 0x{f32(1.0 / 2047.5):x}")
            a(f"v_mov_b32 {vK2}, 0x{f32((0.5 - 2048.0) / 2047.5):x}")
            a(f"s_mov_b32 {sHiL[0]}, 0")
            a(f"s_mov_b32 {sHiL[1]}, -1")
            a(f"s_mov_b32 {sHdr[0]}, 0x80808080")
            a(f"s_mov_b32 {sHdr[1]}, 0x80808080")
            a(f"v_lshlrev_b32 {t2}, 3, {vLane}")
            a(f"ds_write_b64 {t2}, {wraw} offset:{WSC}")
            wtmp = X[2]
            for i in range(4):
                a(f"ds_read_u16 {wtmp[i]}, {vWr} offset:{WSC + (2*i)*32}")
                a(f"ds_read_u16 {X[3][i]}, {vWr} offset:{WSC + (2*i+1)*32}")
            pf_at('gw1')
            if o['rbfat'] == 'gap':
                gap_epw()
                gap_rbf(range(5), X[0])
            wtmp = X[2]
            a(f"s_not_b64 {sX}, {sHiL}")
            a("s_waitcnt lgkmcnt(0)")
            for i in range(4):
                a(f"v_lshl_or_b32 {wtmp[i]}, {X[3][i]}, 16, {wtmp[i]}")
            for i in range(4):
                a(f"v_cndmask_b32 {Wa[i]}, 0, {wtmp[i]}, {sX}")
            for i in range(4):
                a(f"v_cndmask_b32 {Wb[i]}, 0, {wtmp[i]}, {sHiL}")
            pf_at('gw2')
            self.stamp(7)
        if o['gapat'] == 'pre': gap_work()
        tf = o['tupflags']
        gate = o['gate']
        if gate == 'ack': a("s_waitcnt vmcnt(0)")
        elif gate == 'ack0': wait_for('L0')
        elif isinstance(gate, int) and gate > 0:
            Lg = a.newlabel('gate'); Lgx = a.newlabel('gatex')
            a(f"s_mov_b32 {sPoll}, 0")
            a.label(Lg)
            a("s_memrealtime s[14:15]")
            a("s_waitcnt lgkmcnt(0)")
            a(f"s_sub_u32 {st}, s14, {sG0}")
            a(f"s_cmp_ge_u32 {st}, {gate}")
            a(f"s_cbranch_scc1 {Lgx}")
            a(f"s_add_u32 {sPoll}, {sPoll}, 1")
            a(f"s_cmp_lt_u32 {sPoll}, 100000")
            a(f"s_cbranch_scc1 {Lg}")
            a.label(Lgx)
        self.stamp(8)
        a(f"s_lshl_b32 {sPoff}, s2, 15")
        def load_line(dst, l, k, tag=None, optional=False):
            if l == 0:
                a(f"buffer_load_dwordx4 {dst}, {vLine}, {sWS}, {sPoff} offen offset:{k*1024} {tf}")
            else:
                a(f"s_add_u32 {st}, {sPoff}, {(l * 256) << 15}")
                a(f"buffer_load_dwordx4 {dst}, {vLine}, {sWS}, {st} offen offset:{k*1024} {tf}")
            if tag: self.vm_issue(tag, optional)
        def stores_at(where):
            for it in range(4):
                if L1S[it] == where:
                    store(1, it)
                    self.vm_issue(f'L1{it}', optional=isinstance(where, int))
            if L2S == where: store2()
        for k in range(4): load_line(X0[k], 0, k, f'Z{k}')
        stores_at('post')
        pf_at('z')
        if o['gapat'] == 'post': gap_work()
        if 'val' in L1S or L2S == 'val':
            for k in range(4):
                self.vm_wait(f'Z{k}', linear=True)
                if k == 0: self.stamp(9)
                self.checked(X0[k], 0, k, f'z{k}')
            pf_at('z0')
            stores_at('val')
            pf_at('val')
            for k in range(4): self.insert(X0[k], 0)
        else:
            PRE = o['ppl'] if isinstance(o['ppl'], str) else None
            for k in range(4):
                self.vm_wait(f'Z{k}', linear=True)
                if k == 0: self.stamp(9)
                if PRE == f'z{k}':
                    for kk in range(4): load_line(X[kk], 1, kk, f'P{kk}')
                self.checked(X0[k], 0, k, f'z{k}')
                self.insert(X0[k], 0)
                if o['sat'] == 'pre': load_line(X0[k], 2, k, f'S{k}')
        self.publish()
        self.stamp(10)
        a("s_waitcnt lgkmcnt(0)")
        a("s_barrier")
        self.stamp(11)
        self.read_counts_issue(vC, vCntA, CC)
        off = lambda p: (p // NBLK) * 2 * GS + (p % NBLK) * 256
        ix = [Bq[1][0][i] for i in range(4)] + [Bq[1][1][i] for i in range(4)]
        for t in range(DG):
            a(f"ds_read_b32 {ix[t]}, {vIdxC} offset:{off(t)}")
        a(f"ds_read_b64 {vT}, {vTupC} offset:0")
        a("s_waitcnt lgkmcnt(0)")
        self.read_counts_use(vC, sCnt, sFail, st, st2)
        OB = o['optblk']
        opt = lambda p: (p % NBLK) >= OB
        for t in range(DG):
            Lg = None
            if opt(t):
                Lg = a.newlabel('skg')
                a(f"s_cmp_gt_u32 {sCnt[t // NBLK]}, {32 * (t % NBLK)}")
                a(f"s_cbranch_scc0 {Lg}")
            self.g_stage(ix[t], vOff, sNot31, vHalf, sCnt[t // NBLK], vTau[t % NBLK], rows[t % NR], sM)
            self.vm_issue(f"G{t}", optional=Lg is not None)
            if Lg: a.label(Lg)
        sst = (vT, vAddr, vC0, vC1, sF0, vK, sK1, vK2, sHiL, vBrd)
        self.s_stage(*sst, Bq[0], vZero)
        a(f"ds_read_b32 {vIdx}, {vIdxC} offset:{off(DG)}")
        a(f"ds_read_b64 {vT}, {vTupC} offset:{off(1)}")
        a(f"s_mov_b32 {sIt}, 0")
        self.stamp(12)

        PINS = o['pins']; PSEC = o['psec']; PWAIT = o['pwait']; PPL = o['ppl']
        if isinstance(PPL, str): PPL = ()
        else: assert all(PPL[k] < PINS[k] for k in range(4))
        assert max(PINS) < PSEC < PWAIT <= NPOS - DG - 2
        Lloop = 'c_loop'
        a.label(Lloop)
        start = len(a.lines)
        for p in range(NPOS):
            a.comment(f"---- slot {p}")
            j, blk = p // NBLK, p % NBLK
            a("s_waitcnt lgkmcnt(0)")
            if p == PWAIT + 1:
                self.read_counts_use(vC, sCntN, sFail, st, st2)
            rw = rows[p % NR]
            Lsk1 = None
            if opt(p):
                Lsk1 = a.newlabel('sk1')
                a(f"s_cmp_gt_u32 {sCnt[j]}, {32 * blk}")
                a(f"s_cbranch_scc0 {Lsk1}")
            self.vm_wait(f"G{p}")
            a(f"v_mfma_f32_16x16x32_bf16 {D1[0]}, {rw}, {Wa}, 0")
            a(f"v_mfma_f32_16x16x32_bf16 {D1[1]}, {rw}, {Wb}, 0")
            if Lsk1: a.label(Lsk1)
            if p == PWAIT:
                Lno = a.newlabel('nowait'); Lgo = a.newlabel('gowait')
                a(f"s_cmp_eq_u32 {sIt}, 0")
                a(f"s_cbranch_scc0 {Lno}")
                self.lds_spin(CB_CNT, 8, vC, vZero, st)
                self.read_counts_issue(vC, vCntA, CC + 4)
                a(f"s_branch {Lgo}")
                a.label(Lno)
                a(f"v_mov_b32 {vC}, 0")
                a.label(Lgo)
            tgt = p + DG
            tq = tgt % NPOS
            cn = sCnt[tq // NBLK] if tgt < NPOS else sCntN[tq // NBLK]
            Lg = None
            if opt(tq):
                Lg = a.newlabel('skg')
                a(f"s_cmp_gt_u32 {cn}, {32 * (tq % NBLK)}")
                a(f"s_cbranch_scc0 {Lg}")
            self.g_stage(vIdx, vOff, sNot31, vHalf, cn, vTau[tq % NBLK], rows[tgt % NR], sM)
            self.vm_issue(f"G{tq}", optional=Lg is not None)
            if Lg: a.label(Lg)
            nx = p + 1
            nq = nx % NPOS
            Lsk2 = None
            if opt(nq):
                cn2 = sCnt[nq // NBLK] if nx < NPOS else sCntN[nq // NBLK]
                Lsk2 = a.newlabel('sk2')
                a(f"s_cmp_gt_u32 {cn2}, {32 * (nq % NBLK)}")
                a(f"s_cbranch_scc0 {Lsk2}")
            self.s_stage(*sst, Bq[nx & 1], vZero)
            if Lsk2: a.label(Lsk2)
            t2_ = tgt + 1
            base = vIdxC if t2_ < NPOS else vIdxN
            a(f"ds_read_b32 {vIdx}, {base} offset:{off(t2_ % NPOS)}")
            s2_ = p + 2
            base = vTupC if s2_ < NPOS else vTupN
            a(f"ds_read_b64 {vT}, {base} offset:{off(s2_ % NPOS)}")
            Lsk3 = None
            if opt(p):
                Lsk3 = a.newlabel('sk3')
                a(f"s_cmp_gt_u32 {sCnt[j]}, {32 * blk}")
                a(f"s_cbranch_scc0 {Lsk3}")
            a(f"v_cvt_pk_bf16_f32 {rw[0]}, {D1[0][0]}, {D1[0][1]}")
            a(f"v_cvt_pk_bf16_f32 {rw[1]}, {D1[0][2]}, {D1[0][3]}")
            a(f"v_cvt_pk_bf16_f32 {rw[2]}, {D1[1][0]}, {D1[1][1]}")
            a(f"v_cvt_pk_bf16_f32 {rw[3]}, {D1[1][2]}, {D1[1][3]}")
            Bp = Bq[p & 1]
            a(f"v_mfma_f32_16x16x32_bf16 {acc[j][0]}, {rw}, {Bp[0]}, {acc[j][0]}")
            a(f"v_mfma_f32_16x16x32_bf16 {acc[j][1]}, {rw}, {Bp[1]}, {acc[j][1]}")
            if Lsk3: a.label(Lsk3)
            if p in L1S or p == L2S or p in PPL:
                Lsk = a.newlabel('nost')
                a(f"s_cmp_eq_u32 {sIt}, 0")
                a(f"s_cbranch_scc0 {Lsk}")
                stores_at(p)
                if p in PPL:
                    k = PPL.index(p)
                    load_line(X[k], 1, k, f'P{k}', optional=True)
                a.label(Lsk)
            if isinstance(o['rbfat'], int) or isinstance(o['mat'], int):
                RB = o['rbfat'] if isinstance(o['rbfat'], int) else -100
                MA = o['mat'] if isinstance(o['mat'], int) else -100
                if p == MA or RB <= p < RB + 6:
                    Lsk = a.newlabel('norb')
                    a(f"s_cmp_eq_u32 {sIt}, 0")
                    a(f"s_cbranch_scc0 {Lsk}")
                    if p == MA:
                        for jj in range(5):
                            a(f"buffer_load_dwordx2 {Mr[jj]}, {vMoff}, {sM}, 0 offen offset:{jj*512}")
                            self.vm_issue(f'mr{jj}', optional=True)
                    if p == RB: gap_epw()
                    if RB < p < RB + 6: gap_rbf([p - RB - 1], self.c3)
                    a.label(Lsk)
            if p in PINS:
                k = PINS.index(p)
                Lsk = a.newlabel('noins')
                a(f"s_cmp_eq_u32 {sIt}, 0")
                a(f"s_cbranch_scc0 {Lsk}")
                self.vm_wait(f"P{k}", linear=True)
                self.checked(X[k], 1, k, f'p{k}')
                self.insert(X[k], 1, k=k)
                if o['sat'] != 'pre':
                    L = a.newlabel('sl')
                    a(f"s_cmp_eq_u64 {sMore[k]}, 0")
                    a(f"s_cbranch_scc1 {L}")
                    a(f"s_add_u32 {st}, {sPoff}, {(2 * 256) << 15}")
                    a(f"s_mov_b64 exec, {sMore[k]}")
                    a(f"buffer_load_dwordx4 {X[k]}, {vLine}, {sWS}, {st} offen offset:{k*1024} {tf}")
                    a(f"s_mov_b64 exec, -1")
                    a.label(L)
                    self.vm_issue(f"S{k}", optional=True)
                a.label(Lsk)
            if p == PSEC:
                Lna = a.newlabel('noarr')
                a(f"s_cmp_eq_u32 {sIt}, 0")
                a(f"s_cbranch_scc0 {Lna}")
                for k in range(4):
                    Ln_ = a.newlabel('sn')
                    a(f"s_cmp_eq_u64 {sMore[k]}, 0")
                    a(f"s_cbranch_scc1 {Ln_}")
                    self.vm_wait(f"S{k}", linear=True)
                    a(f"s_mov_b64 exec, {sMore[k]}")
                    XS = X0[k] if o['sat'] == 'pre' else X[k]
                    self.checked(XS, 2, k, f's{k}', sub=sMore[k])
                    self.insert(XS, 2, sub=sMore[k])
                    a.label(Ln_)
                self.publish()
                a("s_waitcnt lgkmcnt(0)")
                self.lds_arrive(CB_CNT, vZero, vOne)
                a.label(Lna)
            if self.prof and p in (1, 5, 9, 14, 19, 24, 29):
                slot = (1, 5, 9, 14, 19, 24, 29).index(p)
                a(f"s_lshl_b32 {st}, {sIt}, 3")
                a(f"s_add_u32 {st}, {st}, {13 + slot}")
                self.stamp_dyn(st)
        a(f"v_mov_b32 {vIdxC}, {vIdxN}")
        a(f"v_mov_b32 {vTupC}, {vTupN}")
        for jj in range(5):
            a(f"s_mov_b32 {sCnt[jj]}, {sCntN[jj]}")
        a(f"s_add_u32 {sIt}, {sIt}, 1")
        a(f"s_cmp_le_u32 {sIt}, 1")
        a(f"s_cbranch_scc1 {Lloop}")
        end = len(a.lines)
        self.resolve_vm(start, end)
        self.stamp(40)
        a("s_waitcnt vmcnt(0) lgkmcnt(0)")
        a(f"ds_read_b32 {tt[0]}, {vZero} offset:{FAIL}")
        a("s_waitcnt lgkmcnt(0)")
        a(f"v_readfirstlane_b32 {st}, {tt[0]}")
        a(f"s_or_b32 {sFail}, {sFail}, {st}")
        a(f"s_cmp_lg_u32 {sFail}, 0")
        a(f"s_cbranch_scc1 c_fallback")
        a.label("c_fb_back")
        self.late.append((self._fallback, (acc, rows, X, D1, Bq, Wa, Wb, vLane, vZero, vOne, vHalf, vTau, sE0, sW,
                                            sOI, sIN, sAN, sM, st, st2, sMore, pDBG, sIt, sPoff, sPoll,
                                            vOff, vIdx, vAddr, vC0, vT, sv)))
        Aop = [X[0][0:2], X[0][2:4], X[1][0:2], X[1][2:4]]
        a(f"v_lshlrev_b32 {vIdx}, 3, {vLane}")
        for x in range(4):
            a(f"ds_read_b64 {Aop[x]}, {vIdx} offset:{EPW + x*512}")
        a("s_waitcnt lgkmcnt(0)")
        self.epilogue(acc, Mr, D1, Bq, rbfB, Aop, tt, vLane, vMoff, sW, sOUT, st, rows, X)
        self.stamp(41)
        Lgd = a.newlabel('gd'); Lgx = a.newlabel('gdx')
        a(f"s_mov_b32 {sPoll}, 0")
        a.label(Lgd)
        a("s_memrealtime s[14:15]")
        a("s_waitcnt lgkmcnt(0)")
        a(f"s_sub_u32 {st}, s14, {sG0}")
        a(f"s_cmp_ge_u32 {st}, {GUARD}")
        a(f"s_cbranch_scc1 {Lgx}")
        a(f"s_add_u32 {sPoll}, {sPoll}, 1")
        a(f"s_cmp_lt_u32 {sPoll}, 100000")
        a("s_sleep 4")
        a(f"s_cbranch_scc1 {Lgd}")
        a.label(Lgx)
        self.prof_store(sW)
        self.dbg_store(sW, pDBG)
        a("s_endpgm")

    def dbg_store(self, sW, pDBG):
        if not self.o.get('dbgprof'): return
        a = self.a
        L = a.newlabel('dbgx')
        a(f"s_cmp_lg_u32 {sW}, 0")
        a(f"s_cbranch_scc1 {L}")
        a("s_mov_b64 exec, 1")
        a("v_mov_b32 v2, 0")
        a(f"v_readlane_b32 s5, {self.vProf}, 50")
        spec = [(0, 50, 'min'), (1, 50, 'max'), (2, 2, 'max'), (3, 4, 'max'), (5, 9, 'max'), (6, 12, 'max'), (7, 40, 'max'), (8, 41, 'max'),
                (9, 2, 'sum'), (10, 4, 'sum'), (11, 9, 'sum'), (12, 12, 'sum'), (13, 19, 'sum'), (14, 40, 'sum'), (15, 41, 'sum')]
        for slot, ix, kind in spec:
            a(f"v_readlane_b32 s4, {self.vProf}, {ix}")
            if kind == 'min': a("s_not_b32 s4, s4")
            if kind == 'sum': a("s_sub_u32 s4, s4, s5")
            a("v_mov_b32 v1, s4")
            op = 'global_atomic_add' if kind == 'sum' else 'global_atomic_umax'
            a(f"{op} v2, v1, {pDBG} offset:{slot * 4}")
        a("s_waitcnt vmcnt(0)")
        a.label(L)

    def _p_rare(self, Hd, aW, aB, tp, vRb, vSt, vTag, sM24, sSrc, so, s73, sWS, L):
        a = self.a
        a.label("p_rare")
        for it in range(4):
            Ls = a.newlabel('pr')
            a(f"v_cmp_le_u32 vcc, {s73}, {Hd[it]}")
            a(f"s_cbranch_vccz {Ls}")
            a(f"s_mov_b64 exec, vcc")
            a("s_waitcnt vmcnt(0)")
            a(f"ds_read2_b32 {L[0:2]}, {aW[it]} offset0:{3 * 24} offset1:{3 * 24 + 1}")
            a(f"ds_read_b32 {L[2]}, {aW[it]} offset:{3 * 96 + 8}")
            a(f"ds_read2_b32 {tp}, {aB[it]} offset0:{3 * 6} offset1:{3 * 6 + 1}")
            a("s_waitcnt lgkmcnt(0)")
            a(f"v_alignbyte_b32 {L[3]}, {tp[1]}, {tp[0]}, {vRb}")
            a(f"v_bfi_b32 {L[3]}, {sM24}, {L[3]}, {vTag}")
            a(f"s_add_u32 {so}, {sSrc}, {(3 * 256 + it * 8) << 15}")
            a(f"buffer_store_dwordx4 {L}, {vSt}, {sWS}, {so} offen {self.o['stflags']}")
            a(f"s_mov_b64 exec, -1")
            a.label(Ls)
        a("s_branch p_rare_back")

    def publish(self):
        a = self.a; c = self.c
        L = a.newlabel('pub')
        a(f"s_cmp_eq_u32 {c['sFail']}, 0")
        a(f"s_cbranch_scc1 {L}")
        a(f"ds_write_b32 {c['vZero']}, {c['vOne']} offset:{FAIL}")
        a.label(L)

    def g_stage(self, idx, vOff, sNot31, vHalf, cnt, tau, dst, sM):
        a = self.a
        a(f"v_cmp_gt_u32 vcc, {cnt}, {tau}")
        a(f"v_lshrrev_b32 {vOff}, 9, {idx}")
        a(f"v_and_or_b32 {vOff}, {vOff}, {sNot31}, {vHalf}")
        a(f"v_cndmask_b32 {vOff}, {OOB}, {vOff}, vcc")
        a(f"buffer_load_dwordx4 {dst}, {vOff}, {sM}, 0 offen")

    def s_stage(self, vT, vAddr, vC0, vC1, sF0, vK, sK1, vK2, sHiL, vBrd, B, vZero):
        a = self.a
        a(f"v_and_b32 {vC0}, 15, {vT[0]}")
        a(f"v_lshl_or_b32 {vC0}, {vT[1]}, 4, {vC0}")
        a(f"v_cvt_f32_u32 {vC0}, {vC0}")
        a(f"v_and_or_b32 {vAddr}, {vT[0]}, {sF0}, {vK}")
        a(f"v_fma_f32 {vC0}, {vC0}, {sK1}, {vK2}")
        a(f"v_fma_f32 {vC1}, {vC0}, {vC0}, -0.5")
        a(f"v_cndmask_b32 {vC0}, {vC0}, {vC1}, {sHiL}")
        a(f"v_cvt_pk_bf16_f32 {vC0}, {vC0}, {vC0}")
        a(f"ds_write_b16 {vAddr}, {vC0}")
        a(f"ds_read_b128 {B[0]}, {vBrd}")
        a(f"ds_read_b128 {B[1]}, {vBrd} offset:1024")
        a(f"ds_write_b16 {vAddr}, {vZero}")

    def read_counts_issue(self, vC, vCntA, off):
        self.a(f"ds_read_b32 {vC}, {vCntA} offset:{off}")

    def read_counts_use(self, vC, dst, sFail, st, st2):
        a = self.a
        for jj in range(5):
            a(f"v_readlane_b32 {dst[jj]}, {vC}, {jj}")
        a(f"s_max_u32 {st}, {dst[0]}, {dst[1]}")
        a(f"s_max_u32 {st2}, {dst[2]}, {dst[3]}")
        a(f"s_max_u32 {st}, {st}, {dst[4]}")
        a(f"s_max_u32 {st}, {st}, {st2}")
        a(f"s_cmp_gt_u32 {st}, {CAP}")
        a(f"s_cselect_b32 {st}, 1, 0")
        a(f"s_or_b32 {sFail}, {sFail}, {st}")
        for jj in range(5):
            a(f"s_min_u32 {dst[jj]}, {dst[jj]}, {CAP}")

    def rbf_operand(self, d, cen, dst, tt, sQ):
        a = self.a
        t = [tt[0], tt[1], tt[2], tt[3]]; u = tt[4]; dv = tt[5]
        a(f"v_lshlrev_b32 {dv}, 16, {d}")
        for i in range(4): a(f"v_sub_f32 {t[i]}, {dv}, {cen[i]}")
        def rnd():
            for h in range(2):
                a(f"v_cvt_pk_bf16_f32 {u}, {t[2*h]}, {t[2*h+1]}")
                a(f"v_lshlrev_b32 {t[2*h]}, 16, {u}")
                a(f"v_and_b32 {t[2*h+1]}, 0xffff0000, {u}")
        rnd()
        for i in range(4): a(f"v_mul_f32 {t[i]}, {t[i]}, {t[i]}")
        rnd()
        for i in range(4): a(f"v_mul_f32 {t[i]}, 0xc1200000, {t[i]}")
        rnd()
        for i in range(4): a(f"v_mul_f32 {t[i]}, 0x3fb8aa3b, {t[i]}")
        for i in range(4): a(f"v_exp_f32 {t[i]}, {t[i]}")
        a(f"v_cvt_pk_bf16_f32 {dst[0]}, {t[0]}, {t[1]}")
        a(f"v_cvt_pk_bf16_f32 {dst[1]}, {t[2]}, {t[3]}")
        a(f"v_cndmask_b32 {dst[0]}, 0, {dst[0]}, {sQ}")
        a(f"v_cndmask_b32 {dst[1]}, 0, {dst[1]}, {sQ}")

    def tagcheck(self, x):
        a = self.a; c = self.c; tt = c['tt']
        u = tt[10]; w = tt[11]
        a(f"v_perm_b32 {u}, {x[3]}, {x[3]}, {c['Sel']}")
        a(f"v_or_b32_dpp {u}, {u}, {u} quad_perm:[1,0,3,2] row_mask:0xf bank_mask:0xf")
        a(f"v_or_b32_dpp {u}, {u}, {u} quad_perm:[2,3,0,1] row_mask:0xf bank_mask:0xf")
        a(f"v_lshlrev_b32 {w}, 8, {u}")
        a(f"v_xad_u32 {u}, {u}, {w}, {c['NegT']}")
        a(f"v_cmp_le_u32 vcc, 8, {u}")

    def checked(self, x, l, k, name, sub=None):
        a = self.a
        self.tagcheck(x)
        a(f"s_cbranch_vccnz c_rp_{name}")
        a.label(f"c_ok_{name}")
        self.late.append((self._repoll, (x, l, k, name, sub)))

    def _repoll(self, x, l, k, name, sub):
        a = self.a; c = self.c; tt = c['tt']
        ex = sub if sub is not None else '-1'
        a.label(f"c_rp_{name}")
        a(f"s_mov_b32 {c['sPoll']}, 0")
        L = a.newlabel('rpl'); Lto = a.newlabel('rpt')
        a(f"s_cmp_lg_u32 {c['sFail']}, 0")
        a(f"s_cbranch_scc1 {Lto}")
        a.label(L)
        a(f"s_sleep {self.o['psleep']}")
        a(f"s_mov_b64 exec, vcc")
        a(f"s_add_u32 {c['st']}, {c['sPoff']}, {(l * 256) << 15}")
        a(f"buffer_load_dwordx4 {x}, {c['vLine']}, {c['sWS']}, {c['st']} offen offset:{k*1024} {self.o['tupflags']}")
        a("s_waitcnt vmcnt(0)")
        self.tagcheck(x)
        a(f"s_mov_b64 exec, {ex}")
        a(f"s_cbranch_vccz c_ok_{name}")
        a(f"s_add_u32 {c['sPoll']}, {c['sPoll']}, 1")
        a(f"s_cmp_lt_u32 {c['sPoll']}, {self.o['poll_max']}")
        a(f"s_cbranch_scc1 {L}")
        a.label(Lto)
        a(f"s_mov_b32 {c['sFail']}, 1")
        a(f"v_mov_b32 {tt[0]}, -1")
        for h in range(3):
            a(f"v_cndmask_b32 {x[h]}, {x[h]}, {tt[0]}, vcc")
        a(f"s_branch c_ok_{name}")

    def insert(self, x, l, k=None, sub=None):
        a = self.a; c = self.c; tt = c['tt']; sv = c['sv']
        g = tt[0:3]; rk = tt[3:6]; cs = tt[6:9]
        for h in range(3): a(f"v_cmp_gt_u32 {sv[h]}, {c['Lim']}, {x[h]}")
        for h in range(3): a(f"v_bfe_u32 {g[h]}, {x[h]}, 8, 6")
        if l == 0:
            for h in range(3):
                a(f"v_cmp_le_u32 vcc, {c['LimA']}, {x[h]}")
                a(f"v_addc_co_u32 {g[h]}, vcc, {g[h]}, {g[h]}, vcc")
        else:
            for h in range(3): a(f"v_lshl_or_b32 {g[h]}, {g[h]}, 1, 1")
        if l == 1:
            a(f"s_andn2_b64 {sv[2]}, {sv[2]}, {c['sHdr']}")
            a(f"s_mov_b32 {c['st']}, {49 << 18}")
            a(f"s_mov_b32 {c['st2']}, {73 << 18}")
            a(f"v_cmp_le_u32 vcc, {c['st']}, {x[2]}")
            a(f"v_cmp_le_u32 {c['sX']}, {c['st2']}, {x[2]}")
        for h in range(3): a(f"v_lshl_add_u32 {rk[h]}, {g[h]}, 2, {CC}")
        for h in range(3):
            a(f"s_mov_b64 exec, {sv[h]}")
            a(f"ds_add_rtn_u32 {rk[h]}, {rk[h]}, {c['vOne']}")
        a(f"s_mov_b64 exec, -1")
        for h in range(3): a(f"v_bfe_u32 {cs[h]}, {x[3]}, {8 * h}, 8")
        for h in range(3): a(f"v_mad_u32_u24 {g[h]}, {g[h]}, {c['GS']}, {c['vCB']}")
        if l == 1:
            m = c['sMore'][k]
            a(f"s_and_b64 {m}, vcc, {c['sHdr']}")
            a(f"s_lshr_b64 {m}, {m}, 7")
            a(f"s_lshl_b64 {c['sSave']}, {m}, 8")
            a(f"s_sub_u32 {m[0]}, {c['sSave'][0]}, {m[0]}")
            a(f"s_subb_u32 {m[1]}, {c['sSave'][1]}, {m[1]}")
        a("s_waitcnt lgkmcnt(0)")
        for h in range(3): a(f"v_min_u32 {rk[h]}, {CAP}, {rk[h]}")
        for h in range(3): a(f"v_lshl_add_u32 {g[h]}, {rk[h]}, 3, {g[h]}")
        for h in range(3):
            a(f"s_mov_b64 exec, {sv[h]}")
            a(f"ds_write2_b32 {g[h]}, {x[h]}, {cs[h]} offset0:0 offset1:1")
        a(f"s_mov_b64 exec, -1")
        if l == 1:
            a(f"s_and_b64 {c['sX']}, {c['sX']}, {c['sHdr']}")
            a(f"s_cbranch_scc1 c_l3_{k}")
            a.label(f"c_l3_back_{k}")
            self.late.append((self._line3, (x, k)))

    def _line3(self, x, k):
        a = self.a; c = self.c; tt = c['tt']
        m = c['sX']; Y = self.c3
        a.label(f"c_l3_{k}")
        a(f"s_mov_b32 {c['st']}, {97 << 18}")
        a(f"v_cmp_le_u32 vcc, {c['st']}, {x[2]}")
        a(f"s_and_b64 vcc, vcc, {c['sHdr']}")
        a(f"s_cselect_b32 {c['st']}, 1, 0")
        a(f"s_or_b32 {c['sFail']}, {c['sFail']}, {c['st']}")
        a(f"s_lshr_b64 {m}, {m}, 7")
        a(f"s_lshl_b64 {c['sSave']}, {m}, 8")
        a(f"s_sub_u32 {m[0]}, {c['sSave'][0]}, {m[0]}")
        a(f"s_subb_u32 {m[1]}, {c['sSave'][1]}, {m[1]}")
        a(f"s_cmp_lg_u32 {c['sFail']}, 0")
        a(f"s_cbranch_scc1 c_l3_back_{k}")
        a(f"s_add_u32 {c['st']}, {c['sPoff']}, {(3 * 256) << 15}")
        a(f"s_mov_b64 exec, {m}")
        a(f"buffer_load_dwordx4 {Y}, {c['vLine']}, {c['sWS']}, {c['st']} offen offset:{k*1024} {self.o['tupflags']}")
        a("s_waitcnt vmcnt(0)")
        self.checked(Y, 3, k, f't{k}', sub=m)
        self.insert(Y, 3, sub=m)
        a(f"s_branch c_l3_back_{k}")

    def _fallback(self, acc, rows, X, D1, Bq, Wa, Wb, vLane, vZero, vOne, vHalf, vTau, sE0, sCw, sOI, sIN, sAN, sM,
                  st, st2, sMore, pDBG, sN, sCh, sLaneS, vOff, vIdx, vAddr, vC16, vT, sv):
        a = self.a
        a.label("c_fallback")
        a(f"global_store_dword {vZero}, {vOne}, {pDBG} offset:16")
        for j in range(5):
            for l in range(2):
                for i in range(4): a(f"v_mov_b32 {acc[j][l][i]}, 0")
        sMask = sMore[0]; sLoc = Reg('s', 6); sTt = Reg('s', 7); sSel = sMore[2]; sSel2 = sMore[3]
        a(f"s_movk_i32 {sN}, 80")
        a(f"s_cmp_eq_u32 {sCw}, 7")
        a(f"s_cselect_b32 {sN}, 65, {sN}")
        a(f"s_mov_b32 {sCh}, 0")
        vL16 = vIdx; vI15 = vAddr
        a(f"v_lshlrev_b32 {vL16}, 4, {vLane}")
        a(f"v_and_b32 {vI15}, 15, {vLane}")
        for i in range(1, 4):
            a(f"v_mov_b32 {Bq[0][0][i]}, 0")
            a(f"v_mov_b32 {Bq[0][1][i]}, 0")
        a(f"v_cmp_eq_u32 {sSel}, 0, {vTau[0]}")
        Lc = "c_fb_chunk"
        a.label(Lc)
        a(f"buffer_load_dwordx4 {X[3]}, {vL16}, {sOI}, {sCh} offen")
        a("s_waitcnt vmcnt(0)")
        for cidx in range(4):
            Lh = f"c_fb_h{cidx}"; Ld = f"c_fb_d{cidx}"
            a(f"v_subrev_u32 {X[3][cidx]}, {sE0}, {X[3][cidx]}")
            a(f"v_cmp_gt_u32 {sMask}, {sN}, {X[3][cidx]}")
            a.label(Lh)
            a(f"s_cmp_eq_u64 {sMask}, 0")
            a(f"s_cbranch_scc1 {Ld}")
            a(f"s_ff1_i32_b64 {sLaneS}, {sMask}")
            a(f"s_bitset0_b64 {sMask}, {sLaneS}")
            a(f"s_nop 3")
            a(f"v_readlane_b32 {sLoc}, {X[3][cidx]}, {sLaneS}")
            a(f"s_lshl_b32 {sTt}, {sLaneS}, 4")
            a(f"s_add_u32 {sTt}, {sTt}, {sCh}")
            a(f"s_add_u32 {sTt}, {sTt}, {cidx*4}")
            a(f"v_mov_b32 {vOff}, {sTt}")
            a(f"v_lshrrev_b32 {vC16}, 1, {vOff}")
            a(f"buffer_load_dword {vT[0]}, {vOff}, {sIN}, 0 offen")
            a(f"buffer_load_ushort {vT[1]}, {vC16}, {sAN}, 0 offen")
            a("s_waitcnt vmcnt(0)")
            a(f"v_lshl_or_b32 {vOff}, {vT[0]}, 5, {vHalf}")
            a(f"v_cndmask_b32 {vOff}, {OOB}, {vOff}, {sSel}")
            a(f"buffer_load_dwordx4 {rows[0]}, {vOff}, {sM}, 0 offen")
            a(f"v_lshlrev_b32 {vT[1]}, 16, {vT[1]}")
            a(f"v_mul_f32 {vT[1]}, 0x{INV2PI:x}, {vT[1]}")
            a(f"v_fract_f32 {vT[1]}, {vT[1]}")
            a(f"v_cos_f32 {vT[1]}, {vT[1]}")
            a(f"s_and_b32 {st}, {sLoc}, 15")
            a(f"v_cmp_eq_u32 {sSel2}, {st}, {vLane}")
            a(f"v_fma_f32 {vT[0]}, {vT[1]}, {vT[1]}, -0.5")
            a(f"v_cvt_pk_bf16_f32 {vT[0]}, {vT[1]}, {vT[0]}")
            a(f"v_and_b32 {vT[1]}, 0xffff, {vT[0]}")
            a(f"v_lshrrev_b32 {vT[0]}, 16, {vT[0]}")
            a(f"v_cndmask_b32 {Bq[0][0][0]}, 0, {vT[1]}, {sSel2}")
            a(f"v_cndmask_b32 {Bq[0][1][0]}, 0, {vT[0]}, {sSel2}")
            a("s_waitcnt vmcnt(0)")
            rw = rows[0]
            a(f"v_mfma_f32_16x16x32_bf16 {D1[0]}, {rw}, {Wa}, 0")
            a(f"v_mfma_f32_16x16x32_bf16 {D1[1]}, {rw}, {Wb}, 0")
            a(f"v_cvt_pk_bf16_f32 {rw[0]}, {D1[0][0]}, {D1[0][1]}")
            a(f"v_cvt_pk_bf16_f32 {rw[1]}, {D1[0][2]}, {D1[0][3]}")
            a(f"v_cvt_pk_bf16_f32 {rw[2]}, {D1[1][0]}, {D1[1][1]}")
            a(f"v_cvt_pk_bf16_f32 {rw[3]}, {D1[1][2]}, {D1[1][3]}")
            a(f"s_lshr_b32 {st}, {sLoc}, 4")
            for j in range(5):
                Lj = a.newlabel('fbj')
                a(f"s_cmp_lg_u32 {st}, {j}")
                a(f"s_cbranch_scc1 {Lj}")
                a(f"v_mfma_f32_16x16x32_bf16 {acc[j][0]}, {rw}, {Bq[0][0]}, {acc[j][0]}")
                a(f"v_mfma_f32_16x16x32_bf16 {acc[j][1]}, {rw}, {Bq[0][1]}, {acc[j][1]}")
                a.label(Lj)
            a(f"s_branch {Lh}")
            a.label(Ld)
        a(f"s_add_u32 {sCh}, {sCh}, 1024")
        a(f"s_cmp_lt_u32 {sCh}, {T*4}")
        a(f"s_cbranch_scc1 {Lc}")
        a("s_branch c_fb_back")

    def epilogue(self, acc, Mr, D1, Bq, rbfB, Aop, tt, vLane, vMoff, sCw, sOUT, st, rows, X):
        a = self.a
        A0, A1, AG, AU = Aop
        t0 = tt[0]; t1 = tt[1]
        a(f"v_and_b32 {t0}, 15, {vLane}")
        a(f"s_mul_i32 {st}, {sCw}, 80")
        a(f"v_add_u32 {t0}, {st}, {t0}")
        a(f"v_add_u32 {t0}, 64, {t0}")
        a(f"v_cmp_gt_u32 vcc, 625, {t0}")
        a(f"v_cndmask_b32 {t1}, {OOB}, {vMoff}, vcc")
        G0 = [rows[0], rows[1]]; G1 = [rows[2], rows[3]]; GT = [rows[4], rows[5]]; U = [D1[0], D1[1]]
        ag = [Bq[0][0][0:2], Bq[0][0][2:4]]
        mm = [Bq[0][1], Bq[1][0]]
        oo = [Bq[1][1][0:2], Bq[1][1][2:4]]

        def gm(j):
            s = j & 1
            a(f"v_mfma_f32_16x16x16_bf16 {G0[s]}, {A0}, {rbfB[j]}, 0")
            a(f"v_mfma_f32_16x16x16_bf16 {G1[s]}, {A1}, {rbfB[j]}, 0")
            a(f"v_mfma_f32_16x16x16_bf16 {GT[s]}, {AG}, {rbfB[j]}, 0")
        gm(0)
        for j in range(5):
            s = j & 1
            if j + 1 < 5: gm(j + 1)
            mrow = Mr[j]
            a(f"v_lshlrev_b32 {mm[s][0]}, 16, {mrow[0]}")
            a(f"v_and_b32 {mm[s][1]}, 0xffff0000, {mrow[0]}")
            a(f"v_lshlrev_b32 {mm[s][2]}, 16, {mrow[1]}")
            a(f"v_and_b32 {mm[s][3]}, 0xffff0000, {mrow[1]}")
            for i in range(4):
                a(f"v_mul_f32 {G0[s][i]}, {G0[s][i]}, {acc[j][0][i]}")
            for i in range(4):
                a(f"v_fma_f32 {G0[s][i]}, {G1[s][i]}, {acc[j][1][i]}, {G0[s][i]}")
            a(f"v_cvt_pk_bf16_f32 {ag[s][0]}, {G0[s][0]}, {G0[s][1]}")
            a(f"v_cvt_pk_bf16_f32 {ag[s][1]}, {G0[s][2]}, {G0[s][3]}")
            a(f"v_mfma_f32_16x16x16_bf16 {U[s]}, {AU}, {ag[s]}, 0")
            for i in range(4):
                a(f"v_fma_f32 {mm[s][i]}, {U[s][i]}, {GT[s][i]}, {mm[s][i]}")
            o = oo[s]
            a(f"v_cvt_pk_bf16_f32 {o[0]}, {mm[s][0]}, {mm[s][1]}")
            a(f"v_cvt_pk_bf16_f32 {o[1]}, {mm[s][2]}, {mm[s][3]}")
            off = t1 if j == 4 else vMoff
            a(f"buffer_store_dwordx2 {o}, {off}, {sOUT}, 0 offen offset:{j*512} {self.o.get('outflags', '')}")

    def kernel(self, label):
        a = self.a
        self.late = []
        self.Lend = label + '_end'
        self.sWave = Reg('s', 60); self.sT64 = Reg('s', 98, 2)
        self.vProf = Reg('v', 255)
        a.lines.append(f".globl {label}")
        a.lines.append(".p2align 8")
        a.lines.append(f".type {label},@function")
        a.label(label)
        a("s_cmp_ge_u32 s2, 256")
        a(f"s_cbranch_scc1 {self.Lend}")
        a("s_load_dwordx16 s[4:19], s[0:1], 0")
        a("s_load_dwordx8 s[20:27], s[0:1], 64")
        a("s_load_dwordx4 s[28:31], s[0:1], 96")
        a("s_memrealtime s[100:101]")
        if self.prof:
            a("s_memrealtime s[98:99]")
        a("v_lshrrev_b32 v1, 6, v0")
        a("v_and_b32 v0, 63, v0")
        a(f"v_readfirstlane_b32 {self.sWave}, v1")
        if self.prof:
            a("s_waitcnt lgkmcnt(0)")
            a("v_mov_b32 v255, 0")
            a("v_writelane_b32 v255, s98, 50")
        self.body(self.sWave)
        i = 0
        while i < len(self.late):
            fn, args = self.late[i]; fn(*args); i += 1
        a.label(self.Lend)
        a("s_endpgm")

    def build(self):
        hdr = open('cdna_kernels/' + NAME + '.s.ref').read().split('\n')
        head = [l for l in hdr if l.startswith(';') and '@launch' not in l]
        out = list(head)
        K = NAME + '_kernel'
        out.append(f"; @launch grid=(256,1,1) block=(512,1,1) lds={LDS_END}")
        out.append('.amdgcn_target "amdgcn-amd-amdhsa--gfx950"')
        out.append('.text')
        self.kernel(K)
        body = self.a.finalize()
        print(f"{K}: {len(self.a.lines)} lines, nops {self.a.nops}", file=sys.stderr)
        out.append(body)
        out.append('.section .rodata,"a"')
        out.append(f""".p2align 6
.amdhsa_kernel {K}
  .amdhsa_next_free_vgpr 256
  .amdhsa_next_free_sgpr 102
  .amdhsa_accum_offset 256
  .amdhsa_group_segment_fixed_size 0
  .amdhsa_kernarg_size 112
  .amdhsa_user_sgpr_count 2
  .amdhsa_user_sgpr_kernarg_segment_ptr 1
  .amdhsa_system_sgpr_workgroup_id_x 1
.end_amdhsa_kernel""")
        return '\n'.join(out) + '\n'


if __name__ == '__main__':
    import argparse, ast
    ap = argparse.ArgumentParser()
    ap.add_argument('--prof', action='store_true')
    ap.add_argument('--opt', action='append', default=[])
    ap.add_argument('-o', required=True)
    args = ap.parse_args()
    opts = {}
    for kv in args.opt:
        k, v = kv.split('=', 1)
        try: v = ast.literal_eval(v)
        except Exception: pass
        opts[k] = v
    g = Gen(args.prof or bool(opts.get('dbgprof')), opts)
    s = g.build()
    open(args.o, 'w').write(s)
```

```python
import sys, re, os
sys.path.insert(0, 'gen')
from asmlib import *

NAME = 'standalone__molecular_angular_gemnet__graph'

E = 160000; T = 2560000
MAGIC = 6871948
CB_CNT, FAIL, TKT = 8, 16, 24
CC = 64
WSC = 512
EPW = 1024
STG = 3072
PB = 19456
PBS = 492
HDR = 188
BYT = 388
DUMP = 96
CB = PB
GS = 1552
CAP = 192
LDS_END = PB + 256 * PBS
NLINE = 4
WSB = NLINE * 256 * 32768
LIM = 0x9C400000
INV = 0xFFFFFFFF
GUARD = 1300
OOB = '1.0'
PROF_OFF = 100 << 20
INV2PI = 0x3e22f983
NBLK = 6
NPOS = 30
import struct
def f32(x): return struct.unpack('<I', struct.pack('<f', x))[0]


class Gen:
    def __init__(self, prof=False, opts=None):
        self.prof = prof
        self.o = dict(poll_max=60000, ldflags='', tupflags='sc1', stflags='sc1', outflags='sc1', force_fail=False,
                      up=3, dg=4, nr=6, gate='ack0', pins=(8, 9, 10, 11), psec=16, pwait=22,
                      lima=80000, psleep=1, gmask=0xffffffe0, mat='gap', optblk=4,
                      q0n=3, q1n=6, l1s=('pre', 'post', 'post', 'post'), l2s='post', ppl=(2, 3, 4, 5),
                      pf=None, pfat=('post0',), pfmode='id', pfflags='', tlbw=0, rbfat='gap', gapat='pre', sat='loop')
        if opts: self.o.update(opts)
        self.a = Asm()

    def stamp(self, idx):
        if not self.prof: return
        a = self.a
        a(f"s_memrealtime {self.sT64}")
        a("s_waitcnt lgkmcnt(0)")
        a(f"v_writelane_b32 {self.vProf}, {self.sT64[0]}, {idx}")

    def stamp_dyn(self, sidx):
        if not self.prof: return
        a = self.a
        a(f"s_memrealtime {self.sT64}")
        a("s_waitcnt lgkmcnt(0)")
        a(f"s_mov_b32 m0, {sidx}")
        a(f"s_nop 3")
        a(f"v_writelane_b32 {self.vProf}, {self.sT64[0]}, m0")

    def prof_store(self, wave_sgpr):
        if not self.prof: return
        a = self.a
        a(f"s_mul_i32 {self.sT64[0]}, s2, 12")
        a(f"s_add_u32 {self.sT64[0]}, {self.sT64[0]}, {wave_sgpr}")
        a(f"s_lshl_b32 {self.sT64[0]}, {self.sT64[0]}, 8")
        a(f"s_add_u32 {self.sT64[0]}, {self.sT64[0]}, {PROF_OFF}")
        a(f"v_mbcnt_lo_u32_b32 v1, -1, 0")
        a(f"v_mbcnt_hi_u32_b32 v1, -1, v1")
        a(f"v_lshlrev_b32 v1, 2, v1")
        a(f"v_add_u32 v1, {self.sT64[0]}, v1")
        a(f"s_mov_b64 exec, -1")
        a(f"global_store_dword v1, {self.vProf}, s[30:31]")

    def lds_spin(self, off, target, vt, vzero, st):
        a = self.a
        L = a.newlabel('spin')
        Lx = a.newlabel('spinx')
        a.label(L)
        a(f"ds_read_b32 {vt}, {vzero} offset:{off}")
        a("s_waitcnt lgkmcnt(0)")
        a(f"v_readfirstlane_b32 {st}, {vt}")
        a(f"s_cmp_ge_u32 {st}, {target}")
        a(f"s_cbranch_scc1 {Lx}")
        a("s_sleep 1")
        a(f"s_branch {L}")
        a.label(Lx)

    def lds_arrive(self, off, vzero, vone):
        a = self.a
        a("s_mov_b64 exec, 1")
        a(f"ds_add_u32 {vzero}, {vone} offset:{off}")
        a("s_mov_b64 exec, -1")

    def srd(self, reg, src, n):
        a = self.a
        a(f"s_mov_b32 {reg[0]}, s{src}")
        a(f"s_mov_b32 {reg[1]}, s{src+1}")
        a(f"s_mov_b32 {reg[2]}, {n}")
        a(f"s_mov_b32 {reg[3]}, 0x00020000")

    def vm_issue(self, tag, optional=False):
        self.a.lines.append(f"; @ISSUE{'?' if optional else ''} {tag}")

    def vm_wait(self, tag, linear=False):
        self.a.lines.append(f"; @WAIT{'L' if linear else ''} {tag}")

    def resolve_vm(self, start, end):
        lines = self.a.lines
        n = end - start
        for i in range(len(lines)):
            l = lines[i]
            if l.startswith("; @WAITL "):
                tag = l.split()[2]
                cnt = 0; found = False
                for back in range(i - 1, -1, -1):
                    ll = lines[back]
                    if ll.startswith("; @ISSUE"):
                        if ll.split()[2] == tag:
                            found = True; break
                        if not ll.startswith("; @ISSUE?"): cnt += 1
                assert found, tag
                lines[i] = f"s_waitcnt vmcnt({min(cnt, 63)})"
            elif l.startswith("; @WAIT "):
                assert start <= i < end
                tag = l.split()[2]
                cnt = 0; found = False
                pos = i - start
                for back in range(1, n + 1):
                    ll = lines[start + (pos - back) % n]
                    if ll.startswith("; @ISSUE"):
                        if ll.split()[2] == tag:
                            found = True; break
                        if not ll.startswith("; @ISSUE?"): cnt += 1
                assert found, tag
                lines[i] = f"s_waitcnt vmcnt({min(cnt, 63)})"

    def body(self, sW):
        a = self.a
        o = self.o
        DG = o['dg']; NR = o['nr']
        assert NPOS % NR == 0 and DG <= NR - 1 and DG <= 8
        V = Alloc('v', 2, 255)
        S = Alloc('s', 62, 98)
        vLane = Reg('v', 0)
        sM = Reg('s', 32, 4); sIN = Reg('s', 36, 4); sOI = Reg('s', 40, 4); sDI = Reg('s', 44, 4)
        sAN = Reg('s', 48, 4); sOUT = Reg('s', 52, 4); sWS = Reg('s', 56, 4)
        pCEN = Reg('s', 14, 2); pWR = Reg('s', 18, 2); pWS = Reg('s', 20, 2); pWD = Reg('s', 22, 2)
        pWU = Reg('s', 24, 2); pDBG = Reg('s', 28, 2)
        vZero = V('zero'); vOne = V('one')
        acc = [[V(f'acc{j}{l}', 4) for l in range(2)] for j in range(5)]
        Wa = V('wa', 4); Wb = V('wb', 4)
        rbfB = [V(f'rbf{j}', 2) for j in range(5)]
        Mr = [V(f'mr{j}', 2) for j in range(5)]
        vMoff = V('moff'); vLine = V('line'); vSel = V('sel'); vCB = V('cb')
        wraw = V('wraw', 2); dd = [V(f'dd{j}') for j in range(5)]; cenr = V('cenr', 2); raw = V('raw', 4)
        Ln12 = [[V(f'ln{l}{i}', 4) for i in range(4)] for l in (1, 2)]
        vTag = V('tag'); vSt = V('stv'); vPf = V('pf'); vPfD = V('pfd')
        mk0 = V.mark()
        st = S('st'); st2 = S('st2'); so = S('so')
        sFail = Reg('s', 61); sPoll = S('poll'); sG0 = S('g0'); sE0 = S('e0')
        sNegT = S('negT'); sLim = S('lim'); sLimA = S('lima'); sGS = S('gs'); sHi = S('hi')
        sSrc = S('src'); sM24 = S('m24'); sPf = S('pf'); so2 = S('so2')
        sL2 = [Reg('s', 0, 2), Reg('s', 44, 2), Reg('s', 46, 2), S('l2d', 2)]
        smk0 = S.mark()
        Q = [dict(i=V(f'q{k}i', 4), o=V(f'q{k}o', 4), a=V(f'q{k}a', 2)) for k in range(5)]
        tb = V('tb', 4)
        tmp = [dict(mk=V(f'mk{s}', 4), sh=V(f'sh{s}', 4), old=V(f'old{s}', 4), by=V(f'by{s}', 4), inc=V(f'inc{s}', 4))
               for s in range(2)]
        vOffQ = V('offq'); vOffA = V('offa'); vPB = V('pb'); vC2048 = V('c2048'); vi = V('vi', 4); vt = V('vt'); vt2 = V('vt2')
        vRd = V('rd'); vRb = V('rb'); vRh = V('rh')
        Ln = [[V(f'ln0{i}', 4) for i in range(4)]] + Ln12
        Hd = [V(f'hd{i}') for i in range(4)]
        print('phase 1/2 vgprs', V.high, file=sys.stderr)
        sMagic = S('magic'); sNeg = S('neg'); s492 = S('c492'); sLimIn = S('limin'); sK18 = S('k18'); sCq = S('cq')
        sOffI = S('offi'); sOffA = S('offa'); sLast = S('last', 2)
        sm = [Reg('s', 4 + 2 * k, 2) for k in range(4)]
        sm4 = Reg('s', 12, 2)
        ld = o['ldflags']
        self.vmseq = []

        def load_part(k, part):
            q = Q[k]
            if part == 0:
                a(f"s_add_u32 {so}, {sOffI}, {k * 1024}")
                a(f"buffer_load_dwordx4 {q['o']}, {vOffQ}, {sOI}, {so} offen {ld}")
            elif part == 1:
                a(f"s_add_u32 {so}, {sOffI}, {k * 1024}")
                a(f"buffer_load_dwordx4 {q['i']}, {vOffQ}, {sIN}, {so} offen {ld}")
            else:
                a(f"s_add_u32 {so}, {sOffA}, {k * 512}")
                a(f"buffer_load_dwordx2 {q['a']}, {vOffA}, {sAN}, {so} offen {ld}")
            self.vmseq.append(f'Q{k}')

        def load_quad(k):
            if k == 4: a(f"s_mov_b64 exec, {sLast}")
            for part in range(3): load_part(k, part)
            if k == 4: a(f"s_mov_b64 exec, -1")

        def wait_for(tag):
            last = max(i for i, x in enumerate(self.vmseq) if x == tag)
            cnt = sum(1 for x in self.vmseq[last + 1:] if not x.endswith('?'))
            a(f"s_waitcnt vmcnt({min(cnt, 63)})")

        a(f"s_mul_i32 {st}, {sW}, 5120")
        a(f"v_lshlrev_b32 {vOffQ}, 4, {vLane}")
        a(f"v_add_u32 {vOffQ}, {st}, {vOffQ}")
        a(f"v_lshrrev_b32 {vOffA}, 1, {vOffQ}")
        a(f"s_mul_i32 {sOffI}, s2, 40000")
        a(f"s_mul_i32 {sOffA}, s2, 20000")
        a(f"s_cmp_eq_u32 {sW}, 7")
        a(f"s_cselect_b64 {sLast}, 15, -1")
        a(f"s_mul_i32 {sE0}, s2, 625")
        a(f"s_mul_i32 {st}, {sW}, 80")
        a(f"s_add_u32 {sE0}, {sE0}, {st}")
        a("s_waitcnt lgkmcnt(0)")
        self.stamp(51)
        self.srd(sOI, 8, T * 4); self.srd(sIN, 6, T * 4); self.srd(sAN, 12, T * 2)
        up = o['up']
        parts = [(k, part) for k in range(up) for part in range(3)]
        q0n = o['q0n']
        for k, part in parts[:q0n]: load_part(k, part)
        a(f"s_mov_b32 {sG0}, s100")
        for i in range(4): a(f"v_mov_b32 {vi[i]}, -1")
        a(f"s_mul_i32 {st}, {sW}, {32 * PBS}")
        a(f"s_add_u32 {st}, {st}, {PB}")
        a(f"v_lshlrev_b32 {vt}, 4, {vLane}")
        a(f"v_add_u32 {vt2}, {st}, {vt}")
        for i in range(15):
            a(f"ds_write_b128 {vt2}, {vi} offset:{i*1024}")
        a(f"s_mov_b64 exec, 0xffffff")
        a(f"ds_write_b128 {vt2}, {vi} offset:{15*1024}")
        a(f"s_mov_b32 exec_lo, -1")
        a(f"s_mov_b32 exec_hi, 0")
        a(f"s_movk_i32 {s492}, {PBS}")
        a(f"v_mov_b32 {vPB}, {st}")
        a(f"v_mad_u32_u24 {vt2}, {vLane}, {s492}, {vPB}")
        a(f"v_mov_b32 {vi[0]}, {1 << 18}")
        a(f"ds_write_b32 {vt2}, {vi[0]} offset:{HDR}")
        a(f"s_mov_b64 exec, -1")
        for i in range(4): a(f"v_mov_b32 {vi[i]}, 0")
        a(f"s_lshl_b32 {st}, {sW}, 11")
        a(f"s_add_u32 {st}, {st}, {STG}")
        a(f"v_add_u32 {vt2}, {st}, {vt}")
        a(f"ds_write_b128 {vt2}, {vi}")
        a(f"ds_write_b128 {vt2}, {vi} offset:1024")
        Lz = a.newlabel('z')
        a(f"s_cmp_lg_u32 {sW}, 0")
        a(f"s_cbranch_scc1 {Lz}")
        a(f"v_lshlrev_b32 {vt2}, 3, {vLane}")
        a(f"ds_write_b64 {vt2}, {vi[0:2]}")
        a.label(Lz)
        a(f"v_mov_b32 {vOne}, 1")
        a(f"v_mov_b32 {vPB}, {PB}")
        a(f"v_mov_b32 {vC2048}, 0x{f32(2048.0):x}")
        a(f"s_mov_b32 {sCq}, 0x{f32(2047.5):x}")
        a(f"s_mov_b32 {sMagic}, {MAGIC}")
        a(f"s_movk_i32 {sNeg}, -10000")
        a(f"s_mov_b32 {sLimIn}, {o['lima'] - 1}")
        a(f"s_mov_b32 {sK18}, {1 << 18}")
        a(f"s_mov_b32 {sHi}, 0xffff0000")
        a("s_waitcnt lgkmcnt(0)")
        a("s_barrier")
        self.stamp(1)
        q1n = max(q0n, o['q1n'])
        for k, part in parts[q0n:q1n]: load_part(k, part)
        self.srd(sM, 4, E * 32); self.srd(sDI, 10, E * 2); self.srd(sOUT, 26, E * 32); self.srd(sWS, 30, WSB)
        a(f"v_mov_b32 {vZero}, 0")
        a(f"v_mov_b32 {vCB}, {CB}")
        a(f"s_mov_b32 {sLim}, 0x{LIM:x}")
        a(f"s_mov_b32 {sLimA}, 0x{o['lima'] << 14:x}")
        a(f"s_movk_i32 {sGS}, {GS}")
        a(f"s_mov_b32 {sM24}, 0x00ffffff")
        a(f"s_lshl_b32 {sSrc}, s2, 7")
        a(f"s_mov_b32 {sFail}, {1 if o['force_fail'] else 0}")
        a("s_lshr_b64 s[100:101], s[100:101], 8")
        a(f"s_sub_u32 {sNegT}, 3, s100")
        a(f"s_lshl_b32 {st}, s100, 8")
        a(f"s_xor_b32 {st}, {st}, s100")
        a(f"s_lshl_b32 {st2}, {st}, 16")
        a(f"s_xor_b32 {st}, {st}, {st2}")
        a(f"v_and_b32 {vt}, 3, {vLane}")
        a(f"v_lshlrev_b32 {vt}, 3, {vt}")
        a(f"v_lshrrev_b32 {vTag}, {vt}, {st}")
        a(f"v_lshlrev_b32 {vTag}, 24, {vTag}")
        a(f"v_mov_b32 {vt2}, 15")
        a(f"v_lshlrev_b32 {vt2}, {vt}, {vt2}")
        a(f"v_xor_b32 {vSel}, 0x0c0c0c0c, {vt2}")
        a(f"v_lshrrev_b32 {vt}, 3, {vLane}")
        a(f"s_lshl_b32 {st}, {sW}, 5")
        a(f"v_add_u32 {vt}, {st}, {vt}")
        a(f"v_and_b32 {vt2}, 7, {vLane}")
        a(f"v_mad_u32_u24 {vRh}, {vt}, {s492}, {vPB}")
        a(f"v_mad_u32_u24 {vRd}, {vt2}, 12, {vRh}")
        a(f"v_mad_u32_u24 {vRb}, {vt2}, 3, {vRh}")
        a(f"v_lshlrev_b32 {vSt}, 15, {vt}")
        a(f"v_lshl_add_u32 {vSt}, {vt2}, 4, {vSt}")
        a(f"s_lshl_b32 {st}, {sW}, 12")
        a(f"v_lshlrev_b32 {vLine}, 4, {vLane}")
        a(f"v_add_u32 {vLine}, {st}, {vLine}")
        if o['tlbw']:
            a(f"s_lshl_b32 {st}, {sW}, 22")
            a(f"v_lshlrev_b32 {vt}, 20, {vLane}")
            a(f"v_add_u32 {vt}, {st}, {vt}")
            a(f"v_cmp_gt_u32 vcc, 4, {vLane}")
            a(f"v_cndmask_b32 {vt}, {OOB}, {vt}, vcc")
            a(f"buffer_load_dword {vPfD}, {vt}, {sWS}, 0 offen")
            self.vmseq.append('tlb')
        PF = o['pf']
        if PF:
            pfl = PF; pfi = len(o['pfat'])
            a(f"v_lshlrev_b32 {vPf}, 7, {vLane}")
            if pfl < 64:
                a(f"v_cmp_gt_u32 vcc, {pfl}, {vLane}")
                a(f"v_cndmask_b32 {vPf}, {OOB}, {vPf}, vcc")
            a(f"s_lshr_b32 {sPf}, s2, 3")
            if o['pfmode'] == 'xcc':
                Lt = a.newlabel('tk')
                a(f"s_cmp_lg_u32 {sW}, 0")
                a(f"s_cbranch_scc1 {Lt}")
                a(f"s_getreg_b32 {st}, hwreg(HW_REG_XCC_ID, 0, 3)")
                a(f"s_lshl_b32 {st}, {st}, 3")
                a(f"v_mov_b32 {vPfD}, {st}")
                a(f"s_mov_b64 exec, 1")
                a(f"global_atomic_add {vPfD}, {vPfD}, {vOne}, {pDBG} offset:128 sc0")
                a(f"s_mov_b64 exec, -1")
                a.label(Lt)
                self.vmseq.append('tk?')
        for j in range(5):
            for l in range(2):
                for i in range(4): a(f"v_mov_b32 {acc[j][l][i]}, 0")
        for k, part in parts[q1n:]: load_part(k, part)
        n_ = vt; q_ = vt2; t3 = tb[0]
        a(f"v_and_b32 {n_}, 15, {vLane}")
        a(f"v_lshrrev_b32 {q_}, 4, {vLane}")
        a(f"v_lshlrev_b32 {t3}, 3, {vLane}")
        a(f"global_load_dwordx2 {wraw}, {t3}, {pWD}")
        a(f"v_add_u32 {t3}, {sE0}, {n_}")
        a(f"v_lshlrev_b32 {vMoff}, 5, {t3}")
        a(f"v_lshl_add_u32 {vMoff}, {q_}, 3, {vMoff}")
        a(f"v_lshlrev_b32 {t3}, 1, {t3}")
        for j in range(5):
            a(f"buffer_load_ushort {dd[j]}, {t3}, {sDI}, 0 offen offset:{j*32}")
        a(f"v_lshlrev_b32 {t3}, 3, {q_}")
        a(f"v_and_b32 {t3}, 8, {t3}")
        a(f"global_load_dwordx2 {cenr}, {t3}, {pCEN}")
        Lw = [a.newlabel('ew') for _ in range(4)]; Lwx = a.newlabel('ewx')
        a(f"s_and_b32 {st2}, {sW}, 3")
        a(f"s_cmp_eq_u32 {st2}, 3")
        a(f"s_cbranch_scc1 {Lw[3]}")
        a(f"s_cmp_eq_u32 {st2}, 2")
        a(f"s_cbranch_scc1 {Lw[2]}")
        a(f"v_and_b32 {t3}, 1, {q_}")
        a(f"v_lshlrev_b32 {t3}, 8, {t3}")
        a(f"v_lshl_add_u32 {t3}, {n_}, 1, {t3}")
        a(f"s_lshl_b32 {st}, {st2}, 5")
        a(f"v_add_u32 {t3}, {st}, {t3}")
        for jj in range(4):
            a(f"global_load_ushort {raw[jj]}, {t3}, {pWS} offset:{jj*64}")
        a(f"s_branch {Lwx}")
        a.label(Lw[2])
        a(f"v_and_b32 {t3}, 1, {q_}")
        a(f"v_lshlrev_b32 {t3}, 7, {t3}")
        a(f"v_lshl_add_u32 {t3}, {n_}, 1, {t3}")
        for jj in range(4):
            a(f"global_load_ushort {raw[jj]}, {t3}, {pWR} offset:{jj*32}")
        a(f"s_branch {Lwx}")
        a.label(Lw[3])
        a(f"v_lshlrev_b32 {t3}, 7, {q_}")
        a(f"v_lshl_add_u32 {t3}, {n_}, 1, {t3}")
        for jj in range(4):
            a(f"global_load_ushort {raw[jj]}, {t3}, {pWU} offset:{jj*32}")
        a.label(Lwx)
        self.vmseq += ['sm'] * 11
        if o['mat'] == 'start':
            for jj in range(5):
                a(f"buffer_load_dwordx2 {Mr[jj]}, {vMoff}, {sM}, 0 offen offset:{jj*512}")
            self.vmseq += ['mr'] * 5
        self.stamp(53)
        def pre(k, s):
            q = Q[k]; w0 = q['i']; wb = q['o']; an = q['a']; t = tmp[s]
            mk, sh, old, by, inc = t['mk'], t['sh'], t['old'], t['by'], t['inc']
            if k == 4: a(f"s_mov_b64 exec, {sLast}")
            for j in range(4): a(f"v_mul_hi_u32_u24 {tb[j]}, {sMagic}, {wb[j]}")
            for j in range(4):
                if j & 1: a(f"v_and_b32 {by[j]}, {sHi}, {an[j >> 1]}")
                else: a(f"v_lshlrev_b32 {by[j]}, 16, {an[j >> 1]}")
            for j in range(4): a(f"v_sub_u32 {mk[j]}, {sLimIn}, {w0[j]}")
            for j in range(4): a(f"v_mul_f32 {by[j]}, 0x{INV2PI:x}, {by[j]}")
            for j in range(4): a(f"v_lshlrev_b32 {wb[j]}, 4, {wb[j]}")
            for j in range(4): a(f"v_ashrrev_i32 {mk[j]}, 31, {mk[j]}")
            for j in range(4): a(f"v_fract_f32 {by[j]}, {by[j]}")
            for j in range(4): a(f"v_mad_i32_i24 {wb[j]}, {tb[j]}, {sNeg}, {wb[j]}")
            for j in range(4): a(f"v_and_b32 {sh[j]}, 9, {mk[j]}")
            for j in range(4): a(f"v_cos_f32 {by[j]}, {by[j]}")
            for j in range(4): a(f"v_lshl_or_b32 {w0[j]}, {w0[j]}, 14, {wb[j]}")
            for j in range(4): a(f"v_lshl_or_b32 {inc[j]}, {vOne}, {sh[j]}, {sK18}")
            for j in range(4): a(f"v_mad_u32_u24 {wb[j]}, {tb[j]}, {s492}, {vPB}")
            if k >= 2: a("s_waitcnt lgkmcnt(8)")
            for j in range(4): a(f"ds_add_rtn_u32 {old[j]}, {wb[j]}, {inc[j]} offset:{HDR}")
            for j in range(4): a(f"v_fma_f32 {by[j]}, {by[j]}, {sCq}, {vC2048}")
            for j in range(4): a(f"v_cvt_u32_f32 {by[j]}, {by[j]}")
            for j in range(4): a(f"v_and_or_b32 {w0[j]}, {by[j]}, 15, {w0[j]}")
            for j in range(4): a(f"v_lshrrev_b32 {by[j]}, 4, {by[j]}")
            if k == 4: a(f"s_mov_b64 exec, -1")

        def post(k, s):
            q = Q[k]; w0 = q['i']; wb = q['o']; t = tmp[s]
            mk, sh, old, by, inc = t['mk'], t['sh'], t['old'], t['by'], t['inc']
            if k == 4: a(f"s_mov_b64 exec, {sLast}")
            for j in range(4): a(f"v_bfe_u32 {sh[j]}, {old[j]}, {sh[j]}, 9")
            for j in range(4): a(f"v_and_b32 {inc[j]}, 47, {mk[j]}")
            for j in range(4): a(f"v_lshrrev_b32 {old[j]}, 18, {old[j]}")
            for j in range(4): a(f"v_xad_u32 {sh[j]}, {sh[j]}, {mk[j]}, {inc[j]}")
            for j in range(4):
                a(f"v_cmp_le_u32 {sm[j]}, 48, {old[j]}")
            for j in range(4):
                a(f"v_cndmask_b32 {sh[j]}, {sh[j]}, {old[j]}, {sm[j]}")
            for j in range(4): a(f"v_min_u32 {sh[j]}, {DUMP}, {sh[j]}")
            for j in range(4): a(f"v_lshl_add_u32 {inc[j]}, {sh[j]}, 2, {wb[j]}")
            for j in range(4): a(f"v_add_u32 {sh[j]}, {sh[j]}, {wb[j]}")
            for j in range(4):
                a(f"ds_write_b32 {inc[j]}, {w0[j]}")
                a(f"ds_write_b8 {sh[j]}, {by[j]} offset:{BYT}")
            if k == 4: a(f"s_mov_b64 exec, -1")

        def pf_base():
            if o['pfmode'] == 'xcc':
                a(f"ds_read_b32 {vPfD}, {vZero} offset:{TKT}")
                a("s_waitcnt lgkmcnt(0)")
                a(f"v_readfirstlane_b32 {st}, {vPfD}")
                a(f"s_sub_u32 {st2}, {st}, 1")
                a(f"s_and_b32 {st2}, {st2}, 31")
                a(f"s_cmp_eq_u32 {st}, 0")
                a(f"s_cselect_b32 {sPf}, {sPf}, {st2}")
            a(f"s_mul_i32 {sPf}, {sPf}, {8 * pfl * pfi * 128}")
            a(f"s_mul_i32 {st}, {sW}, {pfl * pfi * 128}")
            a(f"s_add_u32 {sPf}, {sPf}, {st}")
            if o.get('pfoff'): a(f"s_add_u32 {sPf}, {sPf}, {o['pfoff']}")
            self.pf_based = True
        self.pfn = 0
        self.pf_based = False
        self.pf_base = pf_base
        def pf1(inloop=False):
            if not self.pf_based: pf_base()
            assert self.pfn < pfi
            a(f"buffer_load_dword {vPfD}, {vPf}, {sM}, {sPf} offen {o['pfflags']}")
            a(f"s_add_u32 {sPf}, {sPf}, {pfl * 128}")
            if not inloop: self.vmseq.append('pf')
            self.vm_issue(f'pf{self.pfn}', optional=inloop)
            self.pfn += 1
        self.pf1 = pf1
        def pf_at(where):
            if not PF: return
            for w in o['pfat']:
                if w == where: pf1()
        self.pf_at = pf_at
        def ticket_publish():
            Lt = a.newlabel('tkp')
            a(f"s_cmp_lg_u32 {sW}, 0")
            a(f"s_cbranch_scc1 {Lt}")
            last = max(i for i, x in enumerate(self.vmseq) if x == 'tk?')
            a(f"s_waitcnt vmcnt({min(sum(1 for x in self.vmseq[last + 1:]), 63)})")
            a(f"v_add_u32 {vPfD}, 1, {vPfD}")
            a(f"s_mov_b64 exec, 1")
            a(f"ds_write_b32 {vZero}, {vPfD} offset:{TKT}")
            a(f"s_mov_b64 exec, -1")
            a.label(Lt)
        nxt = up
        for k in range(5):
            wait_for(f'Q{k}')
            if k == 0: self.stamp(2)
            pre(k, k & 1)
            if nxt < 5:
                load_quad(nxt); nxt += 1
            if PF and o['pfmode'] == 'xcc' and k == o.get('tkat', 1): ticket_publish()
            pf_at(f'k{k}')
            if k > 0:
                a("s_waitcnt lgkmcnt(4)" if k == 1 else "s_waitcnt lgkmcnt(4)")
                post(k - 1, (k - 1) & 1)
        a("s_waitcnt lgkmcnt(0)")
        post(4, 0)
        self.stamp(3)
        a("s_waitcnt lgkmcnt(0)")
        a("s_barrier")
        self.stamp(4)

        stf = o['stflags']
        wait_for('sm')
        L1S = list(o['l1s']); L2S = o['l2s']
        aW = [tmp[0]['mk'][i] for i in range(4)]
        aB = [tmp[0]['sh'][i] for i in range(4)]
        TP = [[Reg('v', Q[l]['i'].i + 2 * it, 2) for it in range(4)] for l in range(3)]
        for l in range(3): assert Q[l]['o'].i == Q[l]['i'].i + 4
        a(f"v_and_b32 {aB[0]}, -4, {vRb}")
        a(f"v_add_u32 {aB[0]}, {BYT}, {aB[0]}")
        a(f"v_mov_b32 {aW[0]}, {vRd}")
        for it in range(1, 4):
            a(f"v_add_u32 {aW[it]}, {it * 8 * PBS}, {vRd}")
            a(f"v_add_u32 {aB[it]}, {it * 8 * PBS}, {aB[0]}")
        def rd(l, it):
            L = Ln[l][it]
            a(f"ds_read2_b32 {L[0:2]}, {aW[it]} offset0:{l * 24} offset1:{l * 24 + 1}")
            a(f"ds_read_b32 {L[2]}, {aW[it]} offset:{l * 96 + 8}")
            a(f"ds_read2_b32 {TP[l][it]}, {aB[it]} offset0:{l * 6} offset1:{l * 6 + 1}")
        def tag(l, it):
            a(f"v_alignbyte_b32 {Ln[l][it][3]}, {TP[l][it][1]}, {TP[l][it][0]}, {vRb}")
            a(f"v_bfi_b32 {Ln[l][it][3]}, {sM24}, {Ln[l][it][3]}, {vTag}")
        def store(l, it, name=None):
            a(f"s_add_u32 {so2}, {sSrc}, {(l * 256 + it * 8) << 15}")
            a(f"buffer_store_dwordx4 {Ln[l][it]}, {vSt}, {sWS}, {so2} offen {stf}")
            if name: self.vmseq.append(name)
        def store2(optional_tag=None):
            for it in range(4):
                Ls = a.newlabel('s2')
                a(f"s_cmp_eq_u64 {sL2[it]}, 0")
                a(f"s_cbranch_scc1 {Ls}")
                a(f"s_mov_b64 exec, {sL2[it]}")
                store(2, it)
                a(f"s_mov_b64 exec, -1")
                a.label(Ls)
        self.store_l = store; self.store2 = store2
        for it in range(4): rd(0, it)
        a("s_waitcnt lgkmcnt(6)")
        for it in range(2): tag(0, it)
        store(0, 0, 'L0')
        for it in range(2): rd(1, it)
        store(0, 1, 'L0')
        a("s_waitcnt lgkmcnt(6)")
        for it in range(2, 4): tag(0, it)
        store(0, 2, 'L0')
        store(0, 3, 'L0')
        pf_at('post0')
        for it in range(2, 4): rd(1, it)
        a("s_waitcnt lgkmcnt(6)")
        for it in range(4): a(f"ds_read_b32 {Hd[it]}, {vRh} offset:{it * 8 * PBS + HDR}")
        rd(2, 0)
        a("s_waitcnt lgkmcnt(3)")
        for it in range(1, 4): rd(2, it)
        self.stamp(5)
        a(f"s_mov_b32 {st}, {49 << 18}")
        a(f"s_mov_b32 {st2}, {73 << 18}")
        for it in range(4): a(f"v_cmp_le_u32 {sL2[it]}, {st}, {Hd[it]}")
        a(f"v_max3_u32 {vt}, {Hd[0]}, {Hd[1]}, {Hd[2]}")
        a(f"v_max_u32 {vt}, {vt}, {Hd[3]}")
        a(f"v_cmp_le_u32 vcc, {st2}, {vt}")
        for it in range(4): tag(1, it)
        a("s_waitcnt lgkmcnt(0)")
        for it in range(4): tag(2, it)
        a(f"s_cbranch_vccnz p_rare")
        a.label("p_rare_back")
        self.late.append((self._p_rare, (Hd, aW, aB, TP[0][0], vRb, vSt, vTag, sM24, sSrc, so2, st2, sWS, Ln[0][0])))
        if o['mat'] == 'gap':
            for jj in range(5):
                a(f"buffer_load_dwordx2 {Mr[jj]}, {vMoff}, {sM}, 0 offen offset:{jj*512}")
            self.vmseq += ['mr'] * 5
        a("s_barrier")
        for it in range(4):
            if L1S[it] == 'pre': store(1, it, 'L1')
        if L2S == 'pre': store2()
        pf_at('gap')
        self.stamp(6)

        V.reset(mk0); S.reset(smk0)
        rows = [V(f'row{i}', 4) for i in range(NR)]
        X = [V(f'x{i}', 4) for i in range(4)]
        D1 = [V(f'd1{i}', 4) for i in range(2)]
        Bq = [[V(f'b{s}{l}', 4) for l in range(2)] for s in range(2)]
        vT = V('tup', 2)
        vIdx = V('idx'); vOff = V('off'); vTau = [V(f'tau{b}') for b in range(NBLK)]; vHalf = V('half16')
        vIdxC = V('idxc'); vIdxN = V('idxn'); vTupC = V('tupc'); vTupN = V('tupn')
        vAddr = V('addr'); vC0 = V('c0'); vC1 = V('c1'); vK = V('k'); vBrd = V('brd'); vK2 = V('k2')
        vCntA = V('cnta'); vC = V('c')
        tt = [V(f'tt{i}') for i in range(12)]
        if o['sat'] == 'pre': X0 = [V(f'y{i}', 4) for i in range(4)]
        else: X0 = rows[0:4]
        self.c3 = V('c3', 4)
        INEP = o.get('inep')
        if INEP:
            eU = V('eu', 4); eM = V('em', 4); eA = V('ea', 2)
        print('phase 3 vgprs', V.next, file=sys.stderr)
        sCnt = [S(f'cnt{j}') for j in range(5)]
        sCntN = [S(f'cntn{j}') for j in range(5)]
        sIt = S('it'); sF0 = S('mf0'); sNot31 = S('not31'); sK1 = S('k1'); sPoff = S('poff')
        sHiL = Reg('s', 24, 2); sHdr = Reg('s', 26, 2); sv = [Reg('s', 18 + 2 * h, 2) for h in range(3)]
        sMore = [Reg('s', 4 + 2 * k, 2) for k in range(4)]
        sSave = Reg('s', 12, 2); sX = Reg('s', 16, 2)
        self.c = dict(NegT=sNegT, Sel=vSel, Lim=sLim, LimA=sLimA, GS=sGS, vCB=vCB, vZero=vZero, vOne=vOne,
                      sFail=sFail, sPoll=sPoll, sWS=sWS, vLine=vLine, sPoff=sPoff, tt=tt, X=X, sMore=sMore,
                      sv=sv, sHdr=sHdr, st=st, st2=st2, sX=sX, sSave=sSave)
        t0, t1, t2, t3 = tt[0], tt[1], tt[2], tt[3]
        def gap_epw():
            Ln1 = a.newlabel('nd')
            a(f"s_and_b32 {st2}, {sW}, 3")
            a(f"s_cmp_lg_u32 {st2}, 1")
            a(f"s_cbranch_scc1 {Ln1}")
            for jj in range(4): a(f"v_lshlrev_b32 {raw[jj]}, 16, {raw[jj]}")
            for jj in range(4): a(f"v_add_f32 {raw[jj]}, {raw[jj]}, {raw[jj]}")
            for jj in range(4): a(f"v_lshrrev_b32 {raw[jj]}, 16, {raw[jj]}")
            a.label(Ln1)
            for h in range(2):
                a(f"v_lshl_or_b32 {raw[2*h]}, {raw[2*h + 1]}, 16, {raw[2*h]}")
            a(f"v_mov_b32 {raw[1]}, {raw[2]}")
            a(f"s_lshl_b32 {st}, {st2}, 9")
            a(f"v_lshl_add_u32 {tt[2]}, {vLane}, 3, {st}")
            a(f"ds_write_b64 {tt[2]}, {raw[0:2]} offset:{EPW}")
        def gap_rbf(js, cen):
            a(f"v_lshlrev_b32 {cen[0]}, 16, {cenr[0]}")
            a(f"v_and_b32 {cen[1]}, {sHi}, {cenr[0]}")
            a(f"v_lshlrev_b32 {cen[2]}, 16, {cenr[1]}")
            a(f"v_and_b32 {cen[3]}, {sHi}, {cenr[1]}")
            a(f"s_not_b64 {sX}, {sHiL}")
            for j in js:
                self.rbf_operand(dd[j], cen, rbfB[j], tt[4:], sX)
        def gap_work():
            a(f"v_and_b32 {t0}, 15, {vLane}")
            a(f"v_lshrrev_b32 {t1}, 4, {vLane}")
            a(f"v_lshrrev_b32 {t2}, 2, {t0}")
            a(f"v_lshlrev_b32 {t2}, 3, {t2}")
            a(f"v_and_b32 {t3}, 3, {t0}")
            a(f"v_add_u32 {vTau[0]}, {t2}, {t3}")
            a(f"v_lshrrev_b32 {t3}, 5, {vLane}")
            a(f"v_lshl_add_u32 {vTau[0]}, {t3}, 2, {vTau[0]}")
            for b in range(1, NBLK): a(f"v_add_u32 {vTau[b]}, {32 * b}, {vTau[0]}")
            a(f"v_and_b32 {t2}, 1, {t1}")
            a(f"v_lshlrev_b32 {vHalf}, 4, {t2}")
            vWr = vIdx
            a(f"v_lshlrev_b32 {vWr}, 4, {vHalf}")
            a(f"v_lshl_add_u32 {vWr}, {t0}, 1, {vWr}")
            a(f"s_mul_i32 {st}, {sW}, {10*GS}")
            a(f"s_add_u32 {st}, {st}, {CB}")
            a(f"v_lshlrev_b32 {vIdxC}, 3, {vTau[0]}")
            a(f"v_add_u32 {vIdxC}, {st}, {vIdxC}")
            a(f"v_add_u32 {vIdxN}, {GS}, {vIdxC}")
            a(f"v_and_b32 {t2}, 31, {vLane}")
            a(f"v_lshlrev_b32 {vTupC}, 3, {t2}")
            a(f"v_add_u32 {vTupC}, {st}, {vTupC}")
            a(f"v_add_u32 {vTupN}, {GS}, {vTupC}")
            a(f"s_lshl_b32 {st}, {sW}, 11")
            a(f"s_add_u32 {st}, {st}, {STG}")
            a(f"v_lshlrev_b32 {vBrd}, 4, {vLane}")
            a(f"v_add_u32 {vBrd}, {st}, {vBrd}")
            a(f"v_lshrrev_b32 {vK}, 3, {t2}")
            a(f"v_lshlrev_b32 {vK}, 8, {vK}")
            a(f"v_and_b32 {t2}, 7, {t2}")
            a(f"v_lshl_add_u32 {vK}, {t2}, 1, {vK}")
            a(f"v_lshl_add_u32 {vK}, {t3}, 10, {vK}")
            a(f"v_add_u32 {vK}, {st}, {vK}")
            a(f"v_min_u32 {vCntA}, 4, {vLane}")
            a(f"s_mul_i32 {st}, {sW}, 5")
            a(f"v_add_u32 {vCntA}, {st}, {vCntA}")
            a(f"v_lshlrev_b32 {vCntA}, 3, {vCntA}")
            a(f"s_mov_b32 {sF0}, 0xf0")
            a(f"s_mov_b32 {sNot31}, 0x{o['gmask']:x}")
            a(f"s_mov_b32 {sK1}, 0x{f32(1.0 / 2047.5):x}")
            a(f"v_mov_b32 {vK2}, 0x{f32((0.5 - 2048.0) / 2047.5):x}")
            a(f"s_mov_b32 {sHiL[0]}, 0")
            a(f"s_mov_b32 {sHiL[1]}, -1")
            a(f"s_mov_b32 {sHdr[0]}, 0x80808080")
            a(f"s_mov_b32 {sHdr[1]}, 0x80808080")
            a(f"v_lshlrev_b32 {t2}, 3, {vLane}")
            a(f"ds_write_b64 {t2}, {wraw} offset:{WSC}")
            wtmp = X[2]
            for i in range(4):
                a(f"ds_read_u16 {wtmp[i]}, {vWr} offset:{WSC + (2*i)*32}")
                a(f"ds_read_u16 {X[3][i]}, {vWr} offset:{WSC + (2*i+1)*32}")
            pf_at('gw1')
            if o['rbfat'] == 'gap':
                gap_epw()
                gap_rbf(range(5), X[0])
            wtmp = X[2]
            a(f"s_not_b64 {sX}, {sHiL}")
            a("s_waitcnt lgkmcnt(0)")
            for i in range(4):
                a(f"v_lshl_or_b32 {wtmp[i]}, {X[3][i]}, 16, {wtmp[i]}")
            for i in range(4):
                a(f"v_cndmask_b32 {Wa[i]}, 0, {wtmp[i]}, {sX}")
            for i in range(4):
                a(f"v_cndmask_b32 {Wb[i]}, 0, {wtmp[i]}, {sHiL}")
            pf_at('gw2')
            if PF and any(isinstance(w, int) for w in o['pfat']) and not self.pf_based: pf_base()
            self.stamp(7)
        if o['gapat'] == 'pre': gap_work()
        tf = o['tupflags']
        gate = o['gate']
        if gate == 'ack': a("s_waitcnt vmcnt(0)")
        elif gate == 'ack0': wait_for('L0')
        elif isinstance(gate, int) and gate > 0:
            Lg = a.newlabel('gate'); Lgx = a.newlabel('gatex')
            a(f"s_mov_b32 {sPoll}, 0")
            a.label(Lg)
            a("s_memrealtime s[14:15]")
            a("s_waitcnt lgkmcnt(0)")
            a(f"s_sub_u32 {st}, s14, {sG0}")
            a(f"s_cmp_ge_u32 {st}, {gate}")
            a(f"s_cbranch_scc1 {Lgx}")
            a(f"s_add_u32 {sPoll}, {sPoll}, 1")
            a(f"s_cmp_lt_u32 {sPoll}, 100000")
            a(f"s_cbranch_scc1 {Lg}")
            a.label(Lgx)
        self.stamp(8)
        a(f"s_lshl_b32 {sPoff}, s2, 15")
        def load_line(dst, l, k, tag=None, optional=False):
            if l == 0:
                a(f"buffer_load_dwordx4 {dst}, {vLine}, {sWS}, {sPoff} offen offset:{k*1024} {tf}")
            else:
                a(f"s_add_u32 {st}, {sPoff}, {(l * 256) << 15}")
                a(f"buffer_load_dwordx4 {dst}, {vLine}, {sWS}, {st} offen offset:{k*1024} {tf}")
            if tag: self.vm_issue(tag, optional)
        def stores_at(where):
            for it in range(4):
                if L1S[it] == where:
                    store(1, it)
                    self.vm_issue(f'L1{it}', optional=isinstance(where, int))
            if L2S == where: store2()
        for k in range(4): load_line(X0[k], 0, k, f'Z{k}')
        stores_at('post')
        pf_at('z')
        if o['gapat'] == 'post': gap_work()
        if 'val' in L1S or L2S == 'val':
            for k in range(4):
                self.vm_wait(f'Z{k}', linear=True)
                if k == 0: self.stamp(9)
                self.checked(X0[k], 0, k, f'z{k}')
            pf_at('z0')
            stores_at('val')
            pf_at('val')
            for k in range(4): self.insert(X0[k], 0)
        else:
            PRE = o['ppl'] if isinstance(o['ppl'], str) else None
            for k in range(4):
                self.vm_wait(f'Z{k}', linear=True)
                if k == 0: self.stamp(9)
                if PRE == f'z{k}':
                    for kk in range(4): load_line(X[kk], 1, kk, f'P{kk}')
                self.checked(X0[k], 0, k, f'z{k}')
                self.insert(X0[k], 0)
                if o['sat'] == 'pre': load_line(X0[k], 2, k, f'S{k}')
        self.publish()
        self.stamp(10)
        a("s_waitcnt lgkmcnt(0)")
        a("s_barrier")
        self.stamp(11)
        self.read_counts_issue(vC, vCntA, CC)
        off = lambda p: (p // NBLK) * 2 * GS + (p % NBLK) * 256
        ix = [Bq[1][0][i] for i in range(4)] + [Bq[1][1][i] for i in range(4)]
        for t in range(DG):
            a(f"ds_read_b32 {ix[t]}, {vIdxC} offset:{off(t)}")
        a(f"ds_read_b64 {vT}, {vTupC} offset:0")
        a("s_waitcnt lgkmcnt(0)")
        self.read_counts_use(vC, sCnt, sFail, st, st2)
        OB = o['optblk']
        opt = lambda p: (p % NBLK) >= OB
        for t in range(DG):
            Lg = None
            if opt(t):
                Lg = a.newlabel('skg')
                a(f"s_cmp_gt_u32 {sCnt[t // NBLK]}, {32 * (t % NBLK)}")
                a(f"s_cbranch_scc0 {Lg}")
            self.g_stage(ix[t], vOff, sNot31, vHalf, sCnt[t // NBLK], vTau[t % NBLK], rows[t % NR], sM)
            self.vm_issue(f"G{t}", optional=Lg is not None)
            if Lg: a.label(Lg)
        sst = (vT, vAddr, vC0, vC1, sF0, vK, sK1, vK2, sHiL, vBrd)
        self.s_stage(*sst, Bq[0], vZero)
        a(f"ds_read_b32 {vIdx}, {vIdxC} offset:{off(DG)}")
        a(f"ds_read_b64 {vT}, {vTupC} offset:{off(1)}")
        a(f"s_mov_b32 {sIt}, 0")
        self.stamp(12)

        PINS = o['pins']; PSEC = o['psec']; PWAIT = o['pwait']; PPL = o['ppl']
        if isinstance(PPL, str): PPL = ()
        else: assert all(PPL[k] < PINS[k] for k in range(4))
        assert max(PINS) < PSEC < PWAIT <= NPOS - DG - 2
        VARS = [(sIt, PPL, PINS, PSEC, '')]
        if o.get('stag'):
            ppl2, pins2, psec2 = o['stag']
            assert all(ppl2[k] < pins2[k] for k in range(4)) and max(pins2) < psec2 < PWAIT
            sV0 = S('var0'); sV1 = S('var1')
            a(f"s_lshr_b32 {sV0}, {sW}, {o.get('stagbit', 2)}")
            a(f"s_and_b32 {sV0}, {sV0}, 1")
            a(f"s_xor_b32 {sV1}, {sV0}, 1")
            VARS = [(sV0, PPL, PINS, PSEC, ''), (sV1, ppl2, pins2, psec2, 'b')]
        Lloop = 'c_loop'
        a.label(Lloop)
        start = len(a.lines)
        for p in range(NPOS):
            a.comment(f"---- slot {p}")
            j, blk = p // NBLK, p % NBLK
            a("s_waitcnt lgkmcnt(0)")
            if p == PWAIT + 1:
                self.read_counts_use(vC, sCntN, sFail, st, st2)
                if INEP:
                    a(f"v_readfirstlane_b32 {st}, {tt[5]}")
                    a(f"s_or_b32 {sFail}, {sFail}, {st}")
            rw = rows[p % NR]
            Lsk1 = None
            if opt(p):
                Lsk1 = a.newlabel('sk1')
                a(f"s_cmp_gt_u32 {sCnt[j]}, {32 * blk}")
                a(f"s_cbranch_scc0 {Lsk1}")
            self.vm_wait(f"G{p}")
            a(f"v_mfma_f32_16x16x32_bf16 {D1[0]}, {rw}, {Wa}, 0")
            a(f"v_mfma_f32_16x16x32_bf16 {D1[1]}, {rw}, {Wb}, 0")
            if Lsk1: a.label(Lsk1)
            if p == PWAIT:
                Lno = a.newlabel('nowait'); Lgo = a.newlabel('gowait')
                a(f"s_cmp_eq_u32 {sIt}, 0")
                a(f"s_cbranch_scc0 {Lno}")
                self.lds_spin(CB_CNT, 8, vC, vZero, st)
                self.read_counts_issue(vC, vCntA, CC + 4)
                if INEP: a(f"ds_read_b32 {tt[5]}, {vZero} offset:{FAIL}")
                a(f"s_branch {Lgo}")
                a.label(Lno)
                a(f"v_mov_b32 {vC}, 0")
                if INEP: a(f"v_mov_b32 {tt[5]}, 0")
                a.label(Lgo)
            tgt = p + DG
            tq = tgt % NPOS
            cn = sCnt[tq // NBLK] if tgt < NPOS else sCntN[tq // NBLK]
            Lg = None
            if opt(tq):
                Lg = a.newlabel('skg')
                a(f"s_cmp_gt_u32 {cn}, {32 * (tq % NBLK)}")
                a(f"s_cbranch_scc0 {Lg}")
            self.g_stage(vIdx, vOff, sNot31, vHalf, cn, vTau[tq % NBLK], rows[tgt % NR], sM)
            self.vm_issue(f"G{tq}", optional=Lg is not None)
            if Lg: a.label(Lg)
            nx = p + 1
            nq = nx % NPOS
            Lsk2 = None
            if opt(nq):
                cn2 = sCnt[nq // NBLK] if nx < NPOS else sCntN[nq // NBLK]
                Lsk2 = a.newlabel('sk2')
                a(f"s_cmp_gt_u32 {cn2}, {32 * (nq % NBLK)}")
                a(f"s_cbranch_scc0 {Lsk2}")
            self.s_stage(*sst, Bq[nx & 1], vZero)
            if Lsk2: a.label(Lsk2)
            t2_ = tgt + 1
            base = vIdxC if t2_ < NPOS else vIdxN
            a(f"ds_read_b32 {vIdx}, {base} offset:{off(t2_ % NPOS)}")
            s2_ = p + 2
            base = vTupC if s2_ < NPOS else vTupN
            a(f"ds_read_b64 {vT}, {base} offset:{off(s2_ % NPOS)}")
            Lsk3 = None
            if opt(p):
                Lsk3 = a.newlabel('sk3')
                a(f"s_cmp_gt_u32 {sCnt[j]}, {32 * blk}")
                a(f"s_cbranch_scc0 {Lsk3}")
            a(f"v_cvt_pk_bf16_f32 {rw[0]}, {D1[0][0]}, {D1[0][1]}")
            a(f"v_cvt_pk_bf16_f32 {rw[1]}, {D1[0][2]}, {D1[0][3]}")
            a(f"v_cvt_pk_bf16_f32 {rw[2]}, {D1[1][0]}, {D1[1][1]}")
            a(f"v_cvt_pk_bf16_f32 {rw[3]}, {D1[1][2]}, {D1[1][3]}")
            Bp = Bq[p & 1]
            a(f"v_mfma_f32_16x16x32_bf16 {acc[j][0]}, {rw}, {Bp[0]}, {acc[j][0]}")
            a(f"v_mfma_f32_16x16x32_bf16 {acc[j][1]}, {rw}, {Bp[1]}, {acc[j][1]}")
            if Lsk3: a.label(Lsk3)
            if p in L1S or p == L2S:
                Lsk = a.newlabel('nost')
                a(f"s_cmp_eq_u32 {sIt}, 0")
                a(f"s_cbranch_scc0 {Lsk}")
                stores_at(p)
                a.label(Lsk)
            for (cnd, vPPL, vPINS, vPSEC, sfx) in VARS:
                if p in vPPL:
                    Lsk = a.newlabel('nost')
                    a(f"s_cmp_eq_u32 {cnd}, 0")
                    a(f"s_cbranch_scc0 {Lsk}")
                    k = vPPL.index(p)
                    load_line(X[k], 1, k, f'P{k}{sfx}', optional=True)
                    a.label(Lsk)
            if o['pf'] and p in o['pfat']:
                Lsk = a.newlabel('nopf')
                a(f"s_cmp_eq_u32 {sIt}, 0")
                a(f"s_cbranch_scc0 {Lsk}")
                for w in o['pfat']:
                    if w == p: self.pf1(inloop=True)
                a.label(Lsk)
            if isinstance(o['rbfat'], int) or isinstance(o['mat'], int):
                RB = o['rbfat'] if isinstance(o['rbfat'], int) else -100
                MA = o['mat'] if isinstance(o['mat'], int) else -100
                if p == MA or RB <= p < RB + 6:
                    Lsk = a.newlabel('norb')
                    a(f"s_cmp_eq_u32 {sIt}, 0")
                    a(f"s_cbranch_scc0 {Lsk}")
                    if p == MA:
                        for jj in range(5):
                            a(f"buffer_load_dwordx2 {Mr[jj]}, {vMoff}, {sM}, 0 offen offset:{jj*512}")
                            self.vm_issue(f'mr{jj}', optional=True)
                    if p == RB: gap_epw()
                    if RB < p < RB + 6: gap_rbf([p - RB - 1], self.c3)
                    a.label(Lsk)
            for (cnd, vPPL, vPINS, vPSEC, sfx) in VARS:
              if p in vPINS:
                k = vPINS.index(p)
                Lsk = a.newlabel('noins')
                a(f"s_cmp_eq_u32 {cnd}, 0")
                a(f"s_cbranch_scc0 {Lsk}")
                self.vm_wait(f"P{k}{sfx if vPPL else ''}", linear=True)
                self.checked(X[k], 1, k, f'p{k}{sfx}')
                self.insert(X[k], 1, k=k, sfx=sfx)
                if o['sat'] != 'pre':
                    L = a.newlabel('sl')
                    a(f"s_cmp_eq_u64 {sMore[k]}, 0")
                    a(f"s_cbranch_scc1 {L}")
                    a(f"s_add_u32 {st}, {sPoff}, {(2 * 256) << 15}")
                    a(f"s_mov_b64 exec, {sMore[k]}")
                    a(f"buffer_load_dwordx4 {X[k]}, {vLine}, {sWS}, {st} offen offset:{k*1024} {tf}")
                    a(f"s_mov_b64 exec, -1")
                    a.label(L)
                    self.vm_issue(f"S{k}{sfx}", optional=True)
                a.label(Lsk)
              if p == vPSEC:
                Lna = a.newlabel('noarr')
                a(f"s_cmp_eq_u32 {cnd}, 0")
                a(f"s_cbranch_scc0 {Lna}")
                for k in range(4):
                    Ln_ = a.newlabel('sn')
                    a(f"s_cmp_eq_u64 {sMore[k]}, 0")
                    a(f"s_cbranch_scc1 {Ln_}")
                    self.vm_wait(f"S{k}{sfx}", linear=True)
                    a(f"s_mov_b64 exec, {sMore[k]}")
                    XS = X0[k] if o['sat'] == 'pre' else X[k]
                    self.checked(XS, 2, k, f's{k}{sfx}', sub=sMore[k])
                    self.insert(XS, 2, sub=sMore[k])
                    a.label(Ln_)
                self.publish()
                a("s_waitcnt lgkmcnt(0)")
                self.lds_arrive(CB_CNT, vZero, vOne)
                a.label(Lna)
            if INEP:
                e_ = o.get('inepe', 1)
                Aop = [X[0][0:2], X[0][2:4], X[1][0:2], X[1][2:4]]
                what = {1: 'aop', 6 + e_: 0, 12 + e_: 1, 18 + e_: 2, 24 + e_: 3, o.get('inep4', 27): 'pre4'}.get(p)
                if what is not None:
                    Lsk = a.newlabel('noep')
                    a(f"s_cmp_eq_u32 {sIt}, 0")
                    a(f"s_cbranch_scc1 {Lsk}")
                    if what == 'aop':
                        a(f"v_lshlrev_b32 {tt[2]}, 3, {vLane}")
                        for x in range(4):
                            a(f"ds_read_b64 {Aop[x]}, {tt[2]} offset:{EPW + x*512}")
                    elif what == 'pre4':
                        a(f"v_and_b32 {tt[0]}, 15, {vLane}")
                        a(f"s_mul_i32 {st}, {sW}, 80")
                        a(f"v_add_u32 {tt[0]}, {st}, {tt[0]}")
                        a(f"v_add_u32 {tt[0]}, 64, {tt[0]}")
                        a(f"v_cmp_gt_u32 vcc, 625, {tt[0]}")
                        a(f"v_cndmask_b32 {tt[1]}, {OOB}, {vMoff}, vcc")
                        self.ep_a(4, Aop, X[2], X[3], self.c3, eM, rbfB, Mr)
                    else:
                        self.ep_a(what, Aop, X[2], X[3], self.c3, eM, rbfB, Mr)
                        self.ep_b(what, Aop, X[2], X[3], self.c3, eM, eU, eA, acc, Mr)
                    a.label(Lsk)
            if self.prof and p in (1, 5, 9, 14, 19, 24, 29):
                slot = (1, 5, 9, 14, 19, 24, 29).index(p)
                a(f"s_lshl_b32 {st}, {sIt}, 3")
                a(f"s_add_u32 {st}, {st}, {13 + slot}")
                self.stamp_dyn(st)
        a(f"v_mov_b32 {vIdxC}, {vIdxN}")
        a(f"v_mov_b32 {vTupC}, {vTupN}")
        for jj in range(5):
            a(f"s_mov_b32 {sCnt[jj]}, {sCntN[jj]}")
        if o.get('stag'):
            a(f"s_mov_b32 {sV0}, 1")
            a(f"s_mov_b32 {sV1}, 1")
        a(f"s_add_u32 {sIt}, {sIt}, 1")
        a(f"s_cmp_le_u32 {sIt}, 1")
        a(f"s_cbranch_scc1 {Lloop}")
        end = len(a.lines)
        self.resolve_vm(start, end)
        self.stamp(40)
        Aop = [X[0][0:2], X[0][2:4], X[1][0:2], X[1][2:4]]
        fbargs = (acc, rows, X, D1, Bq, Wa, Wb, vLane, vZero, vOne, vHalf, vTau, sE0, sW,
                  sOI, sIN, sAN, sM, st, st2, sMore, pDBG, sIt, sPoff, sPoll,
                  vOff, vIdx, vAddr, vC0, vT, sv)
        def full_epilogue():
            a(f"v_lshlrev_b32 {vIdx}, 3, {vLane}")
            for x in range(4):
                a(f"ds_read_b64 {Aop[x]}, {vIdx} offset:{EPW + x*512}")
            a("s_waitcnt vmcnt(0) lgkmcnt(0)" if INEP else "s_waitcnt lgkmcnt(0)")
            self.epilogue(acc, Mr, D1, Bq, rbfB, Aop, tt, vLane, vMoff, sW, sOUT, st, rows, X)
        if INEP:
            a(f"s_cmp_lg_u32 {sFail}, 0")
            a(f"s_cbranch_scc1 c_fallback")
            of = o.get('outflags', '')
            for j in range(4):
                a(f"buffer_store_dwordx2 {Mr[j]}, {vMoff}, {sOUT}, 0 offen offset:{j*512} {of}")
            self.ep_b(4, Aop, X[2], X[3], self.c3, eM, eU, eA, acc, Mr)
            a(f"buffer_store_dwordx2 {Mr[4]}, {tt[1]}, {sOUT}, 0 offen offset:{4*512} {of}")
            a.label("c_done")
            def fb_tail():
                a.label("c_fb_back")
                for jj in range(5):
                    a(f"buffer_load_dwordx2 {Mr[jj]}, {vMoff}, {sM}, 0 offen offset:{jj*512}")
                full_epilogue()
                a("s_branch c_done")
            self.late.append((self._fallback, fbargs))
            self.late.append((fb_tail, ()))
        else:
            a("s_waitcnt vmcnt(0) lgkmcnt(0)")
            a(f"ds_read_b32 {tt[0]}, {vZero} offset:{FAIL}")
            a("s_waitcnt lgkmcnt(0)")
            a(f"v_readfirstlane_b32 {st}, {tt[0]}")
            a(f"s_or_b32 {sFail}, {sFail}, {st}")
            a(f"s_cmp_lg_u32 {sFail}, 0")
            a(f"s_cbranch_scc1 c_fallback")
            a.label("c_fb_back")
            self.late.append((self._fallback, fbargs))
            full_epilogue()
        self.stamp(41)
        Lgd = a.newlabel('gd'); Lgx = a.newlabel('gdx')
        a(f"s_mov_b32 {sPoll}, 0")
        a.label(Lgd)
        a("s_memrealtime s[14:15]")
        a("s_waitcnt lgkmcnt(0)")
        a(f"s_sub_u32 {st}, s14, {sG0}")
        a(f"s_cmp_ge_u32 {st}, {GUARD}")
        a(f"s_cbranch_scc1 {Lgx}")
        a(f"s_add_u32 {sPoll}, {sPoll}, 1")
        a(f"s_cmp_lt_u32 {sPoll}, 100000")
        a("s_sleep 4")
        a(f"s_cbranch_scc1 {Lgd}")
        a.label(Lgx)
        self.prof_store(sW)
        self.dbg_store(sW, pDBG)
        a("s_endpgm")

    def dbg_store(self, sW, pDBG):
        if not self.o.get('dbgprof'): return
        a = self.a
        L = a.newlabel('dbgx')
        a(f"s_cmp_lg_u32 {sW}, 0")
        a(f"s_cbranch_scc1 {L}")
        a("s_mov_b64 exec, 1")
        a("v_mov_b32 v2, 0")
        a(f"v_readlane_b32 s5, {self.vProf}, 50")
        spec = [(0, 50, 'min'), (1, 50, 'max'), (2, 2, 'max'), (3, 4, 'max'), (5, 9, 'max'), (6, 12, 'max'), (7, 40, 'max'), (8, 41, 'max'),
                (9, 2, 'sum'), (10, 4, 'sum'), (11, 9, 'sum'), (12, 12, 'sum'), (13, 19, 'sum'), (14, 40, 'sum'), (15, 41, 'sum')]
        for slot, ix, kind in spec:
            a(f"v_readlane_b32 s4, {self.vProf}, {ix}")
            if kind == 'min': a("s_not_b32 s4, s4")
            if kind == 'sum': a("s_sub_u32 s4, s4, s5")
            a("v_mov_b32 v1, s4")
            op = 'global_atomic_add' if kind == 'sum' else 'global_atomic_umax'
            a(f"{op} v2, v1, {pDBG} offset:{slot * 4}")
        a("s_waitcnt vmcnt(0)")
        a.label(L)

    def _p_rare(self, Hd, aW, aB, tp, vRb, vSt, vTag, sM24, sSrc, so, s73, sWS, L):
        a = self.a
        a.label("p_rare")
        for it in range(4):
            Ls = a.newlabel('pr')
            a(f"v_cmp_le_u32 vcc, {s73}, {Hd[it]}")
            a(f"s_cbranch_vccz {Ls}")
            a(f"s_mov_b64 exec, vcc")
            a("s_waitcnt vmcnt(0)")
            a(f"ds_read2_b32 {L[0:2]}, {aW[it]} offset0:{3 * 24} offset1:{3 * 24 + 1}")
            a(f"ds_read_b32 {L[2]}, {aW[it]} offset:{3 * 96 + 8}")
            a(f"ds_read2_b32 {tp}, {aB[it]} offset0:{3 * 6} offset1:{3 * 6 + 1}")
            a("s_waitcnt lgkmcnt(0)")
            a(f"v_alignbyte_b32 {L[3]}, {tp[1]}, {tp[0]}, {vRb}")
            a(f"v_bfi_b32 {L[3]}, {sM24}, {L[3]}, {vTag}")
            a(f"s_add_u32 {so}, {sSrc}, {(3 * 256 + it * 8) << 15}")
            a(f"buffer_store_dwordx4 {L}, {vSt}, {sWS}, {so} offen {self.o['stflags']}")
            a(f"s_mov_b64 exec, -1")
            a.label(Ls)
        a("s_branch p_rare_back")

    def publish(self):
        a = self.a; c = self.c
        L = a.newlabel('pub')
        a(f"s_cmp_eq_u32 {c['sFail']}, 0")
        a(f"s_cbranch_scc1 {L}")
        a(f"ds_write_b32 {c['vZero']}, {c['vOne']} offset:{FAIL}")
        a.label(L)

    def g_stage(self, idx, vOff, sNot31, vHalf, cnt, tau, dst, sM):
        a = self.a
        a(f"v_cmp_gt_u32 vcc, {cnt}, {tau}")
        a(f"v_lshrrev_b32 {vOff}, 9, {idx}")
        a(f"v_and_or_b32 {vOff}, {vOff}, {sNot31}, {vHalf}")
        if self.o.get('nog') == 1: a(f"v_mov_b32 {vOff}, {OOB}")
        elif self.o.get('nog') == 2: a(f"v_cndmask_b32 {vOff}, {OOB}, {vHalf}, vcc")
        else: a(f"v_cndmask_b32 {vOff}, {OOB}, {vOff}, vcc")
        a(f"buffer_load_dwordx4 {dst}, {vOff}, {sM}, 0 offen")

    def s_stage(self, vT, vAddr, vC0, vC1, sF0, vK, sK1, vK2, sHiL, vBrd, B, vZero):
        a = self.a
        a(f"v_and_b32 {vC0}, 15, {vT[0]}")
        a(f"v_lshl_or_b32 {vC0}, {vT[1]}, 4, {vC0}")
        a(f"v_cvt_f32_u32 {vC0}, {vC0}")
        a(f"v_and_or_b32 {vAddr}, {vT[0]}, {sF0}, {vK}")
        a(f"v_fma_f32 {vC0}, {vC0}, {sK1}, {vK2}")
        a(f"v_fma_f32 {vC1}, {vC0}, {vC0}, -0.5")
        a(f"v_cndmask_b32 {vC0}, {vC0}, {vC1}, {sHiL}")
        a(f"v_cvt_pk_bf16_f32 {vC0}, {vC0}, {vC0}")
        a(f"ds_write_b16 {vAddr}, {vC0}")
        a(f"ds_read_b128 {B[0]}, {vBrd}")
        a(f"ds_read_b128 {B[1]}, {vBrd} offset:1024")
        a(f"ds_write_b16 {vAddr}, {vZero}")

    def read_counts_issue(self, vC, vCntA, off):
        self.a(f"ds_read_b32 {vC}, {vCntA} offset:{off}")

    def read_counts_use(self, vC, dst, sFail, st, st2):
        a = self.a
        for jj in range(5):
            a(f"v_readlane_b32 {dst[jj]}, {vC}, {jj}")
        a(f"s_max_u32 {st}, {dst[0]}, {dst[1]}")
        a(f"s_max_u32 {st2}, {dst[2]}, {dst[3]}")
        a(f"s_max_u32 {st}, {st}, {dst[4]}")
        a(f"s_max_u32 {st}, {st}, {st2}")
        a(f"s_cmp_gt_u32 {st}, {CAP}")
        a(f"s_cselect_b32 {st}, 1, 0")
        a(f"s_or_b32 {sFail}, {sFail}, {st}")
        for jj in range(5):
            a(f"s_min_u32 {dst[jj]}, {dst[jj]}, {CAP}")

    def rbf_operand(self, d, cen, dst, tt, sQ):
        a = self.a
        t = [tt[0], tt[1], tt[2], tt[3]]; u = tt[4]; dv = tt[5]
        a(f"v_lshlrev_b32 {dv}, 16, {d}")
        for i in range(4): a(f"v_sub_f32 {t[i]}, {dv}, {cen[i]}")
        def rnd():
            for h in range(2):
                a(f"v_cvt_pk_bf16_f32 {u}, {t[2*h]}, {t[2*h+1]}")
                a(f"v_lshlrev_b32 {t[2*h]}, 16, {u}")
                a(f"v_and_b32 {t[2*h+1]}, 0xffff0000, {u}")
        rnd()
        for i in range(4): a(f"v_mul_f32 {t[i]}, {t[i]}, {t[i]}")
        rnd()
        for i in range(4): a(f"v_mul_f32 {t[i]}, 0xc1200000, {t[i]}")
        rnd()
        for i in range(4): a(f"v_mul_f32 {t[i]}, 0x3fb8aa3b, {t[i]}")
        for i in range(4): a(f"v_exp_f32 {t[i]}, {t[i]}")
        a(f"v_cvt_pk_bf16_f32 {dst[0]}, {t[0]}, {t[1]}")
        a(f"v_cvt_pk_bf16_f32 {dst[1]}, {t[2]}, {t[3]}")
        a(f"v_cndmask_b32 {dst[0]}, 0, {dst[0]}, {sQ}")
        a(f"v_cndmask_b32 {dst[1]}, 0, {dst[1]}, {sQ}")

    def tagcheck(self, x):
        a = self.a; c = self.c; tt = c['tt']
        u = tt[10]; w = tt[11]
        a(f"v_perm_b32 {u}, {x[3]}, {x[3]}, {c['Sel']}")
        a(f"v_or_b32_dpp {u}, {u}, {u} quad_perm:[1,0,3,2] row_mask:0xf bank_mask:0xf")
        a(f"v_or_b32_dpp {u}, {u}, {u} quad_perm:[2,3,0,1] row_mask:0xf bank_mask:0xf")
        a(f"v_lshlrev_b32 {w}, 8, {u}")
        a(f"v_xad_u32 {u}, {u}, {w}, {c['NegT']}")
        a(f"v_cmp_le_u32 vcc, 8, {u}")

    def checked(self, x, l, k, name, sub=None):
        a = self.a
        self.tagcheck(x)
        a(f"s_cbranch_vccnz c_rp_{name}")
        a.label(f"c_ok_{name}")
        self.late.append((self._repoll, (x, l, k, name, sub)))

    def _repoll(self, x, l, k, name, sub):
        a = self.a; c = self.c; tt = c['tt']
        ex = sub if sub is not None else '-1'
        a.label(f"c_rp_{name}")
        a(f"s_mov_b32 {c['sPoll']}, 0")
        L = a.newlabel('rpl'); Lto = a.newlabel('rpt')
        a(f"s_cmp_lg_u32 {c['sFail']}, 0")
        a(f"s_cbranch_scc1 {Lto}")
        a.label(L)
        a(f"s_sleep {self.o['psleep']}")
        a(f"s_mov_b64 exec, vcc")
        a(f"s_add_u32 {c['st']}, {c['sPoff']}, {(l * 256) << 15}")
        a(f"buffer_load_dwordx4 {x}, {c['vLine']}, {c['sWS']}, {c['st']} offen offset:{k*1024} {self.o['tupflags']}")
        a("s_waitcnt vmcnt(0)")
        self.tagcheck(x)
        a(f"s_mov_b64 exec, {ex}")
        a(f"s_cbranch_vccz c_ok_{name}")
        a(f"s_add_u32 {c['sPoll']}, {c['sPoll']}, 1")
        a(f"s_cmp_lt_u32 {c['sPoll']}, {self.o['poll_max']}")
        a(f"s_cbranch_scc1 {L}")
        a.label(Lto)
        a(f"s_mov_b32 {c['sFail']}, 1")
        a(f"v_mov_b32 {tt[0]}, -1")
        for h in range(3):
            a(f"v_cndmask_b32 {x[h]}, {x[h]}, {tt[0]}, vcc")
        a(f"s_branch c_ok_{name}")

    def insert(self, x, l, k=None, sub=None, sfx=''):
        a = self.a; c = self.c; tt = c['tt']; sv = c['sv']
        g = tt[0:3]; rk = tt[3:6]; cs = tt[6:9]
        for h in range(3): a(f"v_cmp_gt_u32 {sv[h]}, {c['Lim']}, {x[h]}")
        for h in range(3): a(f"v_bfe_u32 {g[h]}, {x[h]}, 8, 6")
        if l == 0:
            for h in range(3):
                a(f"v_cmp_le_u32 vcc, {c['LimA']}, {x[h]}")
                a(f"v_addc_co_u32 {g[h]}, vcc, {g[h]}, {g[h]}, vcc")
        else:
            for h in range(3): a(f"v_lshl_or_b32 {g[h]}, {g[h]}, 1, 1")
        if l == 1:
            a(f"s_andn2_b64 {sv[2]}, {sv[2]}, {c['sHdr']}")
            a(f"s_mov_b32 {c['st']}, {49 << 18}")
            a(f"s_mov_b32 {c['st2']}, {73 << 18}")
            a(f"v_cmp_le_u32 vcc, {c['st']}, {x[2]}")
            a(f"v_cmp_le_u32 {c['sX']}, {c['st2']}, {x[2]}")
        for h in range(3): a(f"v_lshl_add_u32 {rk[h]}, {g[h]}, 2, {CC}")
        for h in range(3):
            a(f"s_mov_b64 exec, {sv[h]}")
            a(f"ds_add_rtn_u32 {rk[h]}, {rk[h]}, {c['vOne']}")
        a(f"s_mov_b64 exec, -1")
        for h in range(3): a(f"v_bfe_u32 {cs[h]}, {x[3]}, {8 * h}, 8")
        for h in range(3): a(f"v_mad_u32_u24 {g[h]}, {g[h]}, {c['GS']}, {c['vCB']}")
        if l == 1:
            m = c['sMore'][k]
            a(f"s_and_b64 {m}, vcc, {c['sHdr']}")
            a(f"s_lshr_b64 {m}, {m}, 7")
            a(f"s_lshl_b64 {c['sSave']}, {m}, 8")
            a(f"s_sub_u32 {m[0]}, {c['sSave'][0]}, {m[0]}")
            a(f"s_subb_u32 {m[1]}, {c['sSave'][1]}, {m[1]}")
        a("s_waitcnt lgkmcnt(0)")
        for h in range(3): a(f"v_min_u32 {rk[h]}, {CAP}, {rk[h]}")
        for h in range(3): a(f"v_lshl_add_u32 {g[h]}, {rk[h]}, 3, {g[h]}")
        for h in range(3):
            a(f"s_mov_b64 exec, {sv[h]}")
            a(f"ds_write2_b32 {g[h]}, {x[h]}, {cs[h]} offset0:0 offset1:1")
        a(f"s_mov_b64 exec, -1")
        if l == 1:
            a(f"s_and_b64 {c['sX']}, {c['sX']}, {c['sHdr']}")
            a(f"s_cbranch_scc1 c_l3_{k}{sfx}")
            a.label(f"c_l3_back_{k}{sfx}")
            self.late.append((self._line3, (x, k, sfx)))

    def _line3(self, x, k, sfx=''):
        a = self.a; c = self.c; tt = c['tt']
        m = c['sX']; Y = self.c3
        a.label(f"c_l3_{k}{sfx}")
        a(f"s_mov_b32 {c['st']}, {97 << 18}")
        a(f"v_cmp_le_u32 vcc, {c['st']}, {x[2]}")
        a(f"s_and_b64 vcc, vcc, {c['sHdr']}")
        a(f"s_cselect_b32 {c['st']}, 1, 0")
        a(f"s_or_b32 {c['sFail']}, {c['sFail']}, {c['st']}")
        a(f"s_lshr_b64 {m}, {m}, 7")
        a(f"s_lshl_b64 {c['sSave']}, {m}, 8")
        a(f"s_sub_u32 {m[0]}, {c['sSave'][0]}, {m[0]}")
        a(f"s_subb_u32 {m[1]}, {c['sSave'][1]}, {m[1]}")
        a(f"s_cmp_lg_u32 {c['sFail']}, 0")
        a(f"s_cbranch_scc1 c_l3_back_{k}{sfx}")
        a(f"s_add_u32 {c['st']}, {c['sPoff']}, {(3 * 256) << 15}")
        a(f"s_mov_b64 exec, {m}")
        a(f"buffer_load_dwordx4 {Y}, {c['vLine']}, {c['sWS']}, {c['st']} offen offset:{k*1024} {self.o['tupflags']}")
        a("s_waitcnt vmcnt(0)")
        self.checked(Y, 3, k, f't{k}{sfx}', sub=m)
        self.insert(Y, 3, sub=m)
        a(f"s_branch c_l3_back_{k}{sfx}")

    def _fallback(self, acc, rows, X, D1, Bq, Wa, Wb, vLane, vZero, vOne, vHalf, vTau, sE0, sCw, sOI, sIN, sAN, sM,
                  st, st2, sMore, pDBG, sN, sCh, sLaneS, vOff, vIdx, vAddr, vC16, vT, sv):
        a = self.a
        a.label("c_fallback")
        if self.o.get('inep'): a("s_waitcnt vmcnt(0) lgkmcnt(0)")
        a(f"global_store_dword {vZero}, {vOne}, {pDBG} offset:16")
        for j in range(5):
            for l in range(2):
                for i in range(4): a(f"v_mov_b32 {acc[j][l][i]}, 0")
        sMask = sMore[0]; sLoc = Reg('s', 6); sTt = Reg('s', 7); sSel = sMore[2]; sSel2 = sMore[3]
        a(f"s_movk_i32 {sN}, 80")
        a(f"s_cmp_eq_u32 {sCw}, 7")
        a(f"s_cselect_b32 {sN}, 65, {sN}")
        a(f"s_mov_b32 {sCh}, 0")
        vL16 = vIdx; vI15 = vAddr
        a(f"v_lshlrev_b32 {vL16}, 4, {vLane}")
        a(f"v_and_b32 {vI15}, 15, {vLane}")
        for i in range(1, 4):
            a(f"v_mov_b32 {Bq[0][0][i]}, 0")
            a(f"v_mov_b32 {Bq[0][1][i]}, 0")
        a(f"v_cmp_eq_u32 {sSel}, 0, {vTau[0]}")
        Lc = "c_fb_chunk"
        a.label(Lc)
        a(f"buffer_load_dwordx4 {X[3]}, {vL16}, {sOI}, {sCh} offen")
        a("s_waitcnt vmcnt(0)")
        for cidx in range(4):
            Lh = f"c_fb_h{cidx}"; Ld = f"c_fb_d{cidx}"
            a(f"v_subrev_u32 {X[3][cidx]}, {sE0}, {X[3][cidx]}")
            a(f"v_cmp_gt_u32 {sMask}, {sN}, {X[3][cidx]}")
            a.label(Lh)
            a(f"s_cmp_eq_u64 {sMask}, 0")
            a(f"s_cbranch_scc1 {Ld}")
            a(f"s_ff1_i32_b64 {sLaneS}, {sMask}")
            a(f"s_bitset0_b64 {sMask}, {sLaneS}")
            a(f"s_nop 3")
            a(f"v_readlane_b32 {sLoc}, {X[3][cidx]}, {sLaneS}")
            a(f"s_lshl_b32 {sTt}, {sLaneS}, 4")
            a(f"s_add_u32 {sTt}, {sTt}, {sCh}")
            a(f"s_add_u32 {sTt}, {sTt}, {cidx*4}")
            a(f"v_mov_b32 {vOff}, {sTt}")
            a(f"v_lshrrev_b32 {vC16}, 1, {vOff}")
            a(f"buffer_load_dword {vT[0]}, {vOff}, {sIN}, 0 offen")
            a(f"buffer_load_ushort {vT[1]}, {vC16}, {sAN}, 0 offen")
            a("s_waitcnt vmcnt(0)")
            a(f"v_lshl_or_b32 {vOff}, {vT[0]}, 5, {vHalf}")
            a(f"v_cndmask_b32 {vOff}, {OOB}, {vOff}, {sSel}")
            a(f"buffer_load_dwordx4 {rows[0]}, {vOff}, {sM}, 0 offen")
            a(f"v_lshlrev_b32 {vT[1]}, 16, {vT[1]}")
            a(f"v_mul_f32 {vT[1]}, 0x{INV2PI:x}, {vT[1]}")
            a(f"v_fract_f32 {vT[1]}, {vT[1]}")
            a(f"v_cos_f32 {vT[1]}, {vT[1]}")
            a(f"s_and_b32 {st}, {sLoc}, 15")
            a(f"v_cmp_eq_u32 {sSel2}, {st}, {vLane}")
            a(f"v_fma_f32 {vT[0]}, {vT[1]}, {vT[1]}, -0.5")
            a(f"v_cvt_pk_bf16_f32 {vT[0]}, {vT[1]}, {vT[0]}")
            a(f"v_and_b32 {vT[1]}, 0xffff, {vT[0]}")
            a(f"v_lshrrev_b32 {vT[0]}, 16, {vT[0]}")
            a(f"v_cndmask_b32 {Bq[0][0][0]}, 0, {vT[1]}, {sSel2}")
            a(f"v_cndmask_b32 {Bq[0][1][0]}, 0, {vT[0]}, {sSel2}")
            a("s_waitcnt vmcnt(0)")
            rw = rows[0]
            a(f"v_mfma_f32_16x16x32_bf16 {D1[0]}, {rw}, {Wa}, 0")
            a(f"v_mfma_f32_16x16x32_bf16 {D1[1]}, {rw}, {Wb}, 0")
            a(f"v_cvt_pk_bf16_f32 {rw[0]}, {D1[0][0]}, {D1[0][1]}")
            a(f"v_cvt_pk_bf16_f32 {rw[1]}, {D1[0][2]}, {D1[0][3]}")
            a(f"v_cvt_pk_bf16_f32 {rw[2]}, {D1[1][0]}, {D1[1][1]}")
            a(f"v_cvt_pk_bf16_f32 {rw[3]}, {D1[1][2]}, {D1[1][3]}")
            a(f"s_lshr_b32 {st}, {sLoc}, 4")
            for j in range(5):
                Lj = a.newlabel('fbj')
                a(f"s_cmp_lg_u32 {st}, {j}")
                a(f"s_cbranch_scc1 {Lj}")
                a(f"v_mfma_f32_16x16x32_bf16 {acc[j][0]}, {rw}, {Bq[0][0]}, {acc[j][0]}")
                a(f"v_mfma_f32_16x16x32_bf16 {acc[j][1]}, {rw}, {Bq[0][1]}, {acc[j][1]}")
                a.label(Lj)
            a(f"s_branch {Lh}")
            a.label(Ld)
        a(f"s_add_u32 {sCh}, {sCh}, 1024")
        a(f"s_cmp_lt_u32 {sCh}, {T*4}")
        a(f"s_cbranch_scc1 {Lc}")
        a("s_branch c_fb_back")

    def ep_a(self, j, Aop, G0, G1, GT, mm, rbfB, Mr):
        a = self.a
        A0, A1, AG, AU = Aop
        a(f"v_mfma_f32_16x16x16_bf16 {G0}, {A0}, {rbfB[j]}, 0")
        a(f"v_mfma_f32_16x16x16_bf16 {G1}, {A1}, {rbfB[j]}, 0")
        a(f"v_mfma_f32_16x16x16_bf16 {GT}, {AG}, {rbfB[j]}, 0")
        a(f"v_lshlrev_b32 {mm[0]}, 16, {Mr[j][0]}")
        a(f"v_and_b32 {mm[1]}, 0xffff0000, {Mr[j][0]}")
        a(f"v_lshlrev_b32 {mm[2]}, 16, {Mr[j][1]}")
        a(f"v_and_b32 {mm[3]}, 0xffff0000, {Mr[j][1]}")

    def ep_b(self, j, Aop, G0, G1, GT, mm, U, ag, acc, Mr):
        a = self.a
        A0, A1, AG, AU = Aop
        for i in range(4):
            a(f"v_mul_f32 {G0[i]}, {G0[i]}, {acc[j][0][i]}")
        for i in range(4):
            a(f"v_fma_f32 {G0[i]}, {G1[i]}, {acc[j][1][i]}, {G0[i]}")
        a(f"v_cvt_pk_bf16_f32 {ag[0]}, {G0[0]}, {G0[1]}")
        a(f"v_cvt_pk_bf16_f32 {ag[1]}, {G0[2]}, {G0[3]}")
        a(f"v_mfma_f32_16x16x16_bf16 {U}, {AU}, {ag}, 0")
        for i in range(4):
            a(f"v_fma_f32 {mm[i]}, {U[i]}, {GT[i]}, {mm[i]}")
        a(f"v_cvt_pk_bf16_f32 {Mr[j][0]}, {mm[0]}, {mm[1]}")
        a(f"v_cvt_pk_bf16_f32 {Mr[j][1]}, {mm[2]}, {mm[3]}")

    def epilogue(self, acc, Mr, D1, Bq, rbfB, Aop, tt, vLane, vMoff, sCw, sOUT, st, rows, X):
        a = self.a
        A0, A1, AG, AU = Aop
        t0 = tt[0]; t1 = tt[1]
        a(f"v_and_b32 {t0}, 15, {vLane}")
        a(f"s_mul_i32 {st}, {sCw}, 80")
        a(f"v_add_u32 {t0}, {st}, {t0}")
        a(f"v_add_u32 {t0}, 64, {t0}")
        a(f"v_cmp_gt_u32 vcc, 625, {t0}")
        a(f"v_cndmask_b32 {t1}, {OOB}, {vMoff}, vcc")
        G0 = [rows[0], rows[1]]; G1 = [rows[2], rows[3]]; GT = [rows[4], rows[5]]; U = [D1[0], D1[1]]
        ag = [Bq[0][0][0:2], Bq[0][0][2:4]]
        mm = [Bq[0][1], Bq[1][0]]
        oo = [Bq[1][1][0:2], Bq[1][1][2:4]]

        def gm(j):
            s = j & 1
            a(f"v_mfma_f32_16x16x16_bf16 {G0[s]}, {A0}, {rbfB[j]}, 0")
            a(f"v_mfma_f32_16x16x16_bf16 {G1[s]}, {A1}, {rbfB[j]}, 0")
            a(f"v_mfma_f32_16x16x16_bf16 {GT[s]}, {AG}, {rbfB[j]}, 0")
        gm(0)
        for j in range(5):
            s = j & 1
            if j + 1 < 5: gm(j + 1)
            mrow = Mr[j]
            a(f"v_lshlrev_b32 {mm[s][0]}, 16, {mrow[0]}")
            a(f"v_and_b32 {mm[s][1]}, 0xffff0000, {mrow[0]}")
            a(f"v_lshlrev_b32 {mm[s][2]}, 16, {mrow[1]}")
            a(f"v_and_b32 {mm[s][3]}, 0xffff0000, {mrow[1]}")
            for i in range(4):
                a(f"v_mul_f32 {G0[s][i]}, {G0[s][i]}, {acc[j][0][i]}")
            for i in range(4):
                a(f"v_fma_f32 {G0[s][i]}, {G1[s][i]}, {acc[j][1][i]}, {G0[s][i]}")
            a(f"v_cvt_pk_bf16_f32 {ag[s][0]}, {G0[s][0]}, {G0[s][1]}")
            a(f"v_cvt_pk_bf16_f32 {ag[s][1]}, {G0[s][2]}, {G0[s][3]}")
            a(f"v_mfma_f32_16x16x16_bf16 {U[s]}, {AU}, {ag[s]}, 0")
            for i in range(4):
                a(f"v_fma_f32 {mm[s][i]}, {U[s][i]}, {GT[s][i]}, {mm[s][i]}")
            o = oo[s]
            a(f"v_cvt_pk_bf16_f32 {o[0]}, {mm[s][0]}, {mm[s][1]}")
            a(f"v_cvt_pk_bf16_f32 {o[1]}, {mm[s][2]}, {mm[s][3]}")
            off = t1 if j == 4 else vMoff
            a(f"buffer_store_dwordx2 {o}, {off}, {sOUT}, 0 offen offset:{j*512} {self.o.get('outflags', '')}")

    def kernel(self, label):
        a = self.a
        self.late = []
        self.Lend = label + '_end'
        self.sWave = Reg('s', 60); self.sT64 = Reg('s', 98, 2)
        self.vProf = Reg('v', 255)
        a.lines.append(f".globl {label}")
        a.lines.append(".p2align 8")
        a.lines.append(f".type {label},@function")
        a.label(label)
        a("s_cmp_ge_u32 s2, 256")
        a(f"s_cbranch_scc1 {self.Lend}")
        a("s_load_dwordx16 s[4:19], s[0:1], 0")
        a("s_load_dwordx8 s[20:27], s[0:1], 64")
        a("s_load_dwordx4 s[28:31], s[0:1], 96")
        a("s_memrealtime s[100:101]")
        if self.prof:
            a("s_memrealtime s[98:99]")
        a("v_lshrrev_b32 v1, 6, v0")
        a("v_and_b32 v0, 63, v0")
        a(f"v_readfirstlane_b32 {self.sWave}, v1")
        if self.prof:
            a("s_waitcnt lgkmcnt(0)")
            a("v_mov_b32 v255, 0")
            a("v_writelane_b32 v255, s98, 50")
        self.body(self.sWave)
        i = 0
        while i < len(self.late):
            fn, args = self.late[i]; fn(*args); i += 1
        a.label(self.Lend)
        a("s_endpgm")

    def build(self):
        hdr = open('cdna_kernels/' + NAME + '.s.ref').read().split('\n')
        head = [l for l in hdr if l.startswith(';') and '@launch' not in l]
        out = list(head)
        K = NAME + '_kernel'
        out.append(f"; @launch grid=(256,1,1) block=(512,1,1) lds={LDS_END}")
        out.append('.amdgcn_target "amdgcn-amd-amdhsa--gfx950"')
        out.append('.text')
        self.kernel(K)
        body = self.a.finalize()
        print(f"{K}: {len(self.a.lines)} lines, nops {self.a.nops}", file=sys.stderr)
        out.append(body)
        out.append('.section .rodata,"a"')
        out.append(f""".p2align 6
.amdhsa_kernel {K}
  .amdhsa_next_free_vgpr 256
  .amdhsa_next_free_sgpr 102
  .amdhsa_accum_offset 256
  .amdhsa_group_segment_fixed_size 0
  .amdhsa_kernarg_size 112
  .amdhsa_user_sgpr_count 2
  .amdhsa_user_sgpr_kernarg_segment_ptr 1
  .amdhsa_system_sgpr_workgroup_id_x 1
.end_amdhsa_kernel""")
        return '\n'.join(out) + '\n'


if __name__ == '__main__':
    import argparse, ast
    ap = argparse.ArgumentParser()
    ap.add_argument('--prof', action='store_true')
    ap.add_argument('--opt', action='append', default=[])
    ap.add_argument('-o', required=True)
    args = ap.parse_args()
    opts = {}
    for kv in args.opt:
        k, v = kv.split('=', 1)
        try: v = ast.literal_eval(v)
        except Exception: pass
        opts[k] = v
    g = Gen(args.prof or bool(opts.get('dbgprof')), opts)
    s = g.build()
    open(args.o, 'w').write(s)
```

```python
import sys, re, os
sys.path.insert(0, 'gen')
from asmlib import *

NAME = 'standalone__molecular_angular_gemnet__graph'

E = 160000; T = 2560000
MAGIC = 6871948
CB_CNT, FAIL, TKT = 8, 16, 24
CC = 64
WSC = 512
EPW = 1024
STG = 3072
PB = 19456
PBS = 492
HDR = 188
BYT = 388
DUMP = 96
CB = PB
GS = 1552
CAP = 192
LDS_END = PB + 256 * PBS
NLINE = 4
WSB = NLINE * 256 * 32768
LIM = 0x9C400000
MARK = 0xFFFFE8FF
LDS_END_MARK = CB + 88 * GS
INV = 0xFFFFFFFF
GUARD = 1300
OOB = '1.0'
PROF_OFF = 100 << 20
INV2PI = 0x3e22f983
NBLK = 6
NPOS = 30
import struct
def f32(x): return struct.unpack('<I', struct.pack('<f', x))[0]


class Gen:
    def __init__(self, prof=False, opts=None):
        self.prof = prof
        self.o = dict(poll_max=60000, ldflags='', tupflags='sc1', stflags='sc1', outflags='sc1', force_fail=False,
                      up=3, dg=4, nr=6, gate='ack0', pins=(8, 9, 10, 11), psec=16, pwait=22,
                      lima=80000, psleep=1, gmask=0xffffffe0, mat='gap', optblk=4,
                      q0n=3, q1n=6, l1s=('pre', 'post', 'post', 'post'), l2s='post', ppl=(2, 3, 4, 5),
                      pf=None, pfat=('post0',), pfmode='id', pfflags='', tlbw=0, rbfat='gap', gapat='pre', sat='loop')
        if opts: self.o.update(opts)
        self.a = Asm()

    def stamp(self, idx):
        if not self.prof: return
        a = self.a
        a(f"s_memrealtime {self.sT64}")
        a("s_waitcnt lgkmcnt(0)")
        a(f"v_writelane_b32 {self.vProf}, {self.sT64[0]}, {idx}")

    def stamp_dyn(self, sidx):
        if not self.prof: return
        a = self.a
        a(f"s_memrealtime {self.sT64}")
        a("s_waitcnt lgkmcnt(0)")
        a(f"s_mov_b32 m0, {sidx}")
        a(f"s_nop 3")
        a(f"v_writelane_b32 {self.vProf}, {self.sT64[0]}, m0")

    def prof_store(self, wave_sgpr):
        if not self.prof: return
        a = self.a
        a(f"s_mul_i32 {self.sT64[0]}, s2, 12")
        a(f"s_add_u32 {self.sT64[0]}, {self.sT64[0]}, {wave_sgpr}")
        a(f"s_lshl_b32 {self.sT64[0]}, {self.sT64[0]}, 8")
        a(f"s_add_u32 {self.sT64[0]}, {self.sT64[0]}, {PROF_OFF}")
        a(f"v_mbcnt_lo_u32_b32 v1, -1, 0")
        a(f"v_mbcnt_hi_u32_b32 v1, -1, v1")
        a(f"v_lshlrev_b32 v1, 2, v1")
        a(f"v_add_u32 v1, {self.sT64[0]}, v1")
        a(f"s_mov_b64 exec, -1")
        a(f"global_store_dword v1, {self.vProf}, s[30:31]")

    def lds_spin(self, off, target, vt, vzero, st):
        a = self.a
        L = a.newlabel('spin')
        Lx = a.newlabel('spinx')
        a.label(L)
        a(f"ds_read_b32 {vt}, {vzero} offset:{off}")
        a("s_waitcnt lgkmcnt(0)")
        a(f"v_readfirstlane_b32 {st}, {vt}")
        a(f"s_cmp_ge_u32 {st}, {target}")
        a(f"s_cbranch_scc1 {Lx}")
        a("s_sleep 1")
        a(f"s_branch {L}")
        a.label(Lx)

    def lds_arrive(self, off, vzero, vone):
        a = self.a
        a("s_mov_b64 exec, 1")
        a(f"ds_add_u32 {vzero}, {vone} offset:{off}")
        a("s_mov_b64 exec, -1")

    def srd(self, reg, src, n):
        a = self.a
        a(f"s_mov_b32 {reg[0]}, s{src}")
        a(f"s_mov_b32 {reg[1]}, s{src+1}")
        a(f"s_mov_b32 {reg[2]}, {n}")
        a(f"s_mov_b32 {reg[3]}, 0x00020000")

    def vm_issue(self, tag, optional=False):
        self.a.lines.append(f"; @ISSUE{'?' if optional else ''} {tag}")

    def vm_wait(self, tag, linear=False):
        self.a.lines.append(f"; @WAIT{'L' if linear else ''} {tag}")

    def resolve_vm(self, start, end):
        lines = self.a.lines
        n = end - start
        for i in range(len(lines)):
            l = lines[i]
            if l.startswith("; @WAITL "):
                tag = l.split()[2]
                cnt = 0; found = False
                for back in range(i - 1, -1, -1):
                    ll = lines[back]
                    if ll.startswith("; @ISSUE"):
                        if ll.split()[2] == tag:
                            found = True; break
                        if not ll.startswith("; @ISSUE?"): cnt += 1
                assert found, tag
                lines[i] = f"s_waitcnt vmcnt({min(cnt, 63)})"
            elif l.startswith("; @WAIT "):
                assert start <= i < end
                tag = l.split()[2]
                cnt = 0; found = False
                pos = i - start
                for back in range(1, n + 1):
                    ll = lines[start + (pos - back) % n]
                    if ll.startswith("; @ISSUE"):
                        if ll.split()[2] == tag:
                            found = True; break
                        if not ll.startswith("; @ISSUE?"): cnt += 1
                assert found, tag
                lines[i] = f"s_waitcnt vmcnt({min(cnt, 63)})"

    def body(self, sW):
        a = self.a
        o = self.o
        DG = o['dg']; NR = o['nr']
        assert NPOS % NR == 0 and DG <= NR - 1 and DG <= 8
        V = Alloc('v', 2, 255)
        S = Alloc('s', 62, 98)
        vLane = Reg('v', 0)
        sM = Reg('s', 32, 4); sIN = Reg('s', 36, 4); sOI = Reg('s', 40, 4); sDI = Reg('s', 44, 4)
        sAN = Reg('s', 48, 4); sOUT = Reg('s', 52, 4); sWS = Reg('s', 56, 4)
        pCEN = Reg('s', 14, 2); pWR = Reg('s', 18, 2); pWS = Reg('s', 20, 2); pWD = Reg('s', 22, 2)
        pWU = Reg('s', 24, 2); pDBG = Reg('s', 28, 2)
        vZero = V('zero'); vOne = V('one')
        acc = [[V(f'acc{j}{l}', 4) for l in range(2)] for j in range(5)]
        Wa = V('wa', 4); Wb = V('wb', 4)
        rbfB = [V(f'rbf{j}', 2) for j in range(5)]
        Mr = [V(f'mr{j}', 2) for j in range(5)]
        vMoff = V('moff'); vLine = V('line'); vSel = V('sel'); vCB = V('cb')
        wraw = V('wraw', 2); dd = [V(f'dd{j}') for j in range(5)]; cenr = V('cenr', 2); raw = V('raw', 4)
        Ln12 = [[V(f'ln{l}{i}', 4) for i in range(4)] for l in (1, 2)]
        vTag = V('tag'); vSt = V('stv'); vPf = V('pf'); vPfD = V('pfd')
        mk0 = V.mark()
        st = S('st'); st2 = S('st2'); so = S('so')
        sFail = Reg('s', 61); sPoll = S('poll'); sG0 = S('g0'); sE0 = S('e0')
        sNegT = S('negT'); sLim = S('lim'); sLimA = S('lima'); sGS = S('gs'); sHi = S('hi')
        sSrc = S('src'); sM24 = S('m24'); sPf = S('pf'); so2 = S('so2')
        sL2 = [Reg('s', 0, 2), Reg('s', 44, 2), Reg('s', 46, 2), S('l2d', 2)]
        smk0 = S.mark()
        Q = [dict(i=V(f'q{k}i', 4), o=V(f'q{k}o', 4), a=V(f'q{k}a', 2)) for k in range(5)]
        tb = V('tb', 4)
        tmp = [dict(mk=V(f'mk{s}', 4), sh=V(f'sh{s}', 4), old=V(f'old{s}', 4), by=V(f'by{s}', 4), inc=V(f'inc{s}', 4))
               for s in range(2)]
        vOffQ = V('offq'); vOffA = V('offa'); vPB = V('pb'); vC2048 = V('c2048'); vi = V('vi', 4); vt = V('vt'); vt2 = V('vt2')
        vRd = V('rd'); vRb = V('rb'); vRh = V('rh')
        Ln = [[V(f'ln0{i}', 4) for i in range(4)]] + Ln12
        Hd = [V(f'hd{i}') for i in range(4)]
        print('phase 1/2 vgprs', V.high, file=sys.stderr)
        sMagic = S('magic'); sNeg = S('neg'); s492 = S('c492'); sLimIn = S('limin'); sK18 = S('k18'); sCq = S('cq')
        sOffI = S('offi'); sOffA = S('offa'); sLast = S('last', 2)
        sm = [Reg('s', 4 + 2 * k, 2) for k in range(4)]
        sm4 = Reg('s', 12, 2)
        ld = o['ldflags']
        self.vmseq = []

        def load_part(k, part):
            q = Q[k]
            if part == 0:
                a(f"s_add_u32 {so}, {sOffI}, {k * 1024}")
                a(f"buffer_load_dwordx4 {q['o']}, {vOffQ}, {sOI}, {so} offen {ld}")
            elif part == 1:
                a(f"s_add_u32 {so}, {sOffI}, {k * 1024}")
                a(f"buffer_load_dwordx4 {q['i']}, {vOffQ}, {sIN}, {so} offen {ld}")
            else:
                a(f"s_add_u32 {so}, {sOffA}, {k * 512}")
                a(f"buffer_load_dwordx2 {q['a']}, {vOffA}, {sAN}, {so} offen {ld}")
            self.vmseq.append(f'Q{k}')

        def load_quad(k):
            if k == 4: a(f"s_mov_b64 exec, {sLast}")
            for part in range(3): load_part(k, part)
            if k == 4: a(f"s_mov_b64 exec, -1")

        def wait_for(tag):
            last = max(i for i, x in enumerate(self.vmseq) if x == tag)
            cnt = sum(1 for x in self.vmseq[last + 1:] if not x.endswith('?'))
            a(f"s_waitcnt vmcnt({min(cnt, 63)})")

        a(f"s_mul_i32 {st}, {sW}, 5120")
        a(f"v_lshlrev_b32 {vOffQ}, 4, {vLane}")
        a(f"v_add_u32 {vOffQ}, {st}, {vOffQ}")
        a(f"v_lshrrev_b32 {vOffA}, 1, {vOffQ}")
        a(f"s_mul_i32 {sOffI}, s2, 40000")
        a(f"s_mul_i32 {sOffA}, s2, 20000")
        a(f"s_cmp_eq_u32 {sW}, 7")
        a(f"s_cselect_b64 {sLast}, 15, -1")
        a(f"s_mul_i32 {sE0}, s2, 625")
        a(f"s_mul_i32 {st}, {sW}, 80")
        a(f"s_add_u32 {sE0}, {sE0}, {st}")
        a("s_waitcnt lgkmcnt(0)")
        self.stamp(51)
        self.srd(sOI, 8, T * 4); self.srd(sIN, 6, T * 4); self.srd(sAN, 12, T * 2)
        up = o['up']
        parts = [(k, part) for k in range(up) for part in range(3)]
        q0n = o['q0n']
        for k, part in parts[:q0n]: load_part(k, part)
        a(f"s_mov_b32 {sG0}, s100")
        if o.get('mark'):
            a(f"s_mov_b32 {st}, 0x{MARK:x}")
            for i in range(4): a(f"v_add_u32 {vi[i]}, {i}, {vLane}")
            for i in range(4): a(f"v_and_b32 {vi[i]}, 3, {vi[i]}")
            for i in range(4): a(f"v_lshl_or_b32 {vi[i]}, {vi[i]}, 8, {st}")
        else:
            for i in range(4): a(f"v_mov_b32 {vi[i]}, -1")
        a(f"s_mul_i32 {st}, {sW}, {32 * PBS}")
        a(f"s_add_u32 {st}, {st}, {PB}")
        a(f"v_lshlrev_b32 {vt}, 4, {vLane}")
        a(f"v_add_u32 {vt2}, {st}, {vt}")
        for i in range(15):
            a(f"ds_write_b128 {vt2}, {vi} offset:{i*1024}")
        a(f"s_mov_b64 exec, 0xffffff")
        a(f"ds_write_b128 {vt2}, {vi} offset:{15*1024}")
        a(f"s_mov_b32 exec_lo, -1")
        a(f"s_mov_b32 exec_hi, 0")
        a(f"s_movk_i32 {s492}, {PBS}")
        a(f"v_mov_b32 {vPB}, {st}")
        a(f"v_mad_u32_u24 {vt2}, {vLane}, {s492}, {vPB}")
        a(f"v_mov_b32 {vi[0]}, {1 << 18}")
        a(f"ds_write_b32 {vt2}, {vi[0]} offset:{HDR}")
        a(f"s_mov_b64 exec, -1")
        for i in range(4): a(f"v_mov_b32 {vi[i]}, 0")
        a(f"s_lshl_b32 {st}, {sW}, 11")
        a(f"s_add_u32 {st}, {st}, {STG}")
        a(f"v_add_u32 {vt2}, {st}, {vt}")
        a(f"ds_write_b128 {vt2}, {vi}")
        a(f"ds_write_b128 {vt2}, {vi} offset:1024")
        Lz = a.newlabel('z')
        a(f"s_cmp_lg_u32 {sW}, 0")
        a(f"s_cbranch_scc1 {Lz}")
        a(f"v_lshlrev_b32 {vt2}, 3, {vLane}")
        a(f"ds_write_b64 {vt2}, {vi[0:2]}")
        a.label(Lz)
        a(f"v_mov_b32 {vOne}, 1")
        a(f"v_mov_b32 {vPB}, {PB}")
        a(f"v_mov_b32 {vC2048}, 0x{f32(2048.0):x}")
        a(f"s_mov_b32 {sCq}, 0x{f32(2047.5):x}")
        a(f"s_mov_b32 {sMagic}, {MAGIC}")
        a(f"s_movk_i32 {sNeg}, -10000")
        a(f"s_mov_b32 {sLimIn}, {o['lima'] - 1}")
        a(f"s_mov_b32 {sK18}, {1 << 18}")
        a(f"s_mov_b32 {sHi}, 0xffff0000")
        a("s_waitcnt lgkmcnt(0)")
        a("s_barrier")
        self.stamp(1)
        q1n = max(q0n, o['q1n'])
        for k, part in parts[q0n:q1n]: load_part(k, part)
        self.srd(sM, 4, E * 32); self.srd(sDI, 10, E * 2); self.srd(sOUT, 26, E * 32); self.srd(sWS, 30, WSB)
        a(f"v_mov_b32 {vZero}, 0")
        a(f"v_mov_b32 {vCB}, {CB}")
        a(f"s_mov_b32 {sLim}, 0x{LIM:x}")
        a(f"s_mov_b32 {sLimA}, 0x{o['lima'] << 14:x}")
        a(f"s_movk_i32 {sGS}, {GS}")
        a(f"s_mov_b32 {sM24}, 0x00ffffff")
        a(f"s_lshl_b32 {sSrc}, s2, 7")
        a(f"s_mov_b32 {sFail}, {1 if o['force_fail'] else 0}")
        a("s_lshr_b64 s[100:101], s[100:101], 8")
        a(f"s_sub_u32 {sNegT}, 3, s100")
        a(f"s_lshl_b32 {st}, s100, 8")
        a(f"s_xor_b32 {st}, {st}, s100")
        a(f"s_lshl_b32 {st2}, {st}, 16")
        a(f"s_xor_b32 {st}, {st}, {st2}")
        a(f"v_and_b32 {vt}, 3, {vLane}")
        a(f"v_lshlrev_b32 {vt}, 3, {vt}")
        a(f"v_lshrrev_b32 {vTag}, {vt}, {st}")
        a(f"v_lshlrev_b32 {vTag}, 24, {vTag}")
        a(f"v_mov_b32 {vt2}, 15")
        a(f"v_lshlrev_b32 {vt2}, {vt}, {vt2}")
        a(f"v_xor_b32 {vSel}, 0x0c0c0c0c, {vt2}")
        a(f"v_lshrrev_b32 {vt}, 3, {vLane}")
        a(f"s_lshl_b32 {st}, {sW}, 5")
        a(f"v_add_u32 {vt}, {st}, {vt}")
        a(f"v_and_b32 {vt2}, 7, {vLane}")
        a(f"v_mad_u32_u24 {vRh}, {vt}, {s492}, {vPB}")
        a(f"v_mad_u32_u24 {vRd}, {vt2}, 12, {vRh}")
        a(f"v_mad_u32_u24 {vRb}, {vt2}, 3, {vRh}")
        a(f"v_lshlrev_b32 {vSt}, 15, {vt}")
        a(f"v_lshl_add_u32 {vSt}, {vt2}, 4, {vSt}")
        a(f"s_lshl_b32 {st}, {sW}, 12")
        a(f"v_lshlrev_b32 {vLine}, 4, {vLane}")
        a(f"v_add_u32 {vLine}, {st}, {vLine}")
        if o['tlbw']:
            a(f"s_lshl_b32 {st}, {sW}, 22")
            a(f"v_lshlrev_b32 {vt}, 20, {vLane}")
            a(f"v_add_u32 {vt}, {st}, {vt}")
            a(f"v_cmp_gt_u32 vcc, 4, {vLane}")
            a(f"v_cndmask_b32 {vt}, {OOB}, {vt}, vcc")
            a(f"buffer_load_dword {vPfD}, {vt}, {sWS}, 0 offen")
            self.vmseq.append('tlb')
        PF = o['pf']
        if PF:
            pfl = PF; pfi = len(o['pfat'])
            a(f"v_lshlrev_b32 {vPf}, 7, {vLane}")
            if pfl < 64:
                a(f"v_cmp_gt_u32 vcc, {pfl}, {vLane}")
                a(f"v_cndmask_b32 {vPf}, {OOB}, {vPf}, vcc")
            a(f"s_lshr_b32 {sPf}, s2, 3")
            if o['pfmode'] == 'xcc':
                Lt = a.newlabel('tk')
                a(f"s_cmp_lg_u32 {sW}, 0")
                a(f"s_cbranch_scc1 {Lt}")
                a(f"s_getreg_b32 {st}, hwreg(HW_REG_XCC_ID, 0, 3)")
                a(f"s_lshl_b32 {st}, {st}, 3")
                a(f"v_mov_b32 {vPfD}, {st}")
                a(f"s_mov_b64 exec, 1")
                a(f"global_atomic_add {vPfD}, {vPfD}, {vOne}, {pDBG} offset:128 sc0")
                a(f"s_mov_b64 exec, -1")
                a.label(Lt)
                self.vmseq.append('tk?')
        for j in range(5):
            for l in range(2):
                for i in range(4): a(f"v_mov_b32 {acc[j][l][i]}, 0")
        for k, part in parts[q1n:]: load_part(k, part)
        n_ = vt; q_ = vt2; t3 = tb[0]
        a(f"v_and_b32 {n_}, 15, {vLane}")
        a(f"v_lshrrev_b32 {q_}, 4, {vLane}")
        a(f"v_lshlrev_b32 {t3}, 3, {vLane}")
        a(f"global_load_dwordx2 {wraw}, {t3}, {pWD}")
        a(f"v_add_u32 {t3}, {sE0}, {n_}")
        a(f"v_lshlrev_b32 {vMoff}, 5, {t3}")
        a(f"v_lshl_add_u32 {vMoff}, {q_}, 3, {vMoff}")
        a(f"v_lshlrev_b32 {t3}, 1, {t3}")
        for j in range(5):
            a(f"buffer_load_ushort {dd[j]}, {t3}, {sDI}, 0 offen offset:{j*32}")
        a(f"v_lshlrev_b32 {t3}, 3, {q_}")
        a(f"v_and_b32 {t3}, 8, {t3}")
        a(f"global_load_dwordx2 {cenr}, {t3}, {pCEN}")
        Lw = [a.newlabel('ew') for _ in range(4)]; Lwx = a.newlabel('ewx')
        a(f"s_and_b32 {st2}, {sW}, 3")
        a(f"s_cmp_eq_u32 {st2}, 3")
        a(f"s_cbranch_scc1 {Lw[3]}")
        a(f"s_cmp_eq_u32 {st2}, 2")
        a(f"s_cbranch_scc1 {Lw[2]}")
        a(f"v_and_b32 {t3}, 1, {q_}")
        a(f"v_lshlrev_b32 {t3}, 8, {t3}")
        a(f"v_lshl_add_u32 {t3}, {n_}, 1, {t3}")
        a(f"s_lshl_b32 {st}, {st2}, 5")
        a(f"v_add_u32 {t3}, {st}, {t3}")
        for jj in range(4):
            a(f"global_load_ushort {raw[jj]}, {t3}, {pWS} offset:{jj*64}")
        a(f"s_branch {Lwx}")
        a.label(Lw[2])
        a(f"v_and_b32 {t3}, 1, {q_}")
        a(f"v_lshlrev_b32 {t3}, 7, {t3}")
        a(f"v_lshl_add_u32 {t3}, {n_}, 1, {t3}")
        for jj in range(4):
            a(f"global_load_ushort {raw[jj]}, {t3}, {pWR} offset:{jj*32}")
        a(f"s_branch {Lwx}")
        a.label(Lw[3])
        a(f"v_lshlrev_b32 {t3}, 7, {q_}")
        a(f"v_lshl_add_u32 {t3}, {n_}, 1, {t3}")
        for jj in range(4):
            a(f"global_load_ushort {raw[jj]}, {t3}, {pWU} offset:{jj*32}")
        a.label(Lwx)
        self.vmseq += ['sm'] * 11
        if o['mat'] == 'start':
            for jj in range(5):
                a(f"buffer_load_dwordx2 {Mr[jj]}, {vMoff}, {sM}, 0 offen offset:{jj*512}")
            self.vmseq += ['mr'] * 5
        self.stamp(53)
        def pre(k, s):
            q = Q[k]; w0 = q['i']; wb = q['o']; an = q['a']; t = tmp[s]
            mk, sh, old, by, inc = t['mk'], t['sh'], t['old'], t['by'], t['inc']
            if k == 4: a(f"s_mov_b64 exec, {sLast}")
            for j in range(4): a(f"v_mul_hi_u32_u24 {tb[j]}, {sMagic}, {wb[j]}")
            for j in range(4):
                if j & 1: a(f"v_and_b32 {by[j]}, {sHi}, {an[j >> 1]}")
                else: a(f"v_lshlrev_b32 {by[j]}, 16, {an[j >> 1]}")
            for j in range(4): a(f"v_sub_u32 {mk[j]}, {sLimIn}, {w0[j]}")
            for j in range(4): a(f"v_mul_f32 {by[j]}, 0x{INV2PI:x}, {by[j]}")
            for j in range(4): a(f"v_lshlrev_b32 {wb[j]}, 4, {wb[j]}")
            for j in range(4): a(f"v_ashrrev_i32 {mk[j]}, 31, {mk[j]}")
            for j in range(4): a(f"v_fract_f32 {by[j]}, {by[j]}")
            for j in range(4): a(f"v_mad_i32_i24 {wb[j]}, {tb[j]}, {sNeg}, {wb[j]}")
            for j in range(4): a(f"v_and_b32 {sh[j]}, 9, {mk[j]}")
            for j in range(4): a(f"v_cos_f32 {by[j]}, {by[j]}")
            for j in range(4): a(f"v_lshl_or_b32 {w0[j]}, {w0[j]}, 14, {wb[j]}")
            for j in range(4): a(f"v_lshl_or_b32 {inc[j]}, {vOne}, {sh[j]}, {sK18}")
            for j in range(4): a(f"v_mad_u32_u24 {wb[j]}, {tb[j]}, {s492}, {vPB}")
            if k >= 2: a("s_waitcnt lgkmcnt(8)")
            for j in range(4): a(f"ds_add_rtn_u32 {old[j]}, {wb[j]}, {inc[j]} offset:{HDR}")
            for j in range(4): a(f"v_fma_f32 {by[j]}, {by[j]}, {sCq}, {vC2048}")
            for j in range(4): a(f"v_cvt_u32_f32 {by[j]}, {by[j]}")
            for j in range(4): a(f"v_and_or_b32 {w0[j]}, {by[j]}, 15, {w0[j]}")
            for j in range(4): a(f"v_lshrrev_b32 {by[j]}, 4, {by[j]}")
            if k == 4: a(f"s_mov_b64 exec, -1")

        def post(k, s):
            q = Q[k]; w0 = q['i']; wb = q['o']; t = tmp[s]
            mk, sh, old, by, inc = t['mk'], t['sh'], t['old'], t['by'], t['inc']
            if k == 4: a(f"s_mov_b64 exec, {sLast}")
            for j in range(4): a(f"v_bfe_u32 {sh[j]}, {old[j]}, {sh[j]}, 9")
            for j in range(4): a(f"v_and_b32 {inc[j]}, 47, {mk[j]}")
            for j in range(4): a(f"v_lshrrev_b32 {old[j]}, 18, {old[j]}")
            for j in range(4): a(f"v_xad_u32 {sh[j]}, {sh[j]}, {mk[j]}, {inc[j]}")
            for j in range(4):
                a(f"v_cmp_le_u32 {sm[j]}, 48, {old[j]}")
            for j in range(4):
                a(f"v_cndmask_b32 {sh[j]}, {sh[j]}, {old[j]}, {sm[j]}")
            for j in range(4): a(f"v_min_u32 {sh[j]}, {DUMP}, {sh[j]}")
            for j in range(4): a(f"v_lshl_add_u32 {inc[j]}, {sh[j]}, 2, {wb[j]}")
            for j in range(4): a(f"v_add_u32 {sh[j]}, {sh[j]}, {wb[j]}")
            for j in range(4):
                a(f"ds_write_b32 {inc[j]}, {w0[j]}")
                a(f"ds_write_b8 {sh[j]}, {by[j]} offset:{BYT}")
            if k == 4: a(f"s_mov_b64 exec, -1")

        def pf_base():
            if o['pfmode'] == 'xcc':
                a(f"ds_read_b32 {vPfD}, {vZero} offset:{TKT}")
                a("s_waitcnt lgkmcnt(0)")
                a(f"v_readfirstlane_b32 {st}, {vPfD}")
                a(f"s_sub_u32 {st2}, {st}, 1")
                a(f"s_and_b32 {st2}, {st2}, 31")
                a(f"s_cmp_eq_u32 {st}, 0")
                a(f"s_cselect_b32 {sPf}, {sPf}, {st2}")
            a(f"s_mul_i32 {sPf}, {sPf}, {8 * pfl * pfi * 128}")
            a(f"s_mul_i32 {st}, {sW}, {pfl * pfi * 128}")
            a(f"s_add_u32 {sPf}, {sPf}, {st}")
            if o.get('pfoff'): a(f"s_add_u32 {sPf}, {sPf}, {o['pfoff']}")
            self.pf_based = True
        self.pfn = 0
        self.pf_based = False
        self.pf_base = pf_base
        def pf1(inloop=False):
            if not self.pf_based: pf_base()
            assert self.pfn < pfi
            a(f"buffer_load_dword {vPfD}, {vPf}, {sM}, {sPf} offen {o['pfflags']}")
            a(f"s_add_u32 {sPf}, {sPf}, {pfl * 128}")
            if not inloop: self.vmseq.append('pf')
            self.vm_issue(f'pf{self.pfn}', optional=inloop)
            self.pfn += 1
        self.pf1 = pf1
        def pf_at(where):
            if not PF: return
            for w in o['pfat']:
                if w == where: pf1()
        self.pf_at = pf_at
        def ticket_publish():
            Lt = a.newlabel('tkp')
            a(f"s_cmp_lg_u32 {sW}, 0")
            a(f"s_cbranch_scc1 {Lt}")
            last = max(i for i, x in enumerate(self.vmseq) if x == 'tk?')
            a(f"s_waitcnt vmcnt({min(sum(1 for x in self.vmseq[last + 1:]), 63)})")
            a(f"v_add_u32 {vPfD}, 1, {vPfD}")
            a(f"s_mov_b64 exec, 1")
            a(f"ds_write_b32 {vZero}, {vPfD} offset:{TKT}")
            a(f"s_mov_b64 exec, -1")
            a.label(Lt)
        nxt = up
        for k in range(5):
            wait_for(f'Q{k}')
            if k == 0: self.stamp(2)
            pre(k, k & 1)
            if nxt < 5:
                load_quad(nxt); nxt += 1
            if PF and o['pfmode'] == 'xcc' and k == o.get('tkat', 1): ticket_publish()
            pf_at(f'k{k}')
            if k > 0:
                a("s_waitcnt lgkmcnt(4)" if k == 1 else "s_waitcnt lgkmcnt(4)")
                post(k - 1, (k - 1) & 1)
        a("s_waitcnt lgkmcnt(0)")
        post(4, 0)
        self.stamp(3)
        a("s_waitcnt lgkmcnt(0)")
        a("s_barrier")
        self.stamp(4)

        stf = o['stflags']
        wait_for('sm')
        L1S = list(o['l1s']); L2S = o['l2s']
        aW = [tmp[0]['mk'][i] for i in range(4)]
        aB = [tmp[0]['sh'][i] for i in range(4)]
        TP = [[Reg('v', Q[l]['i'].i + 2 * it, 2) for it in range(4)] for l in range(3)]
        for l in range(3): assert Q[l]['o'].i == Q[l]['i'].i + 4
        a(f"v_and_b32 {aB[0]}, -4, {vRb}")
        a(f"v_add_u32 {aB[0]}, {BYT}, {aB[0]}")
        a(f"v_mov_b32 {aW[0]}, {vRd}")
        for it in range(1, 4):
            a(f"v_add_u32 {aW[it]}, {it * 8 * PBS}, {vRd}")
            a(f"v_add_u32 {aB[it]}, {it * 8 * PBS}, {aB[0]}")
        def rd(l, it):
            L = Ln[l][it]
            a(f"ds_read2_b32 {L[0:2]}, {aW[it]} offset0:{l * 24} offset1:{l * 24 + 1}")
            a(f"ds_read_b32 {L[2]}, {aW[it]} offset:{l * 96 + 8}")
            a(f"ds_read2_b32 {TP[l][it]}, {aB[it]} offset0:{l * 6} offset1:{l * 6 + 1}")
        def tag(l, it):
            a(f"v_alignbyte_b32 {Ln[l][it][3]}, {TP[l][it][1]}, {TP[l][it][0]}, {vRb}")
            a(f"v_bfi_b32 {Ln[l][it][3]}, {sM24}, {Ln[l][it][3]}, {vTag}")
        def store(l, it, name=None):
            a(f"s_add_u32 {so2}, {sSrc}, {(l * 256 + it * 8) << 15}")
            a(f"buffer_store_dwordx4 {Ln[l][it]}, {vSt}, {sWS}, {so2} offen {stf}")
            if name: self.vmseq.append(name)
        def store2(optional_tag=None):
            for it in range(4):
                Ls = a.newlabel('s2')
                a(f"s_cmp_eq_u64 {sL2[it]}, 0")
                a(f"s_cbranch_scc1 {Ls}")
                a(f"s_mov_b64 exec, {sL2[it]}")
                store(2, it)
                a(f"s_mov_b64 exec, -1")
                a.label(Ls)
        self.store_l = store; self.store2 = store2
        for it in range(4): rd(0, it)
        a("s_waitcnt lgkmcnt(6)")
        for it in range(2): tag(0, it)
        store(0, 0, 'L0')
        for it in range(2): rd(1, it)
        store(0, 1, 'L0')
        a("s_waitcnt lgkmcnt(6)")
        for it in range(2, 4): tag(0, it)
        store(0, 2, 'L0')
        store(0, 3, 'L0')
        pf_at('post0')
        for it in range(2, 4): rd(1, it)
        a("s_waitcnt lgkmcnt(6)")
        for it in range(4): a(f"ds_read_b32 {Hd[it]}, {vRh} offset:{it * 8 * PBS + HDR}")
        rd(2, 0)
        a("s_waitcnt lgkmcnt(3)")
        for it in range(1, 4): rd(2, it)
        self.stamp(5)
        a(f"s_mov_b32 {st}, {49 << 18}")
        a(f"s_mov_b32 {st2}, {73 << 18}")
        for it in range(4): a(f"v_cmp_le_u32 {sL2[it]}, {st}, {Hd[it]}")
        a(f"v_max3_u32 {vt}, {Hd[0]}, {Hd[1]}, {Hd[2]}")
        a(f"v_max_u32 {vt}, {vt}, {Hd[3]}")
        a(f"v_cmp_le_u32 vcc, {st2}, {vt}")
        for it in range(4): tag(1, it)
        a("s_waitcnt lgkmcnt(0)")
        for it in range(4): tag(2, it)
        a(f"s_cbranch_vccnz p_rare")
        a.label("p_rare_back")
        self.late.append((self._p_rare, (Hd, aW, aB, TP[0][0], vRb, vSt, vTag, sM24, sSrc, so2, st2, sWS, Ln[0][0])))
        if o['mat'] == 'gap':
            for jj in range(5):
                a(f"buffer_load_dwordx2 {Mr[jj]}, {vMoff}, {sM}, 0 offen offset:{jj*512}")
            self.vmseq += ['mr'] * 5
        a("s_barrier")
        for it in range(4):
            if L1S[it] == 'pre': store(1, it, 'L1')
        if L2S == 'pre': store2()
        pf_at('gap')
        self.stamp(6)

        V.reset(mk0); S.reset(smk0)
        rows = [V(f'row{i}', 4) for i in range(NR)]
        X = [V(f'x{i}', 4) for i in range(4)]
        D1 = [V(f'd1{i}', 4) for i in range(2)]
        Bq = [[V(f'b{s}{l}', 4) for l in range(2)] for s in range(2)]
        vT = V('tup', 2)
        vIdx = V('idx'); vOff = V('off'); vTau = [V(f'tau{b}') for b in range(NBLK)]; vHalf = V('half16')
        vIdxC = V('idxc'); vIdxN = V('idxn'); vTupC = V('tupc'); vTupN = V('tupn')
        vAddr = V('addr'); vC0 = V('c0'); vC1 = V('c1'); vK = V('k'); vBrd = V('brd'); vK2 = V('k2')
        vCntA = V('cnta'); vC = V('c')
        tt = [V(f'tt{i}') for i in range(12)]
        if o['sat'] == 'pre': X0 = [V(f'y{i}', 4) for i in range(4)]
        else: X0 = rows[0:4]
        self.c3 = V('c3', 4)
        INEP = o.get('inep')
        if INEP:
            eU = V('eu', 4); eM = V('em', 4); eA = V('ea', 2)
        print('phase 3 vgprs', V.next, file=sys.stderr)
        sCnt = [S(f'cnt{j}') for j in range(5)]
        sCntN = [S(f'cntn{j}') for j in range(5)]
        sIt = S('it'); sF0 = S('mf0'); sNot31 = S('not31'); sK1 = S('k1'); sPoff = S('poff')
        sHiL = Reg('s', 24, 2); sHdr = Reg('s', 26, 2); sv = [Reg('s', 18 + 2 * h, 2) for h in range(3)]
        sMore = [Reg('s', 4 + 2 * k, 2) for k in range(4)]
        sSave = Reg('s', 12, 2); sX = Reg('s', 16, 2)
        self.c = dict(NegT=sNegT, Sel=vSel, Lim=sLim, LimA=sLimA, GS=sGS, vCB=vCB, vZero=vZero, vOne=vOne,
                      sFail=sFail, sPoll=sPoll, sWS=sWS, vLine=vLine, sPoff=sPoff, tt=tt, X=X, sMore=sMore,
                      sv=sv, sHdr=sHdr, st=st, st2=st2, sX=sX, sSave=sSave)
        t0, t1, t2, t3 = tt[0], tt[1], tt[2], tt[3]
        def gap_epw():
            Ln1 = a.newlabel('nd')
            a(f"s_and_b32 {st2}, {sW}, 3")
            a(f"s_cmp_lg_u32 {st2}, 1")
            a(f"s_cbranch_scc1 {Ln1}")
            for jj in range(4): a(f"v_lshlrev_b32 {raw[jj]}, 16, {raw[jj]}")
            for jj in range(4): a(f"v_add_f32 {raw[jj]}, {raw[jj]}, {raw[jj]}")
            for jj in range(4): a(f"v_lshrrev_b32 {raw[jj]}, 16, {raw[jj]}")
            a.label(Ln1)
            for h in range(2):
                a(f"v_lshl_or_b32 {raw[2*h]}, {raw[2*h + 1]}, 16, {raw[2*h]}")
            a(f"v_mov_b32 {raw[1]}, {raw[2]}")
            a(f"s_lshl_b32 {st}, {st2}, 9")
            a(f"v_lshl_add_u32 {tt[2]}, {vLane}, 3, {st}")
            a(f"ds_write_b64 {tt[2]}, {raw[0:2]} offset:{EPW}")
        def gap_rbf(js, cen):
            a(f"v_lshlrev_b32 {cen[0]}, 16, {cenr[0]}")
            a(f"v_and_b32 {cen[1]}, {sHi}, {cenr[0]}")
            a(f"v_lshlrev_b32 {cen[2]}, 16, {cenr[1]}")
            a(f"v_and_b32 {cen[3]}, {sHi}, {cenr[1]}")
            a(f"s_not_b64 {sX}, {sHiL}")
            for j in js:
                self.rbf_operand(dd[j], cen, rbfB[j], tt[4:], sX)
        def gap_work():
            a(f"v_and_b32 {t0}, 15, {vLane}")
            a(f"v_lshrrev_b32 {t1}, 4, {vLane}")
            a(f"v_lshrrev_b32 {t2}, 2, {t0}")
            a(f"v_lshlrev_b32 {t2}, 3, {t2}")
            a(f"v_and_b32 {t3}, 3, {t0}")
            a(f"v_add_u32 {vTau[0]}, {t2}, {t3}")
            a(f"v_lshrrev_b32 {t3}, 5, {vLane}")
            a(f"v_lshl_add_u32 {vTau[0]}, {t3}, 2, {vTau[0]}")
            for b in range(1, NBLK): a(f"v_add_u32 {vTau[b]}, {32 * b}, {vTau[0]}")
            a(f"v_and_b32 {t2}, 1, {t1}")
            a(f"v_lshlrev_b32 {vHalf}, 4, {t2}")
            vWr = vIdx
            a(f"v_lshlrev_b32 {vWr}, 4, {vHalf}")
            a(f"v_lshl_add_u32 {vWr}, {t0}, 1, {vWr}")
            a(f"s_mul_i32 {st}, {sW}, {10*GS}")
            a(f"s_add_u32 {st}, {st}, {CB}")
            a(f"v_lshlrev_b32 {vIdxC}, 3, {vTau[0]}")
            a(f"v_add_u32 {vIdxC}, {st}, {vIdxC}")
            a(f"v_add_u32 {vIdxN}, {GS}, {vIdxC}")
            a(f"v_and_b32 {t2}, 31, {vLane}")
            a(f"v_lshlrev_b32 {vTupC}, 3, {t2}")
            a(f"v_add_u32 {vTupC}, {st}, {vTupC}")
            a(f"v_add_u32 {vTupN}, {GS}, {vTupC}")
            a(f"s_lshl_b32 {st}, {sW}, 11")
            a(f"s_add_u32 {st}, {st}, {STG}")
            a(f"v_lshlrev_b32 {vBrd}, 4, {vLane}")
            a(f"v_add_u32 {vBrd}, {st}, {vBrd}")
            a(f"v_lshrrev_b32 {vK}, 3, {t2}")
            a(f"v_lshlrev_b32 {vK}, 8, {vK}")
            a(f"v_and_b32 {t2}, 7, {t2}")
            a(f"v_lshl_add_u32 {vK}, {t2}, 1, {vK}")
            a(f"v_lshl_add_u32 {vK}, {t3}, 10, {vK}")
            a(f"v_add_u32 {vK}, {st}, {vK}")
            a(f"v_min_u32 {vCntA}, 4, {vLane}")
            a(f"s_mul_i32 {st}, {sW}, 5")
            a(f"v_add_u32 {vCntA}, {st}, {vCntA}")
            a(f"v_lshlrev_b32 {vCntA}, 3, {vCntA}")
            a(f"s_mov_b32 {sF0}, 0xf0")
            a(f"s_mov_b32 {sNot31}, 0x{o['gmask']:x}")
            a(f"s_mov_b32 {sK1}, 0x{f32(1.0 / 2047.5):x}")
            a(f"v_mov_b32 {vK2}, 0x{f32((0.5 - 2048.0) / 2047.5):x}")
            a(f"s_mov_b32 {sHiL[0]}, 0")
            a(f"s_mov_b32 {sHiL[1]}, -1")
            a(f"s_mov_b32 {sHdr[0]}, 0x80808080")
            a(f"s_mov_b32 {sHdr[1]}, 0x80808080")
            a(f"v_lshlrev_b32 {t2}, 3, {vLane}")
            a(f"ds_write_b64 {t2}, {wraw} offset:{WSC}")
            wtmp = X[2]
            for i in range(4):
                a(f"ds_read_u16 {wtmp[i]}, {vWr} offset:{WSC + (2*i)*32}")
                a(f"ds_read_u16 {X[3][i]}, {vWr} offset:{WSC + (2*i+1)*32}")
            pf_at('gw1')
            if o['rbfat'] == 'gap':
                gap_epw()
                gap_rbf(range(5), X[0])
            wtmp = X[2]
            a(f"s_not_b64 {sX}, {sHiL}")
            a("s_waitcnt lgkmcnt(0)")
            for i in range(4):
                a(f"v_lshl_or_b32 {wtmp[i]}, {X[3][i]}, 16, {wtmp[i]}")
            for i in range(4):
                a(f"v_cndmask_b32 {Wa[i]}, 0, {wtmp[i]}, {sX}")
            for i in range(4):
                a(f"v_cndmask_b32 {Wb[i]}, 0, {wtmp[i]}, {sHiL}")
            pf_at('gw2')
            if PF and any(isinstance(w, int) for w in o['pfat']) and not self.pf_based: pf_base()
            self.stamp(7)
        if o['gapat'] == 'pre': gap_work()
        tf = o['tupflags']
        gate = o['gate']
        if gate == 'ack': a("s_waitcnt vmcnt(0)")
        elif gate == 'ack0': wait_for('L0')
        elif isinstance(gate, int) and gate > 0:
            Lg = a.newlabel('gate'); Lgx = a.newlabel('gatex')
            a(f"s_mov_b32 {sPoll}, 0")
            a.label(Lg)
            a("s_memrealtime s[14:15]")
            a("s_waitcnt lgkmcnt(0)")
            a(f"s_sub_u32 {st}, s14, {sG0}")
            a(f"s_cmp_ge_u32 {st}, {gate}")
            a(f"s_cbranch_scc1 {Lgx}")
            a(f"s_add_u32 {sPoll}, {sPoll}, 1")
            a(f"s_cmp_lt_u32 {sPoll}, 100000")
            a(f"s_cbranch_scc1 {Lg}")
            a.label(Lgx)
        self.stamp(8)
        a(f"s_lshl_b32 {sPoff}, s2, 15")
        def load_line(dst, l, k, tag=None, optional=False):
            if l == 0:
                a(f"buffer_load_dwordx4 {dst}, {vLine}, {sWS}, {sPoff} offen offset:{k*1024} {tf}")
            else:
                a(f"s_add_u32 {st}, {sPoff}, {(l * 256) << 15}")
                a(f"buffer_load_dwordx4 {dst}, {vLine}, {sWS}, {st} offen offset:{k*1024} {tf}")
            if tag: self.vm_issue(tag, optional)
        def stores_at(where):
            for it in range(4):
                if L1S[it] == where:
                    store(1, it)
                    self.vm_issue(f'L1{it}', optional=isinstance(where, int))
            if L2S == where: store2()
        for k in range(4): load_line(X0[k], 0, k, f'Z{k}')
        stores_at('post')
        pf_at('z')
        if o['gapat'] == 'post': gap_work()
        if 'val' in L1S or L2S == 'val':
            for k in range(4):
                self.vm_wait(f'Z{k}', linear=True)
                if k == 0: self.stamp(9)
                self.checked(X0[k], 0, k, f'z{k}')
            pf_at('z0')
            stores_at('val')
            pf_at('val')
            for k in range(4): self.insert(X0[k], 0)
        else:
            PRE = o['ppl'] if isinstance(o['ppl'], str) else None
            if o.get('pipe0'):
                assert PRE is None and o['sat'] != 'pre'
                sets = [(sv, tt[0:3], tt[3:6], tt[6:9]),
                        (sMore[0:3], [X[0][i] for i in range(3)], [X[1][i] for i in range(3)], [X[2][i] for i in range(3)])]
                sZ = so2
                def W(n, name):
                    if o.get('mark'):
                        a(f"s_waitcnt lgkmcnt({n})")
                        return
                    a(f"s_cmp_lg_u32 {sZ}, 0")
                    a(f"s_cbranch_scc1 c_sw_{name}")
                    a(f"s_waitcnt lgkmcnt({n})")
                    a.label(f"c_swb_{name}")
                    def slow(name=name):
                        a.label(f"c_sw_{name}")
                        a("s_waitcnt lgkmcnt(0)")
                        a(f"s_branch c_swb_{name}")
                    self.late.append((slow, ()))
                a(f"s_mov_b32 {sZ}, 0")
                for k in range(4):
                    self.vm_wait(f'Z{k}', linear=True)
                    if k == 0: self.stamp(9)
                    self.checked(X0[k], 0, k, f'z{k}')
                    self.ins_a(X0[k], sets[k & 1], sZ)
                    if k > 0:
                        W(3 if k == 1 else 6, f'z{k}')
                        self.ins_b(X0[k - 1], sets[(k - 1) & 1])
                W(3, 'z4')
                self.ins_b(X0[3], sets[1])
            for k in range(0 if o.get('pipe0') else 4):
                self.vm_wait(f'Z{k}', linear=True)
                if k == 0: self.stamp(9)
                if PRE == f'z{k}':
                    for kk in range(4): load_line(X[kk], 1, kk, f'P{kk}')
                self.checked(X0[k], 0, k, f'z{k}')
                if o.get('fine') and k == 0: self.stamp(20)
                self.insert(X0[k], 0)
                if o.get('fine') and k == 0: self.stamp(28)
                if o.get('fine') and k == 2: self.stamp(29)
                if o['sat'] == 'pre': load_line(X0[k], 2, k, f'S{k}')
        self.publish()
        self.stamp(10)
        a("s_waitcnt lgkmcnt(0)")
        a("s_barrier")
        self.stamp(11)
        self.read_counts_issue(vC, vCntA, CC)
        off = lambda p: (p // NBLK) * 2 * GS + (p % NBLK) * 256
        ix = [Bq[1][0][i] for i in range(4)] + [Bq[1][1][i] for i in range(4)]
        for t in range(DG):
            a(f"ds_read_b32 {ix[t]}, {vIdxC} offset:{off(t)}")
        a(f"ds_read_b64 {vT}, {vTupC} offset:0")
        a("s_waitcnt lgkmcnt(0)")
        self.read_counts_use(vC, sCnt, sFail, st, st2)
        OB = o['optblk']
        opt = lambda p: (p % NBLK) >= OB
        for t in range(DG):
            Lg = None
            if opt(t):
                Lg = a.newlabel('skg')
                a(f"s_cmp_gt_u32 {sCnt[t // NBLK]}, {32 * (t % NBLK)}")
                a(f"s_cbranch_scc0 {Lg}")
            self.g_stage(ix[t], vOff, sNot31, vHalf, sCnt[t // NBLK], vTau[t % NBLK], rows[t % NR], sM)
            self.vm_issue(f"G{t}", optional=Lg is not None)
            if Lg: a.label(Lg)
        sst = (vT, vAddr, vC0, vC1, sF0, vK, sK1, vK2, sHiL, vBrd)
        self.s_stage(*sst, Bq[0], vZero)
        a(f"ds_read_b32 {vIdx}, {vIdxC} offset:{off(DG)}")
        a(f"ds_read_b64 {vT}, {vTupC} offset:{off(1)}")
        a(f"s_mov_b32 {sIt}, 0")
        self.stamp(12)

        PINS = o['pins']; PSEC = o['psec']; PWAIT = o['pwait']; PPL = o['ppl']
        if isinstance(PPL, str): PPL = ()
        else: assert all(PPL[k] < PINS[k] for k in range(4))
        assert max(PINS) < PSEC < PWAIT <= NPOS - DG - 2
        VARS = [(sIt, PPL, PINS, PSEC, '')]
        if o.get('stag'):
            ppl2, pins2, psec2 = o['stag']
            assert all(ppl2[k] < pins2[k] for k in range(4)) and max(pins2) < psec2 < PWAIT
            sV0 = S('var0'); sV1 = S('var1')
            a(f"s_lshr_b32 {sV0}, {sW}, {o.get('stagbit', 2)}")
            a(f"s_and_b32 {sV0}, {sV0}, 1")
            a(f"s_xor_b32 {sV1}, {sV0}, 1")
            VARS = [(sV0, PPL, PINS, PSEC, ''), (sV1, ppl2, pins2, psec2, 'b')]
        Lloop = 'c_loop'
        a.label(Lloop)
        start = len(a.lines)
        for p in range(NPOS):
            a.comment(f"---- slot {p}")
            j, blk = p // NBLK, p % NBLK
            a("s_waitcnt lgkmcnt(0)")
            if p == PWAIT + 1:
                self.read_counts_use(vC, sCntN, sFail, st, st2)
                if INEP:
                    a(f"v_readfirstlane_b32 {st}, {tt[5]}")
                    a(f"s_or_b32 {sFail}, {sFail}, {st}")
            rw = rows[p % NR]
            Lsk1 = None
            if opt(p):
                Lsk1 = a.newlabel('sk1')
                a(f"s_cmp_gt_u32 {sCnt[j]}, {32 * blk}")
                a(f"s_cbranch_scc0 {Lsk1}")
            self.vm_wait(f"G{p}")
            a(f"v_mfma_f32_16x16x32_bf16 {D1[0]}, {rw}, {Wa}, 0")
            a(f"v_mfma_f32_16x16x32_bf16 {D1[1]}, {rw}, {Wb}, 0")
            if Lsk1: a.label(Lsk1)
            if p == PWAIT:
                Lno = a.newlabel('nowait'); Lgo = a.newlabel('gowait')
                a(f"s_cmp_eq_u32 {sIt}, 0")
                a(f"s_cbranch_scc0 {Lno}")
                self.lds_spin(CB_CNT, 8, vC, vZero, st)
                self.read_counts_issue(vC, vCntA, CC + 4)
                if INEP: a(f"ds_read_b32 {tt[5]}, {vZero} offset:{FAIL}")
                a(f"s_branch {Lgo}")
                a.label(Lno)
                a(f"v_mov_b32 {vC}, 0")
                if INEP: a(f"v_mov_b32 {tt[5]}, 0")
                a.label(Lgo)
            tgt = p + DG
            tq = tgt % NPOS
            cn = sCnt[tq // NBLK] if tgt < NPOS else sCntN[tq // NBLK]
            Lg = None
            if opt(tq):
                Lg = a.newlabel('skg')
                a(f"s_cmp_gt_u32 {cn}, {32 * (tq % NBLK)}")
                a(f"s_cbranch_scc0 {Lg}")
            self.g_stage(vIdx, vOff, sNot31, vHalf, cn, vTau[tq % NBLK], rows[tgt % NR], sM)
            self.vm_issue(f"G{tq}", optional=Lg is not None)
            if Lg: a.label(Lg)
            nx = p + 1
            nq = nx % NPOS
            Lsk2 = None
            if opt(nq):
                cn2 = sCnt[nq // NBLK] if nx < NPOS else sCntN[nq // NBLK]
                Lsk2 = a.newlabel('sk2')
                a(f"s_cmp_gt_u32 {cn2}, {32 * (nq % NBLK)}")
                a(f"s_cbranch_scc0 {Lsk2}")
            self.s_stage(*sst, Bq[nx & 1], vZero)
            if Lsk2: a.label(Lsk2)
            t2_ = tgt + 1
            base = vIdxC if t2_ < NPOS else vIdxN
            a(f"ds_read_b32 {vIdx}, {base} offset:{off(t2_ % NPOS)}")
            s2_ = p + 2
            base = vTupC if s2_ < NPOS else vTupN
            a(f"ds_read_b64 {vT}, {base} offset:{off(s2_ % NPOS)}")
            Lsk3 = None
            if opt(p):
                Lsk3 = a.newlabel('sk3')
                a(f"s_cmp_gt_u32 {sCnt[j]}, {32 * blk}")
                a(f"s_cbranch_scc0 {Lsk3}")
            a(f"v_cvt_pk_bf16_f32 {rw[0]}, {D1[0][0]}, {D1[0][1]}")
            a(f"v_cvt_pk_bf16_f32 {rw[1]}, {D1[0][2]}, {D1[0][3]}")
            a(f"v_cvt_pk_bf16_f32 {rw[2]}, {D1[1][0]}, {D1[1][1]}")
            a(f"v_cvt_pk_bf16_f32 {rw[3]}, {D1[1][2]}, {D1[1][3]}")
            Bp = Bq[p & 1]
            a(f"v_mfma_f32_16x16x32_bf16 {acc[j][0]}, {rw}, {Bp[0]}, {acc[j][0]}")
            a(f"v_mfma_f32_16x16x32_bf16 {acc[j][1]}, {rw}, {Bp[1]}, {acc[j][1]}")
            if Lsk3: a.label(Lsk3)
            if p in L1S or p == L2S:
                Lsk = a.newlabel('nost')
                a(f"s_cmp_eq_u32 {sIt}, 0")
                a(f"s_cbranch_scc0 {Lsk}")
                stores_at(p)
                a.label(Lsk)
            for (cnd, vPPL, vPINS, vPSEC, sfx) in VARS:
                if p in vPPL:
                    Lsk = a.newlabel('nost')
                    a(f"s_cmp_eq_u32 {cnd}, 0")
                    a(f"s_cbranch_scc0 {Lsk}")
                    k = vPPL.index(p)
                    load_line(X[k], 1, k, f'P{k}{sfx}', optional=True)
                    a.label(Lsk)
            if o['pf'] and p in o['pfat']:
                Lsk = a.newlabel('nopf')
                a(f"s_cmp_eq_u32 {sIt}, 0")
                a(f"s_cbranch_scc0 {Lsk}")
                for w in o['pfat']:
                    if w == p: self.pf1(inloop=True)
                a.label(Lsk)
            if isinstance(o['rbfat'], int) or isinstance(o['mat'], int):
                RB = o['rbfat'] if isinstance(o['rbfat'], int) else -100
                MA = o['mat'] if isinstance(o['mat'], int) else -100
                if p == MA or RB <= p < RB + 6:
                    Lsk = a.newlabel('norb')
                    a(f"s_cmp_eq_u32 {sIt}, 0")
                    a(f"s_cbranch_scc0 {Lsk}")
                    if p == MA:
                        for jj in range(5):
                            a(f"buffer_load_dwordx2 {Mr[jj]}, {vMoff}, {sM}, 0 offen offset:{jj*512}")
                            self.vm_issue(f'mr{jj}', optional=True)
                    if p == RB: gap_epw()
                    if RB < p < RB + 6: gap_rbf([p - RB - 1], self.c3)
                    a.label(Lsk)
            for (cnd, vPPL, vPINS, vPSEC, sfx) in VARS:
              if p in vPINS:
                k = vPINS.index(p)
                Lsk = a.newlabel('noins')
                a(f"s_cmp_eq_u32 {cnd}, 0")
                a(f"s_cbranch_scc0 {Lsk}")
                self.vm_wait(f"P{k}{sfx if vPPL else ''}", linear=True)
                self.checked(X[k], 1, k, f'p{k}{sfx}')
                self.insert(X[k], 1, k=k, sfx=sfx)
                if o['sat'] != 'pre':
                    L = a.newlabel('sl')
                    a(f"s_cmp_eq_u64 {sMore[k]}, 0")
                    a(f"s_cbranch_scc1 {L}")
                    a(f"s_add_u32 {st}, {sPoff}, {(2 * 256) << 15}")
                    a(f"s_mov_b64 exec, {sMore[k]}")
                    a(f"buffer_load_dwordx4 {X[k]}, {vLine}, {sWS}, {st} offen offset:{k*1024} {tf}")
                    a(f"s_mov_b64 exec, -1")
                    a.label(L)
                    self.vm_issue(f"S{k}{sfx}", optional=True)
                a.label(Lsk)
              if p == vPSEC:
                Lna = a.newlabel('noarr')
                a(f"s_cmp_eq_u32 {cnd}, 0")
                a(f"s_cbranch_scc0 {Lna}")
                for k in range(4):
                    Ln_ = a.newlabel('sn')
                    a(f"s_cmp_eq_u64 {sMore[k]}, 0")
                    a(f"s_cbranch_scc1 {Ln_}")
                    self.vm_wait(f"S{k}{sfx}", linear=True)
                    a(f"s_mov_b64 exec, {sMore[k]}")
                    XS = X0[k] if o['sat'] == 'pre' else X[k]
                    self.checked(XS, 2, k, f's{k}{sfx}', sub=sMore[k])
                    self.insert(XS, 2, sub=sMore[k])
                    a.label(Ln_)
                self.publish()
                a("s_waitcnt lgkmcnt(0)")
                self.lds_arrive(CB_CNT, vZero, vOne)
                a.label(Lna)
            if INEP:
                e_ = o.get('inepe', 1)
                Aop = [X[0][0:2], X[0][2:4], X[1][0:2], X[1][2:4]]
                what = {1: 'aop', 6 + e_: 0, 12 + e_: 1, 18 + e_: 2, 24 + e_: 3, o.get('inep4', 27): 'pre4'}.get(p)
                if what is not None:
                    Lsk = a.newlabel('noep')
                    a(f"s_cmp_eq_u32 {sIt}, 0")
                    a(f"s_cbranch_scc1 {Lsk}")
                    if what == 'aop':
                        a(f"v_lshlrev_b32 {tt[2]}, 3, {vLane}")
                        for x in range(4):
                            a(f"ds_read_b64 {Aop[x]}, {tt[2]} offset:{EPW + x*512}")
                    elif what == 'pre4':
                        a(f"v_and_b32 {tt[0]}, 15, {vLane}")
                        a(f"s_mul_i32 {st}, {sW}, 80")
                        a(f"v_add_u32 {tt[0]}, {st}, {tt[0]}")
                        a(f"v_add_u32 {tt[0]}, 64, {tt[0]}")
                        a(f"v_cmp_gt_u32 vcc, 625, {tt[0]}")
                        a(f"v_cndmask_b32 {tt[1]}, {OOB}, {vMoff}, vcc")
                        self.ep_a(4, Aop, X[2], X[3], self.c3, eM, rbfB, Mr)
                    else:
                        self.ep_a(what, Aop, X[2], X[3], self.c3, eM, rbfB, Mr)
                        self.ep_b(what, Aop, X[2], X[3], self.c3, eM, eU, eA, acc, Mr)
                    a.label(Lsk)
            if self.prof and p in (1, 5, 9, 14, 19, 24, 29):
                slot = (1, 5, 9, 14, 19, 24, 29).index(p)
                a(f"s_lshl_b32 {st}, {sIt}, 3")
                a(f"s_add_u32 {st}, {st}, {13 + slot}")
                self.stamp_dyn(st)
        a(f"v_mov_b32 {vIdxC}, {vIdxN}")
        a(f"v_mov_b32 {vTupC}, {vTupN}")
        for jj in range(5):
            a(f"s_mov_b32 {sCnt[jj]}, {sCntN[jj]}")
        if o.get('stag'):
            a(f"s_mov_b32 {sV0}, 1")
            a(f"s_mov_b32 {sV1}, 1")
        a(f"s_add_u32 {sIt}, {sIt}, 1")
        a(f"s_cmp_le_u32 {sIt}, 1")
        a(f"s_cbranch_scc1 {Lloop}")
        end = len(a.lines)
        self.resolve_vm(start, end)
        self.stamp(40)
        Aop = [X[0][0:2], X[0][2:4], X[1][0:2], X[1][2:4]]
        fbargs = (acc, rows, X, D1, Bq, Wa, Wb, vLane, vZero, vOne, vHalf, vTau, sE0, sW,
                  sOI, sIN, sAN, sM, st, st2, sMore, pDBG, sIt, sPoff, sPoll,
                  vOff, vIdx, vAddr, vC0, vT, sv)
        def full_epilogue():
            a(f"v_lshlrev_b32 {vIdx}, 3, {vLane}")
            for x in range(4):
                a(f"ds_read_b64 {Aop[x]}, {vIdx} offset:{EPW + x*512}")
            a("s_waitcnt vmcnt(0) lgkmcnt(0)" if INEP else "s_waitcnt lgkmcnt(0)")
            self.epilogue(acc, Mr, D1, Bq, rbfB, Aop, tt, vLane, vMoff, sW, sOUT, st, rows, X)
        if INEP:
            a(f"s_cmp_lg_u32 {sFail}, 0")
            a(f"s_cbranch_scc1 c_fallback")
            of = o.get('outflags', '')
            for j in range(4):
                a(f"buffer_store_dwordx2 {Mr[j]}, {vMoff}, {sOUT}, 0 offen offset:{j*512} {of}")
            self.ep_b(4, Aop, X[2], X[3], self.c3, eM, eU, eA, acc, Mr)
            a(f"buffer_store_dwordx2 {Mr[4]}, {tt[1]}, {sOUT}, 0 offen offset:{4*512} {of}")
            a.label("c_done")
            def fb_tail():
                a.label("c_fb_back")
                for jj in range(5):
                    a(f"buffer_load_dwordx2 {Mr[jj]}, {vMoff}, {sM}, 0 offen offset:{jj*512}")
                full_epilogue()
                a("s_branch c_done")
            self.late.append((self._fallback, fbargs))
            self.late.append((fb_tail, ()))
        else:
            a("s_waitcnt vmcnt(0) lgkmcnt(0)")
            a(f"ds_read_b32 {tt[0]}, {vZero} offset:{FAIL}")
            a("s_waitcnt lgkmcnt(0)")
            a(f"v_readfirstlane_b32 {st}, {tt[0]}")
            a(f"s_or_b32 {sFail}, {sFail}, {st}")
            a(f"s_cmp_lg_u32 {sFail}, 0")
            a(f"s_cbranch_scc1 c_fallback")
            a.label("c_fb_back")
            self.late.append((self._fallback, fbargs))
            full_epilogue()
        self.stamp(41)
        Lgd = a.newlabel('gd'); Lgx = a.newlabel('gdx')
        a(f"s_mov_b32 {sPoll}, 0")
        a.label(Lgd)
        a("s_memrealtime s[14:15]")
        a("s_waitcnt lgkmcnt(0)")
        a(f"s_sub_u32 {st}, s14, {sG0}")
        a(f"s_cmp_ge_u32 {st}, {GUARD}")
        a(f"s_cbranch_scc1 {Lgx}")
        a(f"s_add_u32 {sPoll}, {sPoll}, 1")
        a(f"s_cmp_lt_u32 {sPoll}, 100000")
        a("s_sleep 4")
        a(f"s_cbranch_scc1 {Lgd}")
        a.label(Lgx)
        self.prof_store(sW)
        self.dbg_store(sW, pDBG)
        a("s_endpgm")

    def dbg_store(self, sW, pDBG):
        if not self.o.get('dbgprof'): return
        a = self.a
        L = a.newlabel('dbgx')
        a(f"s_cmp_lg_u32 {sW}, 0")
        a(f"s_cbranch_scc1 {L}")
        a("s_mov_b64 exec, 1")
        a("v_mov_b32 v2, 0")
        a(f"v_readlane_b32 s5, {self.vProf}, 50")
        spec = [(0, 50, 'min'), (1, 50, 'max'), (2, 2, 'max'), (3, 4, 'max'), (5, 9, 'max'), (6, 12, 'max'), (7, 40, 'max'), (8, 41, 'max'),
                (9, 2, 'sum'), (10, 4, 'sum'), (11, 9, 'sum'), (12, 12, 'sum'), (13, 19, 'sum'), (14, 40, 'sum'), (15, 41, 'sum')]
        for slot, ix, kind in spec:
            a(f"v_readlane_b32 s4, {self.vProf}, {ix}")
            if kind == 'min': a("s_not_b32 s4, s4")
            if kind == 'sum': a("s_sub_u32 s4, s4, s5")
            a("v_mov_b32 v1, s4")
            op = 'global_atomic_add' if kind == 'sum' else 'global_atomic_umax'
            a(f"{op} v2, v1, {pDBG} offset:{slot * 4}")
        a("s_waitcnt vmcnt(0)")
        a.label(L)

    def _p_rare(self, Hd, aW, aB, tp, vRb, vSt, vTag, sM24, sSrc, so, s73, sWS, L):
        a = self.a
        a.label("p_rare")
        for it in range(4):
            Ls = a.newlabel('pr')
            a(f"v_cmp_le_u32 vcc, {s73}, {Hd[it]}")
            a(f"s_cbranch_vccz {Ls}")
            a(f"s_mov_b64 exec, vcc")
            a("s_waitcnt vmcnt(0)")
            a(f"ds_read2_b32 {L[0:2]}, {aW[it]} offset0:{3 * 24} offset1:{3 * 24 + 1}")
            a(f"ds_read_b32 {L[2]}, {aW[it]} offset:{3 * 96 + 8}")
            a(f"ds_read2_b32 {tp}, {aB[it]} offset0:{3 * 6} offset1:{3 * 6 + 1}")
            a("s_waitcnt lgkmcnt(0)")
            a(f"v_alignbyte_b32 {L[3]}, {tp[1]}, {tp[0]}, {vRb}")
            a(f"v_bfi_b32 {L[3]}, {sM24}, {L[3]}, {vTag}")
            a(f"s_add_u32 {so}, {sSrc}, {(3 * 256 + it * 8) << 15}")
            a(f"buffer_store_dwordx4 {L}, {vSt}, {sWS}, {so} offen {self.o['stflags']}")
            a(f"s_mov_b64 exec, -1")
            a.label(Ls)
        a("s_branch p_rare_back")

    def publish(self):
        a = self.a; c = self.c
        L = a.newlabel('pub')
        a(f"s_cmp_eq_u32 {c['sFail']}, 0")
        a(f"s_cbranch_scc1 {L}")
        a(f"ds_write_b32 {c['vZero']}, {c['vOne']} offset:{FAIL}")
        a.label(L)

    def g_stage(self, idx, vOff, sNot31, vHalf, cnt, tau, dst, sM):
        a = self.a
        a(f"v_cmp_gt_u32 vcc, {cnt}, {tau}")
        a(f"v_lshrrev_b32 {vOff}, 9, {idx}")
        a(f"v_and_or_b32 {vOff}, {vOff}, {sNot31}, {vHalf}")
        if self.o.get('nog') == 1: a(f"v_mov_b32 {vOff}, {OOB}")
        elif self.o.get('nog') == 2: a(f"v_cndmask_b32 {vOff}, {OOB}, {vHalf}, vcc")
        else: a(f"v_cndmask_b32 {vOff}, {OOB}, {vOff}, vcc")
        a(f"buffer_load_dwordx4 {dst}, {vOff}, {sM}, 0 offen")

    def s_stage(self, vT, vAddr, vC0, vC1, sF0, vK, sK1, vK2, sHiL, vBrd, B, vZero):
        a = self.a
        a(f"v_and_b32 {vC0}, 15, {vT[0]}")
        a(f"v_lshl_or_b32 {vC0}, {vT[1]}, 4, {vC0}")
        a(f"v_cvt_f32_u32 {vC0}, {vC0}")
        a(f"v_and_or_b32 {vAddr}, {vT[0]}, {sF0}, {vK}")
        a(f"v_fma_f32 {vC0}, {vC0}, {sK1}, {vK2}")
        a(f"v_fma_f32 {vC1}, {vC0}, {vC0}, -0.5")
        a(f"v_cndmask_b32 {vC0}, {vC0}, {vC1}, {sHiL}")
        a(f"v_cvt_pk_bf16_f32 {vC0}, {vC0}, {vC0}")
        a(f"ds_write_b16 {vAddr}, {vC0}")
        a(f"ds_read_b128 {B[0]}, {vBrd}")
        a(f"ds_read_b128 {B[1]}, {vBrd} offset:1024")
        a(f"ds_write_b16 {vAddr}, {vZero}")

    def read_counts_issue(self, vC, vCntA, off):
        self.a(f"ds_read_b32 {vC}, {vCntA} offset:{off}")

    def read_counts_use(self, vC, dst, sFail, st, st2):
        a = self.a
        for jj in range(5):
            a(f"v_readlane_b32 {dst[jj]}, {vC}, {jj}")
        a(f"s_max_u32 {st}, {dst[0]}, {dst[1]}")
        a(f"s_max_u32 {st2}, {dst[2]}, {dst[3]}")
        a(f"s_max_u32 {st}, {st}, {dst[4]}")
        a(f"s_max_u32 {st}, {st}, {st2}")
        a(f"s_cmp_gt_u32 {st}, {CAP}")
        a(f"s_cselect_b32 {st}, 1, 0")
        a(f"s_or_b32 {sFail}, {sFail}, {st}")
        for jj in range(5):
            a(f"s_min_u32 {dst[jj]}, {dst[jj]}, {CAP}")

    def rbf_operand(self, d, cen, dst, tt, sQ):
        a = self.a
        t = [tt[0], tt[1], tt[2], tt[3]]; u = tt[4]; dv = tt[5]
        a(f"v_lshlrev_b32 {dv}, 16, {d}")
        for i in range(4): a(f"v_sub_f32 {t[i]}, {dv}, {cen[i]}")
        def rnd():
            for h in range(2):
                a(f"v_cvt_pk_bf16_f32 {u}, {t[2*h]}, {t[2*h+1]}")
                a(f"v_lshlrev_b32 {t[2*h]}, 16, {u}")
                a(f"v_and_b32 {t[2*h+1]}, 0xffff0000, {u}")
        rnd()
        for i in range(4): a(f"v_mul_f32 {t[i]}, {t[i]}, {t[i]}")
        rnd()
        for i in range(4): a(f"v_mul_f32 {t[i]}, 0xc1200000, {t[i]}")
        rnd()
        for i in range(4): a(f"v_mul_f32 {t[i]}, 0x3fb8aa3b, {t[i]}")
        for i in range(4): a(f"v_exp_f32 {t[i]}, {t[i]}")
        a(f"v_cvt_pk_bf16_f32 {dst[0]}, {t[0]}, {t[1]}")
        a(f"v_cvt_pk_bf16_f32 {dst[1]}, {t[2]}, {t[3]}")
        a(f"v_cndmask_b32 {dst[0]}, 0, {dst[0]}, {sQ}")
        a(f"v_cndmask_b32 {dst[1]}, 0, {dst[1]}, {sQ}")

    def tagcheck(self, x):
        a = self.a; c = self.c; tt = c['tt']
        u = tt[10]; w = tt[11]
        a(f"v_perm_b32 {u}, {x[3]}, {x[3]}, {c['Sel']}")
        a(f"v_or_b32_dpp {u}, {u}, {u} quad_perm:[1,0,3,2] row_mask:0xf bank_mask:0xf")
        a(f"v_or_b32_dpp {u}, {u}, {u} quad_perm:[2,3,0,1] row_mask:0xf bank_mask:0xf")
        a(f"v_lshlrev_b32 {w}, 8, {u}")
        a(f"v_xad_u32 {u}, {u}, {w}, {c['NegT']}")
        a(f"v_cmp_le_u32 vcc, 8, {u}")

    def checked(self, x, l, k, name, sub=None):
        a = self.a
        self.tagcheck(x)
        a(f"s_cbranch_vccnz c_rp_{name}")
        a.label(f"c_ok_{name}")
        self.late.append((self._repoll, (x, l, k, name, sub)))

    def _repoll(self, x, l, k, name, sub):
        a = self.a; c = self.c; tt = c['tt']
        ex = sub if sub is not None else '-1'
        a.label(f"c_rp_{name}")
        if self.o.get('fine') and name[0] == 'z': self.stamp(30 + k)
        if self.o.get('fine') and name[0] == 'p': self.stamp(34 + k)
        a(f"s_mov_b32 {c['sPoll']}, 0")
        L = a.newlabel('rpl'); Lto = a.newlabel('rpt')
        a(f"s_cmp_lg_u32 {c['sFail']}, 0")
        a(f"s_cbranch_scc1 {Lto}")
        a.label(L)
        a(f"s_sleep {self.o['psleep']}")
        a(f"s_mov_b64 exec, vcc")
        a(f"s_add_u32 {c['st']}, {c['sPoff']}, {(l * 256) << 15}")
        a(f"buffer_load_dwordx4 {x}, {c['vLine']}, {c['sWS']}, {c['st']} offen offset:{k*1024} {self.o['tupflags']}")
        a("s_waitcnt vmcnt(0)")
        self.tagcheck(x)
        a(f"s_mov_b64 exec, {ex}")
        a(f"s_cbranch_vccz c_ok_{name}")
        a(f"s_add_u32 {c['sPoll']}, {c['sPoll']}, 1")
        a(f"s_cmp_lt_u32 {c['sPoll']}, {self.o['poll_max']}")
        a(f"s_cbranch_scc1 {L}")
        a.label(Lto)
        a(f"s_mov_b32 {c['sFail']}, 1")
        tm = tt[9] if self.o.get('pipe0') else tt[0]
        a(f"v_mov_b32 {tm}, {'0x%x' % MARK if self.o.get('mark') else -1}")
        for h in range(3):
            a(f"v_cndmask_b32 {x[h]}, {x[h]}, {tm}, vcc")
        a(f"s_branch c_ok_{name}")

    def insert(self, x, l, k=None, sub=None, sfx=''):
        a = self.a; c = self.c; tt = c['tt']; sv = c['sv']
        g = tt[0:3]; rk = tt[3:6]; cs = tt[6:9]
        if self.o.get('mark'): return self.insert_m(x, l, k, sub, sfx)
        for h in range(3): a(f"v_cmp_gt_u32 {sv[h]}, {c['Lim']}, {x[h]}")
        for h in range(3): a(f"v_bfe_u32 {g[h]}, {x[h]}, 8, 6")
        if l == 0:
            for h in range(3):
                a(f"v_cmp_le_u32 vcc, {c['LimA']}, {x[h]}")
                a(f"v_addc_co_u32 {g[h]}, vcc, {g[h]}, {g[h]}, vcc")
        else:
            for h in range(3): a(f"v_lshl_or_b32 {g[h]}, {g[h]}, 1, 1")
        if l == 1:
            a(f"s_andn2_b64 {sv[2]}, {sv[2]}, {c['sHdr']}")
            a(f"s_mov_b32 {c['st']}, {49 << 18}")
            a(f"s_mov_b32 {c['st2']}, {73 << 18}")
            a(f"v_cmp_le_u32 vcc, {c['st']}, {x[2]}")
            a(f"v_cmp_le_u32 {c['sX']}, {c['st2']}, {x[2]}")
        for h in range(3): a(f"v_lshl_add_u32 {rk[h]}, {g[h]}, 2, {CC}")
        if self.o.get('diagins') and l == 0:
            for h in range(3):
                a(f"v_mbcnt_lo_u32_b32 {rk[h]}, -1, 0")
                a(f"v_mbcnt_hi_u32_b32 {rk[h]}, -1, {rk[h]}")
                a(f"v_lshl_add_u32 {rk[h]}, {rk[h]}, 2, {CC}")
        for h in range(3):
            a(f"s_mov_b64 exec, {sv[h]}")
            a(f"ds_add_rtn_u32 {rk[h]}, {rk[h]}, {c['vOne']}")
        a(f"s_mov_b64 exec, -1")
        for h in range(3): a(f"v_bfe_u32 {cs[h]}, {x[3]}, {8 * h}, 8")
        for h in range(3): a(f"v_mad_u32_u24 {g[h]}, {g[h]}, {c['GS']}, {c['vCB']}")
        if l == 1:
            m = c['sMore'][k]
            a(f"s_and_b64 {m}, vcc, {c['sHdr']}")
            a(f"s_lshr_b64 {m}, {m}, 7")
            a(f"s_lshl_b64 {c['sSave']}, {m}, 8")
            a(f"s_sub_u32 {m[0]}, {c['sSave'][0]}, {m[0]}")
            a(f"s_subb_u32 {m[1]}, {c['sSave'][1]}, {m[1]}")
        a("s_waitcnt lgkmcnt(0)")
        for h in range(3): a(f"v_min_u32 {rk[h]}, {CAP}, {rk[h]}")
        for h in range(3): a(f"v_lshl_add_u32 {g[h]}, {rk[h]}, 3, {g[h]}")
        for h in range(3):
            a(f"s_mov_b64 exec, {sv[h]}")
            a(f"ds_write2_b32 {g[h]}, {x[h]}, {cs[h]} offset0:0 offset1:1")
        a(f"s_mov_b64 exec, -1")
        if l == 1:
            a(f"s_and_b64 {c['sX']}, {c['sX']}, {c['sHdr']}")
            a(f"s_cbranch_scc1 c_l3_{k}{sfx}")
            a.label(f"c_l3_back_{k}{sfx}")
            self.late.append((self._line3, (x, k, sfx)))

    def insert_m(self, x, l, k, sub, sfx):
        a = self.a; c = self.c; tt = c['tt']; sv = c['sv']
        g = tt[0:3]; rk = tt[3:6]; cs = tt[6:9]
        for h in range(3): a(f"v_bfe_u32 {g[h]}, {x[h]}, 8, 6")
        if l == 0:
            for h in range(3): a(f"v_cmp_le_u32 {sv[h]}, {c['LimA']}, {x[h]}")
            for h in range(3): a(f"v_addc_co_u32 {g[h]}, vcc, {g[h]}, {g[h]}, {sv[h]}")
        else:
            for h in range(3): a(f"v_lshl_or_b32 {g[h]}, {g[h]}, 1, 1")
        if l == 1:
            a(f"s_mov_b32 {c['st']}, {49 << 18}")
            a(f"s_mov_b32 {c['st2']}, {73 << 18}")
            a(f"v_cmp_le_u32 vcc, {c['st']}, {x[2]}")
            a(f"v_cmp_le_u32 {c['sX']}, {c['st2']}, {x[2]}")
        for h in range(3): a(f"v_lshl_add_u32 {rk[h]}, {g[h]}, 2, {CC}")
        for h in range(3):
            if l == 1 and h == 2: a(f"s_not_b64 exec, {c['sHdr']}")
            a(f"ds_add_rtn_u32 {rk[h]}, {rk[h]}, {c['vOne']}")
        if l == 1: a(f"s_mov_b64 exec, -1")
        for h in range(3): a(f"v_bfe_u32 {cs[h]}, {x[3]}, {8 * h}, 8")
        for h in range(3): a(f"v_mad_u32_u24 {g[h]}, {g[h]}, {c['GS']}, {c['vCB']}")
        if l == 1:
            m = c['sMore'][k]
            a(f"s_and_b64 {m}, vcc, {c['sHdr']}")
            a(f"s_lshr_b64 {m}, {m}, 7")
            a(f"s_lshl_b64 {c['sSave']}, {m}, 8")
            a(f"s_sub_u32 {m[0]}, {c['sSave'][0]}, {m[0]}")
            a(f"s_subb_u32 {m[1]}, {c['sSave'][1]}, {m[1]}")
        a("s_waitcnt lgkmcnt(0)")
        for h in range(3): a(f"v_min_u32 {rk[h]}, {CAP}, {rk[h]}")
        for h in range(3): a(f"v_lshl_add_u32 {g[h]}, {rk[h]}, 3, {g[h]}")
        for h in range(3):
            if l == 1 and h == 2: a(f"s_not_b64 exec, {c['sHdr']}")
            a(f"ds_write2_b32 {g[h]}, {x[h]}, {cs[h]} offset0:0 offset1:1")
        if l != 0: a(f"s_mov_b64 exec, -1")
        if l == 1:
            a(f"s_and_b64 {c['sX']}, {c['sX']}, {c['sHdr']}")
            a(f"s_cbranch_scc1 c_l3_{k}{sfx}")
            a.label(f"c_l3_back_{k}{sfx}")
            self.late.append((self._line3, (x, k, sfx)))

    def ins_a(self, x, st_, sZ):
        a = self.a; c = self.c
        sv, g, rk, cs = st_
        if self.o.get('mark'):
            for h in range(3): a(f"v_bfe_u32 {g[h]}, {x[h]}, 8, 6")
            for h in range(3): a(f"v_cmp_le_u32 {sv[h]}, {c['LimA']}, {x[h]}")
            for h in range(3): a(f"v_addc_co_u32 {g[h]}, vcc, {g[h]}, {g[h]}, {sv[h]}")
            for h in range(3): a(f"v_lshl_add_u32 {rk[h]}, {g[h]}, 2, {CC}")
            for h in range(3): a(f"ds_add_rtn_u32 {rk[h]}, {rk[h]}, {c['vOne']}")
            for h in range(3): a(f"v_bfe_u32 {cs[h]}, {x[3]}, {8 * h}, 8")
            for h in range(3): a(f"v_mad_u32_u24 {g[h]}, {g[h]}, {c['GS']}, {c['vCB']}")
            return
        for h in range(3): a(f"v_cmp_gt_u32 {sv[h]}, {c['Lim']}, {x[h]}")
        for h in range(3): a(f"v_bfe_u32 {g[h]}, {x[h]}, 8, 6")
        for h in range(3):
            a(f"v_cmp_le_u32 vcc, {c['LimA']}, {x[h]}")
            a(f"v_addc_co_u32 {g[h]}, vcc, {g[h]}, {g[h]}, vcc")
        for h in range(3): a(f"v_lshl_add_u32 {rk[h]}, {g[h]}, 2, {CC}")
        for h in range(3):
            a(f"s_cmp_eq_u64 {sv[h]}, 0")
            a(f"s_addc_u32 {sZ}, {sZ}, 0")
            a(f"s_mov_b64 exec, {sv[h]}")
            a(f"ds_add_rtn_u32 {rk[h]}, {rk[h]}, {c['vOne']}")
        a(f"s_mov_b64 exec, -1")
        for h in range(3): a(f"v_bfe_u32 {cs[h]}, {x[3]}, {8 * h}, 8")
        for h in range(3): a(f"v_mad_u32_u24 {g[h]}, {g[h]}, {c['GS']}, {c['vCB']}")

    def ins_b(self, x, st_):
        a = self.a
        sv, g, rk, cs = st_
        for h in range(3): a(f"v_min_u32 {rk[h]}, {CAP}, {rk[h]}")
        for h in range(3): a(f"v_lshl_add_u32 {g[h]}, {rk[h]}, 3, {g[h]}")
        if self.o.get('mark'):
            for h in range(3): a(f"ds_write2_b32 {g[h]}, {x[h]}, {cs[h]} offset0:0 offset1:1")
            return
        for h in range(3):
            a(f"s_mov_b64 exec, {sv[h]}")
            a(f"ds_write2_b32 {g[h]}, {x[h]}, {cs[h]} offset0:0 offset1:1")
        a(f"s_mov_b64 exec, -1")

    def _line3(self, x, k, sfx=''):
        a = self.a; c = self.c; tt = c['tt']
        m = c['sX']; Y = self.c3
        a.label(f"c_l3_{k}{sfx}")
        a(f"s_mov_b32 {c['st']}, {97 << 18}")
        a(f"v_cmp_le_u32 vcc, {c['st']}, {x[2]}")
        a(f"s_and_b64 vcc, vcc, {c['sHdr']}")
        a(f"s_cselect_b32 {c['st']}, 1, 0")
        a(f"s_or_b32 {c['sFail']}, {c['sFail']}, {c['st']}")
        a(f"s_lshr_b64 {m}, {m}, 7")
        a(f"s_lshl_b64 {c['sSave']}, {m}, 8")
        a(f"s_sub_u32 {m[0]}, {c['sSave'][0]}, {m[0]}")
        a(f"s_subb_u32 {m[1]}, {c['sSave'][1]}, {m[1]}")
        a(f"s_cmp_lg_u32 {c['sFail']}, 0")
        a(f"s_cbranch_scc1 c_l3_back_{k}{sfx}")
        a(f"s_add_u32 {c['st']}, {c['sPoff']}, {(3 * 256) << 15}")
        a(f"s_mov_b64 exec, {m}")
        a(f"buffer_load_dwordx4 {Y}, {c['vLine']}, {c['sWS']}, {c['st']} offen offset:{k*1024} {self.o['tupflags']}")
        a("s_waitcnt vmcnt(0)")
        self.checked(Y, 3, k, f't{k}{sfx}', sub=m)
        self.insert(Y, 3, sub=m)
        a(f"s_branch c_l3_back_{k}{sfx}")

    def _fallback(self, acc, rows, X, D1, Bq, Wa, Wb, vLane, vZero, vOne, vHalf, vTau, sE0, sCw, sOI, sIN, sAN, sM,
                  st, st2, sMore, pDBG, sN, sCh, sLaneS, vOff, vIdx, vAddr, vC16, vT, sv):
        a = self.a
        a.label("c_fallback")
        if self.o.get('inep'): a("s_waitcnt vmcnt(0) lgkmcnt(0)")
        a(f"global_store_dword {vZero}, {vOne}, {pDBG} offset:16")
        for j in range(5):
            for l in range(2):
                for i in range(4): a(f"v_mov_b32 {acc[j][l][i]}, 0")
        sMask = sMore[0]; sLoc = Reg('s', 6); sTt = Reg('s', 7); sSel = sMore[2]; sSel2 = sMore[3]
        a(f"s_movk_i32 {sN}, 80")
        a(f"s_cmp_eq_u32 {sCw}, 7")
        a(f"s_cselect_b32 {sN}, 65, {sN}")
        a(f"s_mov_b32 {sCh}, 0")
        vL16 = vIdx; vI15 = vAddr
        a(f"v_lshlrev_b32 {vL16}, 4, {vLane}")
        a(f"v_and_b32 {vI15}, 15, {vLane}")
        for i in range(1, 4):
            a(f"v_mov_b32 {Bq[0][0][i]}, 0")
            a(f"v_mov_b32 {Bq[0][1][i]}, 0")
        a(f"v_cmp_eq_u32 {sSel}, 0, {vTau[0]}")
        Lc = "c_fb_chunk"
        a.label(Lc)
        a(f"buffer_load_dwordx4 {X[3]}, {vL16}, {sOI}, {sCh} offen")
        a("s_waitcnt vmcnt(0)")
        for cidx in range(4):
            Lh = f"c_fb_h{cidx}"; Ld = f"c_fb_d{cidx}"
            a(f"v_subrev_u32 {X[3][cidx]}, {sE0}, {X[3][cidx]}")
            a(f"v_cmp_gt_u32 {sMask}, {sN}, {X[3][cidx]}")
            a.label(Lh)
            a(f"s_cmp_eq_u64 {sMask}, 0")
            a(f"s_cbranch_scc1 {Ld}")
            a(f"s_ff1_i32_b64 {sLaneS}, {sMask}")
            a(f"s_bitset0_b64 {sMask}, {sLaneS}")
            a(f"s_nop 3")
            a(f"v_readlane_b32 {sLoc}, {X[3][cidx]}, {sLaneS}")
            a(f"s_lshl_b32 {sTt}, {sLaneS}, 4")
            a(f"s_add_u32 {sTt}, {sTt}, {sCh}")
            a(f"s_add_u32 {sTt}, {sTt}, {cidx*4}")
            a(f"v_mov_b32 {vOff}, {sTt}")
            a(f"v_lshrrev_b32 {vC16}, 1, {vOff}")
            a(f"buffer_load_dword {vT[0]}, {vOff}, {sIN}, 0 offen")
            a(f"buffer_load_ushort {vT[1]}, {vC16}, {sAN}, 0 offen")
            a("s_waitcnt vmcnt(0)")
            a(f"v_lshl_or_b32 {vOff}, {vT[0]}, 5, {vHalf}")
            a(f"v_cndmask_b32 {vOff}, {OOB}, {vOff}, {sSel}")
            a(f"buffer_load_dwordx4 {rows[0]}, {vOff}, {sM}, 0 offen")
            a(f"v_lshlrev_b32 {vT[1]}, 16, {vT[1]}")
            a(f"v_mul_f32 {vT[1]}, 0x{INV2PI:x}, {vT[1]}")
            a(f"v_fract_f32 {vT[1]}, {vT[1]}")
            a(f"v_cos_f32 {vT[1]}, {vT[1]}")
            a(f"s_and_b32 {st}, {sLoc}, 15")
            a(f"v_cmp_eq_u32 {sSel2}, {st}, {vLane}")
            a(f"v_fma_f32 {vT[0]}, {vT[1]}, {vT[1]}, -0.5")
            a(f"v_cvt_pk_bf16_f32 {vT[0]}, {vT[1]}, {vT[0]}")
            a(f"v_and_b32 {vT[1]}, 0xffff, {vT[0]}")
            a(f"v_lshrrev_b32 {vT[0]}, 16, {vT[0]}")
            a(f"v_cndmask_b32 {Bq[0][0][0]}, 0, {vT[1]}, {sSel2}")
            a(f"v_cndmask_b32 {Bq[0][1][0]}, 0, {vT[0]}, {sSel2}")
            a("s_waitcnt vmcnt(0)")
            rw = rows[0]
            a(f"v_mfma_f32_16x16x32_bf16 {D1[0]}, {rw}, {Wa}, 0")
            a(f"v_mfma_f32_16x16x32_bf16 {D1[1]}, {rw}, {Wb}, 0")
            a(f"v_cvt_pk_bf16_f32 {rw[0]}, {D1[0][0]}, {D1[0][1]}")
            a(f"v_cvt_pk_bf16_f32 {rw[1]}, {D1[0][2]}, {D1[0][3]}")
            a(f"v_cvt_pk_bf16_f32 {rw[2]}, {D1[1][0]}, {D1[1][1]}")
            a(f"v_cvt_pk_bf16_f32 {rw[3]}, {D1[1][2]}, {D1[1][3]}")
            a(f"s_lshr_b32 {st}, {sLoc}, 4")
            for j in range(5):
                Lj = a.newlabel('fbj')
                a(f"s_cmp_lg_u32 {st}, {j}")
                a(f"s_cbranch_scc1 {Lj}")
                a(f"v_mfma_f32_16x16x32_bf16 {acc[j][0]}, {rw}, {Bq[0][0]}, {acc[j][0]}")
                a(f"v_mfma_f32_16x16x32_bf16 {acc[j][1]}, {rw}, {Bq[0][1]}, {acc[j][1]}")
                a.label(Lj)
            a(f"s_branch {Lh}")
            a.label(Ld)
        a(f"s_add_u32 {sCh}, {sCh}, 1024")
        a(f"s_cmp_lt_u32 {sCh}, {T*4}")
        a(f"s_cbranch_scc1 {Lc}")
        a("s_branch c_fb_back")

    def ep_a(self, j, Aop, G0, G1, GT, mm, rbfB, Mr):
        a = self.a
        A0, A1, AG, AU = Aop
        a(f"v_mfma_f32_16x16x16_bf16 {G0}, {A0}, {rbfB[j]}, 0")
        a(f"v_mfma_f32_16x16x16_bf16 {G1}, {A1}, {rbfB[j]}, 0")
        a(f"v_mfma_f32_16x16x16_bf16 {GT}, {AG}, {rbfB[j]}, 0")
        a(f"v_lshlrev_b32 {mm[0]}, 16, {Mr[j][0]}")
        a(f"v_and_b32 {mm[1]}, 0xffff0000, {Mr[j][0]}")
        a(f"v_lshlrev_b32 {mm[2]}, 16, {Mr[j][1]}")
        a(f"v_and_b32 {mm[3]}, 0xffff0000, {Mr[j][1]}")

    def ep_b(self, j, Aop, G0, G1, GT, mm, U, ag, acc, Mr):
        a = self.a
        A0, A1, AG, AU = Aop
        for i in range(4):
            a(f"v_mul_f32 {G0[i]}, {G0[i]}, {acc[j][0][i]}")
        for i in range(4):
            a(f"v_fma_f32 {G0[i]}, {G1[i]}, {acc[j][1][i]}, {G0[i]}")
        a(f"v_cvt_pk_bf16_f32 {ag[0]}, {G0[0]}, {G0[1]}")
        a(f"v_cvt_pk_bf16_f32 {ag[1]}, {G0[2]}, {G0[3]}")
        a(f"v_mfma_f32_16x16x16_bf16 {U}, {AU}, {ag}, 0")
        for i in range(4):
            a(f"v_fma_f32 {mm[i]}, {U[i]}, {GT[i]}, {mm[i]}")
        a(f"v_cvt_pk_bf16_f32 {Mr[j][0]}, {mm[0]}, {mm[1]}")
        a(f"v_cvt_pk_bf16_f32 {Mr[j][1]}, {mm[2]}, {mm[3]}")

    def epilogue(self, acc, Mr, D1, Bq, rbfB, Aop, tt, vLane, vMoff, sCw, sOUT, st, rows, X):
        a = self.a
        A0, A1, AG, AU = Aop
        t0 = tt[0]; t1 = tt[1]
        a(f"v_and_b32 {t0}, 15, {vLane}")
        a(f"s_mul_i32 {st}, {sCw}, 80")
        a(f"v_add_u32 {t0}, {st}, {t0}")
        a(f"v_add_u32 {t0}, 64, {t0}")
        a(f"v_cmp_gt_u32 vcc, 625, {t0}")
        a(f"v_cndmask_b32 {t1}, {OOB}, {vMoff}, vcc")
        G0 = [rows[0], rows[1]]; G1 = [rows[2], rows[3]]; GT = [rows[4], rows[5]]; U = [D1[0], D1[1]]
        ag = [Bq[0][0][0:2], Bq[0][0][2:4]]
        mm = [Bq[0][1], Bq[1][0]]
        oo = [Bq[1][1][0:2], Bq[1][1][2:4]]

        def gm(j):
            s = j & 1
            a(f"v_mfma_f32_16x16x16_bf16 {G0[s]}, {A0}, {rbfB[j]}, 0")
            a(f"v_mfma_f32_16x16x16_bf16 {G1[s]}, {A1}, {rbfB[j]}, 0")
            a(f"v_mfma_f32_16x16x16_bf16 {GT[s]}, {AG}, {rbfB[j]}, 0")
        gm(0)
        for j in range(5):
            s = j & 1
            if j + 1 < 5: gm(j + 1)
            mrow = Mr[j]
            a(f"v_lshlrev_b32 {mm[s][0]}, 16, {mrow[0]}")
            a(f"v_and_b32 {mm[s][1]}, 0xffff0000, {mrow[0]}")
            a(f"v_lshlrev_b32 {mm[s][2]}, 16, {mrow[1]}")
            a(f"v_and_b32 {mm[s][3]}, 0xffff0000, {mrow[1]}")
            for i in range(4):
                a(f"v_mul_f32 {G0[s][i]}, {G0[s][i]}, {acc[j][0][i]}")
            for i in range(4):
                a(f"v_fma_f32 {G0[s][i]}, {G1[s][i]}, {acc[j][1][i]}, {G0[s][i]}")
            a(f"v_cvt_pk_bf16_f32 {ag[s][0]}, {G0[s][0]}, {G0[s][1]}")
            a(f"v_cvt_pk_bf16_f32 {ag[s][1]}, {G0[s][2]}, {G0[s][3]}")
            a(f"v_mfma_f32_16x16x16_bf16 {U[s]}, {AU}, {ag[s]}, 0")
            for i in range(4):
                a(f"v_fma_f32 {mm[s][i]}, {U[s][i]}, {GT[s][i]}, {mm[s][i]}")
            o = oo[s]
            a(f"v_cvt_pk_bf16_f32 {o[0]}, {mm[s][0]}, {mm[s][1]}")
            a(f"v_cvt_pk_bf16_f32 {o[1]}, {mm[s][2]}, {mm[s][3]}")
            off = t1 if j == 4 else vMoff
            a(f"buffer_store_dwordx2 {o}, {off}, {sOUT}, 0 offen offset:{j*512} {self.o.get('outflags', '')}")

    def kernel(self, label):
        a = self.a
        self.late = []
        self.Lend = label + '_end'
        self.sWave = Reg('s', 60); self.sT64 = Reg('s', 98, 2)
        self.vProf = Reg('v', 255)
        a.lines.append(f".globl {label}")
        a.lines.append(".p2align 8")
        a.lines.append(f".type {label},@function")
        a.label(label)
        a("s_cmp_ge_u32 s2, 256")
        a(f"s_cbranch_scc1 {self.Lend}")
        a("s_load_dwordx16 s[4:19], s[0:1], 0")
        a("s_load_dwordx8 s[20:27], s[0:1], 64")
        a("s_load_dwordx4 s[28:31], s[0:1], 96")
        a("s_memrealtime s[100:101]")
        if self.prof:
            a("s_memrealtime s[98:99]")
        a("v_lshrrev_b32 v1, 6, v0")
        a("v_and_b32 v0, 63, v0")
        a(f"v_readfirstlane_b32 {self.sWave}, v1")
        if self.prof:
            a("s_waitcnt lgkmcnt(0)")
            a("v_mov_b32 v255, 0")
            a("v_writelane_b32 v255, s98, 50")
        self.body(self.sWave)
        i = 0
        while i < len(self.late):
            fn, args = self.late[i]; fn(*args); i += 1
        a.label(self.Lend)
        a("s_endpgm")

    def build(self):
        hdr = open('cdna_kernels/' + NAME + '.s.ref').read().split('\n')
        head = [l for l in hdr if l.startswith(';') and '@launch' not in l]
        out = list(head)
        K = NAME + '_kernel'
        out.append(f"; @launch grid=(256,1,1) block=(512,1,1) lds={LDS_END_MARK if self.o.get('mark') else LDS_END}")
        out.append('.amdgcn_target "amdgcn-amd-amdhsa--gfx950"')
        out.append('.text')
        self.kernel(K)
        body = self.a.finalize()
        print(f"{K}: {len(self.a.lines)} lines, nops {self.a.nops}", file=sys.stderr)
        out.append(body)
        out.append('.section .rodata,"a"')
        out.append(f""".p2align 6
.amdhsa_kernel {K}
  .amdhsa_next_free_vgpr 256
  .amdhsa_next_free_sgpr 102
  .amdhsa_accum_offset 256
  .amdhsa_group_segment_fixed_size 0
  .amdhsa_kernarg_size 112
  .amdhsa_user_sgpr_count 2
  .amdhsa_user_sgpr_kernarg_segment_ptr 1
  .amdhsa_system_sgpr_workgroup_id_x 1
.end_amdhsa_kernel""")
        return '\n'.join(out) + '\n'


if __name__ == '__main__':
    import argparse, ast
    ap = argparse.ArgumentParser()
    ap.add_argument('--prof', action='store_true')
    ap.add_argument('--opt', action='append', default=[])
    ap.add_argument('-o', required=True)
    args = ap.parse_args()
    opts = {}
    for kv in args.opt:
        k, v = kv.split('=', 1)
        try: v = ast.literal_eval(v)
        except Exception: pass
        opts[k] = v
    g = Gen(args.prof or bool(opts.get('dbgprof')), opts)
    s = g.build()
    open(args.o, 'w').write(s)
```

```python
import sys, re, os
sys.path.insert(0, 'gen')
from asmlib import *

NAME = 'standalone__molecular_angular_gemnet__graph'

E = 160000; T = 2560000
MAGIC = 6871948
CB_CNT, FAIL, TKT = 8, 16, 24
CC = 64
WSC = 512
EPW = 1024
STG = 3072
PB = 19456
PBS = 492
HDR = 188
BYT = 388
DUMP = 96
CB = PB
GS = 1552
CAP = 192
LDS_END = PB + 256 * PBS
NLINE = 4
WSB = NLINE * 256 * 32768
LIM = 0x9C400000
MARK = 0xFFFFE8FF
LDS_END_MARK = CB + 88 * GS
INV = 0xFFFFFFFF
GUARD = 1300
OOB = '1.0'
PROF_OFF = 100 << 20
INV2PI = 0x3e22f983
NBLK = 6
NPOS = 30
import struct
def f32(x): return struct.unpack('<I', struct.pack('<f', x))[0]


class Gen:
    def __init__(self, prof=False, opts=None):
        self.prof = prof
        self.o = dict(poll_max=60000, ldflags='', tupflags='sc1', stflags='sc1', outflags='sc1', force_fail=False,
                      up=3, dg=4, nr=6, gate='ack0', pins=(8, 9, 10, 11), psec=16, pwait=22,
                      lima=80000, psleep=1, gmask=0xffffffe0, mat='gap', optblk=4,
                      q0n=3, q1n=6, l1s=('pre', 'post', 'post', 'post'), l2s='post', ppl=(2, 3, 4, 5),
                      pf=None, pfat=('post0',), pfmode='id', pfflags='', tlbw=0, rbfat='gap', gapat='pre', sat='loop')
        if opts: self.o.update(opts)
        self.a = Asm()

    def stamp(self, idx):
        if not self.prof: return
        a = self.a
        a(f"s_memrealtime {self.sT64}")
        a("s_waitcnt lgkmcnt(0)")
        a(f"v_writelane_b32 {self.vProf}, {self.sT64[0]}, {idx}")

    def stamp_dyn(self, sidx):
        if not self.prof: return
        a = self.a
        a(f"s_memrealtime {self.sT64}")
        a("s_waitcnt lgkmcnt(0)")
        a(f"s_mov_b32 m0, {sidx}")
        a(f"s_nop 3")
        a(f"v_writelane_b32 {self.vProf}, {self.sT64[0]}, m0")

    def prof_store(self, wave_sgpr):
        if not self.prof: return
        a = self.a
        a(f"s_mul_i32 {self.sT64[0]}, s2, 12")
        a(f"s_add_u32 {self.sT64[0]}, {self.sT64[0]}, {wave_sgpr}")
        a(f"s_lshl_b32 {self.sT64[0]}, {self.sT64[0]}, 8")
        a(f"s_add_u32 {self.sT64[0]}, {self.sT64[0]}, {PROF_OFF}")
        a(f"v_mbcnt_lo_u32_b32 v1, -1, 0")
        a(f"v_mbcnt_hi_u32_b32 v1, -1, v1")
        a(f"v_lshlrev_b32 v1, 2, v1")
        a(f"v_add_u32 v1, {self.sT64[0]}, v1")
        a(f"s_mov_b64 exec, -1")
        a(f"global_store_dword v1, {self.vProf}, s[30:31]")

    def lds_spin(self, off, target, vt, vzero, st):
        a = self.a
        L = a.newlabel('spin')
        Lx = a.newlabel('spinx')
        a.label(L)
        a(f"ds_read_b32 {vt}, {vzero} offset:{off}")
        a("s_waitcnt lgkmcnt(0)")
        a(f"v_readfirstlane_b32 {st}, {vt}")
        a(f"s_cmp_ge_u32 {st}, {target}")
        a(f"s_cbranch_scc1 {Lx}")
        a("s_sleep 1")
        a(f"s_branch {L}")
        a.label(Lx)

    def lds_arrive(self, off, vzero, vone):
        a = self.a
        a("s_mov_b64 exec, 1")
        a(f"ds_add_u32 {vzero}, {vone} offset:{off}")
        a("s_mov_b64 exec, -1")

    def srd(self, reg, src, n):
        a = self.a
        a(f"s_mov_b32 {reg[0]}, s{src}")
        a(f"s_mov_b32 {reg[1]}, s{src+1}")
        a(f"s_mov_b32 {reg[2]}, {n}")
        a(f"s_mov_b32 {reg[3]}, 0x00020000")

    def vm_issue(self, tag, optional=False):
        self.a.lines.append(f"; @ISSUE{'?' if optional else ''} {tag}")

    def vm_wait(self, tag, linear=False):
        self.a.lines.append(f"; @WAIT{'L' if linear else ''} {tag}")

    def resolve_vm(self, start, end):
        lines = self.a.lines
        n = end - start
        for i in range(len(lines)):
            l = lines[i]
            if l.startswith("; @WAITL "):
                tag = l.split()[2]
                cnt = 0; found = False
                for back in range(i - 1, -1, -1):
                    ll = lines[back]
                    if ll.startswith("; @ISSUE"):
                        if ll.split()[2] == tag:
                            found = True; break
                        if not ll.startswith("; @ISSUE?"): cnt += 1
                assert found, tag
                lines[i] = f"s_waitcnt vmcnt({min(cnt, 63)})"
            elif l.startswith("; @WAIT "):
                assert start <= i < end
                tag = l.split()[2]
                cnt = 0; found = False
                pos = i - start
                for back in range(1, n + 1):
                    ll = lines[start + (pos - back) % n]
                    if ll.startswith("; @ISSUE"):
                        if ll.split()[2] == tag:
                            found = True; break
                        if not ll.startswith("; @ISSUE?"): cnt += 1
                assert found, tag
                lines[i] = f"s_waitcnt vmcnt({min(cnt, 63)})"

    def body(self, sW):
        a = self.a
        o = self.o
        DG = o['dg']; NR = o['nr']
        assert NPOS % NR == 0 and DG <= NR - 1 and DG <= 8
        V = Alloc('v', 2, 255)
        S = Alloc('s', 62, 98)
        vLane = Reg('v', 0)
        sM = Reg('s', 32, 4); sIN = Reg('s', 36, 4); sOI = Reg('s', 40, 4); sDI = Reg('s', 44, 4)
        sAN = Reg('s', 48, 4); sOUT = Reg('s', 52, 4); sWS = Reg('s', 56, 4)
        pCEN = Reg('s', 14, 2); pWR = Reg('s', 18, 2); pWS = Reg('s', 20, 2); pWD = Reg('s', 22, 2)
        pWU = Reg('s', 24, 2); pDBG = Reg('s', 28, 2)
        vZero = V('zero'); vOne = V('one')
        acc = [[V(f'acc{j}{l}', 4) for l in range(2)] for j in range(5)]
        Wa = V('wa', 4); Wb = V('wb', 4)
        rbfB = [V(f'rbf{j}', 2) for j in range(5)]
        Mr = [V(f'mr{j}', 2) for j in range(5)]
        vMoff = V('moff'); vLine = V('line'); vSel = V('sel'); vCB = V('cb')
        wraw = V('wraw', 2); dd = [V(f'dd{j}') for j in range(5)]; cenr = V('cenr', 2); raw = V('raw', 4)
        Ln12 = [[V(f'ln{l}{i}', 4) for i in range(4)] for l in (1, 2)]
        vTag = V('tag'); vSt = V('stv'); vPf = V('pf'); vPfD = V('pfd')
        mk0 = V.mark()
        st = S('st'); st2 = S('st2'); so = S('so')
        sFail = Reg('s', 61); sPoll = S('poll'); sG0 = S('g0'); sE0 = S('e0')
        sNegT = S('negT'); sLim = S('lim'); sLimA = S('lima'); sGS = S('gs'); sHi = S('hi')
        sSrc = S('src'); sM24 = S('m24'); sPf = S('pf'); so2 = S('so2')
        sL2 = [Reg('s', 0, 2), Reg('s', 44, 2), Reg('s', 46, 2), S('l2d', 2)]
        smk0 = S.mark()
        Q = [dict(i=V(f'q{k}i', 4), o=V(f'q{k}o', 4), a=V(f'q{k}a', 2)) for k in range(5)]
        tb = V('tb', 4)
        tmp = [dict(mk=V(f'mk{s}', 4), sh=V(f'sh{s}', 4), old=V(f'old{s}', 4), by=V(f'by{s}', 4), inc=V(f'inc{s}', 4))
               for s in range(2)]
        vOffQ = V('offq'); vOffA = V('offa'); vPB = V('pb'); vC2048 = V('c2048'); vi = V('vi', 4); vt = V('vt'); vt2 = V('vt2')
        vRd = V('rd'); vRb = V('rb'); vRh = V('rh')
        Ln = [[V(f'ln0{i}', 4) for i in range(4)]] + Ln12
        Hd = [V(f'hd{i}') for i in range(4)]
        print('phase 1/2 vgprs', V.high, file=sys.stderr)
        sMagic = S('magic'); sNeg = S('neg'); s492 = S('c492'); sLimIn = S('limin'); sK18 = S('k18'); sCq = S('cq')
        sOffI = S('offi'); sOffA = S('offa'); sLast = S('last', 2)
        sm = [Reg('s', 4 + 2 * k, 2) for k in range(4)]
        sm4 = Reg('s', 12, 2)
        ld = o['ldflags']
        self.vmseq = []

        def load_part(k, part):
            q = Q[k]
            if part == 0:
                a(f"s_add_u32 {so}, {sOffI}, {k * 1024}")
                a(f"buffer_load_dwordx4 {q['o']}, {vOffQ}, {sOI}, {so} offen {ld}")
            elif part == 1:
                a(f"s_add_u32 {so}, {sOffI}, {k * 1024}")
                a(f"buffer_load_dwordx4 {q['i']}, {vOffQ}, {sIN}, {so} offen {ld}")
            else:
                a(f"s_add_u32 {so}, {sOffA}, {k * 512}")
                a(f"buffer_load_dwordx2 {q['a']}, {vOffA}, {sAN}, {so} offen {ld}")
            self.vmseq.append(f'Q{k}')

        def load_quad(k):
            if k == 4: a(f"s_mov_b64 exec, {sLast}")
            for part in range(3): load_part(k, part)
            if k == 4: a(f"s_mov_b64 exec, -1")

        def wait_for(tag):
            last = max(i for i, x in enumerate(self.vmseq) if x == tag)
            cnt = sum(1 for x in self.vmseq[last + 1:] if not x.endswith('?'))
            a(f"s_waitcnt vmcnt({min(cnt, 63)})")

        a(f"s_mul_i32 {st}, {sW}, 5120")
        a(f"v_lshlrev_b32 {vOffQ}, 4, {vLane}")
        a(f"v_add_u32 {vOffQ}, {st}, {vOffQ}")
        a(f"v_lshrrev_b32 {vOffA}, 1, {vOffQ}")
        a(f"s_mul_i32 {sOffI}, s2, 40000")
        a(f"s_mul_i32 {sOffA}, s2, 20000")
        a(f"s_cmp_eq_u32 {sW}, 7")
        a(f"s_cselect_b64 {sLast}, 15, -1")
        a(f"s_mul_i32 {sE0}, s2, 625")
        a(f"s_mul_i32 {st}, {sW}, 80")
        a(f"s_add_u32 {sE0}, {sE0}, {st}")
        a("s_waitcnt lgkmcnt(0)")
        self.stamp(51)
        self.srd(sOI, 8, T * 4); self.srd(sIN, 6, T * 4); self.srd(sAN, 12, T * 2)
        up = o['up']
        parts = [(k, part) for k in range(up) for part in range(3)]
        q0n = o['q0n']
        for k, part in parts[:q0n]: load_part(k, part)
        a(f"s_mov_b32 {sG0}, s100")
        if o.get('mark'):
            a(f"s_mov_b32 {st}, 0x{MARK:x}")
            for i in range(4): a(f"v_add_u32 {vi[i]}, {i}, {vLane}")
            for i in range(4): a(f"v_and_b32 {vi[i]}, 3, {vi[i]}")
            for i in range(4): a(f"v_lshl_or_b32 {vi[i]}, {vi[i]}, 8, {st}")
        else:
            for i in range(4): a(f"v_mov_b32 {vi[i]}, -1")
        a(f"s_mul_i32 {st}, {sW}, {32 * PBS}")
        a(f"s_add_u32 {st}, {st}, {PB}")
        a(f"v_lshlrev_b32 {vt}, 4, {vLane}")
        a(f"v_add_u32 {vt2}, {st}, {vt}")
        for i in range(15):
            a(f"ds_write_b128 {vt2}, {vi} offset:{i*1024}")
        a(f"s_mov_b64 exec, 0xffffff")
        a(f"ds_write_b128 {vt2}, {vi} offset:{15*1024}")
        a(f"s_mov_b32 exec_lo, -1")
        a(f"s_mov_b32 exec_hi, 0")
        a(f"s_movk_i32 {s492}, {PBS}")
        a(f"v_mov_b32 {vPB}, {st}")
        a(f"v_mad_u32_u24 {vt2}, {vLane}, {s492}, {vPB}")
        a(f"v_mov_b32 {vi[0]}, {1 << 18}")
        a(f"ds_write_b32 {vt2}, {vi[0]} offset:{HDR}")
        a(f"s_mov_b64 exec, -1")
        for i in range(4): a(f"v_mov_b32 {vi[i]}, 0")
        a(f"s_lshl_b32 {st}, {sW}, 11")
        a(f"s_add_u32 {st}, {st}, {STG}")
        a(f"v_add_u32 {vt2}, {st}, {vt}")
        a(f"ds_write_b128 {vt2}, {vi}")
        a(f"ds_write_b128 {vt2}, {vi} offset:1024")
        Lz = a.newlabel('z')
        a(f"s_cmp_lg_u32 {sW}, 0")
        a(f"s_cbranch_scc1 {Lz}")
        a(f"v_lshlrev_b32 {vt2}, 3, {vLane}")
        a(f"ds_write_b64 {vt2}, {vi[0:2]}")
        a.label(Lz)
        a(f"v_mov_b32 {vOne}, 1")
        a(f"v_mov_b32 {vPB}, {PB}")
        a(f"v_mov_b32 {vC2048}, 0x{f32(2048.0):x}")
        a(f"s_mov_b32 {sCq}, 0x{f32(2047.5):x}")
        a(f"s_mov_b32 {sMagic}, {MAGIC}")
        a(f"s_movk_i32 {sNeg}, -10000")
        a(f"s_mov_b32 {sLimIn}, {o['lima'] - 1}")
        a(f"s_mov_b32 {sK18}, {1 << 18}")
        a(f"s_mov_b32 {sHi}, 0xffff0000")
        a("s_waitcnt lgkmcnt(0)")
        a("s_barrier")
        self.stamp(1)
        q1n = max(q0n, o['q1n'])
        for k, part in parts[q0n:q1n]: load_part(k, part)
        self.srd(sM, 4, E * 32); self.srd(sDI, 10, E * 2); self.srd(sOUT, 26, E * 32); self.srd(sWS, 30, WSB)
        a(f"v_mov_b32 {vZero}, 0")
        a(f"v_mov_b32 {vCB}, {CB}")
        a(f"s_mov_b32 {sLim}, 0x{LIM:x}")
        a(f"s_mov_b32 {sLimA}, 0x{o['lima'] << 14:x}")
        a(f"s_movk_i32 {sGS}, {GS}")
        a(f"s_mov_b32 {sM24}, 0x00ffffff")
        a(f"s_lshl_b32 {sSrc}, s2, 7")
        a(f"s_mov_b32 {sFail}, {1 if o['force_fail'] else 0}")
        a("s_lshr_b64 s[100:101], s[100:101], 8")
        a(f"s_sub_u32 {sNegT}, 3, s100")
        a(f"s_lshl_b32 {st}, s100, 8")
        a(f"s_xor_b32 {st}, {st}, s100")
        a(f"s_lshl_b32 {st2}, {st}, 16")
        a(f"s_xor_b32 {st}, {st}, {st2}")
        a(f"v_and_b32 {vt}, 3, {vLane}")
        a(f"v_lshlrev_b32 {vt}, 3, {vt}")
        a(f"v_lshrrev_b32 {vTag}, {vt}, {st}")
        a(f"v_lshlrev_b32 {vTag}, 24, {vTag}")
        a(f"v_mov_b32 {vt2}, 15")
        a(f"v_lshlrev_b32 {vt2}, {vt}, {vt2}")
        a(f"v_xor_b32 {vSel}, 0x0c0c0c0c, {vt2}")
        a(f"v_lshrrev_b32 {vt}, 3, {vLane}")
        a(f"s_lshl_b32 {st}, {sW}, 5")
        a(f"v_add_u32 {vt}, {st}, {vt}")
        a(f"v_and_b32 {vt2}, 7, {vLane}")
        a(f"v_mad_u32_u24 {vRh}, {vt}, {s492}, {vPB}")
        a(f"v_mad_u32_u24 {vRd}, {vt2}, 12, {vRh}")
        a(f"v_mad_u32_u24 {vRb}, {vt2}, 3, {vRh}")
        a(f"v_lshlrev_b32 {vSt}, 15, {vt}")
        a(f"v_lshl_add_u32 {vSt}, {vt2}, 4, {vSt}")
        a(f"s_lshl_b32 {st}, {sW}, 12")
        a(f"v_lshlrev_b32 {vLine}, 4, {vLane}")
        a(f"v_add_u32 {vLine}, {st}, {vLine}")
        if o['tlbw']:
            a(f"s_lshl_b32 {st}, {sW}, 22")
            a(f"v_lshlrev_b32 {vt}, 20, {vLane}")
            a(f"v_add_u32 {vt}, {st}, {vt}")
            a(f"v_cmp_gt_u32 vcc, 4, {vLane}")
            a(f"v_cndmask_b32 {vt}, {OOB}, {vt}, vcc")
            a(f"buffer_load_dword {vPfD}, {vt}, {sWS}, 0 offen")
            self.vmseq.append('tlb')
        PF = o['pf']
        if PF:
            pfl = PF; pfi = len(o['pfat'])
            a(f"v_lshlrev_b32 {vPf}, 7, {vLane}")
            if pfl < 64:
                a(f"v_cmp_gt_u32 vcc, {pfl}, {vLane}")
                a(f"v_cndmask_b32 {vPf}, {OOB}, {vPf}, vcc")
            a(f"s_lshr_b32 {sPf}, s2, 3")
            if o['pfmode'] == 'xcc':
                Lt = a.newlabel('tk')
                a(f"s_cmp_lg_u32 {sW}, 0")
                a(f"s_cbranch_scc1 {Lt}")
                a(f"s_getreg_b32 {st}, hwreg(HW_REG_XCC_ID, 0, 3)")
                a(f"s_lshl_b32 {st}, {st}, 3")
                a(f"v_mov_b32 {vPfD}, {st}")
                a(f"s_mov_b64 exec, 1")
                a(f"global_atomic_add {vPfD}, {vPfD}, {vOne}, {pDBG} offset:128 sc0")
                a(f"s_mov_b64 exec, -1")
                a.label(Lt)
                self.vmseq.append('tk?')
        for j in range(5):
            for l in range(2):
                for i in range(4): a(f"v_mov_b32 {acc[j][l][i]}, 0")
        for k, part in parts[q1n:]: load_part(k, part)
        n_ = vt; q_ = vt2; t3 = tb[0]
        a(f"v_and_b32 {n_}, 15, {vLane}")
        a(f"v_lshrrev_b32 {q_}, 4, {vLane}")
        a(f"v_lshlrev_b32 {t3}, 3, {vLane}")
        a(f"global_load_dwordx2 {wraw}, {t3}, {pWD}")
        a(f"v_add_u32 {t3}, {sE0}, {n_}")
        a(f"v_lshlrev_b32 {vMoff}, 5, {t3}")
        a(f"v_lshl_add_u32 {vMoff}, {q_}, 3, {vMoff}")
        a(f"v_lshlrev_b32 {t3}, 1, {t3}")
        for j in range(5):
            a(f"buffer_load_ushort {dd[j]}, {t3}, {sDI}, 0 offen offset:{j*32}")
        a(f"v_lshlrev_b32 {t3}, 3, {q_}")
        a(f"v_and_b32 {t3}, 8, {t3}")
        a(f"global_load_dwordx2 {cenr}, {t3}, {pCEN}")
        Lw = [a.newlabel('ew') for _ in range(4)]; Lwx = a.newlabel('ewx')
        a(f"s_and_b32 {st2}, {sW}, 3")
        a(f"s_cmp_eq_u32 {st2}, 3")
        a(f"s_cbranch_scc1 {Lw[3]}")
        a(f"s_cmp_eq_u32 {st2}, 2")
        a(f"s_cbranch_scc1 {Lw[2]}")
        a(f"v_and_b32 {t3}, 1, {q_}")
        a(f"v_lshlrev_b32 {t3}, 8, {t3}")
        a(f"v_lshl_add_u32 {t3}, {n_}, 1, {t3}")
        a(f"s_lshl_b32 {st}, {st2}, 5")
        a(f"v_add_u32 {t3}, {st}, {t3}")
        for jj in range(4):
            a(f"global_load_ushort {raw[jj]}, {t3}, {pWS} offset:{jj*64}")
        a(f"s_branch {Lwx}")
        a.label(Lw[2])
        a(f"v_and_b32 {t3}, 1, {q_}")
        a(f"v_lshlrev_b32 {t3}, 7, {t3}")
        a(f"v_lshl_add_u32 {t3}, {n_}, 1, {t3}")
        for jj in range(4):
            a(f"global_load_ushort {raw[jj]}, {t3}, {pWR} offset:{jj*32}")
        a(f"s_branch {Lwx}")
        a.label(Lw[3])
        a(f"v_lshlrev_b32 {t3}, 7, {q_}")
        a(f"v_lshl_add_u32 {t3}, {n_}, 1, {t3}")
        for jj in range(4):
            a(f"global_load_ushort {raw[jj]}, {t3}, {pWU} offset:{jj*32}")
        a.label(Lwx)
        self.vmseq += ['sm'] * 11
        if o['mat'] == 'start':
            for jj in range(5):
                a(f"buffer_load_dwordx2 {Mr[jj]}, {vMoff}, {sM}, 0 offen offset:{jj*512}")
            self.vmseq += ['mr'] * 5
        self.stamp(53)
        def pre(k, s):
            q = Q[k]; w0 = q['i']; wb = q['o']; an = q['a']; t = tmp[s]
            mk, sh, old, by, inc = t['mk'], t['sh'], t['old'], t['by'], t['inc']
            if k == 4: a(f"s_mov_b64 exec, {sLast}")
            for j in range(4): a(f"v_mul_hi_u32_u24 {tb[j]}, {sMagic}, {wb[j]}")
            for j in range(4):
                if j & 1: a(f"v_and_b32 {by[j]}, {sHi}, {an[j >> 1]}")
                else: a(f"v_lshlrev_b32 {by[j]}, 16, {an[j >> 1]}")
            for j in range(4): a(f"v_sub_u32 {mk[j]}, {sLimIn}, {w0[j]}")
            for j in range(4): a(f"v_mul_f32 {by[j]}, 0x{INV2PI:x}, {by[j]}")
            for j in range(4): a(f"v_lshlrev_b32 {wb[j]}, 4, {wb[j]}")
            for j in range(4): a(f"v_ashrrev_i32 {mk[j]}, 31, {mk[j]}")
            for j in range(4): a(f"v_fract_f32 {by[j]}, {by[j]}")
            for j in range(4): a(f"v_mad_i32_i24 {wb[j]}, {tb[j]}, {sNeg}, {wb[j]}")
            for j in range(4): a(f"v_and_b32 {sh[j]}, 9, {mk[j]}")
            for j in range(4): a(f"v_cos_f32 {by[j]}, {by[j]}")
            for j in range(4): a(f"v_lshl_or_b32 {w0[j]}, {w0[j]}, 14, {wb[j]}")
            for j in range(4): a(f"v_lshl_or_b32 {inc[j]}, {vOne}, {sh[j]}, {sK18}")
            for j in range(4): a(f"v_mad_u32_u24 {wb[j]}, {tb[j]}, {s492}, {vPB}")
            if k >= 2: a("s_waitcnt lgkmcnt(8)")
            for j in range(4): a(f"ds_add_rtn_u32 {old[j]}, {wb[j]}, {inc[j]} offset:{HDR}")
            for j in range(4): a(f"v_fma_f32 {by[j]}, {by[j]}, {sCq}, {vC2048}")
            for j in range(4): a(f"v_cvt_u32_f32 {by[j]}, {by[j]}")
            for j in range(4): a(f"v_and_or_b32 {w0[j]}, {by[j]}, 15, {w0[j]}")
            for j in range(4): a(f"v_lshrrev_b32 {by[j]}, 4, {by[j]}")
            if k == 4: a(f"s_mov_b64 exec, -1")

        def post(k, s):
            q = Q[k]; w0 = q['i']; wb = q['o']; t = tmp[s]
            mk, sh, old, by, inc = t['mk'], t['sh'], t['old'], t['by'], t['inc']
            if k == 4: a(f"s_mov_b64 exec, {sLast}")
            for j in range(4): a(f"v_bfe_u32 {sh[j]}, {old[j]}, {sh[j]}, 9")
            for j in range(4): a(f"v_and_b32 {inc[j]}, 47, {mk[j]}")
            for j in range(4): a(f"v_lshrrev_b32 {old[j]}, 18, {old[j]}")
            for j in range(4): a(f"v_xad_u32 {sh[j]}, {sh[j]}, {mk[j]}, {inc[j]}")
            for j in range(4):
                a(f"v_cmp_le_u32 {sm[j]}, 48, {old[j]}")
            for j in range(4):
                a(f"v_cndmask_b32 {sh[j]}, {sh[j]}, {old[j]}, {sm[j]}")
            for j in range(4): a(f"v_min_u32 {sh[j]}, {DUMP}, {sh[j]}")
            for j in range(4): a(f"v_lshl_add_u32 {inc[j]}, {sh[j]}, 2, {wb[j]}")
            for j in range(4): a(f"v_add_u32 {sh[j]}, {sh[j]}, {wb[j]}")
            for j in range(4):
                a(f"ds_write_b32 {inc[j]}, {w0[j]}")
                a(f"ds_write_b8 {sh[j]}, {by[j]} offset:{BYT}")
            if k == 4: a(f"s_mov_b64 exec, -1")

        def pf_base():
            if o['pfmode'] == 'xcc':
                a(f"ds_read_b32 {vPfD}, {vZero} offset:{TKT}")
                a("s_waitcnt lgkmcnt(0)")
                a(f"v_readfirstlane_b32 {st}, {vPfD}")
                a(f"s_sub_u32 {st2}, {st}, 1")
                a(f"s_and_b32 {st2}, {st2}, 31")
                a(f"s_cmp_eq_u32 {st}, 0")
                a(f"s_cselect_b32 {sPf}, {sPf}, {st2}")
            a(f"s_mul_i32 {sPf}, {sPf}, {8 * pfl * pfi * 128}")
            a(f"s_mul_i32 {st}, {sW}, {pfl * pfi * 128}")
            a(f"s_add_u32 {sPf}, {sPf}, {st}")
            if o.get('pfoff'): a(f"s_add_u32 {sPf}, {sPf}, {o['pfoff']}")
            self.pf_based = True
        self.pfn = 0
        self.pf_based = False
        self.pf_base = pf_base
        def pf1(inloop=False):
            if not self.pf_based: pf_base()
            assert self.pfn < pfi
            a(f"buffer_load_dword {vPfD}, {vPf}, {sM}, {sPf} offen {o['pfflags']}")
            a(f"s_add_u32 {sPf}, {sPf}, {pfl * 128}")
            if not inloop: self.vmseq.append('pf')
            self.vm_issue(f'pf{self.pfn}', optional=inloop)
            self.pfn += 1
        self.pf1 = pf1
        def pf_at(where):
            if not PF: return
            for w in o['pfat']:
                if w == where: pf1()
        self.pf_at = pf_at
        def ticket_publish():
            Lt = a.newlabel('tkp')
            a(f"s_cmp_lg_u32 {sW}, 0")
            a(f"s_cbranch_scc1 {Lt}")
            last = max(i for i, x in enumerate(self.vmseq) if x == 'tk?')
            a(f"s_waitcnt vmcnt({min(sum(1 for x in self.vmseq[last + 1:]), 63)})")
            a(f"v_add_u32 {vPfD}, 1, {vPfD}")
            a(f"s_mov_b64 exec, 1")
            a(f"ds_write_b32 {vZero}, {vPfD} offset:{TKT}")
            a(f"s_mov_b64 exec, -1")
            a.label(Lt)
        nxt = up
        for k in range(5):
            wait_for(f'Q{k}')
            if k == 0: self.stamp(2)
            pre(k, k & 1)
            if nxt < 5:
                load_quad(nxt); nxt += 1
            if PF and o['pfmode'] == 'xcc' and k == o.get('tkat', 1): ticket_publish()
            pf_at(f'k{k}')
            if k > 0:
                a("s_waitcnt lgkmcnt(4)" if k == 1 else "s_waitcnt lgkmcnt(4)")
                post(k - 1, (k - 1) & 1)
        a("s_waitcnt lgkmcnt(0)")
        post(4, 0)
        self.stamp(3)
        a("s_waitcnt lgkmcnt(0)")
        a("s_barrier")
        self.stamp(4)

        stf = o['stflags']
        wait_for('sm')
        L1S = list(o['l1s']); L2S = o['l2s']
        aW = [tmp[0]['mk'][i] for i in range(4)]
        aB = [tmp[0]['sh'][i] for i in range(4)]
        TP = [[Reg('v', Q[l]['i'].i + 2 * it, 2) for it in range(4)] for l in range(3)]
        for l in range(3): assert Q[l]['o'].i == Q[l]['i'].i + 4
        a(f"v_and_b32 {aB[0]}, -4, {vRb}")
        a(f"v_add_u32 {aB[0]}, {BYT}, {aB[0]}")
        a(f"v_mov_b32 {aW[0]}, {vRd}")
        for it in range(1, 4):
            a(f"v_add_u32 {aW[it]}, {it * 8 * PBS}, {vRd}")
            a(f"v_add_u32 {aB[it]}, {it * 8 * PBS}, {aB[0]}")
        def rd(l, it):
            L = Ln[l][it]
            a(f"ds_read2_b32 {L[0:2]}, {aW[it]} offset0:{l * 24} offset1:{l * 24 + 1}")
            a(f"ds_read_b32 {L[2]}, {aW[it]} offset:{l * 96 + 8}")
            a(f"ds_read2_b32 {TP[l][it]}, {aB[it]} offset0:{l * 6} offset1:{l * 6 + 1}")
        def tag(l, it):
            a(f"v_alignbyte_b32 {Ln[l][it][3]}, {TP[l][it][1]}, {TP[l][it][0]}, {vRb}")
            a(f"v_bfi_b32 {Ln[l][it][3]}, {sM24}, {Ln[l][it][3]}, {vTag}")
        def store(l, it, name=None):
            a(f"s_add_u32 {so2}, {sSrc}, {(l * 256 + it * 8) << 15}")
            a(f"buffer_store_dwordx4 {Ln[l][it]}, {vSt}, {sWS}, {so2} offen {stf}")
            if name: self.vmseq.append(name)
        def store2(optional_tag=None):
            for it in range(4):
                Ls = a.newlabel('s2')
                a(f"s_cmp_eq_u64 {sL2[it]}, 0")
                a(f"s_cbranch_scc1 {Ls}")
                a(f"s_mov_b64 exec, {sL2[it]}")
                store(2, it)
                a(f"s_mov_b64 exec, -1")
                a.label(Ls)
        self.store_l = store; self.store2 = store2
        for it in range(4): rd(0, it)
        a("s_waitcnt lgkmcnt(6)")
        for it in range(2): tag(0, it)
        store(0, 0, 'L0')
        for it in range(2): rd(1, it)
        store(0, 1, 'L0')
        a("s_waitcnt lgkmcnt(6)")
        for it in range(2, 4): tag(0, it)
        store(0, 2, 'L0')
        store(0, 3, 'L0')
        pf_at('post0')
        for it in range(2, 4): rd(1, it)
        a("s_waitcnt lgkmcnt(6)")
        for it in range(4): a(f"ds_read_b32 {Hd[it]}, {vRh} offset:{it * 8 * PBS + HDR}")
        rd(2, 0)
        a("s_waitcnt lgkmcnt(3)")
        for it in range(1, 4): rd(2, it)
        self.stamp(5)
        a(f"s_mov_b32 {st}, {49 << 18}")
        a(f"s_mov_b32 {st2}, {73 << 18}")
        for it in range(4): a(f"v_cmp_le_u32 {sL2[it]}, {st}, {Hd[it]}")
        a(f"v_max3_u32 {vt}, {Hd[0]}, {Hd[1]}, {Hd[2]}")
        a(f"v_max_u32 {vt}, {vt}, {Hd[3]}")
        a(f"v_cmp_le_u32 vcc, {st2}, {vt}")
        for it in range(4): tag(1, it)
        a("s_waitcnt lgkmcnt(0)")
        for it in range(4): tag(2, it)
        a(f"s_cbranch_vccnz p_rare")
        a.label("p_rare_back")
        self.late.append((self._p_rare, (Hd, aW, aB, TP[0][0], vRb, vSt, vTag, sM24, sSrc, so2, st2, sWS, Ln[0][0])))
        if o['mat'] == 'gap':
            for jj in range(5):
                a(f"buffer_load_dwordx2 {Mr[jj]}, {vMoff}, {sM}, 0 offen offset:{jj*512}")
            self.vmseq += ['mr'] * 5
        a("s_barrier")
        for it in range(4):
            if L1S[it] == 'pre': store(1, it, 'L1')
        if L2S == 'pre': store2()
        pf_at('gap')
        self.stamp(6)

        V.reset(mk0); S.reset(smk0)
        rows = [V(f'row{i}', 4) for i in range(NR)]
        X = [V(f'x{i}', 4) for i in range(4)]
        D1 = [V(f'd1{i}', 4) for i in range(2)]
        Bq = [[V(f'b{s}{l}', 4) for l in range(2)] for s in range(2)]
        vT = V('tup', 2)
        vIdx = V('idx'); vOff = V('off'); vTau = [V(f'tau{b}') for b in range(NBLK)]; vHalf = V('half16')
        vIdxC = V('idxc'); vIdxN = V('idxn'); vTupC = V('tupc'); vTupN = V('tupn')
        vAddr = V('addr'); vC0 = V('c0'); vC1 = V('c1'); vK = V('k'); vBrd = V('brd'); vK2 = V('k2')
        vCntA = V('cnta'); vC = V('c')
        tt = [V(f'tt{i}') for i in range(12)]
        if o['sat'] == 'pre': X0 = [V(f'y{i}', 4) for i in range(4)]
        else: X0 = rows[0:4]
        self.c3 = V('c3', 4)
        INEP = o.get('inep')
        if INEP:
            eU = V('eu', 4); eM = V('em', 4); eA = V('ea', 2)
        print('phase 3 vgprs', V.next, file=sys.stderr)
        sCnt = [S(f'cnt{j}') for j in range(5)]
        sCntN = [S(f'cntn{j}') for j in range(5)]
        sIt = S('it'); sF0 = S('mf0'); sNot31 = S('not31'); sK1 = S('k1'); sPoff = S('poff')
        sHiL = Reg('s', 24, 2); sHdr = Reg('s', 26, 2); sv = [Reg('s', 18 + 2 * h, 2) for h in range(3)]
        sMore = [Reg('s', 4 + 2 * k, 2) for k in range(4)]
        sSave = Reg('s', 12, 2); sX = Reg('s', 16, 2)
        self.c = dict(NegT=sNegT, Sel=vSel, Lim=sLim, LimA=sLimA, GS=sGS, vCB=vCB, vZero=vZero, vOne=vOne,
                      sFail=sFail, sPoll=sPoll, sWS=sWS, vLine=vLine, sPoff=sPoff, tt=tt, X=X, sMore=sMore,
                      sv=sv, sHdr=sHdr, st=st, st2=st2, sX=sX, sSave=sSave)
        t0, t1, t2, t3 = tt[0], tt[1], tt[2], tt[3]
        def gap_epw():
            Ln1 = a.newlabel('nd')
            a(f"s_and_b32 {st2}, {sW}, 3")
            a(f"s_cmp_lg_u32 {st2}, 1")
            a(f"s_cbranch_scc1 {Ln1}")
            for jj in range(4): a(f"v_lshlrev_b32 {raw[jj]}, 16, {raw[jj]}")
            for jj in range(4): a(f"v_add_f32 {raw[jj]}, {raw[jj]}, {raw[jj]}")
            for jj in range(4): a(f"v_lshrrev_b32 {raw[jj]}, 16, {raw[jj]}")
            a.label(Ln1)
            for h in range(2):
                a(f"v_lshl_or_b32 {raw[2*h]}, {raw[2*h + 1]}, 16, {raw[2*h]}")
            a(f"v_mov_b32 {raw[1]}, {raw[2]}")
            a(f"s_lshl_b32 {st}, {st2}, 9")
            a(f"v_lshl_add_u32 {tt[2]}, {vLane}, 3, {st}")
            a(f"ds_write_b64 {tt[2]}, {raw[0:2]} offset:{EPW}")
        def gap_rbf(js, cen):
            a(f"v_lshlrev_b32 {cen[0]}, 16, {cenr[0]}")
            a(f"v_and_b32 {cen[1]}, {sHi}, {cenr[0]}")
            a(f"v_lshlrev_b32 {cen[2]}, 16, {cenr[1]}")
            a(f"v_and_b32 {cen[3]}, {sHi}, {cenr[1]}")
            a(f"s_not_b64 {sX}, {sHiL}")
            for j in js:
                self.rbf_operand(dd[j], cen, rbfB[j], tt[4:], sX)
        def gap_work():
            a(f"v_and_b32 {t0}, 15, {vLane}")
            a(f"v_lshrrev_b32 {t1}, 4, {vLane}")
            a(f"v_lshrrev_b32 {t2}, 2, {t0}")
            a(f"v_lshlrev_b32 {t2}, 3, {t2}")
            a(f"v_and_b32 {t3}, 3, {t0}")
            a(f"v_add_u32 {vTau[0]}, {t2}, {t3}")
            a(f"v_lshrrev_b32 {t3}, 5, {vLane}")
            a(f"v_lshl_add_u32 {vTau[0]}, {t3}, 2, {vTau[0]}")
            for b in range(1, NBLK): a(f"v_add_u32 {vTau[b]}, {32 * b}, {vTau[0]}")
            a(f"v_and_b32 {t2}, 1, {t1}")
            a(f"v_lshlrev_b32 {vHalf}, 4, {t2}")
            vWr = vIdx
            a(f"v_lshlrev_b32 {vWr}, 4, {vHalf}")
            a(f"v_lshl_add_u32 {vWr}, {t0}, 1, {vWr}")
            a(f"s_mul_i32 {st}, {sW}, {10*GS}")
            a(f"s_add_u32 {st}, {st}, {CB}")
            a(f"v_lshlrev_b32 {vIdxC}, 3, {vTau[0]}")
            a(f"v_add_u32 {vIdxC}, {st}, {vIdxC}")
            a(f"v_add_u32 {vIdxN}, {GS}, {vIdxC}")
            a(f"v_and_b32 {t2}, 31, {vLane}")
            a(f"v_lshlrev_b32 {vTupC}, 3, {t2}")
            a(f"v_add_u32 {vTupC}, {st}, {vTupC}")
            a(f"v_add_u32 {vTupN}, {GS}, {vTupC}")
            a(f"s_lshl_b32 {st}, {sW}, 11")
            a(f"s_add_u32 {st}, {st}, {STG}")
            a(f"v_lshlrev_b32 {vBrd}, 4, {vLane}")
            a(f"v_add_u32 {vBrd}, {st}, {vBrd}")
            a(f"v_lshrrev_b32 {vK}, 3, {t2}")
            a(f"v_lshlrev_b32 {vK}, 8, {vK}")
            a(f"v_and_b32 {t2}, 7, {t2}")
            a(f"v_lshl_add_u32 {vK}, {t2}, 1, {vK}")
            a(f"v_lshl_add_u32 {vK}, {t3}, 10, {vK}")
            a(f"v_add_u32 {vK}, {st}, {vK}")
            a(f"v_min_u32 {vCntA}, 4, {vLane}")
            a(f"s_mul_i32 {st}, {sW}, 5")
            a(f"v_add_u32 {vCntA}, {st}, {vCntA}")
            a(f"v_lshlrev_b32 {vCntA}, 3, {vCntA}")
            a(f"s_mov_b32 {sF0}, 0xf0")
            a(f"s_mov_b32 {sNot31}, 0x{o['gmask']:x}")
            a(f"s_mov_b32 {sK1}, 0x{f32(1.0 / 2047.5):x}")
            a(f"v_mov_b32 {vK2}, 0x{f32((0.5 - 2048.0) / 2047.5):x}")
            a(f"s_mov_b32 {sHiL[0]}, 0")
            a(f"s_mov_b32 {sHiL[1]}, -1")
            a(f"s_mov_b32 {sHdr[0]}, 0x80808080")
            a(f"s_mov_b32 {sHdr[1]}, 0x80808080")
            a(f"v_lshlrev_b32 {t2}, 3, {vLane}")
            a(f"ds_write_b64 {t2}, {wraw} offset:{WSC}")
            wtmp = X[2]
            for i in range(4):
                a(f"ds_read_u16 {wtmp[i]}, {vWr} offset:{WSC + (2*i)*32}")
                a(f"ds_read_u16 {X[3][i]}, {vWr} offset:{WSC + (2*i+1)*32}")
            pf_at('gw1')
            if o['rbfat'] == 'gap':
                gap_epw()
                gap_rbf(range(5), X[0])
            wtmp = X[2]
            a(f"s_not_b64 {sX}, {sHiL}")
            a("s_waitcnt lgkmcnt(0)")
            for i in range(4):
                a(f"v_lshl_or_b32 {wtmp[i]}, {X[3][i]}, 16, {wtmp[i]}")
            for i in range(4):
                a(f"v_cndmask_b32 {Wa[i]}, 0, {wtmp[i]}, {sX}")
            for i in range(4):
                a(f"v_cndmask_b32 {Wb[i]}, 0, {wtmp[i]}, {sHiL}")
            pf_at('gw2')
            if PF and any(isinstance(w, int) for w in o['pfat']) and not self.pf_based: pf_base()
            self.stamp(7)
        if o['gapat'] == 'pre': gap_work()
        tf = o['tupflags']
        gate = o['gate']
        if gate == 'ack': a("s_waitcnt vmcnt(0)")
        elif gate == 'ack0': wait_for('L0')
        elif isinstance(gate, int) and gate > 0:
            Lg = a.newlabel('gate'); Lgx = a.newlabel('gatex')
            a(f"s_mov_b32 {sPoll}, 0")
            a.label(Lg)
            a("s_memrealtime s[14:15]")
            a("s_waitcnt lgkmcnt(0)")
            a(f"s_sub_u32 {st}, s14, {sG0}")
            a(f"s_cmp_ge_u32 {st}, {gate}")
            a(f"s_cbranch_scc1 {Lgx}")
            a(f"s_add_u32 {sPoll}, {sPoll}, 1")
            a(f"s_cmp_lt_u32 {sPoll}, 100000")
            a(f"s_cbranch_scc1 {Lg}")
            a.label(Lgx)
        self.stamp(8)
        a(f"s_lshl_b32 {sPoff}, s2, 15")
        def load_line(dst, l, k, tag=None, optional=False):
            if l == 0:
                a(f"buffer_load_dwordx4 {dst}, {vLine}, {sWS}, {sPoff} offen offset:{k*1024} {tf}")
            else:
                a(f"s_add_u32 {st}, {sPoff}, {(l * 256) << 15}")
                a(f"buffer_load_dwordx4 {dst}, {vLine}, {sWS}, {st} offen offset:{k*1024} {tf}")
            if tag: self.vm_issue(tag, optional)
        def stores_at(where):
            for it in range(4):
                if L1S[it] == where:
                    store(1, it)
                    self.vm_issue(f'L1{it}', optional=isinstance(where, int))
            if L2S == where: store2()
        for k in range(4): load_line(X0[k], 0, k, f'Z{k}')
        stores_at('post')
        pf_at('z')
        if o['gapat'] == 'post': gap_work()
        if 'val' in L1S or L2S == 'val':
            for k in range(4):
                self.vm_wait(f'Z{k}', linear=True)
                if k == 0: self.stamp(9)
                self.checked(X0[k], 0, k, f'z{k}')
            pf_at('z0')
            stores_at('val')
            pf_at('val')
            for k in range(4): self.insert(X0[k], 0)
        else:
            PRE = o['ppl'] if isinstance(o['ppl'], str) else None
            if o.get('pipe0'):
                assert PRE is None and o['sat'] != 'pre'
                sets = [(sv, tt[0:3], tt[3:6], tt[6:9]),
                        (sMore[0:3], [X[0][i] for i in range(3)], [X[1][i] for i in range(3)], [X[2][i] for i in range(3)])]
                sZ = so2
                def W(n, name):
                    if o.get('mark'):
                        a(f"s_waitcnt lgkmcnt({n})")
                        return
                    a(f"s_cmp_lg_u32 {sZ}, 0")
                    a(f"s_cbranch_scc1 c_sw_{name}")
                    a(f"s_waitcnt lgkmcnt({n})")
                    a.label(f"c_swb_{name}")
                    def slow(name=name):
                        a.label(f"c_sw_{name}")
                        a("s_waitcnt lgkmcnt(0)")
                        a(f"s_branch c_swb_{name}")
                    self.late.append((slow, ()))
                a(f"s_mov_b32 {sZ}, 0")
                for k in range(4):
                    self.vm_wait(f'Z{k}', linear=True)
                    if k == 0: self.stamp(9)
                    self.checked(X0[k], 0, k, f'z{k}')
                    self.ins_a(X0[k], sets[k & 1], sZ)
                    if k > 0:
                        W(3 if k == 1 else 6, f'z{k}')
                        self.ins_b(X0[k - 1], sets[(k - 1) & 1])
                W(3, 'z4')
                self.ins_b(X0[3], sets[1])
            for k in range(0 if o.get('pipe0') else 4):
                self.vm_wait(f'Z{k}', linear=True)
                if k == 0: self.stamp(9)
                if PRE == f'z{k}':
                    for kk in range(4): load_line(X[kk], 1, kk, f'P{kk}')
                self.checked(X0[k], 0, k, f'z{k}')
                if o.get('fine') and k == 0: self.stamp(20)
                self.insert(X0[k], 0)
                if o.get('fine') and k == 0: self.stamp(28)
                if o.get('fine') and k == 2: self.stamp(29)
                if o['sat'] == 'pre': load_line(X0[k], 2, k, f'S{k}')
        self.publish()
        self.stamp(10)
        a("s_waitcnt lgkmcnt(0)")
        a("s_barrier")
        self.stamp(11)
        self.read_counts_issue(vC, vCntA, CC)
        off = lambda p: (p // NBLK) * 2 * GS + (p % NBLK) * 256
        ix = [Bq[1][0][i] for i in range(4)] + [Bq[1][1][i] for i in range(4)]
        for t in range(DG):
            a(f"ds_read_b32 {ix[t]}, {vIdxC} offset:{off(t)}")
        a(f"ds_read_b64 {vT}, {vTupC} offset:0")
        a("s_waitcnt lgkmcnt(0)")
        self.read_counts_use(vC, sCnt, sFail, st, st2)
        OB = o['optblk']
        opt = lambda p: (p % NBLK) >= OB
        for t in range(DG):
            Lg = None
            if opt(t):
                Lg = a.newlabel('skg')
                a(f"s_cmp_gt_u32 {sCnt[t // NBLK]}, {32 * (t % NBLK)}")
                a(f"s_cbranch_scc0 {Lg}")
            self.g_stage(ix[t], vOff, sNot31, vHalf, sCnt[t // NBLK], vTau[t % NBLK], rows[t % NR], sM)
            self.vm_issue(f"G{t}", optional=Lg is not None)
            if Lg: a.label(Lg)
        sst = (vT, vAddr, vC0, vC1, sF0, vK, sK1, vK2, sHiL, vBrd)
        self.s_stage(*sst, Bq[0], vZero)
        a(f"ds_read_b32 {vIdx}, {vIdxC} offset:{off(DG)}")
        a(f"ds_read_b64 {vT}, {vTupC} offset:{off(1)}")
        a(f"s_mov_b32 {sIt}, 0")
        self.stamp(12)

        PINS = o['pins']; PSEC = o['psec']; PWAIT = o['pwait']; PPL = o['ppl']
        if isinstance(PPL, str): PPL = ()
        else: assert all(PPL[k] < PINS[k] for k in range(4))
        assert max(PINS) < PSEC < PWAIT <= NPOS - DG - 2
        VARS = [(sIt, PPL, PINS, PSEC, '')]
        if o.get('stag'):
            ppl2, pins2, psec2 = o['stag']
            assert all(ppl2[k] < pins2[k] for k in range(4)) and max(pins2) < psec2 < PWAIT
            sV0 = S('var0'); sV1 = S('var1')
            a(f"s_lshr_b32 {sV0}, {sW}, {o.get('stagbit', 2)}")
            a(f"s_and_b32 {sV0}, {sV0}, 1")
            a(f"s_xor_b32 {sV1}, {sV0}, 1")
            VARS = [(sV0, PPL, PINS, PSEC, ''), (sV1, ppl2, pins2, psec2, 'b')]
        Lloop = 'c_loop'
        a.label(Lloop)
        start = len(a.lines)
        for p in range(NPOS):
            a.comment(f"---- slot {p}")
            j, blk = p // NBLK, p % NBLK
            a("s_waitcnt lgkmcnt(0)")
            if p == PWAIT + 1:
                self.read_counts_use(vC, sCntN, sFail, st, st2)
                if INEP:
                    a(f"v_readfirstlane_b32 {st}, {tt[5]}")
                    a(f"s_or_b32 {sFail}, {sFail}, {st}")
            rw = rows[p % NR]
            Lsk1 = None
            if opt(p):
                Lsk1 = a.newlabel('sk1')
                a(f"s_cmp_gt_u32 {sCnt[j]}, {32 * blk}")
                a(f"s_cbranch_scc0 {Lsk1}")
            self.vm_wait(f"G{p}")
            a(f"v_mfma_f32_16x16x32_bf16 {D1[0]}, {rw}, {Wa}, 0")
            a(f"v_mfma_f32_16x16x32_bf16 {D1[1]}, {rw}, {Wb}, 0")
            if Lsk1: a.label(Lsk1)
            if p == PWAIT:
                Lno = a.newlabel('nowait'); Lgo = a.newlabel('gowait')
                a(f"s_cmp_eq_u32 {sIt}, 0")
                a(f"s_cbranch_scc0 {Lno}")
                self.lds_spin(CB_CNT, 8, vC, vZero, st)
                self.read_counts_issue(vC, vCntA, CC + 4)
                if INEP: a(f"ds_read_b32 {tt[5]}, {vZero} offset:{FAIL}")
                a(f"s_branch {Lgo}")
                a.label(Lno)
                a(f"v_mov_b32 {vC}, 0")
                if INEP: a(f"v_mov_b32 {tt[5]}, 0")
                a.label(Lgo)
            tgt = p + DG
            tq = tgt % NPOS
            cn = sCnt[tq // NBLK] if tgt < NPOS else sCntN[tq // NBLK]
            Lg = None
            if opt(tq):
                Lg = a.newlabel('skg')
                a(f"s_cmp_gt_u32 {cn}, {32 * (tq % NBLK)}")
                a(f"s_cbranch_scc0 {Lg}")
            self.g_stage(vIdx, vOff, sNot31, vHalf, cn, vTau[tq % NBLK], rows[tgt % NR], sM)
            self.vm_issue(f"G{tq}", optional=Lg is not None)
            if Lg: a.label(Lg)
            nx = p + 1
            nq = nx % NPOS
            Lsk2 = None
            if opt(nq):
                cn2 = sCnt[nq // NBLK] if nx < NPOS else sCntN[nq // NBLK]
                Lsk2 = a.newlabel('sk2')
                a(f"s_cmp_gt_u32 {cn2}, {32 * (nq % NBLK)}")
                a(f"s_cbranch_scc0 {Lsk2}")
            self.s_stage(*sst, Bq[nx & 1], vZero)
            if Lsk2: a.label(Lsk2)
            t2_ = tgt + 1
            base = vIdxC if t2_ < NPOS else vIdxN
            a(f"ds_read_b32 {vIdx}, {base} offset:{off(t2_ % NPOS)}")
            s2_ = p + 2
            base = vTupC if s2_ < NPOS else vTupN
            a(f"ds_read_b64 {vT}, {base} offset:{off(s2_ % NPOS)}")
            Lsk3 = None
            if opt(p):
                Lsk3 = a.newlabel('sk3')
                a(f"s_cmp_gt_u32 {sCnt[j]}, {32 * blk}")
                a(f"s_cbranch_scc0 {Lsk3}")
            a(f"v_cvt_pk_bf16_f32 {rw[0]}, {D1[0][0]}, {D1[0][1]}")
            a(f"v_cvt_pk_bf16_f32 {rw[1]}, {D1[0][2]}, {D1[0][3]}")
            a(f"v_cvt_pk_bf16_f32 {rw[2]}, {D1[1][0]}, {D1[1][1]}")
            a(f"v_cvt_pk_bf16_f32 {rw[3]}, {D1[1][2]}, {D1[1][3]}")
            Bp = Bq[p & 1]
            a(f"v_mfma_f32_16x16x32_bf16 {acc[j][0]}, {rw}, {Bp[0]}, {acc[j][0]}")
            a(f"v_mfma_f32_16x16x32_bf16 {acc[j][1]}, {rw}, {Bp[1]}, {acc[j][1]}")
            if Lsk3: a.label(Lsk3)
            if p in L1S or p == L2S:
                Lsk = a.newlabel('nost')
                a(f"s_cmp_eq_u32 {sIt}, 0")
                a(f"s_cbranch_scc0 {Lsk}")
                stores_at(p)
                a.label(Lsk)
            for (cnd, vPPL, vPINS, vPSEC, sfx) in VARS:
                if p in vPPL:
                    Lsk = a.newlabel('nost')
                    a(f"s_cmp_eq_u32 {cnd}, 0")
                    a(f"s_cbranch_scc0 {Lsk}")
                    k = vPPL.index(p)
                    load_line(X[k], 1, k, f'P{k}{sfx}', optional=True)
                    a.label(Lsk)
            if o['pf'] and p in o['pfat']:
                Lsk = a.newlabel('nopf')
                a(f"s_cmp_eq_u32 {sIt}, 0")
                a(f"s_cbranch_scc0 {Lsk}")
                for w in o['pfat']:
                    if w == p: self.pf1(inloop=True)
                a.label(Lsk)
            if isinstance(o['rbfat'], int) or isinstance(o['mat'], int):
                RB = o['rbfat'] if isinstance(o['rbfat'], int) else -100
                MA = o['mat'] if isinstance(o['mat'], int) else -100
                if p == MA or RB <= p < RB + 6:
                    Lsk = a.newlabel('norb')
                    a(f"s_cmp_eq_u32 {sIt}, 0")
                    a(f"s_cbranch_scc0 {Lsk}")
                    if p == MA:
                        for jj in range(5):
                            a(f"buffer_load_dwordx2 {Mr[jj]}, {vMoff}, {sM}, 0 offen offset:{jj*512}")
                            self.vm_issue(f'mr{jj}', optional=True)
                    if p == RB: gap_epw()
                    if RB < p < RB + 6: gap_rbf([p - RB - 1], self.c3)
                    a.label(Lsk)
            for (cnd, vPPL, vPINS, vPSEC, sfx) in VARS:
              if p in vPINS:
                k = vPINS.index(p)
                Lsk = a.newlabel('noins')
                a(f"s_cmp_eq_u32 {cnd}, 0")
                a(f"s_cbranch_scc0 {Lsk}")
                self.vm_wait(f"P{k}{sfx if vPPL else ''}", linear=True)
                self.checked(X[k], 1, k, f'p{k}{sfx}')
                self.insert(X[k], 1, k=k, sfx=sfx)
                if o['sat'] != 'pre':
                    L = a.newlabel('sl')
                    a(f"s_cmp_eq_u64 {sMore[k]}, 0")
                    a(f"s_cbranch_scc1 {L}")
                    a(f"s_add_u32 {st}, {sPoff}, {(2 * 256) << 15}")
                    a(f"s_mov_b64 exec, {sMore[k]}")
                    a(f"buffer_load_dwordx4 {X[k]}, {vLine}, {sWS}, {st} offen offset:{k*1024} {tf}")
                    a(f"s_mov_b64 exec, -1")
                    a.label(L)
                    self.vm_issue(f"S{k}{sfx}", optional=True)
                a.label(Lsk)
              if p == vPSEC:
                Lna = a.newlabel('noarr')
                a(f"s_cmp_eq_u32 {cnd}, 0")
                a(f"s_cbranch_scc0 {Lna}")
                for k in range(4):
                    Ln_ = a.newlabel('sn')
                    a(f"s_cmp_eq_u64 {sMore[k]}, 0")
                    a(f"s_cbranch_scc1 {Ln_}")
                    self.vm_wait(f"S{k}{sfx}", linear=True)
                    a(f"s_mov_b64 exec, {sMore[k]}")
                    XS = X0[k] if o['sat'] == 'pre' else X[k]
                    self.checked(XS, 2, k, f's{k}{sfx}', sub=sMore[k])
                    self.insert(XS, 2, sub=sMore[k])
                    a.label(Ln_)
                self.publish()
                a("s_waitcnt lgkmcnt(0)")
                self.lds_arrive(CB_CNT, vZero, vOne)
                a.label(Lna)
            if INEP:
                e_ = o.get('inepe', 1)
                Aop = [X[0][0:2], X[0][2:4], X[1][0:2], X[1][2:4]]
                what = {1: 'aop', 6 + e_: 0, 12 + e_: 1, 18 + e_: 2, 24 + e_: 3, o.get('inep4', 27): 'pre4'}.get(p)
                if what is not None:
                    Lsk = a.newlabel('noep')
                    a(f"s_cmp_eq_u32 {sIt}, 0")
                    a(f"s_cbranch_scc1 {Lsk}")
                    if what == 'aop':
                        a(f"v_lshlrev_b32 {tt[2]}, 3, {vLane}")
                        for x in range(4):
                            a(f"ds_read_b64 {Aop[x]}, {tt[2]} offset:{EPW + x*512}")
                    elif what == 'pre4':
                        a(f"v_and_b32 {tt[0]}, 15, {vLane}")
                        a(f"s_mul_i32 {st}, {sW}, 80")
                        a(f"v_add_u32 {tt[0]}, {st}, {tt[0]}")
                        a(f"v_add_u32 {tt[0]}, 64, {tt[0]}")
                        a(f"v_cmp_gt_u32 vcc, 625, {tt[0]}")
                        a(f"v_cndmask_b32 {tt[1]}, {OOB}, {vMoff}, vcc")
                        self.ep_a(4, Aop, X[2], X[3], self.c3, eM, rbfB, Mr)
                    else:
                        self.ep_a(what, Aop, X[2], X[3], self.c3, eM, rbfB, Mr)
                        self.ep_b(what, Aop, X[2], X[3], self.c3, eM, eU, eA, acc, Mr)
                    a.label(Lsk)
            if self.prof and p in (1, 5, 9, 14, 19, 24, 29):
                slot = (1, 5, 9, 14, 19, 24, 29).index(p)
                a(f"s_lshl_b32 {st}, {sIt}, 3")
                a(f"s_add_u32 {st}, {st}, {13 + slot}")
                self.stamp_dyn(st)
        a(f"v_mov_b32 {vIdxC}, {vIdxN}")
        a(f"v_mov_b32 {vTupC}, {vTupN}")
        for jj in range(5):
            a(f"s_mov_b32 {sCnt[jj]}, {sCntN[jj]}")
        if o.get('stag'):
            a(f"s_mov_b32 {sV0}, 1")
            a(f"s_mov_b32 {sV1}, 1")
        a(f"s_add_u32 {sIt}, {sIt}, 1")
        a(f"s_cmp_le_u32 {sIt}, 1")
        a(f"s_cbranch_scc1 {Lloop}")
        end = len(a.lines)
        self.resolve_vm(start, end)
        self.stamp(40)
        Aop = [X[0][0:2], X[0][2:4], X[1][0:2], X[1][2:4]]
        fbargs = (acc, rows, X, D1, Bq, Wa, Wb, vLane, vZero, vOne, vHalf, vTau, sE0, sW,
                  sOI, sIN, sAN, sM, st, st2, sMore, pDBG, sIt, sPoff, sPoll,
                  vOff, vIdx, vAddr, vC0, vT, sv)
        def full_epilogue():
            a(f"v_lshlrev_b32 {vIdx}, 3, {vLane}")
            for x in range(4):
                a(f"ds_read_b64 {Aop[x]}, {vIdx} offset:{EPW + x*512}")
            a("s_waitcnt vmcnt(0) lgkmcnt(0)" if INEP else "s_waitcnt lgkmcnt(0)")
            self.epilogue(acc, Mr, D1, Bq, rbfB, Aop, tt, vLane, vMoff, sW, sOUT, st, rows, X)
        if INEP:
            a(f"s_cmp_lg_u32 {sFail}, 0")
            a(f"s_cbranch_scc1 c_fallback")
            of = o.get('outflags', '')
            for j in range(4):
                a(f"buffer_store_dwordx2 {Mr[j]}, {vMoff}, {sOUT}, 0 offen offset:{j*512} {of}")
            self.ep_b(4, Aop, X[2], X[3], self.c3, eM, eU, eA, acc, Mr)
            a(f"buffer_store_dwordx2 {Mr[4]}, {tt[1]}, {sOUT}, 0 offen offset:{4*512} {of}")
            a.label("c_done")
            def fb_tail():
                a.label("c_fb_back")
                for jj in range(5):
                    a(f"buffer_load_dwordx2 {Mr[jj]}, {vMoff}, {sM}, 0 offen offset:{jj*512}")
                full_epilogue()
                a("s_branch c_done")
            self.late.append((self._fallback, fbargs))
            self.late.append((fb_tail, ()))
        else:
            a("s_waitcnt vmcnt(0) lgkmcnt(0)")
            a(f"ds_read_b32 {tt[0]}, {vZero} offset:{FAIL}")
            a("s_waitcnt lgkmcnt(0)")
            a(f"v_readfirstlane_b32 {st}, {tt[0]}")
            a(f"s_or_b32 {sFail}, {sFail}, {st}")
            a(f"s_cmp_lg_u32 {sFail}, 0")
            a(f"s_cbranch_scc1 c_fallback")
            a.label("c_fb_back")
            self.late.append((self._fallback, fbargs))
            full_epilogue()
        self.stamp(41)
        Lgd = a.newlabel('gd'); Lgx = a.newlabel('gdx')
        a(f"s_mov_b32 {sPoll}, 0")
        a.label(Lgd)
        a("s_memrealtime s[14:15]")
        a("s_waitcnt lgkmcnt(0)")
        a(f"s_sub_u32 {st}, s14, {sG0}")
        a(f"s_cmp_ge_u32 {st}, {GUARD}")
        a(f"s_cbranch_scc1 {Lgx}")
        a(f"s_add_u32 {sPoll}, {sPoll}, 1")
        a(f"s_cmp_lt_u32 {sPoll}, 100000")
        a("s_sleep 4")
        a(f"s_cbranch_scc1 {Lgd}")
        a.label(Lgx)
        self.prof_store(sW)
        self.dbg_store(sW, pDBG)
        a("s_endpgm")

    def dbg_store(self, sW, pDBG):
        if not self.o.get('dbgprof'): return
        a = self.a
        L = a.newlabel('dbgx')
        if self.o.get('dbgprof') == 2:
            a("s_mov_b64 exec, 1")
            a("s_getreg_b32 s6, hwreg(HW_REG_XCC_ID, 0, 3)")
            a("s_lshl_b32 s7, s6, 8")
            a("s_or_b32 s7, s7, s2")
            a(f"s_lshl_b32 s8, {sW}, 11")
            a("s_or_b32 s7, s7, s8")
            rl = lambda d, ix: a(f"v_readlane_b32 {d}, {self.vProf}, {ix}")
            def amax(slot, voff='v2', op='global_atomic_umax'):
                a("v_mov_b32 v1, s4")
                a(f"{op} {voff}, v1, {pDBG} offset:{slot * 4}")
            a("v_mov_b32 v2, 0")
            rl('s4', 41); amax(1)
            a("s_lshl_b32 s8, s6, 2"); a("v_mov_b32 v3, s8")
            amax(6, 'v3')
            for slot, hi, lo in ((2, 40, 12),):
                rl('s4', hi); rl('s5', lo); a("s_sub_u32 s4, s4, s5"); a("s_lshl_b32 s4, s4, 14"); a("s_or_b32 s4, s4, s7"); amax(slot)
            a(f"s_cmp_lg_u32 {sW}, 0")
            a(f"s_cbranch_scc1 {L}")
            rl('s4', 50); a("s_not_b32 s4, s4"); amax(0)
            for slot, hi, lo in ((3, 19, 12), (4, 40, 19), (5, 12, 50)):
                rl('s4', hi); rl('s5', lo); a("s_sub_u32 s4, s4, s5"); a("s_lshl_b32 s4, s4, 14"); a("s_or_b32 s4, s4, s7"); amax(slot)
            for slot, th in ((14, self.o.get('th1', 1600)), (15, self.o.get('th2', 1900))):
                rl('s4', 40); rl('s5', 12); a("s_sub_u32 s4, s4, s5")
                a(f"s_cmp_gt_u32 s4, {th}"); a("s_cselect_b32 s4, 1, 0"); amax(slot, op='global_atomic_add')
            a("s_waitcnt vmcnt(0)")
            a.label(L)
            a("s_waitcnt vmcnt(0)")
            return
        a(f"s_cmp_lg_u32 {sW}, 0")
        a(f"s_cbranch_scc1 {L}")
        a("s_mov_b64 exec, 1")
        a("v_mov_b32 v2, 0")
        a(f"v_readlane_b32 s5, {self.vProf}, 50")
        spec = [(0, 50, 'min'), (1, 50, 'max'), (2, 2, 'max'), (3, 4, 'max'), (5, 9, 'max'), (6, 12, 'max'), (7, 40, 'max'), (8, 41, 'max'),
                (9, 2, 'sum'), (10, 4, 'sum'), (11, 9, 'sum'), (12, 12, 'sum'), (13, 19, 'sum'), (14, 40, 'sum'), (15, 41, 'sum')]
        for slot, ix, kind in spec:
            a(f"v_readlane_b32 s4, {self.vProf}, {ix}")
            if kind == 'min': a("s_not_b32 s4, s4")
            if kind == 'sum': a("s_sub_u32 s4, s4, s5")
            a("v_mov_b32 v1, s4")
            op = 'global_atomic_add' if kind == 'sum' else 'global_atomic_umax'
            a(f"{op} v2, v1, {pDBG} offset:{slot * 4}")
        a("s_waitcnt vmcnt(0)")
        a.label(L)

    def _p_rare(self, Hd, aW, aB, tp, vRb, vSt, vTag, sM24, sSrc, so, s73, sWS, L):
        a = self.a
        a.label("p_rare")
        for it in range(4):
            Ls = a.newlabel('pr')
            a(f"v_cmp_le_u32 vcc, {s73}, {Hd[it]}")
            a(f"s_cbranch_vccz {Ls}")
            a(f"s_mov_b64 exec, vcc")
            a("s_waitcnt vmcnt(0)")
            a(f"ds_read2_b32 {L[0:2]}, {aW[it]} offset0:{3 * 24} offset1:{3 * 24 + 1}")
            a(f"ds_read_b32 {L[2]}, {aW[it]} offset:{3 * 96 + 8}")
            a(f"ds_read2_b32 {tp}, {aB[it]} offset0:{3 * 6} offset1:{3 * 6 + 1}")
            a("s_waitcnt lgkmcnt(0)")
            a(f"v_alignbyte_b32 {L[3]}, {tp[1]}, {tp[0]}, {vRb}")
            a(f"v_bfi_b32 {L[3]}, {sM24}, {L[3]}, {vTag}")
            a(f"s_add_u32 {so}, {sSrc}, {(3 * 256 + it * 8) << 15}")
            a(f"buffer_store_dwordx4 {L}, {vSt}, {sWS}, {so} offen {self.o['stflags']}")
            a(f"s_mov_b64 exec, -1")
            a.label(Ls)
        a("s_branch p_rare_back")

    def publish(self):
        a = self.a; c = self.c
        L = a.newlabel('pub')
        a(f"s_cmp_eq_u32 {c['sFail']}, 0")
        a(f"s_cbranch_scc1 {L}")
        a(f"ds_write_b32 {c['vZero']}, {c['vOne']} offset:{FAIL}")
        a.label(L)

    def g_stage(self, idx, vOff, sNot31, vHalf, cnt, tau, dst, sM):
        a = self.a
        a(f"v_cmp_gt_u32 vcc, {cnt}, {tau}")
        a(f"v_lshrrev_b32 {vOff}, 9, {idx}")
        a(f"v_and_or_b32 {vOff}, {vOff}, {sNot31}, {vHalf}")
        if self.o.get('nog') == 1: a(f"v_mov_b32 {vOff}, {OOB}")
        elif self.o.get('nog') == 2: a(f"v_cndmask_b32 {vOff}, {OOB}, {vHalf}, vcc")
        else: a(f"v_cndmask_b32 {vOff}, {OOB}, {vOff}, vcc")
        a(f"buffer_load_dwordx4 {dst}, {vOff}, {sM}, 0 offen")

    def s_stage(self, vT, vAddr, vC0, vC1, sF0, vK, sK1, vK2, sHiL, vBrd, B, vZero):
        a = self.a
        a(f"v_and_b32 {vC0}, 15, {vT[0]}")
        a(f"v_lshl_or_b32 {vC0}, {vT[1]}, 4, {vC0}")
        a(f"v_cvt_f32_u32 {vC0}, {vC0}")
        a(f"v_and_or_b32 {vAddr}, {vT[0]}, {sF0}, {vK}")
        a(f"v_fma_f32 {vC0}, {vC0}, {sK1}, {vK2}")
        a(f"v_fma_f32 {vC1}, {vC0}, {vC0}, -0.5")
        a(f"v_cndmask_b32 {vC0}, {vC0}, {vC1}, {sHiL}")
        a(f"v_cvt_pk_bf16_f32 {vC0}, {vC0}, {vC0}")
        a(f"ds_write_b16 {vAddr}, {vC0}")
        a(f"ds_read_b128 {B[0]}, {vBrd}")
        a(f"ds_read_b128 {B[1]}, {vBrd} offset:1024")
        a(f"ds_write_b16 {vAddr}, {vZero}")

    def read_counts_issue(self, vC, vCntA, off):
        self.a(f"ds_read_b32 {vC}, {vCntA} offset:{off}")

    def read_counts_use(self, vC, dst, sFail, st, st2):
        a = self.a
        for jj in range(5):
            a(f"v_readlane_b32 {dst[jj]}, {vC}, {jj}")
        a(f"s_max_u32 {st}, {dst[0]}, {dst[1]}")
        a(f"s_max_u32 {st2}, {dst[2]}, {dst[3]}")
        a(f"s_max_u32 {st}, {st}, {dst[4]}")
        a(f"s_max_u32 {st}, {st}, {st2}")
        a(f"s_cmp_gt_u32 {st}, {CAP}")
        a(f"s_cselect_b32 {st}, 1, 0")
        a(f"s_or_b32 {sFail}, {sFail}, {st}")
        for jj in range(5):
            a(f"s_min_u32 {dst[jj]}, {dst[jj]}, {CAP}")

    def rbf_operand(self, d, cen, dst, tt, sQ):
        a = self.a
        t = [tt[0], tt[1], tt[2], tt[3]]; u = tt[4]; dv = tt[5]
        a(f"v_lshlrev_b32 {dv}, 16, {d}")
        for i in range(4): a(f"v_sub_f32 {t[i]}, {dv}, {cen[i]}")
        def rnd():
            for h in range(2):
                a(f"v_cvt_pk_bf16_f32 {u}, {t[2*h]}, {t[2*h+1]}")
                a(f"v_lshlrev_b32 {t[2*h]}, 16, {u}")
                a(f"v_and_b32 {t[2*h+1]}, 0xffff0000, {u}")
        rnd()
        for i in range(4): a(f"v_mul_f32 {t[i]}, {t[i]}, {t[i]}")
        rnd()
        for i in range(4): a(f"v_mul_f32 {t[i]}, 0xc1200000, {t[i]}")
        rnd()
        for i in range(4): a(f"v_mul_f32 {t[i]}, 0x3fb8aa3b, {t[i]}")
        for i in range(4): a(f"v_exp_f32 {t[i]}, {t[i]}")
        a(f"v_cvt_pk_bf16_f32 {dst[0]}, {t[0]}, {t[1]}")
        a(f"v_cvt_pk_bf16_f32 {dst[1]}, {t[2]}, {t[3]}")
        a(f"v_cndmask_b32 {dst[0]}, 0, {dst[0]}, {sQ}")
        a(f"v_cndmask_b32 {dst[1]}, 0, {dst[1]}, {sQ}")

    def tagcheck(self, x):
        a = self.a; c = self.c; tt = c['tt']
        u = tt[10]; w = tt[11]
        a(f"v_perm_b32 {u}, {x[3]}, {x[3]}, {c['Sel']}")
        a(f"v_or_b32_dpp {u}, {u}, {u} quad_perm:[1,0,3,2] row_mask:0xf bank_mask:0xf")
        a(f"v_or_b32_dpp {u}, {u}, {u} quad_perm:[2,3,0,1] row_mask:0xf bank_mask:0xf")
        a(f"v_lshlrev_b32 {w}, 8, {u}")
        a(f"v_xad_u32 {u}, {u}, {w}, {c['NegT']}")
        a(f"v_cmp_le_u32 vcc, 8, {u}")

    def checked(self, x, l, k, name, sub=None):
        a = self.a
        self.tagcheck(x)
        a(f"s_cbranch_vccnz c_rp_{name}")
        a.label(f"c_ok_{name}")
        self.late.append((self._repoll, (x, l, k, name, sub)))

    def _repoll(self, x, l, k, name, sub):
        a = self.a; c = self.c; tt = c['tt']
        ex = sub if sub is not None else '-1'
        a.label(f"c_rp_{name}")
        if self.o.get('fine') and name[0] == 'z': self.stamp(30 + k)
        if self.o.get('fine') and name[0] == 'p': self.stamp(34 + k)
        a(f"s_mov_b32 {c['sPoll']}, 0")
        L = a.newlabel('rpl'); Lto = a.newlabel('rpt')
        a(f"s_cmp_lg_u32 {c['sFail']}, 0")
        a(f"s_cbranch_scc1 {Lto}")
        a.label(L)
        a(f"s_sleep {self.o['psleep']}")
        a(f"s_mov_b64 exec, vcc")
        a(f"s_add_u32 {c['st']}, {c['sPoff']}, {(l * 256) << 15}")
        a(f"buffer_load_dwordx4 {x}, {c['vLine']}, {c['sWS']}, {c['st']} offen offset:{k*1024} {self.o['tupflags']}")
        a("s_waitcnt vmcnt(0)")
        self.tagcheck(x)
        a(f"s_mov_b64 exec, {ex}")
        a(f"s_cbranch_vccz c_ok_{name}")
        a(f"s_add_u32 {c['sPoll']}, {c['sPoll']}, 1")
        a(f"s_cmp_lt_u32 {c['sPoll']}, {self.o['poll_max']}")
        a(f"s_cbranch_scc1 {L}")
        a.label(Lto)
        a(f"s_mov_b32 {c['sFail']}, 1")
        tm = tt[9] if self.o.get('pipe0') else tt[0]
        a(f"v_mov_b32 {tm}, {'0x%x' % MARK if self.o.get('mark') else -1}")
        for h in range(3):
            a(f"v_cndmask_b32 {x[h]}, {x[h]}, {tm}, vcc")
        a(f"s_branch c_ok_{name}")

    def insert(self, x, l, k=None, sub=None, sfx=''):
        a = self.a; c = self.c; tt = c['tt']; sv = c['sv']
        g = tt[0:3]; rk = tt[3:6]; cs = tt[6:9]
        if self.o.get('mark'): return self.insert_m(x, l, k, sub, sfx)
        for h in range(3): a(f"v_cmp_gt_u32 {sv[h]}, {c['Lim']}, {x[h]}")
        for h in range(3): a(f"v_bfe_u32 {g[h]}, {x[h]}, 8, 6")
        if l == 0:
            for h in range(3):
                a(f"v_cmp_le_u32 vcc, {c['LimA']}, {x[h]}")
                a(f"v_addc_co_u32 {g[h]}, vcc, {g[h]}, {g[h]}, vcc")
        else:
            for h in range(3): a(f"v_lshl_or_b32 {g[h]}, {g[h]}, 1, 1")
        if l == 1:
            a(f"s_andn2_b64 {sv[2]}, {sv[2]}, {c['sHdr']}")
            a(f"s_mov_b32 {c['st']}, {49 << 18}")
            a(f"s_mov_b32 {c['st2']}, {73 << 18}")
            a(f"v_cmp_le_u32 vcc, {c['st']}, {x[2]}")
            a(f"v_cmp_le_u32 {c['sX']}, {c['st2']}, {x[2]}")
        for h in range(3): a(f"v_lshl_add_u32 {rk[h]}, {g[h]}, 2, {CC}")
        if self.o.get('diagins') and l == 0:
            for h in range(3):
                a(f"v_mbcnt_lo_u32_b32 {rk[h]}, -1, 0")
                a(f"v_mbcnt_hi_u32_b32 {rk[h]}, -1, {rk[h]}")
                a(f"v_lshl_add_u32 {rk[h]}, {rk[h]}, 2, {CC}")
        for h in range(3):
            a(f"s_mov_b64 exec, {sv[h]}")
            a(f"ds_add_rtn_u32 {rk[h]}, {rk[h]}, {c['vOne']}")
        a(f"s_mov_b64 exec, -1")
        for h in range(3): a(f"v_bfe_u32 {cs[h]}, {x[3]}, {8 * h}, 8")
        for h in range(3): a(f"v_mad_u32_u24 {g[h]}, {g[h]}, {c['GS']}, {c['vCB']}")
        if l == 1:
            m = c['sMore'][k]
            a(f"s_and_b64 {m}, vcc, {c['sHdr']}")
            a(f"s_lshr_b64 {m}, {m}, 7")
            a(f"s_lshl_b64 {c['sSave']}, {m}, 8")
            a(f"s_sub_u32 {m[0]}, {c['sSave'][0]}, {m[0]}")
            a(f"s_subb_u32 {m[1]}, {c['sSave'][1]}, {m[1]}")
        a("s_waitcnt lgkmcnt(0)")
        for h in range(3): a(f"v_min_u32 {rk[h]}, {CAP}, {rk[h]}")
        for h in range(3): a(f"v_lshl_add_u32 {g[h]}, {rk[h]}, 3, {g[h]}")
        for h in range(3):
            a(f"s_mov_b64 exec, {sv[h]}")
            a(f"ds_write2_b32 {g[h]}, {x[h]}, {cs[h]} offset0:0 offset1:1")
        a(f"s_mov_b64 exec, -1")
        if l == 1:
            a(f"s_and_b64 {c['sX']}, {c['sX']}, {c['sHdr']}")
            a(f"s_cbranch_scc1 c_l3_{k}{sfx}")
            a.label(f"c_l3_back_{k}{sfx}")
            self.late.append((self._line3, (x, k, sfx)))

    def insert_m(self, x, l, k, sub, sfx):
        a = self.a; c = self.c; tt = c['tt']; sv = c['sv']
        g = tt[0:3]; rk = tt[3:6]; cs = tt[6:9]
        for h in range(3): a(f"v_bfe_u32 {g[h]}, {x[h]}, 8, 6")
        if l == 0:
            for h in range(3): a(f"v_cmp_le_u32 {sv[h]}, {c['LimA']}, {x[h]}")
            for h in range(3): a(f"v_addc_co_u32 {g[h]}, vcc, {g[h]}, {g[h]}, {sv[h]}")
        else:
            for h in range(3): a(f"v_lshl_or_b32 {g[h]}, {g[h]}, 1, 1")
        if l == 1:
            a(f"s_mov_b32 {c['st']}, {49 << 18}")
            a(f"s_mov_b32 {c['st2']}, {73 << 18}")
            a(f"v_cmp_le_u32 vcc, {c['st']}, {x[2]}")
            a(f"v_cmp_le_u32 {c['sX']}, {c['st2']}, {x[2]}")
        for h in range(3): a(f"v_lshl_add_u32 {rk[h]}, {g[h]}, 2, {CC}")
        for h in range(3):
            if l == 1 and h == 2: a(f"s_not_b64 exec, {c['sHdr']}")
            a(f"ds_add_rtn_u32 {rk[h]}, {rk[h]}, {c['vOne']}")
        if l == 1: a(f"s_mov_b64 exec, -1")
        for h in range(3): a(f"v_bfe_u32 {cs[h]}, {x[3]}, {8 * h}, 8")
        for h in range(3): a(f"v_mad_u32_u24 {g[h]}, {g[h]}, {c['GS']}, {c['vCB']}")
        if l == 1:
            m = c['sMore'][k]
            a(f"s_and_b64 {m}, vcc, {c['sHdr']}")
            a(f"s_lshr_b64 {m}, {m}, 7")
            a(f"s_lshl_b64 {c['sSave']}, {m}, 8")
            a(f"s_sub_u32 {m[0]}, {c['sSave'][0]}, {m[0]}")
            a(f"s_subb_u32 {m[1]}, {c['sSave'][1]}, {m[1]}")
        a("s_waitcnt lgkmcnt(0)")
        for h in range(3): a(f"v_min_u32 {rk[h]}, {CAP}, {rk[h]}")
        for h in range(3): a(f"v_lshl_add_u32 {g[h]}, {rk[h]}, 3, {g[h]}")
        for h in range(3):
            if l == 1 and h == 2: a(f"s_not_b64 exec, {c['sHdr']}")
            a(f"ds_write2_b32 {g[h]}, {x[h]}, {cs[h]} offset0:0 offset1:1")
        if l != 0: a(f"s_mov_b64 exec, -1")
        if l == 1:
            a(f"s_and_b64 {c['sX']}, {c['sX']}, {c['sHdr']}")
            a(f"s_cbranch_scc1 c_l3_{k}{sfx}")
            a.label(f"c_l3_back_{k}{sfx}")
            self.late.append((self._line3, (x, k, sfx)))

    def ins_a(self, x, st_, sZ):
        a = self.a; c = self.c
        sv, g, rk, cs = st_
        if self.o.get('mark'):
            for h in range(3): a(f"v_bfe_u32 {g[h]}, {x[h]}, 8, 6")
            for h in range(3): a(f"v_cmp_le_u32 {sv[h]}, {c['LimA']}, {x[h]}")
            for h in range(3): a(f"v_addc_co_u32 {g[h]}, vcc, {g[h]}, {g[h]}, {sv[h]}")
            for h in range(3): a(f"v_lshl_add_u32 {rk[h]}, {g[h]}, 2, {CC}")
            for h in range(3): a(f"ds_add_rtn_u32 {rk[h]}, {rk[h]}, {c['vOne']}")
            for h in range(3): a(f"v_bfe_u32 {cs[h]}, {x[3]}, {8 * h}, 8")
            for h in range(3): a(f"v_mad_u32_u24 {g[h]}, {g[h]}, {c['GS']}, {c['vCB']}")
            return
        for h in range(3): a(f"v_cmp_gt_u32 {sv[h]}, {c['Lim']}, {x[h]}")
        for h in range(3): a(f"v_bfe_u32 {g[h]}, {x[h]}, 8, 6")
        for h in range(3):
            a(f"v_cmp_le_u32 vcc, {c['LimA']}, {x[h]}")
            a(f"v_addc_co_u32 {g[h]}, vcc, {g[h]}, {g[h]}, vcc")
        for h in range(3): a(f"v_lshl_add_u32 {rk[h]}, {g[h]}, 2, {CC}")
        for h in range(3):
            a(f"s_cmp_eq_u64 {sv[h]}, 0")
            a(f"s_addc_u32 {sZ}, {sZ}, 0")
            a(f"s_mov_b64 exec, {sv[h]}")
            a(f"ds_add_rtn_u32 {rk[h]}, {rk[h]}, {c['vOne']}")
        a(f"s_mov_b64 exec, -1")
        for h in range(3): a(f"v_bfe_u32 {cs[h]}, {x[3]}, {8 * h}, 8")
        for h in range(3): a(f"v_mad_u32_u24 {g[h]}, {g[h]}, {c['GS']}, {c['vCB']}")

    def ins_b(self, x, st_):
        a = self.a
        sv, g, rk, cs = st_
        for h in range(3): a(f"v_min_u32 {rk[h]}, {CAP}, {rk[h]}")
        for h in range(3): a(f"v_lshl_add_u32 {g[h]}, {rk[h]}, 3, {g[h]}")
        if self.o.get('mark'):
            for h in range(3): a(f"ds_write2_b32 {g[h]}, {x[h]}, {cs[h]} offset0:0 offset1:1")
            return
        for h in range(3):
            a(f"s_mov_b64 exec, {sv[h]}")
            a(f"ds_write2_b32 {g[h]}, {x[h]}, {cs[h]} offset0:0 offset1:1")
        a(f"s_mov_b64 exec, -1")

    def _line3(self, x, k, sfx=''):
        a = self.a; c = self.c; tt = c['tt']
        m = c['sX']; Y = self.c3
        a.label(f"c_l3_{k}{sfx}")
        a(f"s_mov_b32 {c['st']}, {97 << 18}")
        a(f"v_cmp_le_u32 vcc, {c['st']}, {x[2]}")
        a(f"s_and_b64 vcc, vcc, {c['sHdr']}")
        a(f"s_cselect_b32 {c['st']}, 1, 0")
        a(f"s_or_b32 {c['sFail']}, {c['sFail']}, {c['st']}")
        a(f"s_lshr_b64 {m}, {m}, 7")
        a(f"s_lshl_b64 {c['sSave']}, {m}, 8")
        a(f"s_sub_u32 {m[0]}, {c['sSave'][0]}, {m[0]}")
        a(f"s_subb_u32 {m[1]}, {c['sSave'][1]}, {m[1]}")
        a(f"s_cmp_lg_u32 {c['sFail']}, 0")
        a(f"s_cbranch_scc1 c_l3_back_{k}{sfx}")
        a(f"s_add_u32 {c['st']}, {c['sPoff']}, {(3 * 256) << 15}")
        a(f"s_mov_b64 exec, {m}")
        a(f"buffer_load_dwordx4 {Y}, {c['vLine']}, {c['sWS']}, {c['st']} offen offset:{k*1024} {self.o['tupflags']}")
        a("s_waitcnt vmcnt(0)")
        self.checked(Y, 3, k, f't{k}{sfx}', sub=m)
        self.insert(Y, 3, sub=m)
        a(f"s_branch c_l3_back_{k}{sfx}")

    def _fallback(self, acc, rows, X, D1, Bq, Wa, Wb, vLane, vZero, vOne, vHalf, vTau, sE0, sCw, sOI, sIN, sAN, sM,
                  st, st2, sMore, pDBG, sN, sCh, sLaneS, vOff, vIdx, vAddr, vC16, vT, sv):
        a = self.a
        a.label("c_fallback")
        if self.o.get('inep'): a("s_waitcnt vmcnt(0) lgkmcnt(0)")
        a(f"global_store_dword {vZero}, {vOne}, {pDBG} offset:16")
        for j in range(5):
            for l in range(2):
                for i in range(4): a(f"v_mov_b32 {acc[j][l][i]}, 0")
        sMask = sMore[0]; sLoc = Reg('s', 6); sTt = Reg('s', 7); sSel = sMore[2]; sSel2 = sMore[3]
        a(f"s_movk_i32 {sN}, 80")
        a(f"s_cmp_eq_u32 {sCw}, 7")
        a(f"s_cselect_b32 {sN}, 65, {sN}")
        a(f"s_mov_b32 {sCh}, 0")
        vL16 = vIdx; vI15 = vAddr
        a(f"v_lshlrev_b32 {vL16}, 4, {vLane}")
        a(f"v_and_b32 {vI15}, 15, {vLane}")
        for i in range(1, 4):
            a(f"v_mov_b32 {Bq[0][0][i]}, 0")
            a(f"v_mov_b32 {Bq[0][1][i]}, 0")
        a(f"v_cmp_eq_u32 {sSel}, 0, {vTau[0]}")
        Lc = "c_fb_chunk"
        a.label(Lc)
        a(f"buffer_load_dwordx4 {X[3]}, {vL16}, {sOI}, {sCh} offen")
        a("s_waitcnt vmcnt(0)")
        for cidx in range(4):
            Lh = f"c_fb_h{cidx}"; Ld = f"c_fb_d{cidx}"
            a(f"v_subrev_u32 {X[3][cidx]}, {sE0}, {X[3][cidx]}")
            a(f"v_cmp_gt_u32 {sMask}, {sN}, {X[3][cidx]}")
            a.label(Lh)
            a(f"s_cmp_eq_u64 {sMask}, 0")
            a(f"s_cbranch_scc1 {Ld}")
            a(f"s_ff1_i32_b64 {sLaneS}, {sMask}")
            a(f"s_bitset0_b64 {sMask}, {sLaneS}")
            a(f"s_nop 3")
            a(f"v_readlane_b32 {sLoc}, {X[3][cidx]}, {sLaneS}")
            a(f"s_lshl_b32 {sTt}, {sLaneS}, 4")
            a(f"s_add_u32 {sTt}, {sTt}, {sCh}")
            a(f"s_add_u32 {sTt}, {sTt}, {cidx*4}")
            a(f"v_mov_b32 {vOff}, {sTt}")
            a(f"v_lshrrev_b32 {vC16}, 1, {vOff}")
            a(f"buffer_load_dword {vT[0]}, {vOff}, {sIN}, 0 offen")
            a(f"buffer_load_ushort {vT[1]}, {vC16}, {sAN}, 0 offen")
            a("s_waitcnt vmcnt(0)")
            a(f"v_lshl_or_b32 {vOff}, {vT[0]}, 5, {vHalf}")
            a(f"v_cndmask_b32 {vOff}, {OOB}, {vOff}, {sSel}")
            a(f"buffer_load_dwordx4 {rows[0]}, {vOff}, {sM}, 0 offen")
            a(f"v_lshlrev_b32 {vT[1]}, 16, {vT[1]}")
            a(f"v_mul_f32 {vT[1]}, 0x{INV2PI:x}, {vT[1]}")
            a(f"v_fract_f32 {vT[1]}, {vT[1]}")
            a(f"v_cos_f32 {vT[1]}, {vT[1]}")
            a(f"s_and_b32 {st}, {sLoc}, 15")
            a(f"v_cmp_eq_u32 {sSel2}, {st}, {vLane}")
            a(f"v_fma_f32 {vT[0]}, {vT[1]}, {vT[1]}, -0.5")
            a(f"v_cvt_pk_bf16_f32 {vT[0]}, {vT[1]}, {vT[0]}")
            a(f"v_and_b32 {vT[1]}, 0xffff, {vT[0]}")
            a(f"v_lshrrev_b32 {vT[0]}, 16, {vT[0]}")
            a(f"v_cndmask_b32 {Bq[0][0][0]}, 0, {vT[1]}, {sSel2}")
            a(f"v_cndmask_b32 {Bq[0][1][0]}, 0, {vT[0]}, {sSel2}")
            a("s_waitcnt vmcnt(0)")
            rw = rows[0]
            a(f"v_mfma_f32_16x16x32_bf16 {D1[0]}, {rw}, {Wa}, 0")
            a(f"v_mfma_f32_16x16x32_bf16 {D1[1]}, {rw}, {Wb}, 0")
            a(f"v_cvt_pk_bf16_f32 {rw[0]}, {D1[0][0]}, {D1[0][1]}")
            a(f"v_cvt_pk_bf16_f32 {rw[1]}, {D1[0][2]}, {D1[0][3]}")
            a(f"v_cvt_pk_bf16_f32 {rw[2]}, {D1[1][0]}, {D1[1][1]}")
            a(f"v_cvt_pk_bf16_f32 {rw[3]}, {D1[1][2]}, {D1[1][3]}")
            a(f"s_lshr_b32 {st}, {sLoc}, 4")
            for j in range(5):
                Lj = a.newlabel('fbj')
                a(f"s_cmp_lg_u32 {st}, {j}")
                a(f"s_cbranch_scc1 {Lj}")
                a(f"v_mfma_f32_16x16x32_bf16 {acc[j][0]}, {rw}, {Bq[0][0]}, {acc[j][0]}")
                a(f"v_mfma_f32_16x16x32_bf16 {acc[j][1]}, {rw}, {Bq[0][1]}, {acc[j][1]}")
                a.label(Lj)
            a(f"s_branch {Lh}")
            a.label(Ld)
        a(f"s_add_u32 {sCh}, {sCh}, 1024")
        a(f"s_cmp_lt_u32 {sCh}, {T*4}")
        a(f"s_cbranch_scc1 {Lc}")
        a("s_branch c_fb_back")

    def ep_a(self, j, Aop, G0, G1, GT, mm, rbfB, Mr):
        a = self.a
        A0, A1, AG, AU = Aop
        a(f"v_mfma_f32_16x16x16_bf16 {G0}, {A0}, {rbfB[j]}, 0")
        a(f"v_mfma_f32_16x16x16_bf16 {G1}, {A1}, {rbfB[j]}, 0")
        a(f"v_mfma_f32_16x16x16_bf16 {GT}, {AG}, {rbfB[j]}, 0")
        a(f"v_lshlrev_b32 {mm[0]}, 16, {Mr[j][0]}")
        a(f"v_and_b32 {mm[1]}, 0xffff0000, {Mr[j][0]}")
        a(f"v_lshlrev_b32 {mm[2]}, 16, {Mr[j][1]}")
        a(f"v_and_b32 {mm[3]}, 0xffff0000, {Mr[j][1]}")

    def ep_b(self, j, Aop, G0, G1, GT, mm, U, ag, acc, Mr):
        a = self.a
        A0, A1, AG, AU = Aop
        for i in range(4):
            a(f"v_mul_f32 {G0[i]}, {G0[i]}, {acc[j][0][i]}")
        for i in range(4):
            a(f"v_fma_f32 {G0[i]}, {G1[i]}, {acc[j][1][i]}, {G0[i]}")
        a(f"v_cvt_pk_bf16_f32 {ag[0]}, {G0[0]}, {G0[1]}")
        a(f"v_cvt_pk_bf16_f32 {ag[1]}, {G0[2]}, {G0[3]}")
        a(f"v_mfma_f32_16x16x16_bf16 {U}, {AU}, {ag}, 0")
        for i in range(4):
            a(f"v_fma_f32 {mm[i]}, {U[i]}, {GT[i]}, {mm[i]}")
        a(f"v_cvt_pk_bf16_f32 {Mr[j][0]}, {mm[0]}, {mm[1]}")
        a(f"v_cvt_pk_bf16_f32 {Mr[j][1]}, {mm[2]}, {mm[3]}")

    def epilogue(self, acc, Mr, D1, Bq, rbfB, Aop, tt, vLane, vMoff, sCw, sOUT, st, rows, X):
        a = self.a
        A0, A1, AG, AU = Aop
        t0 = tt[0]; t1 = tt[1]
        a(f"v_and_b32 {t0}, 15, {vLane}")
        a(f"s_mul_i32 {st}, {sCw}, 80")
        a(f"v_add_u32 {t0}, {st}, {t0}")
        a(f"v_add_u32 {t0}, 64, {t0}")
        a(f"v_cmp_gt_u32 vcc, 625, {t0}")
        a(f"v_cndmask_b32 {t1}, {OOB}, {vMoff}, vcc")
        G0 = [rows[0], rows[1]]; G1 = [rows[2], rows[3]]; GT = [rows[4], rows[5]]; U = [D1[0], D1[1]]
        ag = [Bq[0][0][0:2], Bq[0][0][2:4]]
        mm = [Bq[0][1], Bq[1][0]]
        oo = [Bq[1][1][0:2], Bq[1][1][2:4]]

        def gm(j):
            s = j & 1
            a(f"v_mfma_f32_16x16x16_bf16 {G0[s]}, {A0}, {rbfB[j]}, 0")
            a(f"v_mfma_f32_16x16x16_bf16 {G1[s]}, {A1}, {rbfB[j]}, 0")
            a(f"v_mfma_f32_16x16x16_bf16 {GT[s]}, {AG}, {rbfB[j]}, 0")
        gm(0)
        for j in range(5):
            s = j & 1
            if j + 1 < 5: gm(j + 1)
            mrow = Mr[j]
            a(f"v_lshlrev_b32 {mm[s][0]}, 16, {mrow[0]}")
            a(f"v_and_b32 {mm[s][1]}, 0xffff0000, {mrow[0]}")
            a(f"v_lshlrev_b32 {mm[s][2]}, 16, {mrow[1]}")
            a(f"v_and_b32 {mm[s][3]}, 0xffff0000, {mrow[1]}")
            for i in range(4):
                a(f"v_mul_f32 {G0[s][i]}, {G0[s][i]}, {acc[j][0][i]}")
            for i in range(4):
                a(f"v_fma_f32 {G0[s][i]}, {G1[s][i]}, {acc[j][1][i]}, {G0[s][i]}")
            a(f"v_cvt_pk_bf16_f32 {ag[s][0]}, {G0[s][0]}, {G0[s][1]}")
            a(f"v_cvt_pk_bf16_f32 {ag[s][1]}, {G0[s][2]}, {G0[s][3]}")
            a(f"v_mfma_f32_16x16x16_bf16 {U[s]}, {AU}, {ag[s]}, 0")
            for i in range(4):
                a(f"v_fma_f32 {mm[s][i]}, {U[s][i]}, {GT[s][i]}, {mm[s][i]}")
            o = oo[s]
            a(f"v_cvt_pk_bf16_f32 {o[0]}, {mm[s][0]}, {mm[s][1]}")
            a(f"v_cvt_pk_bf16_f32 {o[1]}, {mm[s][2]}, {mm[s][3]}")
            off = t1 if j == 4 else vMoff
            a(f"buffer_store_dwordx2 {o}, {off}, {sOUT}, 0 offen offset:{j*512} {self.o.get('outflags', '')}")

    def kernel(self, label):
        a = self.a
        self.late = []
        self.Lend = label + '_end'
        self.sWave = Reg('s', 60); self.sT64 = Reg('s', 98, 2)
        self.vProf = Reg('v', 255)
        a.lines.append(f".globl {label}")
        a.lines.append(".p2align 8")
        a.lines.append(f".type {label},@function")
        a.label(label)
        a("s_cmp_ge_u32 s2, 256")
        a(f"s_cbranch_scc1 {self.Lend}")
        a("s_load_dwordx16 s[4:19], s[0:1], 0")
        a("s_load_dwordx8 s[20:27], s[0:1], 64")
        a("s_load_dwordx4 s[28:31], s[0:1], 96")
        a("s_memrealtime s[100:101]")
        if self.prof:
            a("s_memrealtime s[98:99]")
        a("v_lshrrev_b32 v1, 6, v0")
        a("v_and_b32 v0, 63, v0")
        a(f"v_readfirstlane_b32 {self.sWave}, v1")
        if self.prof:
            a("s_waitcnt lgkmcnt(0)")
            a("v_mov_b32 v255, 0")
            a("v_writelane_b32 v255, s98, 50")
        self.body(self.sWave)
        i = 0
        while i < len(self.late):
            fn, args = self.late[i]; fn(*args); i += 1
        a.label(self.Lend)
        a("s_endpgm")

    def build(self):
        hdr = open('cdna_kernels/' + NAME + '.s.ref').read().split('\n')
        head = [l for l in hdr if l.startswith(';') and '@launch' not in l]
        out = list(head)
        K = NAME + '_kernel'
        out.append(f"; @launch grid=(256,1,1) block=(512,1,1) lds={LDS_END_MARK if self.o.get('mark') else LDS_END}")
        out.append('.amdgcn_target "amdgcn-amd-amdhsa--gfx950"')
        out.append('.text')
        self.kernel(K)
        body = self.a.finalize()
        print(f"{K}: {len(self.a.lines)} lines, nops {self.a.nops}", file=sys.stderr)
        out.append(body)
        out.append('.section .rodata,"a"')
        out.append(f""".p2align 6
.amdhsa_kernel {K}
  .amdhsa_next_free_vgpr 256
  .amdhsa_next_free_sgpr 102
  .amdhsa_accum_offset 256
  .amdhsa_group_segment_fixed_size 0
  .amdhsa_kernarg_size 112
  .amdhsa_user_sgpr_count 2
  .amdhsa_user_sgpr_kernarg_segment_ptr 1
  .amdhsa_system_sgpr_workgroup_id_x 1
.end_amdhsa_kernel""")
        return '\n'.join(out) + '\n'


if __name__ == '__main__':
    import argparse, ast
    ap = argparse.ArgumentParser()
    ap.add_argument('--prof', action='store_true')
    ap.add_argument('--opt', action='append', default=[])
    ap.add_argument('-o', required=True)
    args = ap.parse_args()
    opts = {}
    for kv in args.opt:
        k, v = kv.split('=', 1)
        try: v = ast.literal_eval(v)
        except Exception: pass
        opts[k] = v
    g = Gen(args.prof or bool(opts.get('dbgprof')), opts)
    s = g.build()
    open(args.o, 'w').write(s)
```

```python
import sys, re, os
sys.path.insert(0, 'gen')
from asmlib import *

NAME = 'standalone__molecular_angular_gemnet__graph'

E = 160000; T = 2560000
MAGIC = 6871948
CB_CNT, FAIL, TKT = 8, 16, 24
CC = 64
WSC = 512
EPW = 1024
STG = 3072
PB = 19456
PBS = 492
HDR = 188
BYT = 388
DUMP = 96
CB = PB
GS = 1552
CAP = 192
LDS_END = PB + 256 * PBS
NLINE = 4
WSB = NLINE * 256 * 32768
LIM = 0x9C400000
MARK = 0xFFFFE8FF
LDS_END_MARK = CB + 88 * GS
INV = 0xFFFFFFFF
GUARD = 1300
OOB = '1.0'
PROF_OFF = 100 << 20
INV2PI = 0x3e22f983
NBLK = 6
NPOS = 30
import struct
def f32(x): return struct.unpack('<I', struct.pack('<f', x))[0]


class Gen:
    def __init__(self, prof=False, opts=None):
        self.prof = prof
        self.o = dict(poll_max=60000, ldflags='', tupflags='sc1', stflags='sc1', outflags='sc1', force_fail=False,
                      up=3, dg=4, nr=6, gate='ack0', pins=(8, 9, 10, 11), psec=16, pwait=22,
                      lima=80000, psleep=1, gmask=0xffffffe0, mat='gap', optblk=4,
                      q0n=3, q1n=6, l1s=('pre', 'post', 'post', 'post'), l2s='post', ppl=(2, 3, 4, 5),
                      pf=None, pfat=('post0',), pfmode='id', pfflags='', tlbw=0, rbfat='gap', gapat='pre', sat='loop')
        if opts: self.o.update(opts)
        self.a = Asm()

    def stamp(self, idx):
        if not self.prof: return
        a = self.a
        a(f"s_memrealtime {self.sT64}")
        a("s_waitcnt lgkmcnt(0)")
        a(f"v_writelane_b32 {self.vProf}, {self.sT64[0]}, {idx}")

    def stamp_dyn(self, sidx):
        if not self.prof: return
        a = self.a
        a(f"s_memrealtime {self.sT64}")
        a("s_waitcnt lgkmcnt(0)")
        a(f"s_mov_b32 m0, {sidx}")
        a(f"s_nop 3")
        a(f"v_writelane_b32 {self.vProf}, {self.sT64[0]}, m0")

    def prof_store(self, wave_sgpr):
        if not self.prof: return
        a = self.a
        a(f"s_mul_i32 {self.sT64[0]}, s2, 12")
        a(f"s_add_u32 {self.sT64[0]}, {self.sT64[0]}, {wave_sgpr}")
        a(f"s_lshl_b32 {self.sT64[0]}, {self.sT64[0]}, 8")
        a(f"s_add_u32 {self.sT64[0]}, {self.sT64[0]}, {PROF_OFF}")
        a(f"v_mbcnt_lo_u32_b32 v1, -1, 0")
        a(f"v_mbcnt_hi_u32_b32 v1, -1, v1")
        a(f"v_lshlrev_b32 v1, 2, v1")
        a(f"v_add_u32 v1, {self.sT64[0]}, v1")
        a(f"s_mov_b64 exec, -1")
        a(f"global_store_dword v1, {self.vProf}, s[30:31]")

    def lds_spin(self, off, target, vt, vzero, st):
        a = self.a
        L = a.newlabel('spin')
        Lx = a.newlabel('spinx')
        a.label(L)
        a(f"ds_read_b32 {vt}, {vzero} offset:{off}")
        a("s_waitcnt lgkmcnt(0)")
        a(f"v_readfirstlane_b32 {st}, {vt}")
        a(f"s_cmp_ge_u32 {st}, {target}")
        a(f"s_cbranch_scc1 {Lx}")
        a("s_sleep 1")
        a(f"s_branch {L}")
        a.label(Lx)

    def lds_arrive(self, off, vzero, vone):
        a = self.a
        a("s_mov_b64 exec, 1")
        a(f"ds_add_u32 {vzero}, {vone} offset:{off}")
        a("s_mov_b64 exec, -1")

    def srd(self, reg, src, n):
        a = self.a
        a(f"s_mov_b32 {reg[0]}, s{src}")
        a(f"s_mov_b32 {reg[1]}, s{src+1}")
        a(f"s_mov_b32 {reg[2]}, {n}")
        a(f"s_mov_b32 {reg[3]}, 0x00020000")

    def vm_issue(self, tag, optional=False):
        self.a.lines.append(f"; @ISSUE{'?' if optional else ''} {tag}")

    def vm_wait(self, tag, linear=False):
        self.a.lines.append(f"; @WAIT{'L' if linear else ''} {tag}")

    def resolve_vm(self, start, end):
        lines = self.a.lines
        n = end - start
        for i in range(len(lines)):
            l = lines[i]
            if l.startswith("; @WAITL "):
                tag = l.split()[2]
                cnt = 0; found = False
                for back in range(i - 1, -1, -1):
                    ll = lines[back]
                    if ll.startswith("; @ISSUE"):
                        if ll.split()[2] == tag:
                            found = True; break
                        if not ll.startswith("; @ISSUE?"): cnt += 1
                assert found, tag
                lines[i] = f"s_waitcnt vmcnt({min(cnt, 63)})"
            elif l.startswith("; @WAIT "):
                assert start <= i < end
                tag = l.split()[2]
                cnt = 0; found = False
                pos = i - start
                for back in range(1, n + 1):
                    ll = lines[start + (pos - back) % n]
                    if ll.startswith("; @ISSUE"):
                        if ll.split()[2] == tag:
                            found = True; break
                        if not ll.startswith("; @ISSUE?"): cnt += 1
                assert found, tag
                lines[i] = f"s_waitcnt vmcnt({min(cnt, 63)})"

    def body(self, sW):
        a = self.a
        o = self.o
        DG = o['dg']; NR = o['nr']
        assert NPOS % NR == 0 and DG <= NR - 1 and DG <= 8
        V = Alloc('v', 2, 255)
        S = Alloc('s', 62, 98)
        vLane = Reg('v', 0)
        sM = Reg('s', 32, 4); sIN = Reg('s', 36, 4); sOI = Reg('s', 40, 4); sDI = Reg('s', 44, 4)
        sAN = Reg('s', 48, 4); sOUT = Reg('s', 52, 4); sWS = Reg('s', 56, 4)
        pCEN = Reg('s', 14, 2); pWR = Reg('s', 18, 2); pWS = Reg('s', 20, 2); pWD = Reg('s', 22, 2)
        pWU = Reg('s', 24, 2); pDBG = Reg('s', 28, 2)
        vZero = V('zero'); vOne = V('one')
        acc = [[V(f'acc{j}{l}', 4) for l in range(2)] for j in range(5)]
        Wa = V('wa', 4); Wb = V('wb', 4)
        rbfB = [V(f'rbf{j}', 2) for j in range(5)]
        Mr = [V(f'mr{j}', 2) for j in range(5)]
        vMoff = V('moff'); vLine = V('line'); vSel = V('sel'); vCB = V('cb')
        wraw = V('wraw', 2); dd = [V(f'dd{j}') for j in range(5)]; cenr = V('cenr', 2); raw = V('raw', 4)
        Ln12 = [[V(f'ln{l}{i}', 4) for i in range(4)] for l in (1, 2)]
        vTag = V('tag'); vSt = V('stv'); vPf = V('pf'); vPfD = V('pfd')
        mk0 = V.mark()
        st = S('st'); st2 = S('st2'); so = S('so')
        sFail = Reg('s', 61); sPoll = S('poll'); sG0 = S('g0'); sE0 = S('e0')
        sNegT = S('negT'); sLim = S('lim'); sLimA = S('lima'); sGS = S('gs'); sHi = S('hi')
        sSrc = S('src'); sM24 = S('m24'); sPf = S('pf'); so2 = S('so2')
        sL2 = [Reg('s', 0, 2), Reg('s', 44, 2), Reg('s', 46, 2), S('l2d', 2)]
        smk0 = S.mark()
        Q = [dict(i=V(f'q{k}i', 4), o=V(f'q{k}o', 4), a=V(f'q{k}a', 2)) for k in range(5)]
        tb = V('tb', 4)
        tmp = [dict(mk=V(f'mk{s}', 4), sh=V(f'sh{s}', 4), old=V(f'old{s}', 4), by=V(f'by{s}', 4), inc=V(f'inc{s}', 4))
               for s in range(2)]
        vOffQ = V('offq'); vOffA = V('offa'); vPB = V('pb'); vC2048 = V('c2048'); vi = V('vi', 4); vt = V('vt'); vt2 = V('vt2')
        vRd = V('rd'); vRb = V('rb'); vRh = V('rh')
        Ln = [[V(f'ln0{i}', 4) for i in range(4)]] + Ln12
        Hd = [V(f'hd{i}') for i in range(4)]
        print('phase 1/2 vgprs', V.high, file=sys.stderr)
        sMagic = S('magic'); sNeg = S('neg'); s492 = S('c492'); sLimIn = S('limin'); sK18 = S('k18'); sCq = S('cq')
        sOffI = S('offi'); sOffA = S('offa'); sLast = S('last', 2)
        sm = [Reg('s', 4 + 2 * k, 2) for k in range(4)]
        sm4 = Reg('s', 12, 2)
        ld = o['ldflags']
        self.vmseq = []

        def load_part(k, part):
            q = Q[k]
            if part == 0:
                a(f"s_add_u32 {so}, {sOffI}, {k * 1024}")
                a(f"buffer_load_dwordx4 {q['o']}, {vOffQ}, {sOI}, {so} offen {ld}")
            elif part == 1:
                a(f"s_add_u32 {so}, {sOffI}, {k * 1024}")
                a(f"buffer_load_dwordx4 {q['i']}, {vOffQ}, {sIN}, {so} offen {ld}")
            else:
                a(f"s_add_u32 {so}, {sOffA}, {k * 512}")
                a(f"buffer_load_dwordx2 {q['a']}, {vOffA}, {sAN}, {so} offen {ld}")
            self.vmseq.append(f'Q{k}')

        def load_quad(k):
            if k == 4: a(f"s_mov_b64 exec, {sLast}")
            for part in range(3): load_part(k, part)
            if k == 4: a(f"s_mov_b64 exec, -1")

        def wait_for(tag):
            last = max(i for i, x in enumerate(self.vmseq) if x == tag)
            cnt = sum(1 for x in self.vmseq[last + 1:] if not x.endswith('?'))
            a(f"s_waitcnt vmcnt({min(cnt, 63)})")

        a(f"s_mul_i32 {st}, {sW}, 5120")
        a(f"v_lshlrev_b32 {vOffQ}, 4, {vLane}")
        a(f"v_add_u32 {vOffQ}, {st}, {vOffQ}")
        a(f"v_lshrrev_b32 {vOffA}, 1, {vOffQ}")
        a(f"s_mul_i32 {sOffI}, s2, 40000")
        a(f"s_mul_i32 {sOffA}, s2, 20000")
        a(f"s_cmp_eq_u32 {sW}, 7")
        a(f"s_cselect_b64 {sLast}, 15, -1")
        a(f"s_mul_i32 {sE0}, s2, 625")
        a(f"s_mul_i32 {st}, {sW}, 80")
        a(f"s_add_u32 {sE0}, {sE0}, {st}")
        a("s_waitcnt lgkmcnt(0)")
        self.stamp(51)
        self.srd(sOI, 8, T * 4); self.srd(sIN, 6, T * 4); self.srd(sAN, 12, T * 2)
        up = o['up']
        parts = [(k, part) for k in range(up) for part in range(3)]
        q0n = o['q0n']
        for k, part in parts[:q0n]: load_part(k, part)
        a(f"s_mov_b32 {sG0}, s100")
        if o.get('mark'):
            a(f"s_mov_b32 {st}, 0x{MARK:x}")
            for i in range(4): a(f"v_add_u32 {vi[i]}, {i}, {vLane}")
            for i in range(4): a(f"v_and_b32 {vi[i]}, 3, {vi[i]}")
            for i in range(4): a(f"v_lshl_or_b32 {vi[i]}, {vi[i]}, 8, {st}")
        else:
            for i in range(4): a(f"v_mov_b32 {vi[i]}, -1")
        a(f"s_mul_i32 {st}, {sW}, {32 * PBS}")
        a(f"s_add_u32 {st}, {st}, {PB}")
        a(f"v_lshlrev_b32 {vt}, 4, {vLane}")
        a(f"v_add_u32 {vt2}, {st}, {vt}")
        for i in range(15):
            a(f"ds_write_b128 {vt2}, {vi} offset:{i*1024}")
        a(f"s_mov_b64 exec, 0xffffff")
        a(f"ds_write_b128 {vt2}, {vi} offset:{15*1024}")
        a(f"s_mov_b32 exec_lo, -1")
        a(f"s_mov_b32 exec_hi, 0")
        a(f"s_movk_i32 {s492}, {PBS}")
        a(f"v_mov_b32 {vPB}, {st}")
        a(f"v_mad_u32_u24 {vt2}, {vLane}, {s492}, {vPB}")
        a(f"v_mov_b32 {vi[0]}, {1 << 18}")
        a(f"ds_write_b32 {vt2}, {vi[0]} offset:{HDR}")
        a(f"s_mov_b64 exec, -1")
        for i in range(4): a(f"v_mov_b32 {vi[i]}, 0")
        a(f"s_lshl_b32 {st}, {sW}, 11")
        a(f"s_add_u32 {st}, {st}, {STG}")
        a(f"v_add_u32 {vt2}, {st}, {vt}")
        a(f"ds_write_b128 {vt2}, {vi}")
        a(f"ds_write_b128 {vt2}, {vi} offset:1024")
        Lz = a.newlabel('z')
        a(f"s_cmp_lg_u32 {sW}, 0")
        a(f"s_cbranch_scc1 {Lz}")
        a(f"v_lshlrev_b32 {vt2}, 3, {vLane}")
        a(f"ds_write_b64 {vt2}, {vi[0:2]}")
        a.label(Lz)
        a(f"v_mov_b32 {vOne}, 1")
        a(f"v_mov_b32 {vPB}, {PB}")
        a(f"v_mov_b32 {vC2048}, 0x{f32(2048.0):x}")
        a(f"s_mov_b32 {sCq}, 0x{f32(2047.5):x}")
        a(f"s_mov_b32 {sMagic}, {MAGIC}")
        a(f"s_movk_i32 {sNeg}, -10000")
        a(f"s_mov_b32 {sLimIn}, {o['lima'] - 1}")
        a(f"s_mov_b32 {sK18}, {1 << 18}")
        a(f"s_mov_b32 {sHi}, 0xffff0000")
        a("s_waitcnt lgkmcnt(0)")
        a("s_barrier")
        self.stamp(1)
        q1n = max(q0n, o['q1n'])
        for k, part in parts[q0n:q1n]: load_part(k, part)
        self.srd(sM, 4, E * 32); self.srd(sDI, 10, E * 2); self.srd(sOUT, 26, E * 32); self.srd(sWS, 30, WSB)
        a(f"v_mov_b32 {vZero}, 0")
        a(f"v_mov_b32 {vCB}, {CB}")
        a(f"s_mov_b32 {sLim}, 0x{LIM:x}")
        a(f"s_mov_b32 {sLimA}, 0x{o['lima'] << 14:x}")
        a(f"s_movk_i32 {sGS}, {GS}")
        a(f"s_mov_b32 {sM24}, 0x00ffffff")
        a(f"s_lshl_b32 {sSrc}, s2, 7")
        a(f"s_mov_b32 {sFail}, {1 if o['force_fail'] else 0}")
        a("s_lshr_b64 s[100:101], s[100:101], 8")
        a(f"s_sub_u32 {sNegT}, 3, s100")
        a(f"s_lshl_b32 {st}, s100, 8")
        a(f"s_xor_b32 {st}, {st}, s100")
        a(f"s_lshl_b32 {st2}, {st}, 16")
        a(f"s_xor_b32 {st}, {st}, {st2}")
        a(f"v_and_b32 {vt}, 3, {vLane}")
        a(f"v_lshlrev_b32 {vt}, 3, {vt}")
        a(f"v_lshrrev_b32 {vTag}, {vt}, {st}")
        a(f"v_lshlrev_b32 {vTag}, 24, {vTag}")
        a(f"v_mov_b32 {vt2}, 15")
        a(f"v_lshlrev_b32 {vt2}, {vt}, {vt2}")
        a(f"v_xor_b32 {vSel}, 0x0c0c0c0c, {vt2}")
        a(f"v_lshrrev_b32 {vt}, 3, {vLane}")
        a(f"s_lshl_b32 {st}, {sW}, 5")
        a(f"v_add_u32 {vt}, {st}, {vt}")
        a(f"v_and_b32 {vt2}, 7, {vLane}")
        a(f"v_mad_u32_u24 {vRh}, {vt}, {s492}, {vPB}")
        a(f"v_mad_u32_u24 {vRd}, {vt2}, 12, {vRh}")
        a(f"v_mad_u32_u24 {vRb}, {vt2}, 3, {vRh}")
        a(f"v_lshlrev_b32 {vSt}, 15, {vt}")
        a(f"v_lshl_add_u32 {vSt}, {vt2}, 4, {vSt}")
        a(f"s_lshl_b32 {st}, {sW}, 12")
        a(f"v_lshlrev_b32 {vLine}, 4, {vLane}")
        a(f"v_add_u32 {vLine}, {st}, {vLine}")
        if o['tlbw']:
            a(f"s_lshl_b32 {st}, {sW}, 22")
            a(f"v_lshlrev_b32 {vt}, 20, {vLane}")
            a(f"v_add_u32 {vt}, {st}, {vt}")
            a(f"v_cmp_gt_u32 vcc, 4, {vLane}")
            a(f"v_cndmask_b32 {vt}, {OOB}, {vt}, vcc")
            a(f"buffer_load_dword {vPfD}, {vt}, {sWS}, 0 offen")
            self.vmseq.append('tlb')
        PF = o['pf']
        if PF:
            pfl = PF; pfi = len(o['pfat'])
            a(f"v_lshlrev_b32 {vPf}, 7, {vLane}")
            if pfl < 64:
                a(f"v_cmp_gt_u32 vcc, {pfl}, {vLane}")
                a(f"v_cndmask_b32 {vPf}, {OOB}, {vPf}, vcc")
            a(f"s_lshr_b32 {sPf}, s2, 3")
            if o['pfmode'] == 'xcc':
                Lt = a.newlabel('tk')
                a(f"s_cmp_lg_u32 {sW}, 0")
                a(f"s_cbranch_scc1 {Lt}")
                a(f"s_getreg_b32 {st}, hwreg(HW_REG_XCC_ID, 0, 3)")
                a(f"s_lshl_b32 {st}, {st}, 3")
                a(f"v_mov_b32 {vPfD}, {st}")
                a(f"s_mov_b64 exec, 1")
                a(f"global_atomic_add {vPfD}, {vPfD}, {vOne}, {pDBG} offset:128 sc0")
                a(f"s_mov_b64 exec, -1")
                a.label(Lt)
                self.vmseq.append('tk?')
        for j in range(5):
            for l in range(2):
                for i in range(4): a(f"v_mov_b32 {acc[j][l][i]}, 0")
        for k, part in parts[q1n:]: load_part(k, part)
        n_ = vt; q_ = vt2; t3 = tb[0]
        a(f"v_and_b32 {n_}, 15, {vLane}")
        a(f"v_lshrrev_b32 {q_}, 4, {vLane}")
        a(f"v_lshlrev_b32 {t3}, 3, {vLane}")
        a(f"global_load_dwordx2 {wraw}, {t3}, {pWD}")
        a(f"v_add_u32 {t3}, {sE0}, {n_}")
        a(f"v_lshlrev_b32 {vMoff}, 5, {t3}")
        a(f"v_lshl_add_u32 {vMoff}, {q_}, 3, {vMoff}")
        a(f"v_lshlrev_b32 {t3}, 1, {t3}")
        for j in range(5):
            a(f"buffer_load_ushort {dd[j]}, {t3}, {sDI}, 0 offen offset:{j*32}")
        a(f"v_lshlrev_b32 {t3}, 3, {q_}")
        a(f"v_and_b32 {t3}, 8, {t3}")
        a(f"global_load_dwordx2 {cenr}, {t3}, {pCEN}")
        Lw = [a.newlabel('ew') for _ in range(4)]; Lwx = a.newlabel('ewx')
        a(f"s_and_b32 {st2}, {sW}, 3")
        a(f"s_cmp_eq_u32 {st2}, 3")
        a(f"s_cbranch_scc1 {Lw[3]}")
        a(f"s_cmp_eq_u32 {st2}, 2")
        a(f"s_cbranch_scc1 {Lw[2]}")
        a(f"v_and_b32 {t3}, 1, {q_}")
        a(f"v_lshlrev_b32 {t3}, 8, {t3}")
        a(f"v_lshl_add_u32 {t3}, {n_}, 1, {t3}")
        a(f"s_lshl_b32 {st}, {st2}, 5")
        a(f"v_add_u32 {t3}, {st}, {t3}")
        for jj in range(4):
            a(f"global_load_ushort {raw[jj]}, {t3}, {pWS} offset:{jj*64}")
        a(f"s_branch {Lwx}")
        a.label(Lw[2])
        a(f"v_and_b32 {t3}, 1, {q_}")
        a(f"v_lshlrev_b32 {t3}, 7, {t3}")
        a(f"v_lshl_add_u32 {t3}, {n_}, 1, {t3}")
        for jj in range(4):
            a(f"global_load_ushort {raw[jj]}, {t3}, {pWR} offset:{jj*32}")
        a(f"s_branch {Lwx}")
        a.label(Lw[3])
        a(f"v_lshlrev_b32 {t3}, 7, {q_}")
        a(f"v_lshl_add_u32 {t3}, {n_}, 1, {t3}")
        for jj in range(4):
            a(f"global_load_ushort {raw[jj]}, {t3}, {pWU} offset:{jj*32}")
        a.label(Lwx)
        self.vmseq += ['sm'] * 11
        if o['mat'] == 'start':
            for jj in range(5):
                a(f"buffer_load_dwordx2 {Mr[jj]}, {vMoff}, {sM}, 0 offen offset:{jj*512}")
            self.vmseq += ['mr'] * 5
        self.stamp(53)
        def pre(k, s):
            q = Q[k]; w0 = q['i']; wb = q['o']; an = q['a']; t = tmp[s]
            mk, sh, old, by, inc = t['mk'], t['sh'], t['old'], t['by'], t['inc']
            if k == 4: a(f"s_mov_b64 exec, {sLast}")
            for j in range(4): a(f"v_mul_hi_u32_u24 {tb[j]}, {sMagic}, {wb[j]}")
            for j in range(4):
                if j & 1: a(f"v_and_b32 {by[j]}, {sHi}, {an[j >> 1]}")
                else: a(f"v_lshlrev_b32 {by[j]}, 16, {an[j >> 1]}")
            for j in range(4): a(f"v_sub_u32 {mk[j]}, {sLimIn}, {w0[j]}")
            for j in range(4): a(f"v_mul_f32 {by[j]}, 0x{INV2PI:x}, {by[j]}")
            for j in range(4): a(f"v_lshlrev_b32 {wb[j]}, 4, {wb[j]}")
            for j in range(4): a(f"v_ashrrev_i32 {mk[j]}, 31, {mk[j]}")
            for j in range(4): a(f"v_fract_f32 {by[j]}, {by[j]}")
            for j in range(4): a(f"v_mad_i32_i24 {wb[j]}, {tb[j]}, {sNeg}, {wb[j]}")
            for j in range(4): a(f"v_and_b32 {sh[j]}, 9, {mk[j]}")
            for j in range(4): a(f"v_cos_f32 {by[j]}, {by[j]}")
            for j in range(4): a(f"v_lshl_or_b32 {w0[j]}, {w0[j]}, 14, {wb[j]}")
            for j in range(4): a(f"v_lshl_or_b32 {inc[j]}, {vOne}, {sh[j]}, {sK18}")
            for j in range(4): a(f"v_mad_u32_u24 {wb[j]}, {tb[j]}, {s492}, {vPB}")
            if k >= 2: a("s_waitcnt lgkmcnt(8)")
            for j in range(4): a(f"ds_add_rtn_u32 {old[j]}, {wb[j]}, {inc[j]} offset:{HDR}")
            for j in range(4): a(f"v_fma_f32 {by[j]}, {by[j]}, {sCq}, {vC2048}")
            for j in range(4): a(f"v_cvt_u32_f32 {by[j]}, {by[j]}")
            for j in range(4): a(f"v_and_or_b32 {w0[j]}, {by[j]}, 15, {w0[j]}")
            for j in range(4): a(f"v_lshrrev_b32 {by[j]}, 4, {by[j]}")
            if k == 4: a(f"s_mov_b64 exec, -1")

        def post(k, s):
            q = Q[k]; w0 = q['i']; wb = q['o']; t = tmp[s]
            mk, sh, old, by, inc = t['mk'], t['sh'], t['old'], t['by'], t['inc']
            if k == 4: a(f"s_mov_b64 exec, {sLast}")
            for j in range(4): a(f"v_bfe_u32 {sh[j]}, {old[j]}, {sh[j]}, 9")
            for j in range(4): a(f"v_and_b32 {inc[j]}, 47, {mk[j]}")
            for j in range(4): a(f"v_lshrrev_b32 {old[j]}, 18, {old[j]}")
            for j in range(4): a(f"v_xad_u32 {sh[j]}, {sh[j]}, {mk[j]}, {inc[j]}")
            for j in range(4):
                a(f"v_cmp_le_u32 {sm[j]}, 48, {old[j]}")
            for j in range(4):
                a(f"v_cndmask_b32 {sh[j]}, {sh[j]}, {old[j]}, {sm[j]}")
            for j in range(4): a(f"v_min_u32 {sh[j]}, {DUMP}, {sh[j]}")
            for j in range(4): a(f"v_lshl_add_u32 {inc[j]}, {sh[j]}, 2, {wb[j]}")
            for j in range(4): a(f"v_add_u32 {sh[j]}, {sh[j]}, {wb[j]}")
            for j in range(4):
                a(f"ds_write_b32 {inc[j]}, {w0[j]}")
                a(f"ds_write_b8 {sh[j]}, {by[j]} offset:{BYT}")
            if k == 4: a(f"s_mov_b64 exec, -1")

        def pf_base():
            if o['pfmode'] == 'xcc':
                a(f"ds_read_b32 {vPfD}, {vZero} offset:{TKT}")
                a("s_waitcnt lgkmcnt(0)")
                a(f"v_readfirstlane_b32 {st}, {vPfD}")
                a(f"s_sub_u32 {st2}, {st}, 1")
                a(f"s_and_b32 {st2}, {st2}, 31")
                a(f"s_cmp_eq_u32 {st}, 0")
                a(f"s_cselect_b32 {sPf}, {sPf}, {st2}")
            a(f"s_mul_i32 {sPf}, {sPf}, {8 * pfl * pfi * 128}")
            a(f"s_mul_i32 {st}, {sW}, {pfl * pfi * 128}")
            a(f"s_add_u32 {sPf}, {sPf}, {st}")
            if o.get('pfoff'): a(f"s_add_u32 {sPf}, {sPf}, {o['pfoff']}")
            self.pf_based = True
        self.pfn = 0
        self.pf_based = False
        self.pf_base = pf_base
        def pf1(inloop=False):
            if not self.pf_based: pf_base()
            assert self.pfn < pfi
            a(f"buffer_load_dword {vPfD}, {vPf}, {sM}, {sPf} offen {o['pfflags']}")
            a(f"s_add_u32 {sPf}, {sPf}, {pfl * 128}")
            if not inloop: self.vmseq.append('pf')
            self.vm_issue(f'pf{self.pfn}', optional=inloop)
            self.pfn += 1
        self.pf1 = pf1
        def pf_at(where):
            if not PF: return
            for w in o['pfat']:
                if w == where: pf1()
        self.pf_at = pf_at
        def ticket_publish():
            Lt = a.newlabel('tkp')
            a(f"s_cmp_lg_u32 {sW}, 0")
            a(f"s_cbranch_scc1 {Lt}")
            last = max(i for i, x in enumerate(self.vmseq) if x == 'tk?')
            a(f"s_waitcnt vmcnt({min(sum(1 for x in self.vmseq[last + 1:]), 63)})")
            a(f"v_add_u32 {vPfD}, 1, {vPfD}")
            a(f"s_mov_b64 exec, 1")
            a(f"ds_write_b32 {vZero}, {vPfD} offset:{TKT}")
            a(f"s_mov_b64 exec, -1")
            a.label(Lt)
        nxt = up
        for k in range(5):
            wait_for(f'Q{k}')
            if k == 0: self.stamp(2)
            pre(k, k & 1)
            if nxt < 5:
                load_quad(nxt); nxt += 1
            if PF and o['pfmode'] == 'xcc' and k == o.get('tkat', 1): ticket_publish()
            pf_at(f'k{k}')
            if k > 0:
                a("s_waitcnt lgkmcnt(4)" if k == 1 else "s_waitcnt lgkmcnt(4)")
                post(k - 1, (k - 1) & 1)
        a("s_waitcnt lgkmcnt(0)")
        post(4, 0)
        self.stamp(3)
        a("s_waitcnt lgkmcnt(0)")
        a("s_barrier")
        self.stamp(4)

        stf = o['stflags']
        wait_for('sm')
        L1S = list(o['l1s']); L2S = o['l2s']
        aW = [tmp[0]['mk'][i] for i in range(4)]
        aB = [tmp[0]['sh'][i] for i in range(4)]
        TP = [[Reg('v', Q[l]['i'].i + 2 * it, 2) for it in range(4)] for l in range(3)]
        for l in range(3): assert Q[l]['o'].i == Q[l]['i'].i + 4
        a(f"v_and_b32 {aB[0]}, -4, {vRb}")
        a(f"v_add_u32 {aB[0]}, {BYT}, {aB[0]}")
        a(f"v_mov_b32 {aW[0]}, {vRd}")
        for it in range(1, 4):
            a(f"v_add_u32 {aW[it]}, {it * 8 * PBS}, {vRd}")
            a(f"v_add_u32 {aB[it]}, {it * 8 * PBS}, {aB[0]}")
        def rd(l, it):
            L = Ln[l][it]
            a(f"ds_read2_b32 {L[0:2]}, {aW[it]} offset0:{l * 24} offset1:{l * 24 + 1}")
            a(f"ds_read_b32 {L[2]}, {aW[it]} offset:{l * 96 + 8}")
            a(f"ds_read2_b32 {TP[l][it]}, {aB[it]} offset0:{l * 6} offset1:{l * 6 + 1}")
        def tag(l, it):
            a(f"v_alignbyte_b32 {Ln[l][it][3]}, {TP[l][it][1]}, {TP[l][it][0]}, {vRb}")
            a(f"v_bfi_b32 {Ln[l][it][3]}, {sM24}, {Ln[l][it][3]}, {vTag}")
        def store(l, it, name=None):
            a(f"s_add_u32 {so2}, {sSrc}, {(l * 256 + it * 8) << 15}")
            a(f"buffer_store_dwordx4 {Ln[l][it]}, {vSt}, {sWS}, {so2} offen {stf}")
            if name: self.vmseq.append(name)
        def store2(optional_tag=None):
            for it in range(4):
                Ls = a.newlabel('s2')
                a(f"s_cmp_eq_u64 {sL2[it]}, 0")
                a(f"s_cbranch_scc1 {Ls}")
                a(f"s_mov_b64 exec, {sL2[it]}")
                store(2, it)
                a(f"s_mov_b64 exec, -1")
                a.label(Ls)
        self.store_l = store; self.store2 = store2
        for it in range(4): rd(0, it)
        a("s_waitcnt lgkmcnt(6)")
        for it in range(2): tag(0, it)
        store(0, 0, 'L0')
        for it in range(2): rd(1, it)
        store(0, 1, 'L0')
        a("s_waitcnt lgkmcnt(6)")
        for it in range(2, 4): tag(0, it)
        store(0, 2, 'L0')
        store(0, 3, 'L0')
        pf_at('post0')
        for it in range(2, 4): rd(1, it)
        a("s_waitcnt lgkmcnt(6)")
        for it in range(4): a(f"ds_read_b32 {Hd[it]}, {vRh} offset:{it * 8 * PBS + HDR}")
        rd(2, 0)
        a("s_waitcnt lgkmcnt(3)")
        for it in range(1, 4): rd(2, it)
        self.stamp(5)
        a(f"s_mov_b32 {st}, {49 << 18}")
        a(f"s_mov_b32 {st2}, {73 << 18}")
        for it in range(4): a(f"v_cmp_le_u32 {sL2[it]}, {st}, {Hd[it]}")
        a(f"v_max3_u32 {vt}, {Hd[0]}, {Hd[1]}, {Hd[2]}")
        a(f"v_max_u32 {vt}, {vt}, {Hd[3]}")
        a(f"v_cmp_le_u32 vcc, {st2}, {vt}")
        for it in range(4): tag(1, it)
        a("s_waitcnt lgkmcnt(0)")
        for it in range(4): tag(2, it)
        a(f"s_cbranch_vccnz p_rare")
        a.label("p_rare_back")
        self.late.append((self._p_rare, (Hd, aW, aB, TP[0][0], vRb, vSt, vTag, sM24, sSrc, so2, st2, sWS, Ln[0][0])))
        if o['mat'] == 'gap':
            for jj in range(5):
                a(f"buffer_load_dwordx2 {Mr[jj]}, {vMoff}, {sM}, 0 offen offset:{jj*512}")
            self.vmseq += ['mr'] * 5
        a("s_barrier")
        for it in range(4):
            if L1S[it] == 'pre': store(1, it, 'L1')
        if L2S == 'pre': store2()
        pf_at('gap')
        self.stamp(6)

        V.reset(mk0); S.reset(smk0)
        rows = [V(f'row{i}', 4) for i in range(NR)]
        X = [V(f'x{i}', 4) for i in range(4)]
        D1 = [V(f'd1{i}', 4) for i in range(2)]
        Bq = [[V(f'b{s}{l}', 4) for l in range(2)] for s in range(2)]
        vT = V('tup', 2)
        vIdx = V('idx'); vOff = V('off'); vTau = [V(f'tau{b}') for b in range(NBLK)]; vHalf = V('half16')
        vIdxC = V('idxc'); vIdxN = V('idxn'); vTupC = V('tupc'); vTupN = V('tupn')
        vAddr = V('addr'); vC0 = V('c0'); vC1 = V('c1'); vK = V('k'); vBrd = V('brd'); vK2 = V('k2')
        vCntA = V('cnta'); vC = V('c')
        tt = [V(f'tt{i}') for i in range(12)]
        if o['sat'] == 'pre': X0 = [V(f'y{i}', 4) for i in range(4)]
        else: X0 = rows[0:4]
        self.c3 = V('c3', 4)
        INEP = o.get('inep')
        if INEP:
            eU = V('eu', 4); eM = V('em', 4); eA = V('ea', 2)
        print('phase 3 vgprs', V.next, file=sys.stderr)
        sCnt = [S(f'cnt{j}') for j in range(5)]
        sCntN = [S(f'cntn{j}') for j in range(5)]
        sIt = S('it'); sF0 = S('mf0'); sNot31 = S('not31'); sK1 = S('k1'); sPoff = S('poff')
        sHiL = Reg('s', 24, 2); sHdr = Reg('s', 26, 2); sv = [Reg('s', 18 + 2 * h, 2) for h in range(3)]
        sMore = [Reg('s', 4 + 2 * k, 2) for k in range(4)]
        sSave = Reg('s', 12, 2); sX = Reg('s', 16, 2)
        self.c = dict(NegT=sNegT, Sel=vSel, Lim=sLim, LimA=sLimA, GS=sGS, vCB=vCB, vZero=vZero, vOne=vOne,
                      sFail=sFail, sPoll=sPoll, sWS=sWS, vLine=vLine, sPoff=sPoff, tt=tt, X=X, sMore=sMore,
                      sv=sv, sHdr=sHdr, st=st, st2=st2, sX=sX, sSave=sSave)
        t0, t1, t2, t3 = tt[0], tt[1], tt[2], tt[3]
        def gap_epw():
            Ln1 = a.newlabel('nd')
            a(f"s_and_b32 {st2}, {sW}, 3")
            a(f"s_cmp_lg_u32 {st2}, 1")
            a(f"s_cbranch_scc1 {Ln1}")
            for jj in range(4): a(f"v_lshlrev_b32 {raw[jj]}, 16, {raw[jj]}")
            for jj in range(4): a(f"v_add_f32 {raw[jj]}, {raw[jj]}, {raw[jj]}")
            for jj in range(4): a(f"v_lshrrev_b32 {raw[jj]}, 16, {raw[jj]}")
            a.label(Ln1)
            for h in range(2):
                a(f"v_lshl_or_b32 {raw[2*h]}, {raw[2*h + 1]}, 16, {raw[2*h]}")
            a(f"v_mov_b32 {raw[1]}, {raw[2]}")
            a(f"s_lshl_b32 {st}, {st2}, 9")
            a(f"v_lshl_add_u32 {tt[2]}, {vLane}, 3, {st}")
            a(f"ds_write_b64 {tt[2]}, {raw[0:2]} offset:{EPW}")
        def gap_rbf(js, cen):
            a(f"v_lshlrev_b32 {cen[0]}, 16, {cenr[0]}")
            a(f"v_and_b32 {cen[1]}, {sHi}, {cenr[0]}")
            a(f"v_lshlrev_b32 {cen[2]}, 16, {cenr[1]}")
            a(f"v_and_b32 {cen[3]}, {sHi}, {cenr[1]}")
            a(f"s_not_b64 {sX}, {sHiL}")
            for j in js:
                self.rbf_operand(dd[j], cen, rbfB[j], tt[4:], sX)
        def gap_work():
            a(f"v_and_b32 {t0}, 15, {vLane}")
            a(f"v_lshrrev_b32 {t1}, 4, {vLane}")
            a(f"v_lshrrev_b32 {t2}, 2, {t0}")
            a(f"v_lshlrev_b32 {t2}, 3, {t2}")
            a(f"v_and_b32 {t3}, 3, {t0}")
            a(f"v_add_u32 {vTau[0]}, {t2}, {t3}")
            a(f"v_lshrrev_b32 {t3}, 5, {vLane}")
            a(f"v_lshl_add_u32 {vTau[0]}, {t3}, 2, {vTau[0]}")
            for b in range(1, NBLK): a(f"v_add_u32 {vTau[b]}, {32 * b}, {vTau[0]}")
            a(f"v_and_b32 {t2}, 1, {t1}")
            a(f"v_lshlrev_b32 {vHalf}, 4, {t2}")
            vWr = vIdx
            a(f"v_lshlrev_b32 {vWr}, 4, {vHalf}")
            a(f"v_lshl_add_u32 {vWr}, {t0}, 1, {vWr}")
            a(f"s_mul_i32 {st}, {sW}, {10*GS}")
            a(f"s_add_u32 {st}, {st}, {CB}")
            a(f"v_lshlrev_b32 {vIdxC}, 3, {vTau[0]}")
            a(f"v_add_u32 {vIdxC}, {st}, {vIdxC}")
            a(f"v_add_u32 {vIdxN}, {GS}, {vIdxC}")
            a(f"v_and_b32 {t2}, 31, {vLane}")
            a(f"v_lshlrev_b32 {vTupC}, 3, {t2}")
            a(f"v_add_u32 {vTupC}, {st}, {vTupC}")
            a(f"v_add_u32 {vTupN}, {GS}, {vTupC}")
            a(f"s_lshl_b32 {st}, {sW}, 11")
            a(f"s_add_u32 {st}, {st}, {STG}")
            a(f"v_lshlrev_b32 {vBrd}, 4, {vLane}")
            a(f"v_add_u32 {vBrd}, {st}, {vBrd}")
            a(f"v_lshrrev_b32 {vK}, 3, {t2}")
            a(f"v_lshlrev_b32 {vK}, 8, {vK}")
            a(f"v_and_b32 {t2}, 7, {t2}")
            a(f"v_lshl_add_u32 {vK}, {t2}, 1, {vK}")
            a(f"v_lshl_add_u32 {vK}, {t3}, 10, {vK}")
            a(f"v_add_u32 {vK}, {st}, {vK}")
            a(f"v_min_u32 {vCntA}, 4, {vLane}")
            a(f"s_mul_i32 {st}, {sW}, 5")
            a(f"v_add_u32 {vCntA}, {st}, {vCntA}")
            a(f"v_lshlrev_b32 {vCntA}, 3, {vCntA}")
            a(f"s_mov_b32 {sF0}, 0xf0")
            a(f"s_mov_b32 {sNot31}, 0x{o['gmask']:x}")
            a(f"s_mov_b32 {sK1}, 0x{f32(1.0 / 2047.5):x}")
            a(f"v_mov_b32 {vK2}, 0x{f32((0.5 - 2048.0) / 2047.5):x}")
            a(f"s_mov_b32 {sHiL[0]}, 0")
            a(f"s_mov_b32 {sHiL[1]}, -1")
            a(f"s_mov_b32 {sHdr[0]}, 0x80808080")
            a(f"s_mov_b32 {sHdr[1]}, 0x80808080")
            a(f"v_lshlrev_b32 {t2}, 3, {vLane}")
            a(f"ds_write_b64 {t2}, {wraw} offset:{WSC}")
            wtmp = X[2]
            for i in range(4):
                a(f"ds_read_u16 {wtmp[i]}, {vWr} offset:{WSC + (2*i)*32}")
                a(f"ds_read_u16 {X[3][i]}, {vWr} offset:{WSC + (2*i+1)*32}")
            pf_at('gw1')
            if o['rbfat'] == 'gap':
                gap_epw()
                gap_rbf(range(5), X[0])
            wtmp = X[2]
            a(f"s_not_b64 {sX}, {sHiL}")
            a("s_waitcnt lgkmcnt(0)")
            for i in range(4):
                a(f"v_lshl_or_b32 {wtmp[i]}, {X[3][i]}, 16, {wtmp[i]}")
            for i in range(4):
                a(f"v_cndmask_b32 {Wa[i]}, 0, {wtmp[i]}, {sX}")
            for i in range(4):
                a(f"v_cndmask_b32 {Wb[i]}, 0, {wtmp[i]}, {sHiL}")
            pf_at('gw2')
            if PF and any(isinstance(w, int) for w in o['pfat']) and not self.pf_based: pf_base()
            self.stamp(7)
        if o['gapat'] == 'pre': gap_work()
        tf = o['tupflags']
        gate = o['gate']
        if gate == 'ack': a("s_waitcnt vmcnt(0)")
        elif gate == 'ack0': wait_for('L0')
        elif isinstance(gate, int) and gate > 0:
            Lg = a.newlabel('gate'); Lgx = a.newlabel('gatex')
            a(f"s_mov_b32 {sPoll}, 0")
            a.label(Lg)
            a("s_memrealtime s[14:15]")
            a("s_waitcnt lgkmcnt(0)")
            a(f"s_sub_u32 {st}, s14, {sG0}")
            a(f"s_cmp_ge_u32 {st}, {gate}")
            a(f"s_cbranch_scc1 {Lgx}")
            a(f"s_add_u32 {sPoll}, {sPoll}, 1")
            a(f"s_cmp_lt_u32 {sPoll}, 100000")
            a(f"s_cbranch_scc1 {Lg}")
            a.label(Lgx)
        self.stamp(8)
        a(f"s_lshl_b32 {sPoff}, s2, 15")
        def load_line(dst, l, k, tag=None, optional=False):
            if l == 0:
                a(f"buffer_load_dwordx4 {dst}, {vLine}, {sWS}, {sPoff} offen offset:{k*1024} {tf}")
            else:
                a(f"s_add_u32 {st}, {sPoff}, {(l * 256) << 15}")
                a(f"buffer_load_dwordx4 {dst}, {vLine}, {sWS}, {st} offen offset:{k*1024} {tf}")
            if tag: self.vm_issue(tag, optional)
        def stores_at(where):
            for it in range(4):
                if L1S[it] == where:
                    store(1, it)
                    self.vm_issue(f'L1{it}', optional=isinstance(where, int))
            if L2S == where: store2()
        for k in range(4): load_line(X0[k], 0, k, f'Z{k}')
        stores_at('post')
        pf_at('z')
        if o['gapat'] == 'post': gap_work()
        if 'val' in L1S or L2S == 'val':
            for k in range(4):
                self.vm_wait(f'Z{k}', linear=True)
                if k == 0: self.stamp(9)
                self.checked(X0[k], 0, k, f'z{k}')
            pf_at('z0')
            stores_at('val')
            pf_at('val')
            for k in range(4): self.insert(X0[k], 0)
        else:
            PRE = o['ppl'] if isinstance(o['ppl'], str) else None
            if o.get('pipe0'):
                assert PRE is None and o['sat'] != 'pre'
                sets = [(sv, tt[0:3], tt[3:6], tt[6:9]),
                        (sMore[0:3], [X[0][i] for i in range(3)], [X[1][i] for i in range(3)], [X[2][i] for i in range(3)])]
                sZ = so2
                def W(n, name):
                    if o.get('mark'):
                        a(f"s_waitcnt lgkmcnt({n})")
                        return
                    a(f"s_cmp_lg_u32 {sZ}, 0")
                    a(f"s_cbranch_scc1 c_sw_{name}")
                    a(f"s_waitcnt lgkmcnt({n})")
                    a.label(f"c_swb_{name}")
                    def slow(name=name):
                        a.label(f"c_sw_{name}")
                        a("s_waitcnt lgkmcnt(0)")
                        a(f"s_branch c_swb_{name}")
                    self.late.append((slow, ()))
                a(f"s_mov_b32 {sZ}, 0")
                for k in range(4):
                    self.vm_wait(f'Z{k}', linear=True)
                    if k == 0: self.stamp(9)
                    self.checked(X0[k], 0, k, f'z{k}')
                    self.ins_a(X0[k], sets[k & 1], sZ)
                    if k > 0:
                        W(3 if k == 1 else 6, f'z{k}')
                        self.ins_b(X0[k - 1], sets[(k - 1) & 1])
                W(3, 'z4')
                self.ins_b(X0[3], sets[1])
            for k in range(0 if o.get('pipe0') else 4):
                self.vm_wait(f'Z{k}', linear=True)
                if k == 0: self.stamp(9)
                if PRE == f'z{k}':
                    for kk in range(4): load_line(X[kk], 1, kk, f'P{kk}')
                self.checked(X0[k], 0, k, f'z{k}')
                if o.get('fine') and k == 0: self.stamp(20)
                self.insert(X0[k], 0)
                if o.get('fine') and k == 0: self.stamp(28)
                if o.get('fine') and k == 2: self.stamp(29)
                if o['sat'] == 'pre': load_line(X0[k], 2, k, f'S{k}')
        self.publish()
        self.stamp(10)
        a("s_waitcnt lgkmcnt(0)")
        a("s_barrier")
        self.stamp(11)
        self.read_counts_issue(vC, vCntA, CC)
        off = lambda p: (p // NBLK) * 2 * GS + (p % NBLK) * 256
        ix = [Bq[1][0][i] for i in range(4)] + [Bq[1][1][i] for i in range(4)]
        for t in range(DG):
            a(f"ds_read_b32 {ix[t]}, {vIdxC} offset:{off(t)}")
        a(f"ds_read_b64 {vT}, {vTupC} offset:0")
        a("s_waitcnt lgkmcnt(0)")
        self.read_counts_use(vC, sCnt, sFail, st, st2)
        OB = o['optblk']
        opt = lambda p: (p % NBLK) >= OB
        for t in range(DG):
            Lg = None
            if opt(t):
                Lg = a.newlabel('skg')
                a(f"s_cmp_gt_u32 {sCnt[t // NBLK]}, {32 * (t % NBLK)}")
                a(f"s_cbranch_scc0 {Lg}")
            self.g_stage(ix[t], vOff, sNot31, vHalf, sCnt[t // NBLK], vTau[t % NBLK], rows[t % NR], sM)
            self.vm_issue(f"G{t}", optional=Lg is not None)
            if Lg: a.label(Lg)
        sst = (vT, vAddr, vC0, vC1, sF0, vK, sK1, vK2, sHiL, vBrd)
        self.s_stage(*sst, Bq[0], vZero)
        a(f"ds_read_b32 {vIdx}, {vIdxC} offset:{off(DG)}")
        a(f"ds_read_b64 {vT}, {vTupC} offset:{off(1)}")
        a(f"s_mov_b32 {sIt}, 0")
        self.stamp(12)

        PINS = o['pins']; PSEC = o['psec']; PWAIT = o['pwait']; PPL = o['ppl']
        if isinstance(PPL, str): PPL = ()
        else: assert all(PPL[k] < PINS[k] for k in range(4))
        assert max(PINS) < PSEC < PWAIT <= NPOS - DG - 2
        VARS = [(sIt, PPL, PINS, PSEC, '')]
        if o.get('stag'):
            ppl2, pins2, psec2 = o['stag']
            assert all(ppl2[k] < pins2[k] for k in range(4)) and max(pins2) < psec2 < PWAIT
            sV0 = S('var0'); sV1 = S('var1')
            a(f"s_lshr_b32 {sV0}, {sW}, {o.get('stagbit', 2)}")
            a(f"s_and_b32 {sV0}, {sV0}, 1")
            a(f"s_xor_b32 {sV1}, {sV0}, 1")
            VARS = [(sV0, PPL, PINS, PSEC, ''), (sV1, ppl2, pins2, psec2, 'b')]
        Lloop = 'c_loop'
        a.label(Lloop)
        start = len(a.lines)
        for p in range(NPOS):
            a.comment(f"---- slot {p}")
            j, blk = p // NBLK, p % NBLK
            a("s_waitcnt lgkmcnt(0)")
            if p == PWAIT + 1:
                self.read_counts_use(vC, sCntN, sFail, st, st2)
                if INEP:
                    a(f"v_readfirstlane_b32 {st}, {tt[5]}")
                    a(f"s_or_b32 {sFail}, {sFail}, {st}")
            rw = rows[p % NR]
            Lsk1 = None
            if opt(p):
                Lsk1 = a.newlabel('sk1')
                a(f"s_cmp_gt_u32 {sCnt[j]}, {32 * blk}")
                a(f"s_cbranch_scc0 {Lsk1}")
            self.vm_wait(f"G{p}")
            a(f"v_mfma_f32_16x16x32_bf16 {D1[0]}, {rw}, {Wa}, 0")
            a(f"v_mfma_f32_16x16x32_bf16 {D1[1]}, {rw}, {Wb}, 0")
            if Lsk1: a.label(Lsk1)
            if p == PWAIT:
                Lno = a.newlabel('nowait'); Lgo = a.newlabel('gowait')
                a(f"s_cmp_eq_u32 {sIt}, 0")
                a(f"s_cbranch_scc0 {Lno}")
                self.lds_spin(CB_CNT, 8, vC, vZero, st)
                self.read_counts_issue(vC, vCntA, CC + 4)
                if INEP: a(f"ds_read_b32 {tt[5]}, {vZero} offset:{FAIL}")
                a(f"s_branch {Lgo}")
                a.label(Lno)
                a(f"v_mov_b32 {vC}, 0")
                if INEP: a(f"v_mov_b32 {tt[5]}, 0")
                a.label(Lgo)
            tgt = p + DG
            tq = tgt % NPOS
            cn = sCnt[tq // NBLK] if tgt < NPOS else sCntN[tq // NBLK]
            Lg = None
            if opt(tq):
                Lg = a.newlabel('skg')
                a(f"s_cmp_gt_u32 {cn}, {32 * (tq % NBLK)}")
                a(f"s_cbranch_scc0 {Lg}")
            self.g_stage(vIdx, vOff, sNot31, vHalf, cn, vTau[tq % NBLK], rows[tgt % NR], sM)
            self.vm_issue(f"G{tq}", optional=Lg is not None)
            if Lg: a.label(Lg)
            nx = p + 1
            nq = nx % NPOS
            Lsk2 = None
            if opt(nq):
                cn2 = sCnt[nq // NBLK] if nx < NPOS else sCntN[nq // NBLK]
                Lsk2 = a.newlabel('sk2')
                a(f"s_cmp_gt_u32 {cn2}, {32 * (nq % NBLK)}")
                a(f"s_cbranch_scc0 {Lsk2}")
            self.s_stage(*sst, Bq[nx & 1], vZero)
            if Lsk2: a.label(Lsk2)
            t2_ = tgt + 1
            base = vIdxC if t2_ < NPOS else vIdxN
            a(f"ds_read_b32 {vIdx}, {base} offset:{off(t2_ % NPOS)}")
            s2_ = p + 2
            base = vTupC if s2_ < NPOS else vTupN
            a(f"ds_read_b64 {vT}, {base} offset:{off(s2_ % NPOS)}")
            Lsk3 = None
            if opt(p):
                Lsk3 = a.newlabel('sk3')
                a(f"s_cmp_gt_u32 {sCnt[j]}, {32 * blk}")
                a(f"s_cbranch_scc0 {Lsk3}")
            a(f"v_cvt_pk_bf16_f32 {rw[0]}, {D1[0][0]}, {D1[0][1]}")
            a(f"v_cvt_pk_bf16_f32 {rw[1]}, {D1[0][2]}, {D1[0][3]}")
            a(f"v_cvt_pk_bf16_f32 {rw[2]}, {D1[1][0]}, {D1[1][1]}")
            a(f"v_cvt_pk_bf16_f32 {rw[3]}, {D1[1][2]}, {D1[1][3]}")
            Bp = Bq[p & 1]
            a(f"v_mfma_f32_16x16x32_bf16 {acc[j][0]}, {rw}, {Bp[0]}, {acc[j][0]}")
            a(f"v_mfma_f32_16x16x32_bf16 {acc[j][1]}, {rw}, {Bp[1]}, {acc[j][1]}")
            if Lsk3: a.label(Lsk3)
            if p in L1S or p == L2S:
                Lsk = a.newlabel('nost')
                a(f"s_cmp_eq_u32 {sIt}, 0")
                a(f"s_cbranch_scc0 {Lsk}")
                stores_at(p)
                a.label(Lsk)
            for (cnd, vPPL, vPINS, vPSEC, sfx) in VARS:
                if p in vPPL:
                    Lsk = a.newlabel('nost')
                    a(f"s_cmp_eq_u32 {cnd}, 0")
                    a(f"s_cbranch_scc0 {Lsk}")
                    k = vPPL.index(p)
                    load_line(X[k], 1, k, f'P{k}{sfx}', optional=True)
                    a.label(Lsk)
            if o['pf'] and p in o['pfat']:
                Lsk = a.newlabel('nopf')
                a(f"s_cmp_eq_u32 {sIt}, 0")
                a(f"s_cbranch_scc0 {Lsk}")
                for w in o['pfat']:
                    if w == p: self.pf1(inloop=True)
                a.label(Lsk)
            if isinstance(o['rbfat'], int) or isinstance(o['mat'], int):
                RB = o['rbfat'] if isinstance(o['rbfat'], int) else -100
                MA = o['mat'] if isinstance(o['mat'], int) else -100
                if p == MA or RB <= p < RB + 6:
                    Lsk = a.newlabel('norb')
                    a(f"s_cmp_eq_u32 {sIt}, 0")
                    a(f"s_cbranch_scc0 {Lsk}")
                    if p == MA:
                        for jj in range(5):
                            a(f"buffer_load_dwordx2 {Mr[jj]}, {vMoff}, {sM}, 0 offen offset:{jj*512}")
                            self.vm_issue(f'mr{jj}', optional=True)
                    if p == RB: gap_epw()
                    if RB < p < RB + 6: gap_rbf([p - RB - 1], self.c3)
                    a.label(Lsk)
            for (cnd, vPPL, vPINS, vPSEC, sfx) in VARS:
              if p in vPINS:
                k = vPINS.index(p)
                Lsk = a.newlabel('noins')
                a(f"s_cmp_eq_u32 {cnd}, 0")
                a(f"s_cbranch_scc0 {Lsk}")
                self.vm_wait(f"P{k}{sfx if vPPL else ''}", linear=True)
                self.checked(X[k], 1, k, f'p{k}{sfx}')
                self.insert(X[k], 1, k=k, sfx=sfx)
                if o['sat'] != 'pre':
                    L = a.newlabel('sl')
                    a(f"s_cmp_eq_u64 {sMore[k]}, 0")
                    a(f"s_cbranch_scc1 {L}")
                    a(f"s_add_u32 {st}, {sPoff}, {(2 * 256) << 15}")
                    a(f"s_mov_b64 exec, {sMore[k]}")
                    a(f"buffer_load_dwordx4 {X[k]}, {vLine}, {sWS}, {st} offen offset:{k*1024} {tf}")
                    a(f"s_mov_b64 exec, -1")
                    a.label(L)
                    self.vm_issue(f"S{k}{sfx}", optional=True)
                a.label(Lsk)
              if p == vPSEC:
                Lna = a.newlabel('noarr')
                a(f"s_cmp_eq_u32 {cnd}, 0")
                a(f"s_cbranch_scc0 {Lna}")
                for k in range(4):
                    Ln_ = a.newlabel('sn')
                    a(f"s_cmp_eq_u64 {sMore[k]}, 0")
                    a(f"s_cbranch_scc1 {Ln_}")
                    self.vm_wait(f"S{k}{sfx}", linear=True)
                    a(f"s_mov_b64 exec, {sMore[k]}")
                    XS = X0[k] if o['sat'] == 'pre' else X[k]
                    self.checked(XS, 2, k, f's{k}{sfx}', sub=sMore[k])
                    self.insert(XS, 2, sub=sMore[k])
                    a.label(Ln_)
                self.publish()
                a("s_waitcnt lgkmcnt(0)")
                self.lds_arrive(CB_CNT, vZero, vOne)
                a.label(Lna)
            if INEP:
                e_ = o.get('inepe', 1)
                Aop = [X[0][0:2], X[0][2:4], X[1][0:2], X[1][2:4]]
                what = {1: 'aop', 6 + e_: 0, 12 + e_: 1, 18 + e_: 2, 24 + e_: 3, o.get('inep4', 27): 'pre4'}.get(p)
                if what is not None:
                    Lsk = a.newlabel('noep')
                    a(f"s_cmp_eq_u32 {sIt}, 0")
                    a(f"s_cbranch_scc1 {Lsk}")
                    if what == 'aop':
                        a(f"v_lshlrev_b32 {tt[2]}, 3, {vLane}")
                        for x in range(4):
                            a(f"ds_read_b64 {Aop[x]}, {tt[2]} offset:{EPW + x*512}")
                    elif what == 'pre4':
                        a(f"v_and_b32 {tt[0]}, 15, {vLane}")
                        a(f"s_mul_i32 {st}, {sW}, 80")
                        a(f"v_add_u32 {tt[0]}, {st}, {tt[0]}")
                        a(f"v_add_u32 {tt[0]}, 64, {tt[0]}")
                        a(f"v_cmp_gt_u32 vcc, 625, {tt[0]}")
                        a(f"v_cndmask_b32 {tt[1]}, {OOB}, {vMoff}, vcc")
                        self.ep_a(4, Aop, X[2], X[3], self.c3, eM, rbfB, Mr)
                    else:
                        self.ep_a(what, Aop, X[2], X[3], self.c3, eM, rbfB, Mr)
                        self.ep_b(what, Aop, X[2], X[3], self.c3, eM, eU, eA, acc, Mr)
                    a.label(Lsk)
            if self.prof and p in (1, 5, 9, 14, 19, 24, 29):
                slot = (1, 5, 9, 14, 19, 24, 29).index(p)
                a(f"s_lshl_b32 {st}, {sIt}, 3")
                a(f"s_add_u32 {st}, {st}, {13 + slot}")
                self.stamp_dyn(st)
        a(f"v_mov_b32 {vIdxC}, {vIdxN}")
        a(f"v_mov_b32 {vTupC}, {vTupN}")
        for jj in range(5):
            a(f"s_mov_b32 {sCnt[jj]}, {sCntN[jj]}")
        if o.get('stag'):
            a(f"s_mov_b32 {sV0}, 1")
            a(f"s_mov_b32 {sV1}, 1")
        a(f"s_add_u32 {sIt}, {sIt}, 1")
        a(f"s_cmp_le_u32 {sIt}, 1")
        a(f"s_cbranch_scc1 {Lloop}")
        end = len(a.lines)
        self.resolve_vm(start, end)
        self.stamp(40)
        Aop = [X[0][0:2], X[0][2:4], X[1][0:2], X[1][2:4]]
        fbargs = (acc, rows, X, D1, Bq, Wa, Wb, vLane, vZero, vOne, vHalf, vTau, sE0, sW,
                  sOI, sIN, sAN, sM, st, st2, sMore, pDBG, sIt, sPoff, sPoll,
                  vOff, vIdx, vAddr, vC0, vT, sv)
        def full_epilogue():
            a(f"v_lshlrev_b32 {vIdx}, 3, {vLane}")
            for x in range(4):
                a(f"ds_read_b64 {Aop[x]}, {vIdx} offset:{EPW + x*512}")
            a("s_waitcnt vmcnt(0) lgkmcnt(0)" if INEP else "s_waitcnt lgkmcnt(0)")
            self.epilogue(acc, Mr, D1, Bq, rbfB, Aop, tt, vLane, vMoff, sW, sOUT, st, rows, X)
        if INEP:
            a(f"s_cmp_lg_u32 {sFail}, 0")
            a(f"s_cbranch_scc1 c_fallback")
            of = o.get('outflags', '')
            for j in range(4):
                a(f"buffer_store_dwordx2 {Mr[j]}, {vMoff}, {sOUT}, 0 offen offset:{j*512} {of}")
            self.ep_b(4, Aop, X[2], X[3], self.c3, eM, eU, eA, acc, Mr)
            a(f"buffer_store_dwordx2 {Mr[4]}, {tt[1]}, {sOUT}, 0 offen offset:{4*512} {of}")
            a.label("c_done")
            def fb_tail():
                a.label("c_fb_back")
                for jj in range(5):
                    a(f"buffer_load_dwordx2 {Mr[jj]}, {vMoff}, {sM}, 0 offen offset:{jj*512}")
                full_epilogue()
                a("s_branch c_done")
            self.late.append((self._fallback, fbargs))
            self.late.append((fb_tail, ()))
        else:
            a("s_waitcnt vmcnt(0) lgkmcnt(0)")
            a(f"ds_read_b32 {tt[0]}, {vZero} offset:{FAIL}")
            a("s_waitcnt lgkmcnt(0)")
            a(f"v_readfirstlane_b32 {st}, {tt[0]}")
            a(f"s_or_b32 {sFail}, {sFail}, {st}")
            a(f"s_cmp_lg_u32 {sFail}, 0")
            a(f"s_cbranch_scc1 c_fallback")
            a.label("c_fb_back")
            self.late.append((self._fallback, fbargs))
            full_epilogue()
        self.stamp(41)
        Lgd = a.newlabel('gd'); Lgx = a.newlabel('gdx')
        a(f"s_mov_b32 {sPoll}, 0")
        a.label(Lgd)
        a("s_memrealtime s[14:15]")
        a("s_waitcnt lgkmcnt(0)")
        a(f"s_sub_u32 {st}, s14, {sG0}")
        a(f"s_cmp_ge_u32 {st}, {GUARD}")
        a(f"s_cbranch_scc1 {Lgx}")
        a(f"s_add_u32 {sPoll}, {sPoll}, 1")
        a(f"s_cmp_lt_u32 {sPoll}, 100000")
        a("s_sleep 4")
        a(f"s_cbranch_scc1 {Lgd}")
        a.label(Lgx)
        self.prof_store(sW)
        self.dbg_store(sW, pDBG)
        a("s_endpgm")

    def dbg_store(self, sW, pDBG):
        if not self.o.get('dbgprof'): return
        a = self.a
        L = a.newlabel('dbgx')
        if self.o.get('dbgdelay'):
            Ld = a.newlabel('dbgd')
            a(f"v_readlane_b32 s5, {self.vProf}, 50")
            a.label(Ld)
            a("s_memrealtime s[8:9]")
            a("s_waitcnt lgkmcnt(0)")
            a("s_sub_u32 s8, s8, s5")
            a(f"s_cmp_lt_u32 s8, {self.o['dbgdelay']}")
            a("s_sleep 8")
            a(f"s_cbranch_scc1 {Ld}")
        if self.o.get('dbgprof') == 3: return
        if self.o.get('dbgprof') == 2:
            a("s_mov_b64 exec, 1")
            a("s_getreg_b32 s6, hwreg(HW_REG_XCC_ID, 0, 3)")
            a("s_lshl_b32 s7, s6, 8")
            a("s_or_b32 s7, s7, s2")
            a(f"s_lshl_b32 s8, {sW}, 11")
            a("s_or_b32 s7, s7, s8")
            rl = lambda d, ix: a(f"v_readlane_b32 {d}, {self.vProf}, {ix}")
            def amax(slot, voff='v2', op='global_atomic_umax'):
                a("v_mov_b32 v1, s4")
                a(f"{op} {voff}, v1, {pDBG} offset:{slot * 4}")
            a("v_mov_b32 v2, 0")
            rl('s4', 41); amax(1)
            a("s_lshl_b32 s8, s6, 2"); a("v_mov_b32 v3, s8")
            amax(6, 'v3')
            for slot, hi, lo in ((2, 40, 12),):
                rl('s4', hi); rl('s5', lo); a("s_sub_u32 s4, s4, s5"); a("s_lshl_b32 s4, s4, 14"); a("s_or_b32 s4, s4, s7"); amax(slot)
            a(f"s_cmp_lg_u32 {sW}, 0")
            a(f"s_cbranch_scc1 {L}")
            rl('s4', 50); a("s_not_b32 s4, s4"); amax(0)
            for slot, hi, lo in ((3, 19, 12), (4, 40, 19), (5, 12, 50)):
                rl('s4', hi); rl('s5', lo); a("s_sub_u32 s4, s4, s5"); a("s_lshl_b32 s4, s4, 14"); a("s_or_b32 s4, s4, s7"); amax(slot)
            for slot, th in ((14, self.o.get('th1', 1600)), (15, self.o.get('th2', 1900))):
                rl('s4', 40); rl('s5', 12); a("s_sub_u32 s4, s4, s5")
                a(f"s_cmp_gt_u32 s4, {th}"); a("s_cselect_b32 s4, 1, 0"); amax(slot, op='global_atomic_add')
            a("s_waitcnt vmcnt(0)")
            a.label(L)
            a("s_waitcnt vmcnt(0)")
            return
        a(f"s_cmp_lg_u32 {sW}, 0")
        a(f"s_cbranch_scc1 {L}")
        a("s_mov_b64 exec, 1")
        a("v_mov_b32 v2, 0")
        a(f"v_readlane_b32 s5, {self.vProf}, 50")
        spec = [(0, 50, 'min'), (1, 50, 'max'), (2, 2, 'max'), (3, 4, 'max'), (5, 9, 'max'), (6, 12, 'max'), (7, 40, 'max'), (8, 41, 'max'),
                (9, 2, 'sum'), (10, 4, 'sum'), (11, 9, 'sum'), (12, 12, 'sum'), (13, 19, 'sum'), (14, 40, 'sum'), (15, 41, 'sum')]
        for slot, ix, kind in spec:
            a(f"v_readlane_b32 s4, {self.vProf}, {ix}")
            if kind == 'min': a("s_not_b32 s4, s4")
            if kind == 'sum': a("s_sub_u32 s4, s4, s5")
            a("v_mov_b32 v1, s4")
            op = 'global_atomic_add' if kind == 'sum' else 'global_atomic_umax'
            a(f"{op} v2, v1, {pDBG} offset:{slot * 4}")
        a("s_waitcnt vmcnt(0)")
        a.label(L)

    def _p_rare(self, Hd, aW, aB, tp, vRb, vSt, vTag, sM24, sSrc, so, s73, sWS, L):
        a = self.a
        a.label("p_rare")
        for it in range(4):
            Ls = a.newlabel('pr')
            a(f"v_cmp_le_u32 vcc, {s73}, {Hd[it]}")
            a(f"s_cbranch_vccz {Ls}")
            a(f"s_mov_b64 exec, vcc")
            a("s_waitcnt vmcnt(0)")
            a(f"ds_read2_b32 {L[0:2]}, {aW[it]} offset0:{3 * 24} offset1:{3 * 24 + 1}")
            a(f"ds_read_b32 {L[2]}, {aW[it]} offset:{3 * 96 + 8}")
            a(f"ds_read2_b32 {tp}, {aB[it]} offset0:{3 * 6} offset1:{3 * 6 + 1}")
            a("s_waitcnt lgkmcnt(0)")
            a(f"v_alignbyte_b32 {L[3]}, {tp[1]}, {tp[0]}, {vRb}")
            a(f"v_bfi_b32 {L[3]}, {sM24}, {L[3]}, {vTag}")
            a(f"s_add_u32 {so}, {sSrc}, {(3 * 256 + it * 8) << 15}")
            a(f"buffer_store_dwordx4 {L}, {vSt}, {sWS}, {so} offen {self.o['stflags']}")
            a(f"s_mov_b64 exec, -1")
            a.label(Ls)
        a("s_branch p_rare_back")

    def publish(self):
        a = self.a; c = self.c
        L = a.newlabel('pub')
        a(f"s_cmp_eq_u32 {c['sFail']}, 0")
        a(f"s_cbranch_scc1 {L}")
        a(f"ds_write_b32 {c['vZero']}, {c['vOne']} offset:{FAIL}")
        a.label(L)

    def g_stage(self, idx, vOff, sNot31, vHalf, cnt, tau, dst, sM):
        a = self.a
        a(f"v_cmp_gt_u32 vcc, {cnt}, {tau}")
        a(f"v_lshrrev_b32 {vOff}, 9, {idx}")
        a(f"v_and_or_b32 {vOff}, {vOff}, {sNot31}, {vHalf}")
        if self.o.get('nog') == 1: a(f"v_mov_b32 {vOff}, {OOB}")
        elif self.o.get('nog') == 2: a(f"v_cndmask_b32 {vOff}, {OOB}, {vHalf}, vcc")
        else: a(f"v_cndmask_b32 {vOff}, {OOB}, {vOff}, vcc")
        a(f"buffer_load_dwordx4 {dst}, {vOff}, {sM}, 0 offen")

    def s_stage(self, vT, vAddr, vC0, vC1, sF0, vK, sK1, vK2, sHiL, vBrd, B, vZero):
        a = self.a
        a(f"v_and_b32 {vC0}, 15, {vT[0]}")
        a(f"v_lshl_or_b32 {vC0}, {vT[1]}, 4, {vC0}")
        a(f"v_cvt_f32_u32 {vC0}, {vC0}")
        a(f"v_and_or_b32 {vAddr}, {vT[0]}, {sF0}, {vK}")
        a(f"v_fma_f32 {vC0}, {vC0}, {sK1}, {vK2}")
        a(f"v_fma_f32 {vC1}, {vC0}, {vC0}, -0.5")
        a(f"v_cndmask_b32 {vC0}, {vC0}, {vC1}, {sHiL}")
        a(f"v_cvt_pk_bf16_f32 {vC0}, {vC0}, {vC0}")
        a(f"ds_write_b16 {vAddr}, {vC0}")
        a(f"ds_read_b128 {B[0]}, {vBrd}")
        a(f"ds_read_b128 {B[1]}, {vBrd} offset:1024")
        a(f"ds_write_b16 {vAddr}, {vZero}")

    def read_counts_issue(self, vC, vCntA, off):
        self.a(f"ds_read_b32 {vC}, {vCntA} offset:{off}")

    def read_counts_use(self, vC, dst, sFail, st, st2):
        a = self.a
        for jj in range(5):
            a(f"v_readlane_b32 {dst[jj]}, {vC}, {jj}")
        a(f"s_max_u32 {st}, {dst[0]}, {dst[1]}")
        a(f"s_max_u32 {st2}, {dst[2]}, {dst[3]}")
        a(f"s_max_u32 {st}, {st}, {dst[4]}")
        a(f"s_max_u32 {st}, {st}, {st2}")
        a(f"s_cmp_gt_u32 {st}, {CAP}")
        a(f"s_cselect_b32 {st}, 1, 0")
        a(f"s_or_b32 {sFail}, {sFail}, {st}")
        for jj in range(5):
            a(f"s_min_u32 {dst[jj]}, {dst[jj]}, {CAP}")

    def rbf_operand(self, d, cen, dst, tt, sQ):
        a = self.a
        t = [tt[0], tt[1], tt[2], tt[3]]; u = tt[4]; dv = tt[5]
        a(f"v_lshlrev_b32 {dv}, 16, {d}")
        for i in range(4): a(f"v_sub_f32 {t[i]}, {dv}, {cen[i]}")
        def rnd():
            for h in range(2):
                a(f"v_cvt_pk_bf16_f32 {u}, {t[2*h]}, {t[2*h+1]}")
                a(f"v_lshlrev_b32 {t[2*h]}, 16, {u}")
                a(f"v_and_b32 {t[2*h+1]}, 0xffff0000, {u}")
        rnd()
        for i in range(4): a(f"v_mul_f32 {t[i]}, {t[i]}, {t[i]}")
        rnd()
        for i in range(4): a(f"v_mul_f32 {t[i]}, 0xc1200000, {t[i]}")
        rnd()
        for i in range(4): a(f"v_mul_f32 {t[i]}, 0x3fb8aa3b, {t[i]}")
        for i in range(4): a(f"v_exp_f32 {t[i]}, {t[i]}")
        a(f"v_cvt_pk_bf16_f32 {dst[0]}, {t[0]}, {t[1]}")
        a(f"v_cvt_pk_bf16_f32 {dst[1]}, {t[2]}, {t[3]}")
        a(f"v_cndmask_b32 {dst[0]}, 0, {dst[0]}, {sQ}")
        a(f"v_cndmask_b32 {dst[1]}, 0, {dst[1]}, {sQ}")

    def tagcheck(self, x):
        a = self.a; c = self.c; tt = c['tt']
        u = tt[10]; w = tt[11]
        a(f"v_perm_b32 {u}, {x[3]}, {x[3]}, {c['Sel']}")
        a(f"v_or_b32_dpp {u}, {u}, {u} quad_perm:[1,0,3,2] row_mask:0xf bank_mask:0xf")
        a(f"v_or_b32_dpp {u}, {u}, {u} quad_perm:[2,3,0,1] row_mask:0xf bank_mask:0xf")
        a(f"v_lshlrev_b32 {w}, 8, {u}")
        a(f"v_xad_u32 {u}, {u}, {w}, {c['NegT']}")
        a(f"v_cmp_le_u32 vcc, 8, {u}")

    def checked(self, x, l, k, name, sub=None):
        a = self.a
        self.tagcheck(x)
        a(f"s_cbranch_vccnz c_rp_{name}")
        a.label(f"c_ok_{name}")
        self.late.append((self._repoll, (x, l, k, name, sub)))

    def _repoll(self, x, l, k, name, sub):
        a = self.a; c = self.c; tt = c['tt']
        ex = sub if sub is not None else '-1'
        a.label(f"c_rp_{name}")
        if self.o.get('fine') and name[0] == 'z': self.stamp(30 + k)
        if self.o.get('fine') and name[0] == 'p': self.stamp(34 + k)
        a(f"s_mov_b32 {c['sPoll']}, 0")
        L = a.newlabel('rpl'); Lto = a.newlabel('rpt')
        a(f"s_cmp_lg_u32 {c['sFail']}, 0")
        a(f"s_cbranch_scc1 {Lto}")
        a.label(L)
        a(f"s_sleep {self.o['psleep']}")
        a(f"s_mov_b64 exec, vcc")
        a(f"s_add_u32 {c['st']}, {c['sPoff']}, {(l * 256) << 15}")
        a(f"buffer_load_dwordx4 {x}, {c['vLine']}, {c['sWS']}, {c['st']} offen offset:{k*1024} {self.o['tupflags']}")
        a("s_waitcnt vmcnt(0)")
        self.tagcheck(x)
        a(f"s_mov_b64 exec, {ex}")
        a(f"s_cbranch_vccz c_ok_{name}")
        a(f"s_add_u32 {c['sPoll']}, {c['sPoll']}, 1")
        a(f"s_cmp_lt_u32 {c['sPoll']}, {self.o['poll_max']}")
        a(f"s_cbranch_scc1 {L}")
        a.label(Lto)
        a(f"s_mov_b32 {c['sFail']}, 1")
        tm = tt[9] if self.o.get('pipe0') else tt[0]
        a(f"v_mov_b32 {tm}, {'0x%x' % MARK if self.o.get('mark') else -1}")
        for h in range(3):
            a(f"v_cndmask_b32 {x[h]}, {x[h]}, {tm}, vcc")
        a(f"s_branch c_ok_{name}")

    def insert(self, x, l, k=None, sub=None, sfx=''):
        a = self.a; c = self.c; tt = c['tt']; sv = c['sv']
        g = tt[0:3]; rk = tt[3:6]; cs = tt[6:9]
        if self.o.get('mark'): return self.insert_m(x, l, k, sub, sfx)
        for h in range(3): a(f"v_cmp_gt_u32 {sv[h]}, {c['Lim']}, {x[h]}")
        for h in range(3): a(f"v_bfe_u32 {g[h]}, {x[h]}, 8, 6")
        if l == 0:
            for h in range(3):
                a(f"v_cmp_le_u32 vcc, {c['LimA']}, {x[h]}")
                a(f"v_addc_co_u32 {g[h]}, vcc, {g[h]}, {g[h]}, vcc")
        else:
            for h in range(3): a(f"v_lshl_or_b32 {g[h]}, {g[h]}, 1, 1")
        if l == 1:
            a(f"s_andn2_b64 {sv[2]}, {sv[2]}, {c['sHdr']}")
            a(f"s_mov_b32 {c['st']}, {49 << 18}")
            a(f"s_mov_b32 {c['st2']}, {73 << 18}")
            a(f"v_cmp_le_u32 vcc, {c['st']}, {x[2]}")
            a(f"v_cmp_le_u32 {c['sX']}, {c['st2']}, {x[2]}")
        for h in range(3): a(f"v_lshl_add_u32 {rk[h]}, {g[h]}, 2, {CC}")
        if self.o.get('diagins') and l == 0:
            for h in range(3):
                a(f"v_mbcnt_lo_u32_b32 {rk[h]}, -1, 0")
                a(f"v_mbcnt_hi_u32_b32 {rk[h]}, -1, {rk[h]}")
                a(f"v_lshl_add_u32 {rk[h]}, {rk[h]}, 2, {CC}")
        for h in range(3):
            a(f"s_mov_b64 exec, {sv[h]}")
            a(f"ds_add_rtn_u32 {rk[h]}, {rk[h]}, {c['vOne']}")
        a(f"s_mov_b64 exec, -1")
        for h in range(3): a(f"v_bfe_u32 {cs[h]}, {x[3]}, {8 * h}, 8")
        for h in range(3): a(f"v_mad_u32_u24 {g[h]}, {g[h]}, {c['GS']}, {c['vCB']}")
        if l == 1:
            m = c['sMore'][k]
            a(f"s_and_b64 {m}, vcc, {c['sHdr']}")
            a(f"s_lshr_b64 {m}, {m}, 7")
            a(f"s_lshl_b64 {c['sSave']}, {m}, 8")
            a(f"s_sub_u32 {m[0]}, {c['sSave'][0]}, {m[0]}")
            a(f"s_subb_u32 {m[1]}, {c['sSave'][1]}, {m[1]}")
        a("s_waitcnt lgkmcnt(0)")
        for h in range(3): a(f"v_min_u32 {rk[h]}, {CAP}, {rk[h]}")
        for h in range(3): a(f"v_lshl_add_u32 {g[h]}, {rk[h]}, 3, {g[h]}")
        for h in range(3):
            a(f"s_mov_b64 exec, {sv[h]}")
            a(f"ds_write2_b32 {g[h]}, {x[h]}, {cs[h]} offset0:0 offset1:1")
        a(f"s_mov_b64 exec, -1")
        if l == 1:
            a(f"s_and_b64 {c['sX']}, {c['sX']}, {c['sHdr']}")
            a(f"s_cbranch_scc1 c_l3_{k}{sfx}")
            a.label(f"c_l3_back_{k}{sfx}")
            self.late.append((self._line3, (x, k, sfx)))

    def insert_m(self, x, l, k, sub, sfx):
        a = self.a; c = self.c; tt = c['tt']; sv = c['sv']
        g = tt[0:3]; rk = tt[3:6]; cs = tt[6:9]
        for h in range(3): a(f"v_bfe_u32 {g[h]}, {x[h]}, 8, 6")
        if l == 0:
            for h in range(3): a(f"v_cmp_le_u32 {sv[h]}, {c['LimA']}, {x[h]}")
            for h in range(3): a(f"v_addc_co_u32 {g[h]}, vcc, {g[h]}, {g[h]}, {sv[h]}")
        else:
            for h in range(3): a(f"v_lshl_or_b32 {g[h]}, {g[h]}, 1, 1")
        if l == 1:
            a(f"s_mov_b32 {c['st']}, {49 << 18}")
            a(f"s_mov_b32 {c['st2']}, {73 << 18}")
            a(f"v_cmp_le_u32 vcc, {c['st']}, {x[2]}")
            a(f"v_cmp_le_u32 {c['sX']}, {c['st2']}, {x[2]}")
        for h in range(3): a(f"v_lshl_add_u32 {rk[h]}, {g[h]}, 2, {CC}")
        for h in range(3):
            if l == 1 and h == 2: a(f"s_not_b64 exec, {c['sHdr']}")
            a(f"ds_add_rtn_u32 {rk[h]}, {rk[h]}, {c['vOne']}")
        if l == 1: a(f"s_mov_b64 exec, -1")
        for h in range(3): a(f"v_bfe_u32 {cs[h]}, {x[3]}, {8 * h}, 8")
        for h in range(3): a(f"v_mad_u32_u24 {g[h]}, {g[h]}, {c['GS']}, {c['vCB']}")
        if l == 1:
            m = c['sMore'][k]
            a(f"s_and_b64 {m}, vcc, {c['sHdr']}")
            a(f"s_lshr_b64 {m}, {m}, 7")
            a(f"s_lshl_b64 {c['sSave']}, {m}, 8")
            a(f"s_sub_u32 {m[0]}, {c['sSave'][0]}, {m[0]}")
            a(f"s_subb_u32 {m[1]}, {c['sSave'][1]}, {m[1]}")
        a("s_waitcnt lgkmcnt(0)")
        for h in range(3): a(f"v_min_u32 {rk[h]}, {CAP}, {rk[h]}")
        for h in range(3): a(f"v_lshl_add_u32 {g[h]}, {rk[h]}, 3, {g[h]}")
        for h in range(3):
            if l == 1 and h == 2: a(f"s_not_b64 exec, {c['sHdr']}")
            a(f"ds_write2_b32 {g[h]}, {x[h]}, {cs[h]} offset0:0 offset1:1")
        if l != 0: a(f"s_mov_b64 exec, -1")
        if l == 1:
            a(f"s_and_b64 {c['sX']}, {c['sX']}, {c['sHdr']}")
            a(f"s_cbranch_scc1 c_l3_{k}{sfx}")
            a.label(f"c_l3_back_{k}{sfx}")
            self.late.append((self._line3, (x, k, sfx)))

    def ins_a(self, x, st_, sZ):
        a = self.a; c = self.c
        sv, g, rk, cs = st_
        if self.o.get('mark'):
            for h in range(3): a(f"v_bfe_u32 {g[h]}, {x[h]}, 8, 6")
            for h in range(3): a(f"v_cmp_le_u32 {sv[h]}, {c['LimA']}, {x[h]}")
            for h in range(3): a(f"v_addc_co_u32 {g[h]}, vcc, {g[h]}, {g[h]}, {sv[h]}")
            for h in range(3): a(f"v_lshl_add_u32 {rk[h]}, {g[h]}, 2, {CC}")
            for h in range(3): a(f"ds_add_rtn_u32 {rk[h]}, {rk[h]}, {c['vOne']}")
            for h in range(3): a(f"v_bfe_u32 {cs[h]}, {x[3]}, {8 * h}, 8")
            for h in range(3): a(f"v_mad_u32_u24 {g[h]}, {g[h]}, {c['GS']}, {c['vCB']}")
            return
        for h in range(3): a(f"v_cmp_gt_u32 {sv[h]}, {c['Lim']}, {x[h]}")
        for h in range(3): a(f"v_bfe_u32 {g[h]}, {x[h]}, 8, 6")
        for h in range(3):
            a(f"v_cmp_le_u32 vcc, {c['LimA']}, {x[h]}")
            a(f"v_addc_co_u32 {g[h]}, vcc, {g[h]}, {g[h]}, vcc")
        for h in range(3): a(f"v_lshl_add_u32 {rk[h]}, {g[h]}, 2, {CC}")
        for h in range(3):
            a(f"s_cmp_eq_u64 {sv[h]}, 0")
            a(f"s_addc_u32 {sZ}, {sZ}, 0")
            a(f"s_mov_b64 exec, {sv[h]}")
            a(f"ds_add_rtn_u32 {rk[h]}, {rk[h]}, {c['vOne']}")
        a(f"s_mov_b64 exec, -1")
        for h in range(3): a(f"v_bfe_u32 {cs[h]}, {x[3]}, {8 * h}, 8")
        for h in range(3): a(f"v_mad_u32_u24 {g[h]}, {g[h]}, {c['GS']}, {c['vCB']}")

    def ins_b(self, x, st_):
        a = self.a
        sv, g, rk, cs = st_
        for h in range(3): a(f"v_min_u32 {rk[h]}, {CAP}, {rk[h]}")
        for h in range(3): a(f"v_lshl_add_u32 {g[h]}, {rk[h]}, 3, {g[h]}")
        if self.o.get('mark'):
            for h in range(3): a(f"ds_write2_b32 {g[h]}, {x[h]}, {cs[h]} offset0:0 offset1:1")
            return
        for h in range(3):
            a(f"s_mov_b64 exec, {sv[h]}")
            a(f"ds_write2_b32 {g[h]}, {x[h]}, {cs[h]} offset0:0 offset1:1")
        a(f"s_mov_b64 exec, -1")

    def _line3(self, x, k, sfx=''):
        a = self.a; c = self.c; tt = c['tt']
        m = c['sX']; Y = self.c3
        a.label(f"c_l3_{k}{sfx}")
        a(f"s_mov_b32 {c['st']}, {97 << 18}")
        a(f"v_cmp_le_u32 vcc, {c['st']}, {x[2]}")
        a(f"s_and_b64 vcc, vcc, {c['sHdr']}")
        a(f"s_cselect_b32 {c['st']}, 1, 0")
        a(f"s_or_b32 {c['sFail']}, {c['sFail']}, {c['st']}")
        a(f"s_lshr_b64 {m}, {m}, 7")
        a(f"s_lshl_b64 {c['sSave']}, {m}, 8")
        a(f"s_sub_u32 {m[0]}, {c['sSave'][0]}, {m[0]}")
        a(f"s_subb_u32 {m[1]}, {c['sSave'][1]}, {m[1]}")
        a(f"s_cmp_lg_u32 {c['sFail']}, 0")
        a(f"s_cbranch_scc1 c_l3_back_{k}{sfx}")
        a(f"s_add_u32 {c['st']}, {c['sPoff']}, {(3 * 256) << 15}")
        a(f"s_mov_b64 exec, {m}")
        a(f"buffer_load_dwordx4 {Y}, {c['vLine']}, {c['sWS']}, {c['st']} offen offset:{k*1024} {self.o['tupflags']}")
        a("s_waitcnt vmcnt(0)")
        self.checked(Y, 3, k, f't{k}{sfx}', sub=m)
        self.insert(Y, 3, sub=m)
        a(f"s_branch c_l3_back_{k}{sfx}")

    def _fallback(self, acc, rows, X, D1, Bq, Wa, Wb, vLane, vZero, vOne, vHalf, vTau, sE0, sCw, sOI, sIN, sAN, sM,
                  st, st2, sMore, pDBG, sN, sCh, sLaneS, vOff, vIdx, vAddr, vC16, vT, sv):
        a = self.a
        a.label("c_fallback")
        if self.o.get('inep'): a("s_waitcnt vmcnt(0) lgkmcnt(0)")
        a(f"global_store_dword {vZero}, {vOne}, {pDBG} offset:16")
        for j in range(5):
            for l in range(2):
                for i in range(4): a(f"v_mov_b32 {acc[j][l][i]}, 0")
        sMask = sMore[0]; sLoc = Reg('s', 6); sTt = Reg('s', 7); sSel = sMore[2]; sSel2 = sMore[3]
        a(f"s_movk_i32 {sN}, 80")
        a(f"s_cmp_eq_u32 {sCw}, 7")
        a(f"s_cselect_b32 {sN}, 65, {sN}")
        a(f"s_mov_b32 {sCh}, 0")
        vL16 = vIdx; vI15 = vAddr
        a(f"v_lshlrev_b32 {vL16}, 4, {vLane}")
        a(f"v_and_b32 {vI15}, 15, {vLane}")
        for i in range(1, 4):
            a(f"v_mov_b32 {Bq[0][0][i]}, 0")
            a(f"v_mov_b32 {Bq[0][1][i]}, 0")
        a(f"v_cmp_eq_u32 {sSel}, 0, {vTau[0]}")
        Lc = "c_fb_chunk"
        a.label(Lc)
        a(f"buffer_load_dwordx4 {X[3]}, {vL16}, {sOI}, {sCh} offen")
        a("s_waitcnt vmcnt(0)")
        for cidx in range(4):
            Lh = f"c_fb_h{cidx}"; Ld = f"c_fb_d{cidx}"
            a(f"v_subrev_u32 {X[3][cidx]}, {sE0}, {X[3][cidx]}")
            a(f"v_cmp_gt_u32 {sMask}, {sN}, {X[3][cidx]}")
            a.label(Lh)
            a(f"s_cmp_eq_u64 {sMask}, 0")
            a(f"s_cbranch_scc1 {Ld}")
            a(f"s_ff1_i32_b64 {sLaneS}, {sMask}")
            a(f"s_bitset0_b64 {sMask}, {sLaneS}")
            a(f"s_nop 3")
            a(f"v_readlane_b32 {sLoc}, {X[3][cidx]}, {sLaneS}")
            a(f"s_lshl_b32 {sTt}, {sLaneS}, 4")
            a(f"s_add_u32 {sTt}, {sTt}, {sCh}")
            a(f"s_add_u32 {sTt}, {sTt}, {cidx*4}")
            a(f"v_mov_b32 {vOff}, {sTt}")
            a(f"v_lshrrev_b32 {vC16}, 1, {vOff}")
            a(f"buffer_load_dword {vT[0]}, {vOff}, {sIN}, 0 offen")
            a(f"buffer_load_ushort {vT[1]}, {vC16}, {sAN}, 0 offen")
            a("s_waitcnt vmcnt(0)")
            a(f"v_lshl_or_b32 {vOff}, {vT[0]}, 5, {vHalf}")
            a(f"v_cndmask_b32 {vOff}, {OOB}, {vOff}, {sSel}")
            a(f"buffer_load_dwordx4 {rows[0]}, {vOff}, {sM}, 0 offen")
            a(f"v_lshlrev_b32 {vT[1]}, 16, {vT[1]}")
            a(f"v_mul_f32 {vT[1]}, 0x{INV2PI:x}, {vT[1]}")
            a(f"v_fract_f32 {vT[1]}, {vT[1]}")
            a(f"v_cos_f32 {vT[1]}, {vT[1]}")
            a(f"s_and_b32 {st}, {sLoc}, 15")
            a(f"v_cmp_eq_u32 {sSel2}, {st}, {vLane}")
            a(f"v_fma_f32 {vT[0]}, {vT[1]}, {vT[1]}, -0.5")
            a(f"v_cvt_pk_bf16_f32 {vT[0]}, {vT[1]}, {vT[0]}")
            a(f"v_and_b32 {vT[1]}, 0xffff, {vT[0]}")
            a(f"v_lshrrev_b32 {vT[0]}, 16, {vT[0]}")
            a(f"v_cndmask_b32 {Bq[0][0][0]}, 0, {vT[1]}, {sSel2}")
            a(f"v_cndmask_b32 {Bq[0][1][0]}, 0, {vT[0]}, {sSel2}")
            a("s_waitcnt vmcnt(0)")
            rw = rows[0]
            a(f"v_mfma_f32_16x16x32_bf16 {D1[0]}, {rw}, {Wa}, 0")
            a(f"v_mfma_f32_16x16x32_bf16 {D1[1]}, {rw}, {Wb}, 0")
            a(f"v_cvt_pk_bf16_f32 {rw[0]}, {D1[0][0]}, {D1[0][1]}")
            a(f"v_cvt_pk_bf16_f32 {rw[1]}, {D1[0][2]}, {D1[0][3]}")
            a(f"v_cvt_pk_bf16_f32 {rw[2]}, {D1[1][0]}, {D1[1][1]}")
            a(f"v_cvt_pk_bf16_f32 {rw[3]}, {D1[1][2]}, {D1[1][3]}")
            a(f"s_lshr_b32 {st}, {sLoc}, 4")
            for j in range(5):
                Lj = a.newlabel('fbj')
                a(f"s_cmp_lg_u32 {st}, {j}")
                a(f"s_cbranch_scc1 {Lj}")
                a(f"v_mfma_f32_16x16x32_bf16 {acc[j][0]}, {rw}, {Bq[0][0]}, {acc[j][0]}")
                a(f"v_mfma_f32_16x16x32_bf16 {acc[j][1]}, {rw}, {Bq[0][1]}, {acc[j][1]}")
                a.label(Lj)
            a(f"s_branch {Lh}")
            a.label(Ld)
        a(f"s_add_u32 {sCh}, {sCh}, 1024")
        a(f"s_cmp_lt_u32 {sCh}, {T*4}")
        a(f"s_cbranch_scc1 {Lc}")
        a("s_branch c_fb_back")

    def ep_a(self, j, Aop, G0, G1, GT, mm, rbfB, Mr):
        a = self.a
        A0, A1, AG, AU = Aop
        a(f"v_mfma_f32_16x16x16_bf16 {G0}, {A0}, {rbfB[j]}, 0")
        a(f"v_mfma_f32_16x16x16_bf16 {G1}, {A1}, {rbfB[j]}, 0")
        a(f"v_mfma_f32_16x16x16_bf16 {GT}, {AG}, {rbfB[j]}, 0")
        a(f"v_lshlrev_b32 {mm[0]}, 16, {Mr[j][0]}")
        a(f"v_and_b32 {mm[1]}, 0xffff0000, {Mr[j][0]}")
        a(f"v_lshlrev_b32 {mm[2]}, 16, {Mr[j][1]}")
        a(f"v_and_b32 {mm[3]}, 0xffff0000, {Mr[j][1]}")

    def ep_b(self, j, Aop, G0, G1, GT, mm, U, ag, acc, Mr):
        a = self.a
        A0, A1, AG, AU = Aop
        for i in range(4):
            a(f"v_mul_f32 {G0[i]}, {G0[i]}, {acc[j][0][i]}")
        for i in range(4):
            a(f"v_fma_f32 {G0[i]}, {G1[i]}, {acc[j][1][i]}, {G0[i]}")
        a(f"v_cvt_pk_bf16_f32 {ag[0]}, {G0[0]}, {G0[1]}")
        a(f"v_cvt_pk_bf16_f32 {ag[1]}, {G0[2]}, {G0[3]}")
        a(f"v_mfma_f32_16x16x16_bf16 {U}, {AU}, {ag}, 0")
        for i in range(4):
            a(f"v_fma_f32 {mm[i]}, {U[i]}, {GT[i]}, {mm[i]}")
        a(f"v_cvt_pk_bf16_f32 {Mr[j][0]}, {mm[0]}, {mm[1]}")
        a(f"v_cvt_pk_bf16_f32 {Mr[j][1]}, {mm[2]}, {mm[3]}")

    def epilogue(self, acc, Mr, D1, Bq, rbfB, Aop, tt, vLane, vMoff, sCw, sOUT, st, rows, X):
        a = self.a
        A0, A1, AG, AU = Aop
        t0 = tt[0]; t1 = tt[1]
        a(f"v_and_b32 {t0}, 15, {vLane}")
        a(f"s_mul_i32 {st}, {sCw}, 80")
        a(f"v_add_u32 {t0}, {st}, {t0}")
        a(f"v_add_u32 {t0}, 64, {t0}")
        a(f"v_cmp_gt_u32 vcc, 625, {t0}")
        a(f"v_cndmask_b32 {t1}, {OOB}, {vMoff}, vcc")
        G0 = [rows[0], rows[1]]; G1 = [rows[2], rows[3]]; GT = [rows[4], rows[5]]; U = [D1[0], D1[1]]
        ag = [Bq[0][0][0:2], Bq[0][0][2:4]]
        mm = [Bq[0][1], Bq[1][0]]
        oo = [Bq[1][1][0:2], Bq[1][1][2:4]]

        def gm(j):
            s = j & 1
            a(f"v_mfma_f32_16x16x16_bf16 {G0[s]}, {A0}, {rbfB[j]}, 0")
            a(f"v_mfma_f32_16x16x16_bf16 {G1[s]}, {A1}, {rbfB[j]}, 0")
            a(f"v_mfma_f32_16x16x16_bf16 {GT[s]}, {AG}, {rbfB[j]}, 0")
        gm(0)
        for j in range(5):
            s = j & 1
            if j + 1 < 5: gm(j + 1)
            mrow = Mr[j]
            a(f"v_lshlrev_b32 {mm[s][0]}, 16, {mrow[0]}")
            a(f"v_and_b32 {mm[s][1]}, 0xffff0000, {mrow[0]}")
            a(f"v_lshlrev_b32 {mm[s][2]}, 16, {mrow[1]}")
            a(f"v_and_b32 {mm[s][3]}, 0xffff0000, {mrow[1]}")
            for i in range(4):
                a(f"v_mul_f32 {G0[s][i]}, {G0[s][i]}, {acc[j][0][i]}")
            for i in range(4):
                a(f"v_fma_f32 {G0[s][i]}, {G1[s][i]}, {acc[j][1][i]}, {G0[s][i]}")
            a(f"v_cvt_pk_bf16_f32 {ag[s][0]}, {G0[s][0]}, {G0[s][1]}")
            a(f"v_cvt_pk_bf16_f32 {ag[s][1]}, {G0[s][2]}, {G0[s][3]}")
            a(f"v_mfma_f32_16x16x16_bf16 {U[s]}, {AU}, {ag[s]}, 0")
            for i in range(4):
                a(f"v_fma_f32 {mm[s][i]}, {U[s][i]}, {GT[s][i]}, {mm[s][i]}")
            o = oo[s]
            a(f"v_cvt_pk_bf16_f32 {o[0]}, {mm[s][0]}, {mm[s][1]}")
            a(f"v_cvt_pk_bf16_f32 {o[1]}, {mm[s][2]}, {mm[s][3]}")
            off = t1 if j == 4 else vMoff
            a(f"buffer_store_dwordx2 {o}, {off}, {sOUT}, 0 offen offset:{j*512} {self.o.get('outflags', '')}")

    def kernel(self, label):
        a = self.a
        self.late = []
        self.Lend = label + '_end'
        self.sWave = Reg('s', 60); self.sT64 = Reg('s', 98, 2)
        self.vProf = Reg('v', 255)
        a.lines.append(f".globl {label}")
        a.lines.append(".p2align 8")
        a.lines.append(f".type {label},@function")
        a.label(label)
        a("s_cmp_ge_u32 s2, 256")
        a(f"s_cbranch_scc1 {self.Lend}")
        a("s_load_dwordx16 s[4:19], s[0:1], 0")
        a("s_load_dwordx8 s[20:27], s[0:1], 64")
        a("s_load_dwordx4 s[28:31], s[0:1], 96")
        a("s_memrealtime s[100:101]")
        if self.prof:
            a("s_memrealtime s[98:99]")
        a("v_lshrrev_b32 v1, 6, v0")
        a("v_and_b32 v0, 63, v0")
        a(f"v_readfirstlane_b32 {self.sWave}, v1")
        if self.prof:
            a("s_waitcnt lgkmcnt(0)")
            a("v_mov_b32 v255, 0")
            a("v_writelane_b32 v255, s98, 50")
        self.body(self.sWave)
        i = 0
        while i < len(self.late):
            fn, args = self.late[i]; fn(*args); i += 1
        a.label(self.Lend)
        a("s_endpgm")

    def build(self):
        hdr = open('cdna_kernels/' + NAME + '.s.ref').read().split('\n')
        head = [l for l in hdr if l.startswith(';') and '@launch' not in l]
        out = list(head)
        K = NAME + '_kernel'
        out.append(f"; @launch grid=(256,1,1) block=(512,1,1) lds={LDS_END_MARK if self.o.get('mark') else LDS_END}")
        out.append('.amdgcn_target "amdgcn-amd-amdhsa--gfx950"')
        out.append('.text')
        self.kernel(K)
        body = self.a.finalize()
        print(f"{K}: {len(self.a.lines)} lines, nops {self.a.nops}", file=sys.stderr)
        out.append(body)
        out.append('.section .rodata,"a"')
        out.append(f""".p2align 6
.amdhsa_kernel {K}
  .amdhsa_next_free_vgpr 256
  .amdhsa_next_free_sgpr 102
  .amdhsa_accum_offset 256
  .amdhsa_group_segment_fixed_size 0
  .amdhsa_kernarg_size 112
  .amdhsa_user_sgpr_count 2
  .amdhsa_user_sgpr_kernarg_segment_ptr 1
  .amdhsa_system_sgpr_workgroup_id_x 1
.end_amdhsa_kernel""")
        return '\n'.join(out) + '\n'


if __name__ == '__main__':
    import argparse, ast
    ap = argparse.ArgumentParser()
    ap.add_argument('--prof', action='store_true')
    ap.add_argument('--opt', action='append', default=[])
    ap.add_argument('-o', required=True)
    args = ap.parse_args()
    opts = {}
    for kv in args.opt:
        k, v = kv.split('=', 1)
        try: v = ast.literal_eval(v)
        except Exception: pass
        opts[k] = v
    g = Gen(args.prof or bool(opts.get('dbgprof')), opts)
    s = g.build()
    open(args.o, 'w').write(s)
```

```python
import sys, re, os
sys.path.insert(0, 'gen')
from asmlib import *

NAME = 'standalone__molecular_angular_gemnet__graph'

E = 160000; T = 2560000
MAGIC = 6871948
CB_CNT, FAIL, TKT = 8, 16, 24
CC = 64
WSC = 512
EPW = 1024
STG = 3072
PB = 19456
PBS = 492
HDR = 188
BYT = 388
DUMP = 96
CB = PB
GS = 1552
CAP = 192
LDS_END = PB + 256 * PBS
NLINE = 4
WSB = NLINE * 256 * 32768
LIM = 0x9C400000
MARK = 0xFFFFE8FF
LDS_END_MARK = CB + 88 * GS
INV = 0xFFFFFFFF
GUARD = 1300
OOB = '1.0'
PROF_OFF = 100 << 20
INV2PI = 0x3e22f983
NBLK = 6
NPOS = 30
import struct
def f32(x): return struct.unpack('<I', struct.pack('<f', x))[0]


class Gen:
    def __init__(self, prof=False, opts=None):
        self.prof = prof
        self.o = dict(poll_max=60000, ldflags='', tupflags='sc1', stflags='sc1', outflags='sc1', force_fail=False,
                      up=3, dg=4, nr=6, gate='ack0', pins=(8, 9, 10, 11), psec=16, pwait=22,
                      lima=80000, psleep=1, gmask=0xffffffe0, mat='gap', optblk=4,
                      q0n=3, q1n=6, l1s=('pre', 'post', 'post', 'post'), l2s='post', ppl=(2, 3, 4, 5),
                      pf=None, pfat=('post0',), pfmode='id', pfflags='', tlbw=0, rbfat='gap', gapat='pre', sat='loop')
        if opts: self.o.update(opts)
        self.a = Asm()

    def stamp(self, idx):
        if not self.prof: return
        a = self.a
        a(f"s_memrealtime {self.sT64}")
        a("s_waitcnt lgkmcnt(0)")
        a(f"v_writelane_b32 {self.vProf}, {self.sT64[0]}, {idx}")

    def stamp_dyn(self, sidx):
        if not self.prof: return
        a = self.a
        a(f"s_memrealtime {self.sT64}")
        a("s_waitcnt lgkmcnt(0)")
        a(f"s_mov_b32 m0, {sidx}")
        a(f"s_nop 3")
        a(f"v_writelane_b32 {self.vProf}, {self.sT64[0]}, m0")

    def prof_store(self, wave_sgpr):
        if not self.prof: return
        a = self.a
        a(f"s_mul_i32 {self.sT64[0]}, s2, 12")
        a(f"s_add_u32 {self.sT64[0]}, {self.sT64[0]}, {wave_sgpr}")
        a(f"s_lshl_b32 {self.sT64[0]}, {self.sT64[0]}, 8")
        a(f"s_add_u32 {self.sT64[0]}, {self.sT64[0]}, {PROF_OFF}")
        a(f"v_mbcnt_lo_u32_b32 v1, -1, 0")
        a(f"v_mbcnt_hi_u32_b32 v1, -1, v1")
        a(f"v_lshlrev_b32 v1, 2, v1")
        a(f"v_add_u32 v1, {self.sT64[0]}, v1")
        a(f"s_mov_b64 exec, -1")
        a(f"global_store_dword v1, {self.vProf}, s[30:31]")

    def lds_spin(self, off, target, vt, vzero, st):
        a = self.a
        L = a.newlabel('spin')
        Lx = a.newlabel('spinx')
        a.label(L)
        a(f"ds_read_b32 {vt}, {vzero} offset:{off}")
        a("s_waitcnt lgkmcnt(0)")
        a(f"v_readfirstlane_b32 {st}, {vt}")
        a(f"s_cmp_ge_u32 {st}, {target}")
        a(f"s_cbranch_scc1 {Lx}")
        a("s_sleep 1")
        a(f"s_branch {L}")
        a.label(Lx)

    def lds_arrive(self, off, vzero, vone):
        a = self.a
        a("s_mov_b64 exec, 1")
        a(f"ds_add_u32 {vzero}, {vone} offset:{off}")
        a("s_mov_b64 exec, -1")

    def srd(self, reg, src, n):
        a = self.a
        a(f"s_mov_b32 {reg[0]}, s{src}")
        a(f"s_mov_b32 {reg[1]}, s{src+1}")
        a(f"s_mov_b32 {reg[2]}, {n}")
        a(f"s_mov_b32 {reg[3]}, 0x00020000")

    def vm_issue(self, tag, optional=False):
        self.a.lines.append(f"; @ISSUE{'?' if optional else ''} {tag}")

    def vm_wait(self, tag, linear=False):
        self.a.lines.append(f"; @WAIT{'L' if linear else ''} {tag}")

    def resolve_vm(self, start, end):
        lines = self.a.lines
        n = end - start
        for i in range(len(lines)):
            l = lines[i]
            if l.startswith("; @WAITL "):
                tag = l.split()[2]
                cnt = 0; found = False
                for back in range(i - 1, -1, -1):
                    ll = lines[back]
                    if ll.startswith("; @ISSUE"):
                        if ll.split()[2] == tag:
                            found = True; break
                        if not ll.startswith("; @ISSUE?"): cnt += 1
                assert found, tag
                lines[i] = f"s_waitcnt vmcnt({min(cnt, 63)})"
            elif l.startswith("; @WAIT "):
                assert start <= i < end
                tag = l.split()[2]
                cnt = 0; found = False
                pos = i - start
                for back in range(1, n + 1):
                    ll = lines[start + (pos - back) % n]
                    if ll.startswith("; @ISSUE"):
                        if ll.split()[2] == tag:
                            found = True; break
                        if not ll.startswith("; @ISSUE?"): cnt += 1
                assert found, tag
                lines[i] = f"s_waitcnt vmcnt({min(cnt, 63)})"

    def body(self, sW):
        a = self.a
        o = self.o
        DG = o['dg']; NR = o['nr']
        assert NPOS % NR == 0 and DG <= NR - 1 and DG <= 8
        V = Alloc('v', 2, 255)
        S = Alloc('s', 62, 98)
        vLane = Reg('v', 0)
        sM = Reg('s', 32, 4); sIN = Reg('s', 36, 4); sOI = Reg('s', 40, 4); sDI = Reg('s', 44, 4)
        sAN = Reg('s', 48, 4); sOUT = Reg('s', 52, 4); sWS = Reg('s', 56, 4)
        pCEN = Reg('s', 14, 2); pWR = Reg('s', 18, 2); pWS = Reg('s', 20, 2); pWD = Reg('s', 22, 2)
        pWU = Reg('s', 24, 2); pDBG = Reg('s', 28, 2)
        vZero = V('zero'); vOne = V('one')
        acc = [[V(f'acc{j}{l}', 4) for l in range(2)] for j in range(5)]
        Wa = V('wa', 4); Wb = V('wb', 4)
        rbfB = [V(f'rbf{j}', 2) for j in range(5)]
        Mr = [V(f'mr{j}', 2) for j in range(5)]
        vMoff = V('moff'); vLine = V('line'); vSel = V('sel'); vCB = V('cb')
        wraw = V('wraw', 2); dd = [V(f'dd{j}') for j in range(5)]; cenr = V('cenr', 2); raw = V('raw', 4)
        Ln12 = [[V(f'ln{l}{i}', 4) for i in range(4)] for l in (1, 2)]
        vTag = V('tag'); vSt = V('stv'); vPf = V('pf'); vPfD = V('pfd')
        mk0 = V.mark()
        st = S('st'); st2 = S('st2'); so = S('so')
        sFail = Reg('s', 61); sPoll = S('poll'); sG0 = S('g0'); sE0 = S('e0')
        sNegT = S('negT'); sLim = S('lim'); sLimA = S('lima'); sGS = S('gs'); sHi = S('hi')
        sSrc = S('src'); sM24 = S('m24'); sPf = S('pf'); so2 = S('so2')
        sL2 = [Reg('s', 0, 2), Reg('s', 44, 2), Reg('s', 46, 2), S('l2d', 2)]
        smk0 = S.mark()
        Q = [dict(i=V(f'q{k}i', 4), o=V(f'q{k}o', 4), a=V(f'q{k}a', 2)) for k in range(5)]
        tb = V('tb', 4)
        tmp = [dict(mk=V(f'mk{s}', 4), sh=V(f'sh{s}', 4), old=V(f'old{s}', 4), by=V(f'by{s}', 4), inc=V(f'inc{s}', 4))
               for s in range(2)]
        vOffQ = V('offq'); vOffA = V('offa'); vPB = V('pb'); vC2048 = V('c2048'); vi = V('vi', 4); vt = V('vt'); vt2 = V('vt2')
        vRd = V('rd'); vRb = V('rb'); vRh = V('rh')
        Ln = [[V(f'ln0{i}', 4) for i in range(4)]] + Ln12
        Hd = [V(f'hd{i}') for i in range(4)]
        print('phase 1/2 vgprs', V.high, file=sys.stderr)
        sMagic = S('magic'); sNeg = S('neg'); s492 = S('c492'); sLimIn = S('limin'); sK18 = S('k18'); sCq = S('cq')
        sOffI = S('offi'); sOffA = S('offa'); sLast = S('last', 2)
        sm = [Reg('s', 4 + 2 * k, 2) for k in range(4)]
        sm4 = Reg('s', 12, 2)
        ld = o['ldflags']
        self.vmseq = []

        def load_part(k, part):
            q = Q[k]
            if part == 0:
                a(f"s_add_u32 {so}, {sOffI}, {k * 1024}")
                a(f"buffer_load_dwordx4 {q['o']}, {vOffQ}, {sOI}, {so} offen {ld}")
            elif part == 1:
                a(f"s_add_u32 {so}, {sOffI}, {k * 1024}")
                a(f"buffer_load_dwordx4 {q['i']}, {vOffQ}, {sIN}, {so} offen {ld}")
            else:
                a(f"s_add_u32 {so}, {sOffA}, {k * 512}")
                a(f"buffer_load_dwordx2 {q['a']}, {vOffA}, {sAN}, {so} offen {ld}")
            self.vmseq.append(f'Q{k}')

        def load_quad(k):
            if k == 4: a(f"s_mov_b64 exec, {sLast}")
            for part in range(3): load_part(k, part)
            if k == 4: a(f"s_mov_b64 exec, -1")

        def wait_for(tag):
            last = max(i for i, x in enumerate(self.vmseq) if x == tag)
            cnt = sum(1 for x in self.vmseq[last + 1:] if not x.endswith('?'))
            a(f"s_waitcnt vmcnt({min(cnt, 63)})")

        a(f"s_mul_i32 {st}, {sW}, 5120")
        a(f"v_lshlrev_b32 {vOffQ}, 4, {vLane}")
        a(f"v_add_u32 {vOffQ}, {st}, {vOffQ}")
        a(f"v_lshrrev_b32 {vOffA}, 1, {vOffQ}")
        a(f"s_mul_i32 {sOffI}, s2, 40000")
        a(f"s_mul_i32 {sOffA}, s2, 20000")
        a(f"s_cmp_eq_u32 {sW}, 7")
        a(f"s_cselect_b64 {sLast}, 15, -1")
        a(f"s_mul_i32 {sE0}, s2, 625")
        a(f"s_mul_i32 {st}, {sW}, 80")
        a(f"s_add_u32 {sE0}, {sE0}, {st}")
        a("s_waitcnt lgkmcnt(0)")
        self.stamp(51)
        self.srd(sOI, 8, T * 4); self.srd(sIN, 6, T * 4); self.srd(sAN, 12, T * 2)
        up = o['up']
        parts = [(k, part) for k in range(up) for part in range(3)]
        q0n = o['q0n']
        for k, part in parts[:q0n]: load_part(k, part)
        a(f"s_mov_b32 {sG0}, s100")
        if o.get('mark'):
            a(f"s_mov_b32 {st}, 0x{MARK:x}")
            for i in range(4): a(f"v_add_u32 {vi[i]}, {i}, {vLane}")
            for i in range(4): a(f"v_and_b32 {vi[i]}, 3, {vi[i]}")
            for i in range(4): a(f"v_lshl_or_b32 {vi[i]}, {vi[i]}, 8, {st}")
        else:
            for i in range(4): a(f"v_mov_b32 {vi[i]}, -1")
        a(f"s_mul_i32 {st}, {sW}, {32 * PBS}")
        a(f"s_add_u32 {st}, {st}, {PB}")
        a(f"v_lshlrev_b32 {vt}, 4, {vLane}")
        a(f"v_add_u32 {vt2}, {st}, {vt}")
        for i in range(15):
            a(f"ds_write_b128 {vt2}, {vi} offset:{i*1024}")
        a(f"s_mov_b64 exec, 0xffffff")
        a(f"ds_write_b128 {vt2}, {vi} offset:{15*1024}")
        a(f"s_mov_b32 exec_lo, -1")
        a(f"s_mov_b32 exec_hi, 0")
        a(f"s_movk_i32 {s492}, {PBS}")
        a(f"v_mov_b32 {vPB}, {st}")
        a(f"v_mad_u32_u24 {vt2}, {vLane}, {s492}, {vPB}")
        a(f"v_mov_b32 {vi[0]}, {1 << 18}")
        a(f"ds_write_b32 {vt2}, {vi[0]} offset:{HDR}")
        a(f"s_mov_b64 exec, -1")
        for i in range(4): a(f"v_mov_b32 {vi[i]}, 0")
        a(f"s_lshl_b32 {st}, {sW}, 11")
        a(f"s_add_u32 {st}, {st}, {STG}")
        a(f"v_add_u32 {vt2}, {st}, {vt}")
        a(f"ds_write_b128 {vt2}, {vi}")
        a(f"ds_write_b128 {vt2}, {vi} offset:1024")
        Lz = a.newlabel('z')
        a(f"s_cmp_lg_u32 {sW}, 0")
        a(f"s_cbranch_scc1 {Lz}")
        a(f"v_lshlrev_b32 {vt2}, 3, {vLane}")
        a(f"ds_write_b64 {vt2}, {vi[0:2]}")
        a.label(Lz)
        a(f"v_mov_b32 {vOne}, 1")
        a(f"v_mov_b32 {vPB}, {PB}")
        a(f"v_mov_b32 {vC2048}, 0x{f32(2048.0):x}")
        a(f"s_mov_b32 {sCq}, 0x{f32(2047.5):x}")
        a(f"s_mov_b32 {sMagic}, {MAGIC}")
        a(f"s_movk_i32 {sNeg}, -10000")
        a(f"s_mov_b32 {sLimIn}, {o['lima'] - 1}")
        a(f"s_mov_b32 {sK18}, {1 << 18}")
        a(f"s_mov_b32 {sHi}, 0xffff0000")
        a("s_waitcnt lgkmcnt(0)")
        a("s_barrier")
        self.stamp(1)
        q1n = max(q0n, o['q1n'])
        for k, part in parts[q0n:q1n]: load_part(k, part)
        self.srd(sM, 4, E * 32); self.srd(sDI, 10, E * 2); self.srd(sOUT, 26, E * 32); self.srd(sWS, 30, WSB)
        a(f"v_mov_b32 {vZero}, 0")
        a(f"v_mov_b32 {vCB}, {CB}")
        a(f"s_mov_b32 {sLim}, 0x{LIM:x}")
        a(f"s_mov_b32 {sLimA}, 0x{o['lima'] << 14:x}")
        a(f"s_movk_i32 {sGS}, {GS}")
        a(f"s_mov_b32 {sM24}, 0x00ffffff")
        a(f"s_lshl_b32 {sSrc}, s2, 7")
        a(f"s_mov_b32 {sFail}, {1 if o['force_fail'] else 0}")
        a("s_lshr_b64 s[100:101], s[100:101], 8")
        a(f"s_sub_u32 {sNegT}, 3, s100")
        a(f"s_lshl_b32 {st}, s100, 8")
        a(f"s_xor_b32 {st}, {st}, s100")
        a(f"s_lshl_b32 {st2}, {st}, 16")
        a(f"s_xor_b32 {st}, {st}, {st2}")
        a(f"v_and_b32 {vt}, 3, {vLane}")
        a(f"v_lshlrev_b32 {vt}, 3, {vt}")
        a(f"v_lshrrev_b32 {vTag}, {vt}, {st}")
        a(f"v_lshlrev_b32 {vTag}, 24, {vTag}")
        a(f"v_mov_b32 {vt2}, 15")
        a(f"v_lshlrev_b32 {vt2}, {vt}, {vt2}")
        a(f"v_xor_b32 {vSel}, 0x0c0c0c0c, {vt2}")
        a(f"v_lshrrev_b32 {vt}, 3, {vLane}")
        a(f"s_lshl_b32 {st}, {sW}, 5")
        a(f"v_add_u32 {vt}, {st}, {vt}")
        a(f"v_and_b32 {vt2}, 7, {vLane}")
        a(f"v_mad_u32_u24 {vRh}, {vt}, {s492}, {vPB}")
        a(f"v_mad_u32_u24 {vRd}, {vt2}, 12, {vRh}")
        a(f"v_mad_u32_u24 {vRb}, {vt2}, 3, {vRh}")
        a(f"v_lshlrev_b32 {vSt}, 15, {vt}")
        a(f"v_lshl_add_u32 {vSt}, {vt2}, 4, {vSt}")
        a(f"s_lshl_b32 {st}, {sW}, 12")
        a(f"v_lshlrev_b32 {vLine}, 4, {vLane}")
        a(f"v_add_u32 {vLine}, {st}, {vLine}")
        if o['tlbw']:
            a(f"s_lshl_b32 {st}, {sW}, 22")
            a(f"v_lshlrev_b32 {vt}, 20, {vLane}")
            a(f"v_add_u32 {vt}, {st}, {vt}")
            a(f"v_cmp_gt_u32 vcc, 4, {vLane}")
            a(f"v_cndmask_b32 {vt}, {OOB}, {vt}, vcc")
            a(f"buffer_load_dword {vPfD}, {vt}, {sWS}, 0 offen")
            self.vmseq.append('tlb')
        if o.get('mtlb'):
            a(f"v_mul_u32_u24 {vt}, {o['mtlb']}, {vLane}")
            a(f"buffer_load_dword {vPfD}, {vt}, {sM}, 0 offen")
            self.vmseq.append('tlb')
        PF = o['pf']
        if PF:
            pfl = PF; pfi = len(o['pfat'])
            a(f"v_lshlrev_b32 {vPf}, 7, {vLane}")
            if pfl < 64:
                a(f"v_cmp_gt_u32 vcc, {pfl}, {vLane}")
                a(f"v_cndmask_b32 {vPf}, {OOB}, {vPf}, vcc")
            a(f"s_lshr_b32 {sPf}, s2, 3")
            if o['pfmode'] == 'xcc':
                Lt = a.newlabel('tk')
                a(f"s_cmp_lg_u32 {sW}, 0")
                a(f"s_cbranch_scc1 {Lt}")
                a(f"s_getreg_b32 {st}, hwreg(HW_REG_XCC_ID, 0, 3)")
                a(f"s_lshl_b32 {st}, {st}, 3")
                a(f"v_mov_b32 {vPfD}, {st}")
                a(f"s_mov_b64 exec, 1")
                a(f"global_atomic_add {vPfD}, {vPfD}, {vOne}, {pDBG} offset:128 sc0")
                a(f"s_mov_b64 exec, -1")
                a.label(Lt)
                self.vmseq.append('tk?')
        for j in range(5):
            for l in range(2):
                for i in range(4): a(f"v_mov_b32 {acc[j][l][i]}, 0")
        for k, part in parts[q1n:]: load_part(k, part)
        n_ = vt; q_ = vt2; t3 = tb[0]
        a(f"v_and_b32 {n_}, 15, {vLane}")
        a(f"v_lshrrev_b32 {q_}, 4, {vLane}")
        a(f"v_lshlrev_b32 {t3}, 3, {vLane}")
        a(f"global_load_dwordx2 {wraw}, {t3}, {pWD}")
        a(f"v_add_u32 {t3}, {sE0}, {n_}")
        a(f"v_lshlrev_b32 {vMoff}, 5, {t3}")
        a(f"v_lshl_add_u32 {vMoff}, {q_}, 3, {vMoff}")
        a(f"v_lshlrev_b32 {t3}, 1, {t3}")
        for j in range(5):
            a(f"buffer_load_ushort {dd[j]}, {t3}, {sDI}, 0 offen offset:{j*32}")
        a(f"v_lshlrev_b32 {t3}, 3, {q_}")
        a(f"v_and_b32 {t3}, 8, {t3}")
        a(f"global_load_dwordx2 {cenr}, {t3}, {pCEN}")
        Lw = [a.newlabel('ew') for _ in range(4)]; Lwx = a.newlabel('ewx')
        a(f"s_and_b32 {st2}, {sW}, 3")
        a(f"s_cmp_eq_u32 {st2}, 3")
        a(f"s_cbranch_scc1 {Lw[3]}")
        a(f"s_cmp_eq_u32 {st2}, 2")
        a(f"s_cbranch_scc1 {Lw[2]}")
        a(f"v_and_b32 {t3}, 1, {q_}")
        a(f"v_lshlrev_b32 {t3}, 8, {t3}")
        a(f"v_lshl_add_u32 {t3}, {n_}, 1, {t3}")
        a(f"s_lshl_b32 {st}, {st2}, 5")
        a(f"v_add_u32 {t3}, {st}, {t3}")
        for jj in range(4):
            a(f"global_load_ushort {raw[jj]}, {t3}, {pWS} offset:{jj*64}")
        a(f"s_branch {Lwx}")
        a.label(Lw[2])
        a(f"v_and_b32 {t3}, 1, {q_}")
        a(f"v_lshlrev_b32 {t3}, 7, {t3}")
        a(f"v_lshl_add_u32 {t3}, {n_}, 1, {t3}")
        for jj in range(4):
            a(f"global_load_ushort {raw[jj]}, {t3}, {pWR} offset:{jj*32}")
        a(f"s_branch {Lwx}")
        a.label(Lw[3])
        a(f"v_lshlrev_b32 {t3}, 7, {q_}")
        a(f"v_lshl_add_u32 {t3}, {n_}, 1, {t3}")
        for jj in range(4):
            a(f"global_load_ushort {raw[jj]}, {t3}, {pWU} offset:{jj*32}")
        a.label(Lwx)
        self.vmseq += ['sm'] * 11
        if o['mat'] == 'start':
            for jj in range(5):
                a(f"buffer_load_dwordx2 {Mr[jj]}, {vMoff}, {sM}, 0 offen offset:{jj*512}")
            self.vmseq += ['mr'] * 5
        self.stamp(53)
        def pre(k, s):
            q = Q[k]; w0 = q['i']; wb = q['o']; an = q['a']; t = tmp[s]
            mk, sh, old, by, inc = t['mk'], t['sh'], t['old'], t['by'], t['inc']
            if k == 4: a(f"s_mov_b64 exec, {sLast}")
            for j in range(4): a(f"v_mul_hi_u32_u24 {tb[j]}, {sMagic}, {wb[j]}")
            for j in range(4):
                if j & 1: a(f"v_and_b32 {by[j]}, {sHi}, {an[j >> 1]}")
                else: a(f"v_lshlrev_b32 {by[j]}, 16, {an[j >> 1]}")
            for j in range(4): a(f"v_sub_u32 {mk[j]}, {sLimIn}, {w0[j]}")
            for j in range(4): a(f"v_mul_f32 {by[j]}, 0x{INV2PI:x}, {by[j]}")
            for j in range(4): a(f"v_lshlrev_b32 {wb[j]}, 4, {wb[j]}")
            for j in range(4): a(f"v_ashrrev_i32 {mk[j]}, 31, {mk[j]}")
            for j in range(4): a(f"v_fract_f32 {by[j]}, {by[j]}")
            for j in range(4): a(f"v_mad_i32_i24 {wb[j]}, {tb[j]}, {sNeg}, {wb[j]}")
            for j in range(4): a(f"v_and_b32 {sh[j]}, 9, {mk[j]}")
            for j in range(4): a(f"v_cos_f32 {by[j]}, {by[j]}")
            for j in range(4): a(f"v_lshl_or_b32 {w0[j]}, {w0[j]}, 14, {wb[j]}")
            for j in range(4): a(f"v_lshl_or_b32 {inc[j]}, {vOne}, {sh[j]}, {sK18}")
            for j in range(4): a(f"v_mad_u32_u24 {wb[j]}, {tb[j]}, {s492}, {vPB}")
            if k >= 2: a("s_waitcnt lgkmcnt(8)")
            for j in range(4): a(f"ds_add_rtn_u32 {old[j]}, {wb[j]}, {inc[j]} offset:{HDR}")
            for j in range(4): a(f"v_fma_f32 {by[j]}, {by[j]}, {sCq}, {vC2048}")
            for j in range(4): a(f"v_cvt_u32_f32 {by[j]}, {by[j]}")
            for j in range(4): a(f"v_and_or_b32 {w0[j]}, {by[j]}, 15, {w0[j]}")
            for j in range(4): a(f"v_lshrrev_b32 {by[j]}, 4, {by[j]}")
            if k == 4: a(f"s_mov_b64 exec, -1")

        def post(k, s):
            q = Q[k]; w0 = q['i']; wb = q['o']; t = tmp[s]
            mk, sh, old, by, inc = t['mk'], t['sh'], t['old'], t['by'], t['inc']
            if k == 4: a(f"s_mov_b64 exec, {sLast}")
            for j in range(4): a(f"v_bfe_u32 {sh[j]}, {old[j]}, {sh[j]}, 9")
            for j in range(4): a(f"v_and_b32 {inc[j]}, 47, {mk[j]}")
            for j in range(4): a(f"v_lshrrev_b32 {old[j]}, 18, {old[j]}")
            for j in range(4): a(f"v_xad_u32 {sh[j]}, {sh[j]}, {mk[j]}, {inc[j]}")
            for j in range(4):
                a(f"v_cmp_le_u32 {sm[j]}, 48, {old[j]}")
            for j in range(4):
                a(f"v_cndmask_b32 {sh[j]}, {sh[j]}, {old[j]}, {sm[j]}")
            for j in range(4): a(f"v_min_u32 {sh[j]}, {DUMP}, {sh[j]}")
            for j in range(4): a(f"v_lshl_add_u32 {inc[j]}, {sh[j]}, 2, {wb[j]}")
            for j in range(4): a(f"v_add_u32 {sh[j]}, {sh[j]}, {wb[j]}")
            for j in range(4):
                a(f"ds_write_b32 {inc[j]}, {w0[j]}")
                a(f"ds_write_b8 {sh[j]}, {by[j]} offset:{BYT}")
            if k == 4: a(f"s_mov_b64 exec, -1")

        def pf_base():
            if o['pfmode'] == 'xcc':
                a(f"ds_read_b32 {vPfD}, {vZero} offset:{TKT}")
                a("s_waitcnt lgkmcnt(0)")
                a(f"v_readfirstlane_b32 {st}, {vPfD}")
                a(f"s_sub_u32 {st2}, {st}, 1")
                a(f"s_and_b32 {st2}, {st2}, 31")
                a(f"s_cmp_eq_u32 {st}, 0")
                a(f"s_cselect_b32 {sPf}, {sPf}, {st2}")
            a(f"s_mul_i32 {sPf}, {sPf}, {8 * pfl * pfi * 128}")
            a(f"s_mul_i32 {st}, {sW}, {pfl * pfi * 128}")
            a(f"s_add_u32 {sPf}, {sPf}, {st}")
            if o.get('pfoff'): a(f"s_add_u32 {sPf}, {sPf}, {o['pfoff']}")
            self.pf_based = True
        self.pfn = 0
        self.pf_based = False
        self.pf_base = pf_base
        def pf1(inloop=False):
            if not self.pf_based: pf_base()
            assert self.pfn < pfi
            a(f"buffer_load_dword {vPfD}, {vPf}, {sM}, {sPf} offen {o['pfflags']}")
            a(f"s_add_u32 {sPf}, {sPf}, {pfl * 128}")
            if not inloop: self.vmseq.append('pf')
            self.vm_issue(f'pf{self.pfn}', optional=inloop)
            self.pfn += 1
        self.pf1 = pf1
        def pf_at(where):
            if not PF: return
            for w in o['pfat']:
                if w == where: pf1()
        self.pf_at = pf_at
        def ticket_publish():
            Lt = a.newlabel('tkp')
            a(f"s_cmp_lg_u32 {sW}, 0")
            a(f"s_cbranch_scc1 {Lt}")
            last = max(i for i, x in enumerate(self.vmseq) if x == 'tk?')
            a(f"s_waitcnt vmcnt({min(sum(1 for x in self.vmseq[last + 1:]), 63)})")
            a(f"v_add_u32 {vPfD}, 1, {vPfD}")
            a(f"s_mov_b64 exec, 1")
            a(f"ds_write_b32 {vZero}, {vPfD} offset:{TKT}")
            a(f"s_mov_b64 exec, -1")
            a.label(Lt)
        nxt = up
        for k in range(5):
            wait_for(f'Q{k}')
            if k == 0: self.stamp(2)
            pre(k, k & 1)
            if nxt < 5:
                load_quad(nxt); nxt += 1
            if PF and o['pfmode'] == 'xcc' and k == o.get('tkat', 1): ticket_publish()
            pf_at(f'k{k}')
            if k > 0:
                a("s_waitcnt lgkmcnt(4)" if k == 1 else "s_waitcnt lgkmcnt(4)")
                post(k - 1, (k - 1) & 1)
        a("s_waitcnt lgkmcnt(0)")
        post(4, 0)
        self.stamp(3)
        a("s_waitcnt lgkmcnt(0)")
        a("s_barrier")
        self.stamp(4)

        stf = o['stflags']
        wait_for('sm')
        L1S = list(o['l1s']); L2S = o['l2s']
        aW = [tmp[0]['mk'][i] for i in range(4)]
        aB = [tmp[0]['sh'][i] for i in range(4)]
        TP = [[Reg('v', Q[l]['i'].i + 2 * it, 2) for it in range(4)] for l in range(3)]
        for l in range(3): assert Q[l]['o'].i == Q[l]['i'].i + 4
        a(f"v_and_b32 {aB[0]}, -4, {vRb}")
        a(f"v_add_u32 {aB[0]}, {BYT}, {aB[0]}")
        a(f"v_mov_b32 {aW[0]}, {vRd}")
        for it in range(1, 4):
            a(f"v_add_u32 {aW[it]}, {it * 8 * PBS}, {vRd}")
            a(f"v_add_u32 {aB[it]}, {it * 8 * PBS}, {aB[0]}")
        def rd(l, it):
            L = Ln[l][it]
            a(f"ds_read2_b32 {L[0:2]}, {aW[it]} offset0:{l * 24} offset1:{l * 24 + 1}")
            a(f"ds_read_b32 {L[2]}, {aW[it]} offset:{l * 96 + 8}")
            a(f"ds_read2_b32 {TP[l][it]}, {aB[it]} offset0:{l * 6} offset1:{l * 6 + 1}")
        def tag(l, it):
            a(f"v_alignbyte_b32 {Ln[l][it][3]}, {TP[l][it][1]}, {TP[l][it][0]}, {vRb}")
            a(f"v_bfi_b32 {Ln[l][it][3]}, {sM24}, {Ln[l][it][3]}, {vTag}")
        def store(l, it, name=None):
            a(f"s_add_u32 {so2}, {sSrc}, {(l * 256 + it * 8) << 15}")
            a(f"buffer_store_dwordx4 {Ln[l][it]}, {vSt}, {sWS}, {so2} offen {stf}")
            if name: self.vmseq.append(name)
        def store2(optional_tag=None):
            for it in range(4):
                Ls = a.newlabel('s2')
                a(f"s_cmp_eq_u64 {sL2[it]}, 0")
                a(f"s_cbranch_scc1 {Ls}")
                a(f"s_mov_b64 exec, {sL2[it]}")
                store(2, it)
                a(f"s_mov_b64 exec, -1")
                a.label(Ls)
        self.store_l = store; self.store2 = store2
        for it in range(4): rd(0, it)
        a("s_waitcnt lgkmcnt(6)")
        for it in range(2): tag(0, it)
        store(0, 0, 'L0')
        for it in range(2): rd(1, it)
        store(0, 1, 'L0')
        a("s_waitcnt lgkmcnt(6)")
        for it in range(2, 4): tag(0, it)
        store(0, 2, 'L0')
        store(0, 3, 'L0')
        pf_at('post0')
        for it in range(2, 4): rd(1, it)
        a("s_waitcnt lgkmcnt(6)")
        for it in range(4): a(f"ds_read_b32 {Hd[it]}, {vRh} offset:{it * 8 * PBS + HDR}")
        rd(2, 0)
        a("s_waitcnt lgkmcnt(3)")
        for it in range(1, 4): rd(2, it)
        self.stamp(5)
        a(f"s_mov_b32 {st}, {49 << 18}")
        a(f"s_mov_b32 {st2}, {73 << 18}")
        for it in range(4): a(f"v_cmp_le_u32 {sL2[it]}, {st}, {Hd[it]}")
        a(f"v_max3_u32 {vt}, {Hd[0]}, {Hd[1]}, {Hd[2]}")
        a(f"v_max_u32 {vt}, {vt}, {Hd[3]}")
        a(f"v_cmp_le_u32 vcc, {st2}, {vt}")
        for it in range(4): tag(1, it)
        a("s_waitcnt lgkmcnt(0)")
        for it in range(4): tag(2, it)
        a(f"s_cbranch_vccnz p_rare")
        a.label("p_rare_back")
        self.late.append((self._p_rare, (Hd, aW, aB, TP[0][0], vRb, vSt, vTag, sM24, sSrc, so2, st2, sWS, Ln[0][0])))
        if o['mat'] == 'gap':
            for jj in range(5):
                a(f"buffer_load_dwordx2 {Mr[jj]}, {vMoff}, {sM}, 0 offen offset:{jj*512}")
            self.vmseq += ['mr'] * 5
        a("s_barrier")
        for it in range(4):
            if L1S[it] == 'pre': store(1, it, 'L1')
        if L2S == 'pre': store2()
        pf_at('gap')
        self.stamp(6)

        V.reset(mk0); S.reset(smk0)
        rows = [V(f'row{i}', 4) for i in range(NR)]
        X = [V(f'x{i}', 4) for i in range(4)]
        D1 = [V(f'd1{i}', 4) for i in range(2)]
        Bq = [[V(f'b{s}{l}', 4) for l in range(2)] for s in range(2)]
        vT = V('tup', 2)
        vIdx = V('idx'); vOff = V('off'); vTau = [V(f'tau{b}') for b in range(NBLK)]; vHalf = V('half16')
        vIdxC = V('idxc'); vIdxN = V('idxn'); vTupC = V('tupc'); vTupN = V('tupn')
        vAddr = V('addr'); vC0 = V('c0'); vC1 = V('c1'); vK = V('k'); vBrd = V('brd'); vK2 = V('k2')
        vCntA = V('cnta'); vC = V('c')
        tt = [V(f'tt{i}') for i in range(12)]
        if o['sat'] == 'pre': X0 = [V(f'y{i}', 4) for i in range(4)]
        else: X0 = rows[0:4]
        self.c3 = V('c3', 4)
        INEP = o.get('inep')
        if INEP:
            eU = V('eu', 4); eM = V('em', 4); eA = V('ea', 2)
        print('phase 3 vgprs', V.next, file=sys.stderr)
        sCnt = [S(f'cnt{j}') for j in range(5)]
        sCntN = [S(f'cntn{j}') for j in range(5)]
        sIt = S('it'); sF0 = S('mf0'); sNot31 = S('not31'); sK1 = S('k1'); sPoff = S('poff')
        sHiL = Reg('s', 24, 2); sHdr = Reg('s', 26, 2); sv = [Reg('s', 18 + 2 * h, 2) for h in range(3)]
        sMore = [Reg('s', 4 + 2 * k, 2) for k in range(4)]
        sSave = Reg('s', 12, 2); sX = Reg('s', 16, 2)
        self.c = dict(NegT=sNegT, Sel=vSel, Lim=sLim, LimA=sLimA, GS=sGS, vCB=vCB, vZero=vZero, vOne=vOne,
                      sFail=sFail, sPoll=sPoll, sWS=sWS, vLine=vLine, sPoff=sPoff, tt=tt, X=X, sMore=sMore,
                      sv=sv, sHdr=sHdr, st=st, st2=st2, sX=sX, sSave=sSave)
        t0, t1, t2, t3 = tt[0], tt[1], tt[2], tt[3]
        def gap_epw():
            Ln1 = a.newlabel('nd')
            a(f"s_and_b32 {st2}, {sW}, 3")
            a(f"s_cmp_lg_u32 {st2}, 1")
            a(f"s_cbranch_scc1 {Ln1}")
            for jj in range(4): a(f"v_lshlrev_b32 {raw[jj]}, 16, {raw[jj]}")
            for jj in range(4): a(f"v_add_f32 {raw[jj]}, {raw[jj]}, {raw[jj]}")
            for jj in range(4): a(f"v_lshrrev_b32 {raw[jj]}, 16, {raw[jj]}")
            a.label(Ln1)
            for h in range(2):
                a(f"v_lshl_or_b32 {raw[2*h]}, {raw[2*h + 1]}, 16, {raw[2*h]}")
            a(f"v_mov_b32 {raw[1]}, {raw[2]}")
            a(f"s_lshl_b32 {st}, {st2}, 9")
            a(f"v_lshl_add_u32 {tt[2]}, {vLane}, 3, {st}")
            a(f"ds_write_b64 {tt[2]}, {raw[0:2]} offset:{EPW}")
        def gap_rbf(js, cen):
            a(f"v_lshlrev_b32 {cen[0]}, 16, {cenr[0]}")
            a(f"v_and_b32 {cen[1]}, {sHi}, {cenr[0]}")
            a(f"v_lshlrev_b32 {cen[2]}, 16, {cenr[1]}")
            a(f"v_and_b32 {cen[3]}, {sHi}, {cenr[1]}")
            a(f"s_not_b64 {sX}, {sHiL}")
            for j in js:
                self.rbf_operand(dd[j], cen, rbfB[j], tt[4:], sX)
        def gap_work():
            a(f"v_and_b32 {t0}, 15, {vLane}")
            a(f"v_lshrrev_b32 {t1}, 4, {vLane}")
            a(f"v_lshrrev_b32 {t2}, 2, {t0}")
            a(f"v_lshlrev_b32 {t2}, 3, {t2}")
            a(f"v_and_b32 {t3}, 3, {t0}")
            a(f"v_add_u32 {vTau[0]}, {t2}, {t3}")
            a(f"v_lshrrev_b32 {t3}, 5, {vLane}")
            a(f"v_lshl_add_u32 {vTau[0]}, {t3}, 2, {vTau[0]}")
            for b in range(1, NBLK): a(f"v_add_u32 {vTau[b]}, {32 * b}, {vTau[0]}")
            a(f"v_and_b32 {t2}, 1, {t1}")
            a(f"v_lshlrev_b32 {vHalf}, 4, {t2}")
            vWr = vIdx
            a(f"v_lshlrev_b32 {vWr}, 4, {vHalf}")
            a(f"v_lshl_add_u32 {vWr}, {t0}, 1, {vWr}")
            a(f"s_mul_i32 {st}, {sW}, {10*GS}")
            a(f"s_add_u32 {st}, {st}, {CB}")
            a(f"v_lshlrev_b32 {vIdxC}, 3, {vTau[0]}")
            a(f"v_add_u32 {vIdxC}, {st}, {vIdxC}")
            a(f"v_add_u32 {vIdxN}, {GS}, {vIdxC}")
            a(f"v_and_b32 {t2}, 31, {vLane}")
            a(f"v_lshlrev_b32 {vTupC}, 3, {t2}")
            a(f"v_add_u32 {vTupC}, {st}, {vTupC}")
            a(f"v_add_u32 {vTupN}, {GS}, {vTupC}")
            a(f"s_lshl_b32 {st}, {sW}, 11")
            a(f"s_add_u32 {st}, {st}, {STG}")
            a(f"v_lshlrev_b32 {vBrd}, 4, {vLane}")
            a(f"v_add_u32 {vBrd}, {st}, {vBrd}")
            a(f"v_lshrrev_b32 {vK}, 3, {t2}")
            a(f"v_lshlrev_b32 {vK}, 8, {vK}")
            a(f"v_and_b32 {t2}, 7, {t2}")
            a(f"v_lshl_add_u32 {vK}, {t2}, 1, {vK}")
            a(f"v_lshl_add_u32 {vK}, {t3}, 10, {vK}")
            a(f"v_add_u32 {vK}, {st}, {vK}")
            a(f"v_min_u32 {vCntA}, 4, {vLane}")
            a(f"s_mul_i32 {st}, {sW}, 5")
            a(f"v_add_u32 {vCntA}, {st}, {vCntA}")
            a(f"v_lshlrev_b32 {vCntA}, 3, {vCntA}")
            a(f"s_mov_b32 {sF0}, 0xf0")
            a(f"s_mov_b32 {sNot31}, 0x{o['gmask']:x}")
            a(f"s_mov_b32 {sK1}, 0x{f32(1.0 / 2047.5):x}")
            a(f"v_mov_b32 {vK2}, 0x{f32((0.5 - 2048.0) / 2047.5):x}")
            a(f"s_mov_b32 {sHiL[0]}, 0")
            a(f"s_mov_b32 {sHiL[1]}, -1")
            a(f"s_mov_b32 {sHdr[0]}, 0x80808080")
            a(f"s_mov_b32 {sHdr[1]}, 0x80808080")
            a(f"v_lshlrev_b32 {t2}, 3, {vLane}")
            a(f"ds_write_b64 {t2}, {wraw} offset:{WSC}")
            wtmp = X[2]
            for i in range(4):
                a(f"ds_read_u16 {wtmp[i]}, {vWr} offset:{WSC + (2*i)*32}")
                a(f"ds_read_u16 {X[3][i]}, {vWr} offset:{WSC + (2*i+1)*32}")
            pf_at('gw1')
            if o['rbfat'] == 'gap':
                gap_epw()
                gap_rbf(range(5), X[0])
            wtmp = X[2]
            a(f"s_not_b64 {sX}, {sHiL}")
            a("s_waitcnt lgkmcnt(0)")
            for i in range(4):
                a(f"v_lshl_or_b32 {wtmp[i]}, {X[3][i]}, 16, {wtmp[i]}")
            for i in range(4):
                a(f"v_cndmask_b32 {Wa[i]}, 0, {wtmp[i]}, {sX}")
            for i in range(4):
                a(f"v_cndmask_b32 {Wb[i]}, 0, {wtmp[i]}, {sHiL}")
            pf_at('gw2')
            if PF and any(isinstance(w, int) for w in o['pfat']) and not self.pf_based: pf_base()
            self.stamp(7)
        if o['gapat'] == 'pre': gap_work()
        tf = o['tupflags']
        gate = o['gate']
        if gate == 'ack': a("s_waitcnt vmcnt(0)")
        elif gate == 'ack0': wait_for('L0')
        elif isinstance(gate, int) and gate > 0:
            Lg = a.newlabel('gate'); Lgx = a.newlabel('gatex')
            a(f"s_mov_b32 {sPoll}, 0")
            a.label(Lg)
            a("s_memrealtime s[14:15]")
            a("s_waitcnt lgkmcnt(0)")
            a(f"s_sub_u32 {st}, s14, {sG0}")
            a(f"s_cmp_ge_u32 {st}, {gate}")
            a(f"s_cbranch_scc1 {Lgx}")
            a(f"s_add_u32 {sPoll}, {sPoll}, 1")
            a(f"s_cmp_lt_u32 {sPoll}, 100000")
            a(f"s_cbranch_scc1 {Lg}")
            a.label(Lgx)
        self.stamp(8)
        a(f"s_lshl_b32 {sPoff}, s2, 15")
        def load_line(dst, l, k, tag=None, optional=False):
            if l == 0:
                a(f"buffer_load_dwordx4 {dst}, {vLine}, {sWS}, {sPoff} offen offset:{k*1024} {tf}")
            else:
                a(f"s_add_u32 {st}, {sPoff}, {(l * 256) << 15}")
                a(f"buffer_load_dwordx4 {dst}, {vLine}, {sWS}, {st} offen offset:{k*1024} {tf}")
            if tag: self.vm_issue(tag, optional)
        def stores_at(where):
            for it in range(4):
                if L1S[it] == where:
                    store(1, it)
                    self.vm_issue(f'L1{it}', optional=isinstance(where, int))
            if L2S == where: store2()
        for k in range(4): load_line(X0[k], 0, k, f'Z{k}')
        stores_at('post')
        pf_at('z')
        if o['gapat'] == 'post': gap_work()
        if 'val' in L1S or L2S == 'val':
            for k in range(4):
                self.vm_wait(f'Z{k}', linear=True)
                if k == 0: self.stamp(9)
                self.checked(X0[k], 0, k, f'z{k}')
            pf_at('z0')
            stores_at('val')
            pf_at('val')
            for k in range(4): self.insert(X0[k], 0)
        else:
            PRE = o['ppl'] if isinstance(o['ppl'], str) else None
            if o.get('pipe0'):
                assert PRE is None and o['sat'] != 'pre'
                sets = [(sv, tt[0:3], tt[3:6], tt[6:9]),
                        (sMore[0:3], [X[0][i] for i in range(3)], [X[1][i] for i in range(3)], [X[2][i] for i in range(3)])]
                sZ = so2
                def W(n, name):
                    if o.get('mark'):
                        a(f"s_waitcnt lgkmcnt({n})")
                        return
                    a(f"s_cmp_lg_u32 {sZ}, 0")
                    a(f"s_cbranch_scc1 c_sw_{name}")
                    a(f"s_waitcnt lgkmcnt({n})")
                    a.label(f"c_swb_{name}")
                    def slow(name=name):
                        a.label(f"c_sw_{name}")
                        a("s_waitcnt lgkmcnt(0)")
                        a(f"s_branch c_swb_{name}")
                    self.late.append((slow, ()))
                a(f"s_mov_b32 {sZ}, 0")
                for k in range(4):
                    self.vm_wait(f'Z{k}', linear=True)
                    if k == 0: self.stamp(9)
                    self.checked(X0[k], 0, k, f'z{k}')
                    self.ins_a(X0[k], sets[k & 1], sZ)
                    if k > 0:
                        W(3 if k == 1 else 6, f'z{k}')
                        self.ins_b(X0[k - 1], sets[(k - 1) & 1])
                W(3, 'z4')
                self.ins_b(X0[3], sets[1])
            for k in range(0 if o.get('pipe0') else 4):
                self.vm_wait(f'Z{k}', linear=True)
                if k == 0: self.stamp(9)
                if PRE == f'z{k}':
                    for kk in range(4): load_line(X[kk], 1, kk, f'P{kk}')
                self.checked(X0[k], 0, k, f'z{k}')
                if o.get('fine') and k == 0: self.stamp(20)
                self.insert(X0[k], 0)
                if o.get('fine') and k == 0: self.stamp(28)
                if o.get('fine') and k == 2: self.stamp(29)
                if o['sat'] == 'pre': load_line(X0[k], 2, k, f'S{k}')
        self.publish()
        self.stamp(10)
        a("s_waitcnt lgkmcnt(0)")
        a("s_barrier")
        self.stamp(11)
        self.read_counts_issue(vC, vCntA, CC)
        off = lambda p: (p // NBLK) * 2 * GS + (p % NBLK) * 256
        ix = [Bq[1][0][i] for i in range(4)] + [Bq[1][1][i] for i in range(4)]
        for t in range(DG):
            a(f"ds_read_b32 {ix[t]}, {vIdxC} offset:{off(t)}")
        a(f"ds_read_b64 {vT}, {vTupC} offset:0")
        a("s_waitcnt lgkmcnt(0)")
        self.read_counts_use(vC, sCnt, sFail, st, st2)
        OB = o['optblk']
        opt = lambda p: (p % NBLK) >= OB
        for t in range(DG):
            Lg = None
            if opt(t):
                Lg = a.newlabel('skg')
                a(f"s_cmp_gt_u32 {sCnt[t // NBLK]}, {32 * (t % NBLK)}")
                a(f"s_cbranch_scc0 {Lg}")
            self.g_stage(ix[t], vOff, sNot31, vHalf, sCnt[t // NBLK], vTau[t % NBLK], rows[t % NR], sM)
            self.vm_issue(f"G{t}", optional=Lg is not None)
            if Lg: a.label(Lg)
        sst = (vT, vAddr, vC0, vC1, sF0, vK, sK1, vK2, sHiL, vBrd)
        self.s_stage(*sst, Bq[0], vZero)
        a(f"ds_read_b32 {vIdx}, {vIdxC} offset:{off(DG)}")
        a(f"ds_read_b64 {vT}, {vTupC} offset:{off(1)}")
        a(f"s_mov_b32 {sIt}, 0")
        self.stamp(12)

        PINS = o['pins']; PSEC = o['psec']; PWAIT = o['pwait']; PPL = o['ppl']
        if isinstance(PPL, str): PPL = ()
        else: assert all(PPL[k] < PINS[k] for k in range(4))
        assert max(PINS) < PSEC < PWAIT <= NPOS - DG - 2
        VARS = [(sIt, PPL, PINS, PSEC, '')]
        if o.get('stag'):
            ppl2, pins2, psec2 = o['stag']
            assert all(ppl2[k] < pins2[k] for k in range(4)) and max(pins2) < psec2 < PWAIT
            sV0 = S('var0'); sV1 = S('var1')
            a(f"s_lshr_b32 {sV0}, {sW}, {o.get('stagbit', 2)}")
            a(f"s_and_b32 {sV0}, {sV0}, 1")
            a(f"s_xor_b32 {sV1}, {sV0}, 1")
            VARS = [(sV0, PPL, PINS, PSEC, ''), (sV1, ppl2, pins2, psec2, 'b')]
        Lloop = 'c_loop'
        a.label(Lloop)
        start = len(a.lines)
        for p in range(NPOS):
            a.comment(f"---- slot {p}")
            j, blk = p // NBLK, p % NBLK
            a("s_waitcnt lgkmcnt(0)")
            if p == PWAIT + 1:
                self.read_counts_use(vC, sCntN, sFail, st, st2)
                if INEP:
                    a(f"v_readfirstlane_b32 {st}, {tt[5]}")
                    a(f"s_or_b32 {sFail}, {sFail}, {st}")
            rw = rows[p % NR]
            Lsk1 = None
            if opt(p):
                Lsk1 = a.newlabel('sk1')
                a(f"s_cmp_gt_u32 {sCnt[j]}, {32 * blk}")
                a(f"s_cbranch_scc0 {Lsk1}")
            self.vm_wait(f"G{p}")
            a(f"v_mfma_f32_16x16x32_bf16 {D1[0]}, {rw}, {Wa}, 0")
            a(f"v_mfma_f32_16x16x32_bf16 {D1[1]}, {rw}, {Wb}, 0")
            if Lsk1: a.label(Lsk1)
            if p == PWAIT:
                Lno = a.newlabel('nowait'); Lgo = a.newlabel('gowait')
                a(f"s_cmp_eq_u32 {sIt}, 0")
                a(f"s_cbranch_scc0 {Lno}")
                self.lds_spin(CB_CNT, 8, vC, vZero, st)
                self.read_counts_issue(vC, vCntA, CC + 4)
                if INEP: a(f"ds_read_b32 {tt[5]}, {vZero} offset:{FAIL}")
                a(f"s_branch {Lgo}")
                a.label(Lno)
                a(f"v_mov_b32 {vC}, 0")
                if INEP: a(f"v_mov_b32 {tt[5]}, 0")
                a.label(Lgo)
            tgt = p + DG
            tq = tgt % NPOS
            cn = sCnt[tq // NBLK] if tgt < NPOS else sCntN[tq // NBLK]
            Lg = None
            if opt(tq):
                Lg = a.newlabel('skg')
                a(f"s_cmp_gt_u32 {cn}, {32 * (tq % NBLK)}")
                a(f"s_cbranch_scc0 {Lg}")
            self.g_stage(vIdx, vOff, sNot31, vHalf, cn, vTau[tq % NBLK], rows[tgt % NR], sM)
            self.vm_issue(f"G{tq}", optional=Lg is not None)
            if Lg: a.label(Lg)
            nx = p + 1
            nq = nx % NPOS
            Lsk2 = None
            if opt(nq):
                cn2 = sCnt[nq // NBLK] if nx < NPOS else sCntN[nq // NBLK]
                Lsk2 = a.newlabel('sk2')
                a(f"s_cmp_gt_u32 {cn2}, {32 * (nq % NBLK)}")
                a(f"s_cbranch_scc0 {Lsk2}")
            self.s_stage(*sst, Bq[nx & 1], vZero)
            if Lsk2: a.label(Lsk2)
            t2_ = tgt + 1
            base = vIdxC if t2_ < NPOS else vIdxN
            a(f"ds_read_b32 {vIdx}, {base} offset:{off(t2_ % NPOS)}")
            s2_ = p + 2
            base = vTupC if s2_ < NPOS else vTupN
            a(f"ds_read_b64 {vT}, {base} offset:{off(s2_ % NPOS)}")
            Lsk3 = None
            if opt(p):
                Lsk3 = a.newlabel('sk3')
                a(f"s_cmp_gt_u32 {sCnt[j]}, {32 * blk}")
                a(f"s_cbranch_scc0 {Lsk3}")
            a(f"v_cvt_pk_bf16_f32 {rw[0]}, {D1[0][0]}, {D1[0][1]}")
            a(f"v_cvt_pk_bf16_f32 {rw[1]}, {D1[0][2]}, {D1[0][3]}")
            a(f"v_cvt_pk_bf16_f32 {rw[2]}, {D1[1][0]}, {D1[1][1]}")
            a(f"v_cvt_pk_bf16_f32 {rw[3]}, {D1[1][2]}, {D1[1][3]}")
            Bp = Bq[p & 1]
            a(f"v_mfma_f32_16x16x32_bf16 {acc[j][0]}, {rw}, {Bp[0]}, {acc[j][0]}")
            a(f"v_mfma_f32_16x16x32_bf16 {acc[j][1]}, {rw}, {Bp[1]}, {acc[j][1]}")
            if Lsk3: a.label(Lsk3)
            if p in L1S or p == L2S:
                Lsk = a.newlabel('nost')
                a(f"s_cmp_eq_u32 {sIt}, 0")
                a(f"s_cbranch_scc0 {Lsk}")
                stores_at(p)
                a.label(Lsk)
            for (cnd, vPPL, vPINS, vPSEC, sfx) in VARS:
                if p in vPPL:
                    Lsk = a.newlabel('nost')
                    a(f"s_cmp_eq_u32 {cnd}, 0")
                    a(f"s_cbranch_scc0 {Lsk}")
                    k = vPPL.index(p)
                    load_line(X[k], 1, k, f'P{k}{sfx}', optional=True)
                    a.label(Lsk)
            if o['pf'] and p in o['pfat']:
                Lsk = a.newlabel('nopf')
                a(f"s_cmp_eq_u32 {sIt}, 0")
                a(f"s_cbranch_scc0 {Lsk}")
                for w in o['pfat']:
                    if w == p: self.pf1(inloop=True)
                a.label(Lsk)
            if isinstance(o['rbfat'], int) or isinstance(o['mat'], int):
                RB = o['rbfat'] if isinstance(o['rbfat'], int) else -100
                MA = o['mat'] if isinstance(o['mat'], int) else -100
                if p == MA or RB <= p < RB + 6:
                    Lsk = a.newlabel('norb')
                    a(f"s_cmp_eq_u32 {sIt}, 0")
                    a(f"s_cbranch_scc0 {Lsk}")
                    if p == MA:
                        for jj in range(5):
                            a(f"buffer_load_dwordx2 {Mr[jj]}, {vMoff}, {sM}, 0 offen offset:{jj*512}")
                            self.vm_issue(f'mr{jj}', optional=True)
                    if p == RB: gap_epw()
                    if RB < p < RB + 6: gap_rbf([p - RB - 1], self.c3)
                    a.label(Lsk)
            for (cnd, vPPL, vPINS, vPSEC, sfx) in VARS:
              if p in vPINS:
                k = vPINS.index(p)
                Lsk = a.newlabel('noins')
                a(f"s_cmp_eq_u32 {cnd}, 0")
                a(f"s_cbranch_scc0 {Lsk}")
                self.vm_wait(f"P{k}{sfx if vPPL else ''}", linear=True)
                self.checked(X[k], 1, k, f'p{k}{sfx}')
                self.insert(X[k], 1, k=k, sfx=sfx)
                if o['sat'] != 'pre':
                    L = a.newlabel('sl')
                    a(f"s_cmp_eq_u64 {sMore[k]}, 0")
                    a(f"s_cbranch_scc1 {L}")
                    a(f"s_add_u32 {st}, {sPoff}, {(2 * 256) << 15}")
                    a(f"s_mov_b64 exec, {sMore[k]}")
                    a(f"buffer_load_dwordx4 {X[k]}, {vLine}, {sWS}, {st} offen offset:{k*1024} {tf}")
                    a(f"s_mov_b64 exec, -1")
                    a.label(L)
                    self.vm_issue(f"S{k}{sfx}", optional=True)
                a.label(Lsk)
              if p == vPSEC:
                Lna = a.newlabel('noarr')
                a(f"s_cmp_eq_u32 {cnd}, 0")
                a(f"s_cbranch_scc0 {Lna}")
                for k in range(4):
                    Ln_ = a.newlabel('sn')
                    a(f"s_cmp_eq_u64 {sMore[k]}, 0")
                    a(f"s_cbranch_scc1 {Ln_}")
                    self.vm_wait(f"S{k}{sfx}", linear=True)
                    a(f"s_mov_b64 exec, {sMore[k]}")
                    XS = X0[k] if o['sat'] == 'pre' else X[k]
                    self.checked(XS, 2, k, f's{k}{sfx}', sub=sMore[k])
                    self.insert(XS, 2, sub=sMore[k])
                    a.label(Ln_)
                self.publish()
                a("s_waitcnt lgkmcnt(0)")
                self.lds_arrive(CB_CNT, vZero, vOne)
                a.label(Lna)
            if INEP:
                e_ = o.get('inepe', 1)
                Aop = [X[0][0:2], X[0][2:4], X[1][0:2], X[1][2:4]]
                what = {1: 'aop', 6 + e_: 0, 12 + e_: 1, 18 + e_: 2, 24 + e_: 3, o.get('inep4', 27): 'pre4'}.get(p)
                if what is not None:
                    Lsk = a.newlabel('noep')
                    a(f"s_cmp_eq_u32 {sIt}, 0")
                    a(f"s_cbranch_scc1 {Lsk}")
                    if what == 'aop':
                        a(f"v_lshlrev_b32 {tt[2]}, 3, {vLane}")
                        for x in range(4):
                            a(f"ds_read_b64 {Aop[x]}, {tt[2]} offset:{EPW + x*512}")
                    elif what == 'pre4':
                        a(f"v_and_b32 {tt[0]}, 15, {vLane}")
                        a(f"s_mul_i32 {st}, {sW}, 80")
                        a(f"v_add_u32 {tt[0]}, {st}, {tt[0]}")
                        a(f"v_add_u32 {tt[0]}, 64, {tt[0]}")
                        a(f"v_cmp_gt_u32 vcc, 625, {tt[0]}")
                        a(f"v_cndmask_b32 {tt[1]}, {OOB}, {vMoff}, vcc")
                        self.ep_a(4, Aop, X[2], X[3], self.c3, eM, rbfB, Mr)
                    else:
                        self.ep_a(what, Aop, X[2], X[3], self.c3, eM, rbfB, Mr)
                        self.ep_b(what, Aop, X[2], X[3], self.c3, eM, eU, eA, acc, Mr)
                    a.label(Lsk)
            if self.prof and p in (1, 5, 9, 14, 19, 24, 29):
                slot = (1, 5, 9, 14, 19, 24, 29).index(p)
                a(f"s_lshl_b32 {st}, {sIt}, 3")
                a(f"s_add_u32 {st}, {st}, {13 + slot}")
                self.stamp_dyn(st)
        a(f"v_mov_b32 {vIdxC}, {vIdxN}")
        a(f"v_mov_b32 {vTupC}, {vTupN}")
        for jj in range(5):
            a(f"s_mov_b32 {sCnt[jj]}, {sCntN[jj]}")
        if o.get('stag'):
            a(f"s_mov_b32 {sV0}, 1")
            a(f"s_mov_b32 {sV1}, 1")
        a(f"s_add_u32 {sIt}, {sIt}, 1")
        a(f"s_cmp_le_u32 {sIt}, 1")
        a(f"s_cbranch_scc1 {Lloop}")
        end = len(a.lines)
        self.resolve_vm(start, end)
        self.stamp(40)
        Aop = [X[0][0:2], X[0][2:4], X[1][0:2], X[1][2:4]]
        fbargs = (acc, rows, X, D1, Bq, Wa, Wb, vLane, vZero, vOne, vHalf, vTau, sE0, sW,
                  sOI, sIN, sAN, sM, st, st2, sMore, pDBG, sIt, sPoff, sPoll,
                  vOff, vIdx, vAddr, vC0, vT, sv)
        def full_epilogue():
            a(f"v_lshlrev_b32 {vIdx}, 3, {vLane}")
            for x in range(4):
                a(f"ds_read_b64 {Aop[x]}, {vIdx} offset:{EPW + x*512}")
            a("s_waitcnt vmcnt(0) lgkmcnt(0)" if INEP else "s_waitcnt lgkmcnt(0)")
            self.epilogue(acc, Mr, D1, Bq, rbfB, Aop, tt, vLane, vMoff, sW, sOUT, st, rows, X)
        if INEP:
            a(f"s_cmp_lg_u32 {sFail}, 0")
            a(f"s_cbranch_scc1 c_fallback")
            of = o.get('outflags', '')
            for j in range(4):
                a(f"buffer_store_dwordx2 {Mr[j]}, {vMoff}, {sOUT}, 0 offen offset:{j*512} {of}")
            self.ep_b(4, Aop, X[2], X[3], self.c3, eM, eU, eA, acc, Mr)
            a(f"buffer_store_dwordx2 {Mr[4]}, {tt[1]}, {sOUT}, 0 offen offset:{4*512} {of}")
            a.label("c_done")
            def fb_tail():
                a.label("c_fb_back")
                for jj in range(5):
                    a(f"buffer_load_dwordx2 {Mr[jj]}, {vMoff}, {sM}, 0 offen offset:{jj*512}")
                full_epilogue()
                a("s_branch c_done")
            self.late.append((self._fallback, fbargs))
            self.late.append((fb_tail, ()))
        else:
            a("s_waitcnt vmcnt(0) lgkmcnt(0)")
            a(f"ds_read_b32 {tt[0]}, {vZero} offset:{FAIL}")
            a("s_waitcnt lgkmcnt(0)")
            a(f"v_readfirstlane_b32 {st}, {tt[0]}")
            a(f"s_or_b32 {sFail}, {sFail}, {st}")
            a(f"s_cmp_lg_u32 {sFail}, 0")
            a(f"s_cbranch_scc1 c_fallback")
            a.label("c_fb_back")
            self.late.append((self._fallback, fbargs))
            full_epilogue()
        self.stamp(41)
        Lgd = a.newlabel('gd'); Lgx = a.newlabel('gdx')
        a(f"s_mov_b32 {sPoll}, 0")
        a.label(Lgd)
        a("s_memrealtime s[14:15]")
        a("s_waitcnt lgkmcnt(0)")
        a(f"s_sub_u32 {st}, s14, {sG0}")
        a(f"s_cmp_ge_u32 {st}, {GUARD}")
        a(f"s_cbranch_scc1 {Lgx}")
        a(f"s_add_u32 {sPoll}, {sPoll}, 1")
        a(f"s_cmp_lt_u32 {sPoll}, 100000")
        a("s_sleep 4")
        a(f"s_cbranch_scc1 {Lgd}")
        a.label(Lgx)
        self.prof_store(sW)
        self.dbg_store(sW, pDBG)
        a("s_endpgm")

    def dbg_store(self, sW, pDBG):
        if not self.o.get('dbgprof'): return
        a = self.a
        L = a.newlabel('dbgx')
        if self.o.get('dbgdelay'):
            Ld = a.newlabel('dbgd')
            a(f"v_readlane_b32 s5, {self.vProf}, 50")
            a.label(Ld)
            a("s_memrealtime s[8:9]")
            a("s_waitcnt lgkmcnt(0)")
            a("s_sub_u32 s8, s8, s5")
            a(f"s_cmp_lt_u32 s8, {self.o['dbgdelay']}")
            a("s_sleep 8")
            a(f"s_cbranch_scc1 {Ld}")
        if self.o.get('dbgprof') == 3: return
        if self.o.get('dbgprof') == 2:
            a("s_mov_b64 exec, 1")
            a("s_getreg_b32 s6, hwreg(HW_REG_XCC_ID, 0, 3)")
            a("s_lshl_b32 s7, s6, 8")
            a("s_or_b32 s7, s7, s2")
            a(f"s_lshl_b32 s8, {sW}, 11")
            a("s_or_b32 s7, s7, s8")
            rl = lambda d, ix: a(f"v_readlane_b32 {d}, {self.vProf}, {ix}")
            def amax(slot, voff='v2', op='global_atomic_umax'):
                a("v_mov_b32 v1, s4")
                a(f"{op} {voff}, v1, {pDBG} offset:{slot * 4}")
            a("v_mov_b32 v2, 0")
            rl('s4', 41); amax(1)
            a("s_lshl_b32 s8, s6, 2"); a("v_mov_b32 v3, s8")
            amax(6, 'v3')
            for slot, hi, lo in ((2, 40, 12),):
                rl('s4', hi); rl('s5', lo); a("s_sub_u32 s4, s4, s5"); a("s_lshl_b32 s4, s4, 14"); a("s_or_b32 s4, s4, s7"); amax(slot)
            a(f"s_cmp_lg_u32 {sW}, 0")
            a(f"s_cbranch_scc1 {L}")
            rl('s4', 50); a("s_not_b32 s4, s4"); amax(0)
            for slot, hi, lo in ((3, 19, 12), (4, 40, 19), (5, 12, 50)):
                rl('s4', hi); rl('s5', lo); a("s_sub_u32 s4, s4, s5"); a("s_lshl_b32 s4, s4, 14"); a("s_or_b32 s4, s4, s7"); amax(slot)
            for slot, th in ((14, self.o.get('th1', 1600)), (15, self.o.get('th2', 1900))):
                rl('s4', 40); rl('s5', 12); a("s_sub_u32 s4, s4, s5")
                a(f"s_cmp_gt_u32 s4, {th}"); a("s_cselect_b32 s4, 1, 0"); amax(slot, op='global_atomic_add')
            a("s_waitcnt vmcnt(0)")
            a.label(L)
            a("s_waitcnt vmcnt(0)")
            return
        a(f"s_cmp_lg_u32 {sW}, 0")
        a(f"s_cbranch_scc1 {L}")
        a("s_mov_b64 exec, 1")
        a("v_mov_b32 v2, 0")
        a(f"v_readlane_b32 s5, {self.vProf}, 50")
        spec = [(0, 50, 'min'), (1, 50, 'max'), (2, 2, 'max'), (3, 4, 'max'), (5, 9, 'max'), (6, 12, 'max'), (7, 40, 'max'), (8, 41, 'max'),
                (9, 2, 'sum'), (10, 4, 'sum'), (11, 9, 'sum'), (12, 12, 'sum'), (13, 19, 'sum'), (14, 40, 'sum'), (15, 41, 'sum')]
        for slot, ix, kind in spec:
            a(f"v_readlane_b32 s4, {self.vProf}, {ix}")
            if kind == 'min': a("s_not_b32 s4, s4")
            if kind == 'sum': a("s_sub_u32 s4, s4, s5")
            a("v_mov_b32 v1, s4")
            op = 'global_atomic_add' if kind == 'sum' else 'global_atomic_umax'
            a(f"{op} v2, v1, {pDBG} offset:{slot * 4}")
        a("s_waitcnt vmcnt(0)")
        a.label(L)

    def _p_rare(self, Hd, aW, aB, tp, vRb, vSt, vTag, sM24, sSrc, so, s73, sWS, L):
        a = self.a
        a.label("p_rare")
        for it in range(4):
            Ls = a.newlabel('pr')
            a(f"v_cmp_le_u32 vcc, {s73}, {Hd[it]}")
            a(f"s_cbranch_vccz {Ls}")
            a(f"s_mov_b64 exec, vcc")
            a("s_waitcnt vmcnt(0)")
            a(f"ds_read2_b32 {L[0:2]}, {aW[it]} offset0:{3 * 24} offset1:{3 * 24 + 1}")
            a(f"ds_read_b32 {L[2]}, {aW[it]} offset:{3 * 96 + 8}")
            a(f"ds_read2_b32 {tp}, {aB[it]} offset0:{3 * 6} offset1:{3 * 6 + 1}")
            a("s_waitcnt lgkmcnt(0)")
            a(f"v_alignbyte_b32 {L[3]}, {tp[1]}, {tp[0]}, {vRb}")
            a(f"v_bfi_b32 {L[3]}, {sM24}, {L[3]}, {vTag}")
            a(f"s_add_u32 {so}, {sSrc}, {(3 * 256 + it * 8) << 15}")
            a(f"buffer_store_dwordx4 {L}, {vSt}, {sWS}, {so} offen {self.o['stflags']}")
            a(f"s_mov_b64 exec, -1")
            a.label(Ls)
        a("s_branch p_rare_back")

    def publish(self):
        a = self.a; c = self.c
        L = a.newlabel('pub')
        a(f"s_cmp_eq_u32 {c['sFail']}, 0")
        a(f"s_cbranch_scc1 {L}")
        a(f"ds_write_b32 {c['vZero']}, {c['vOne']} offset:{FAIL}")
        a.label(L)

    def g_stage(self, idx, vOff, sNot31, vHalf, cnt, tau, dst, sM):
        a = self.a
        a(f"v_cmp_gt_u32 vcc, {cnt}, {tau}")
        a(f"v_lshrrev_b32 {vOff}, 9, {idx}")
        a(f"v_and_or_b32 {vOff}, {vOff}, {sNot31}, {vHalf}")
        if self.o.get('nog') == 1: a(f"v_mov_b32 {vOff}, {OOB}")
        elif self.o.get('nog') == 2: a(f"v_cndmask_b32 {vOff}, {OOB}, {vHalf}, vcc")
        else: a(f"v_cndmask_b32 {vOff}, {OOB}, {vOff}, vcc")
        a(f"buffer_load_dwordx4 {dst}, {vOff}, {sM}, 0 offen {self.o.get('gflags', '').replace('+', ' ')}".rstrip())

    def s_stage(self, vT, vAddr, vC0, vC1, sF0, vK, sK1, vK2, sHiL, vBrd, B, vZero):
        a = self.a
        a(f"v_and_b32 {vC0}, 15, {vT[0]}")
        a(f"v_lshl_or_b32 {vC0}, {vT[1]}, 4, {vC0}")
        a(f"v_cvt_f32_u32 {vC0}, {vC0}")
        a(f"v_and_or_b32 {vAddr}, {vT[0]}, {sF0}, {vK}")
        a(f"v_fma_f32 {vC0}, {vC0}, {sK1}, {vK2}")
        a(f"v_fma_f32 {vC1}, {vC0}, {vC0}, -0.5")
        a(f"v_cndmask_b32 {vC0}, {vC0}, {vC1}, {sHiL}")
        a(f"v_cvt_pk_bf16_f32 {vC0}, {vC0}, {vC0}")
        a(f"ds_write_b16 {vAddr}, {vC0}")
        a(f"ds_read_b128 {B[0]}, {vBrd}")
        a(f"ds_read_b128 {B[1]}, {vBrd} offset:1024")
        a(f"ds_write_b16 {vAddr}, {vZero}")

    def read_counts_issue(self, vC, vCntA, off):
        self.a(f"ds_read_b32 {vC}, {vCntA} offset:{off}")

    def read_counts_use(self, vC, dst, sFail, st, st2):
        a = self.a
        for jj in range(5):
            a(f"v_readlane_b32 {dst[jj]}, {vC}, {jj}")
        a(f"s_max_u32 {st}, {dst[0]}, {dst[1]}")
        a(f"s_max_u32 {st2}, {dst[2]}, {dst[3]}")
        a(f"s_max_u32 {st}, {st}, {dst[4]}")
        a(f"s_max_u32 {st}, {st}, {st2}")
        a(f"s_cmp_gt_u32 {st}, {CAP}")
        a(f"s_cselect_b32 {st}, 1, 0")
        a(f"s_or_b32 {sFail}, {sFail}, {st}")
        for jj in range(5):
            a(f"s_min_u32 {dst[jj]}, {dst[jj]}, {CAP}")

    def rbf_operand(self, d, cen, dst, tt, sQ):
        a = self.a
        t = [tt[0], tt[1], tt[2], tt[3]]; u = tt[4]; dv = tt[5]
        a(f"v_lshlrev_b32 {dv}, 16, {d}")
        for i in range(4): a(f"v_sub_f32 {t[i]}, {dv}, {cen[i]}")
        def rnd():
            for h in range(2):
                a(f"v_cvt_pk_bf16_f32 {u}, {t[2*h]}, {t[2*h+1]}")
                a(f"v_lshlrev_b32 {t[2*h]}, 16, {u}")
                a(f"v_and_b32 {t[2*h+1]}, 0xffff0000, {u}")
        rnd()
        for i in range(4): a(f"v_mul_f32 {t[i]}, {t[i]}, {t[i]}")
        rnd()
        for i in range(4): a(f"v_mul_f32 {t[i]}, 0xc1200000, {t[i]}")
        rnd()
        for i in range(4): a(f"v_mul_f32 {t[i]}, 0x3fb8aa3b, {t[i]}")
        for i in range(4): a(f"v_exp_f32 {t[i]}, {t[i]}")
        a(f"v_cvt_pk_bf16_f32 {dst[0]}, {t[0]}, {t[1]}")
        a(f"v_cvt_pk_bf16_f32 {dst[1]}, {t[2]}, {t[3]}")
        a(f"v_cndmask_b32 {dst[0]}, 0, {dst[0]}, {sQ}")
        a(f"v_cndmask_b32 {dst[1]}, 0, {dst[1]}, {sQ}")

    def tagcheck(self, x):
        a = self.a; c = self.c; tt = c['tt']
        u = tt[10]; w = tt[11]
        a(f"v_perm_b32 {u}, {x[3]}, {x[3]}, {c['Sel']}")
        a(f"v_or_b32_dpp {u}, {u}, {u} quad_perm:[1,0,3,2] row_mask:0xf bank_mask:0xf")
        a(f"v_or_b32_dpp {u}, {u}, {u} quad_perm:[2,3,0,1] row_mask:0xf bank_mask:0xf")
        a(f"v_lshlrev_b32 {w}, 8, {u}")
        a(f"v_xad_u32 {u}, {u}, {w}, {c['NegT']}")
        a(f"v_cmp_le_u32 vcc, 8, {u}")

    def checked(self, x, l, k, name, sub=None):
        a = self.a
        self.tagcheck(x)
        a(f"s_cbranch_vccnz c_rp_{name}")
        a.label(f"c_ok_{name}")
        self.late.append((self._repoll, (x, l, k, name, sub)))

    def _repoll(self, x, l, k, name, sub):
        a = self.a; c = self.c; tt = c['tt']
        ex = sub if sub is not None else '-1'
        a.label(f"c_rp_{name}")
        if self.o.get('fine') and name[0] == 'z': self.stamp(30 + k)
        if self.o.get('fine') and name[0] == 'p': self.stamp(34 + k)
        a(f"s_mov_b32 {c['sPoll']}, 0")
        L = a.newlabel('rpl'); Lto = a.newlabel('rpt')
        a(f"s_cmp_lg_u32 {c['sFail']}, 0")
        a(f"s_cbranch_scc1 {Lto}")
        a.label(L)
        a(f"s_sleep {self.o['psleep']}")
        a(f"s_mov_b64 exec, vcc")
        a(f"s_add_u32 {c['st']}, {c['sPoff']}, {(l * 256) << 15}")
        a(f"buffer_load_dwordx4 {x}, {c['vLine']}, {c['sWS']}, {c['st']} offen offset:{k*1024} {self.o['tupflags']}")
        a("s_waitcnt vmcnt(0)")
        self.tagcheck(x)
        a(f"s_mov_b64 exec, {ex}")
        a(f"s_cbranch_vccz c_ok_{name}")
        a(f"s_add_u32 {c['sPoll']}, {c['sPoll']}, 1")
        a(f"s_cmp_lt_u32 {c['sPoll']}, {self.o['poll_max']}")
        a(f"s_cbranch_scc1 {L}")
        a.label(Lto)
        a(f"s_mov_b32 {c['sFail']}, 1")
        tm = tt[9] if self.o.get('pipe0') else tt[0]
        a(f"v_mov_b32 {tm}, {'0x%x' % MARK if self.o.get('mark') else -1}")
        for h in range(3):
            a(f"v_cndmask_b32 {x[h]}, {x[h]}, {tm}, vcc")
        a(f"s_branch c_ok_{name}")

    def insert(self, x, l, k=None, sub=None, sfx=''):
        a = self.a; c = self.c; tt = c['tt']; sv = c['sv']
        g = tt[0:3]; rk = tt[3:6]; cs = tt[6:9]
        if self.o.get('mark'): return self.insert_m(x, l, k, sub, sfx)
        for h in range(3): a(f"v_cmp_gt_u32 {sv[h]}, {c['Lim']}, {x[h]}")
        for h in range(3): a(f"v_bfe_u32 {g[h]}, {x[h]}, 8, 6")
        if l == 0:
            for h in range(3):
                a(f"v_cmp_le_u32 vcc, {c['LimA']}, {x[h]}")
                a(f"v_addc_co_u32 {g[h]}, vcc, {g[h]}, {g[h]}, vcc")
        else:
            for h in range(3): a(f"v_lshl_or_b32 {g[h]}, {g[h]}, 1, 1")
        if l == 1:
            a(f"s_andn2_b64 {sv[2]}, {sv[2]}, {c['sHdr']}")
            a(f"s_mov_b32 {c['st']}, {49 << 18}")
            a(f"s_mov_b32 {c['st2']}, {73 << 18}")
            a(f"v_cmp_le_u32 vcc, {c['st']}, {x[2]}")
            a(f"v_cmp_le_u32 {c['sX']}, {c['st2']}, {x[2]}")
        for h in range(3): a(f"v_lshl_add_u32 {rk[h]}, {g[h]}, 2, {CC}")
        if self.o.get('diagins') and l == 0:
            for h in range(3):
                a(f"v_mbcnt_lo_u32_b32 {rk[h]}, -1, 0")
                a(f"v_mbcnt_hi_u32_b32 {rk[h]}, -1, {rk[h]}")
                a(f"v_lshl_add_u32 {rk[h]}, {rk[h]}, 2, {CC}")
        for h in range(3):
            a(f"s_mov_b64 exec, {sv[h]}")
            a(f"ds_add_rtn_u32 {rk[h]}, {rk[h]}, {c['vOne']}")
        a(f"s_mov_b64 exec, -1")
        for h in range(3): a(f"v_bfe_u32 {cs[h]}, {x[3]}, {8 * h}, 8")
        for h in range(3): a(f"v_mad_u32_u24 {g[h]}, {g[h]}, {c['GS']}, {c['vCB']}")
        if l == 1:
            m = c['sMore'][k]
            a(f"s_and_b64 {m}, vcc, {c['sHdr']}")
            a(f"s_lshr_b64 {m}, {m}, 7")
            a(f"s_lshl_b64 {c['sSave']}, {m}, 8")
            a(f"s_sub_u32 {m[0]}, {c['sSave'][0]}, {m[0]}")
            a(f"s_subb_u32 {m[1]}, {c['sSave'][1]}, {m[1]}")
        a("s_waitcnt lgkmcnt(0)")
        for h in range(3): a(f"v_min_u32 {rk[h]}, {CAP}, {rk[h]}")
        for h in range(3): a(f"v_lshl_add_u32 {g[h]}, {rk[h]}, 3, {g[h]}")
        for h in range(3):
            a(f"s_mov_b64 exec, {sv[h]}")
            a(f"ds_write2_b32 {g[h]}, {x[h]}, {cs[h]} offset0:0 offset1:1")
        a(f"s_mov_b64 exec, -1")
        if l == 1:
            a(f"s_and_b64 {c['sX']}, {c['sX']}, {c['sHdr']}")
            a(f"s_cbranch_scc1 c_l3_{k}{sfx}")
            a.label(f"c_l3_back_{k}{sfx}")
            self.late.append((self._line3, (x, k, sfx)))

    def insert_m(self, x, l, k, sub, sfx):
        a = self.a; c = self.c; tt = c['tt']; sv = c['sv']
        g = tt[0:3]; rk = tt[3:6]; cs = tt[6:9]
        for h in range(3): a(f"v_bfe_u32 {g[h]}, {x[h]}, 8, 6")
        if l == 0:
            for h in range(3): a(f"v_cmp_le_u32 {sv[h]}, {c['LimA']}, {x[h]}")
            for h in range(3): a(f"v_addc_co_u32 {g[h]}, vcc, {g[h]}, {g[h]}, {sv[h]}")
        else:
            for h in range(3): a(f"v_lshl_or_b32 {g[h]}, {g[h]}, 1, 1")
        if l == 1:
            a(f"s_mov_b32 {c['st']}, {49 << 18}")
            a(f"s_mov_b32 {c['st2']}, {73 << 18}")
            a(f"v_cmp_le_u32 vcc, {c['st']}, {x[2]}")
            a(f"v_cmp_le_u32 {c['sX']}, {c['st2']}, {x[2]}")
        for h in range(3): a(f"v_lshl_add_u32 {rk[h]}, {g[h]}, 2, {CC}")
        for h in range(3):
            if l == 1 and h == 2: a(f"s_not_b64 exec, {c['sHdr']}")
            a(f"ds_add_rtn_u32 {rk[h]}, {rk[h]}, {c['vOne']}")
        if l == 1: a(f"s_mov_b64 exec, -1")
        for h in range(3): a(f"v_bfe_u32 {cs[h]}, {x[3]}, {8 * h}, 8")
        for h in range(3): a(f"v_mad_u32_u24 {g[h]}, {g[h]}, {c['GS']}, {c['vCB']}")
        if l == 1:
            m = c['sMore'][k]
            a(f"s_and_b64 {m}, vcc, {c['sHdr']}")
            a(f"s_lshr_b64 {m}, {m}, 7")
            a(f"s_lshl_b64 {c['sSave']}, {m}, 8")
            a(f"s_sub_u32 {m[0]}, {c['sSave'][0]}, {m[0]}")
            a(f"s_subb_u32 {m[1]}, {c['sSave'][1]}, {m[1]}")
        a("s_waitcnt lgkmcnt(0)")
        for h in range(3): a(f"v_min_u32 {rk[h]}, {CAP}, {rk[h]}")
        for h in range(3): a(f"v_lshl_add_u32 {g[h]}, {rk[h]}, 3, {g[h]}")
        for h in range(3):
            if l == 1 and h == 2: a(f"s_not_b64 exec, {c['sHdr']}")
            a(f"ds_write2_b32 {g[h]}, {x[h]}, {cs[h]} offset0:0 offset1:1")
        if l != 0: a(f"s_mov_b64 exec, -1")
        if l == 1:
            a(f"s_and_b64 {c['sX']}, {c['sX']}, {c['sHdr']}")
            a(f"s_cbranch_scc1 c_l3_{k}{sfx}")
            a.label(f"c_l3_back_{k}{sfx}")
            self.late.append((self._line3, (x, k, sfx)))

    def ins_a(self, x, st_, sZ):
        a = self.a; c = self.c
        sv, g, rk, cs = st_
        if self.o.get('mark'):
            for h in range(3): a(f"v_bfe_u32 {g[h]}, {x[h]}, 8, 6")
            for h in range(3): a(f"v_cmp_le_u32 {sv[h]}, {c['LimA']}, {x[h]}")
            for h in range(3): a(f"v_addc_co_u32 {g[h]}, vcc, {g[h]}, {g[h]}, {sv[h]}")
            for h in range(3): a(f"v_lshl_add_u32 {rk[h]}, {g[h]}, 2, {CC}")
            for h in range(3): a(f"ds_add_rtn_u32 {rk[h]}, {rk[h]}, {c['vOne']}")
            for h in range(3): a(f"v_bfe_u32 {cs[h]}, {x[3]}, {8 * h}, 8")
            for h in range(3): a(f"v_mad_u32_u24 {g[h]}, {g[h]}, {c['GS']}, {c['vCB']}")
            return
        for h in range(3): a(f"v_cmp_gt_u32 {sv[h]}, {c['Lim']}, {x[h]}")
        for h in range(3): a(f"v_bfe_u32 {g[h]}, {x[h]}, 8, 6")
        for h in range(3):
            a(f"v_cmp_le_u32 vcc, {c['LimA']}, {x[h]}")
            a(f"v_addc_co_u32 {g[h]}, vcc, {g[h]}, {g[h]}, vcc")
        for h in range(3): a(f"v_lshl_add_u32 {rk[h]}, {g[h]}, 2, {CC}")
        for h in range(3):
            a(f"s_cmp_eq_u64 {sv[h]}, 0")
            a(f"s_addc_u32 {sZ}, {sZ}, 0")
            a(f"s_mov_b64 exec, {sv[h]}")
            a(f"ds_add_rtn_u32 {rk[h]}, {rk[h]}, {c['vOne']}")
        a(f"s_mov_b64 exec, -1")
        for h in range(3): a(f"v_bfe_u32 {cs[h]}, {x[3]}, {8 * h}, 8")
        for h in range(3): a(f"v_mad_u32_u24 {g[h]}, {g[h]}, {c['GS']}, {c['vCB']}")

    def ins_b(self, x, st_):
        a = self.a
        sv, g, rk, cs = st_
        for h in range(3): a(f"v_min_u32 {rk[h]}, {CAP}, {rk[h]}")
        for h in range(3): a(f"v_lshl_add_u32 {g[h]}, {rk[h]}, 3, {g[h]}")
        if self.o.get('mark'):
            for h in range(3): a(f"ds_write2_b32 {g[h]}, {x[h]}, {cs[h]} offset0:0 offset1:1")
            return
        for h in range(3):
            a(f"s_mov_b64 exec, {sv[h]}")
            a(f"ds_write2_b32 {g[h]}, {x[h]}, {cs[h]} offset0:0 offset1:1")
        a(f"s_mov_b64 exec, -1")

    def _line3(self, x, k, sfx=''):
        a = self.a; c = self.c; tt = c['tt']
        m = c['sX']; Y = self.c3
        a.label(f"c_l3_{k}{sfx}")
        a(f"s_mov_b32 {c['st']}, {97 << 18}")
        a(f"v_cmp_le_u32 vcc, {c['st']}, {x[2]}")
        a(f"s_and_b64 vcc, vcc, {c['sHdr']}")
        a(f"s_cselect_b32 {c['st']}, 1, 0")
        a(f"s_or_b32 {c['sFail']}, {c['sFail']}, {c['st']}")
        a(f"s_lshr_b64 {m}, {m}, 7")
        a(f"s_lshl_b64 {c['sSave']}, {m}, 8")
        a(f"s_sub_u32 {m[0]}, {c['sSave'][0]}, {m[0]}")
        a(f"s_subb_u32 {m[1]}, {c['sSave'][1]}, {m[1]}")
        a(f"s_cmp_lg_u32 {c['sFail']}, 0")
        a(f"s_cbranch_scc1 c_l3_back_{k}{sfx}")
        a(f"s_add_u32 {c['st']}, {c['sPoff']}, {(3 * 256) << 15}")
        a(f"s_mov_b64 exec, {m}")
        a(f"buffer_load_dwordx4 {Y}, {c['vLine']}, {c['sWS']}, {c['st']} offen offset:{k*1024} {self.o['tupflags']}")
        a("s_waitcnt vmcnt(0)")
        self.checked(Y, 3, k, f't{k}{sfx}', sub=m)
        self.insert(Y, 3, sub=m)
        a(f"s_branch c_l3_back_{k}{sfx}")

    def _fallback(self, acc, rows, X, D1, Bq, Wa, Wb, vLane, vZero, vOne, vHalf, vTau, sE0, sCw, sOI, sIN, sAN, sM,
                  st, st2, sMore, pDBG, sN, sCh, sLaneS, vOff, vIdx, vAddr, vC16, vT, sv):
        a = self.a
        a.label("c_fallback")
        if self.o.get('inep'): a("s_waitcnt vmcnt(0) lgkmcnt(0)")
        a(f"global_store_dword {vZero}, {vOne}, {pDBG} offset:16")
        for j in range(5):
            for l in range(2):
                for i in range(4): a(f"v_mov_b32 {acc[j][l][i]}, 0")
        sMask = sMore[0]; sLoc = Reg('s', 6); sTt = Reg('s', 7); sSel = sMore[2]; sSel2 = sMore[3]
        a(f"s_movk_i32 {sN}, 80")
        a(f"s_cmp_eq_u32 {sCw}, 7")
        a(f"s_cselect_b32 {sN}, 65, {sN}")
        a(f"s_mov_b32 {sCh}, 0")
        vL16 = vIdx; vI15 = vAddr
        a(f"v_lshlrev_b32 {vL16}, 4, {vLane}")
        a(f"v_and_b32 {vI15}, 15, {vLane}")
        for i in range(1, 4):
            a(f"v_mov_b32 {Bq[0][0][i]}, 0")
            a(f"v_mov_b32 {Bq[0][1][i]}, 0")
        a(f"v_cmp_eq_u32 {sSel}, 0, {vTau[0]}")
        Lc = "c_fb_chunk"
        a.label(Lc)
        a(f"buffer_load_dwordx4 {X[3]}, {vL16}, {sOI}, {sCh} offen")
        a("s_waitcnt vmcnt(0)")
        for cidx in range(4):
            Lh = f"c_fb_h{cidx}"; Ld = f"c_fb_d{cidx}"
            a(f"v_subrev_u32 {X[3][cidx]}, {sE0}, {X[3][cidx]}")
            a(f"v_cmp_gt_u32 {sMask}, {sN}, {X[3][cidx]}")
            a.label(Lh)
            a(f"s_cmp_eq_u64 {sMask}, 0")
            a(f"s_cbranch_scc1 {Ld}")
            a(f"s_ff1_i32_b64 {sLaneS}, {sMask}")
            a(f"s_bitset0_b64 {sMask}, {sLaneS}")
            a(f"s_nop 3")
            a(f"v_readlane_b32 {sLoc}, {X[3][cidx]}, {sLaneS}")
            a(f"s_lshl_b32 {sTt}, {sLaneS}, 4")
            a(f"s_add_u32 {sTt}, {sTt}, {sCh}")
            a(f"s_add_u32 {sTt}, {sTt}, {cidx*4}")
            a(f"v_mov_b32 {vOff}, {sTt}")
            a(f"v_lshrrev_b32 {vC16}, 1, {vOff}")
            a(f"buffer_load_dword {vT[0]}, {vOff}, {sIN}, 0 offen")
            a(f"buffer_load_ushort {vT[1]}, {vC16}, {sAN}, 0 offen")
            a("s_waitcnt vmcnt(0)")
            a(f"v_lshl_or_b32 {vOff}, {vT[0]}, 5, {vHalf}")
            a(f"v_cndmask_b32 {vOff}, {OOB}, {vOff}, {sSel}")
            a(f"buffer_load_dwordx4 {rows[0]}, {vOff}, {sM}, 0 offen")
            a(f"v_lshlrev_b32 {vT[1]}, 16, {vT[1]}")
            a(f"v_mul_f32 {vT[1]}, 0x{INV2PI:x}, {vT[1]}")
            a(f"v_fract_f32 {vT[1]}, {vT[1]}")
            a(f"v_cos_f32 {vT[1]}, {vT[1]}")
            a(f"s_and_b32 {st}, {sLoc}, 15")
            a(f"v_cmp_eq_u32 {sSel2}, {st}, {vLane}")
            a(f"v_fma_f32 {vT[0]}, {vT[1]}, {vT[1]}, -0.5")
            a(f"v_cvt_pk_bf16_f32 {vT[0]}, {vT[1]}, {vT[0]}")
            a(f"v_and_b32 {vT[1]}, 0xffff, {vT[0]}")
            a(f"v_lshrrev_b32 {vT[0]}, 16, {vT[0]}")
            a(f"v_cndmask_b32 {Bq[0][0][0]}, 0, {vT[1]}, {sSel2}")
            a(f"v_cndmask_b32 {Bq[0][1][0]}, 0, {vT[0]}, {sSel2}")
            a("s_waitcnt vmcnt(0)")
            rw = rows[0]
            a(f"v_mfma_f32_16x16x32_bf16 {D1[0]}, {rw}, {Wa}, 0")
            a(f"v_mfma_f32_16x16x32_bf16 {D1[1]}, {rw}, {Wb}, 0")
            a(f"v_cvt_pk_bf16_f32 {rw[0]}, {D1[0][0]}, {D1[0][1]}")
            a(f"v_cvt_pk_bf16_f32 {rw[1]}, {D1[0][2]}, {D1[0][3]}")
            a(f"v_cvt_pk_bf16_f32 {rw[2]}, {D1[1][0]}, {D1[1][1]}")
            a(f"v_cvt_pk_bf16_f32 {rw[3]}, {D1[1][2]}, {D1[1][3]}")
            a(f"s_lshr_b32 {st}, {sLoc}, 4")
            for j in range(5):
                Lj = a.newlabel('fbj')
                a(f"s_cmp_lg_u32 {st}, {j}")
                a(f"s_cbranch_scc1 {Lj}")
                a(f"v_mfma_f32_16x16x32_bf16 {acc[j][0]}, {rw}, {Bq[0][0]}, {acc[j][0]}")
                a(f"v_mfma_f32_16x16x32_bf16 {acc[j][1]}, {rw}, {Bq[0][1]}, {acc[j][1]}")
                a.label(Lj)
            a(f"s_branch {Lh}")
            a.label(Ld)
        a(f"s_add_u32 {sCh}, {sCh}, 1024")
        a(f"s_cmp_lt_u32 {sCh}, {T*4}")
        a(f"s_cbranch_scc1 {Lc}")
        a("s_branch c_fb_back")

    def ep_a(self, j, Aop, G0, G1, GT, mm, rbfB, Mr):
        a = self.a
        A0, A1, AG, AU = Aop
        a(f"v_mfma_f32_16x16x16_bf16 {G0}, {A0}, {rbfB[j]}, 0")
        a(f"v_mfma_f32_16x16x16_bf16 {G1}, {A1}, {rbfB[j]}, 0")
        a(f"v_mfma_f32_16x16x16_bf16 {GT}, {AG}, {rbfB[j]}, 0")
        a(f"v_lshlrev_b32 {mm[0]}, 16, {Mr[j][0]}")
        a(f"v_and_b32 {mm[1]}, 0xffff0000, {Mr[j][0]}")
        a(f"v_lshlrev_b32 {mm[2]}, 16, {Mr[j][1]}")
        a(f"v_and_b32 {mm[3]}, 0xffff0000, {Mr[j][1]}")

    def ep_b(self, j, Aop, G0, G1, GT, mm, U, ag, acc, Mr):
        a = self.a
        A0, A1, AG, AU = Aop
        for i in range(4):
            a(f"v_mul_f32 {G0[i]}, {G0[i]}, {acc[j][0][i]}")
        for i in range(4):
            a(f"v_fma_f32 {G0[i]}, {G1[i]}, {acc[j][1][i]}, {G0[i]}")
        a(f"v_cvt_pk_bf16_f32 {ag[0]}, {G0[0]}, {G0[1]}")
        a(f"v_cvt_pk_bf16_f32 {ag[1]}, {G0[2]}, {G0[3]}")
        a(f"v_mfma_f32_16x16x16_bf16 {U}, {AU}, {ag}, 0")
        for i in range(4):
            a(f"v_fma_f32 {mm[i]}, {U[i]}, {GT[i]}, {mm[i]}")
        a(f"v_cvt_pk_bf16_f32 {Mr[j][0]}, {mm[0]}, {mm[1]}")
        a(f"v_cvt_pk_bf16_f32 {Mr[j][1]}, {mm[2]}, {mm[3]}")

    def epilogue(self, acc, Mr, D1, Bq, rbfB, Aop, tt, vLane, vMoff, sCw, sOUT, st, rows, X):
        a = self.a
        A0, A1, AG, AU = Aop
        t0 = tt[0]; t1 = tt[1]
        a(f"v_and_b32 {t0}, 15, {vLane}")
        a(f"s_mul_i32 {st}, {sCw}, 80")
        a(f"v_add_u32 {t0}, {st}, {t0}")
        a(f"v_add_u32 {t0}, 64, {t0}")
        a(f"v_cmp_gt_u32 vcc, 625, {t0}")
        a(f"v_cndmask_b32 {t1}, {OOB}, {vMoff}, vcc")
        G0 = [rows[0], rows[1]]; G1 = [rows[2], rows[3]]; GT = [rows[4], rows[5]]; U = [D1[0], D1[1]]
        ag = [Bq[0][0][0:2], Bq[0][0][2:4]]
        mm = [Bq[0][1], Bq[1][0]]
        oo = [Bq[1][1][0:2], Bq[1][1][2:4]]

        def gm(j):
            s = j & 1
            a(f"v_mfma_f32_16x16x16_bf16 {G0[s]}, {A0}, {rbfB[j]}, 0")
            a(f"v_mfma_f32_16x16x16_bf16 {G1[s]}, {A1}, {rbfB[j]}, 0")
            a(f"v_mfma_f32_16x16x16_bf16 {GT[s]}, {AG}, {rbfB[j]}, 0")
        gm(0)
        for j in range(5):
            s = j & 1
            if j + 1 < 5: gm(j + 1)
            mrow = Mr[j]
            a(f"v_lshlrev_b32 {mm[s][0]}, 16, {mrow[0]}")
            a(f"v_and_b32 {mm[s][1]}, 0xffff0000, {mrow[0]}")
            a(f"v_lshlrev_b32 {mm[s][2]}, 16, {mrow[1]}")
            a(f"v_and_b32 {mm[s][3]}, 0xffff0000, {mrow[1]}")
            for i in range(4):
                a(f"v_mul_f32 {G0[s][i]}, {G0[s][i]}, {acc[j][0][i]}")
            for i in range(4):
                a(f"v_fma_f32 {G0[s][i]}, {G1[s][i]}, {acc[j][1][i]}, {G0[s][i]}")
            a(f"v_cvt_pk_bf16_f32 {ag[s][0]}, {G0[s][0]}, {G0[s][1]}")
            a(f"v_cvt_pk_bf16_f32 {ag[s][1]}, {G0[s][2]}, {G0[s][3]}")
            a(f"v_mfma_f32_16x16x16_bf16 {U[s]}, {AU}, {ag[s]}, 0")
            for i in range(4):
                a(f"v_fma_f32 {mm[s][i]}, {U[s][i]}, {GT[s][i]}, {mm[s][i]}")
            o = oo[s]
            a(f"v_cvt_pk_bf16_f32 {o[0]}, {mm[s][0]}, {mm[s][1]}")
            a(f"v_cvt_pk_bf16_f32 {o[1]}, {mm[s][2]}, {mm[s][3]}")
            off = t1 if j == 4 else vMoff
            a(f"buffer_store_dwordx2 {o}, {off}, {sOUT}, 0 offen offset:{j*512} {self.o.get('outflags', '')}")

    def kernel(self, label):
        a = self.a
        self.late = []
        self.Lend = label + '_end'
        self.sWave = Reg('s', 60); self.sT64 = Reg('s', 98, 2)
        self.vProf = Reg('v', 255)
        a.lines.append(f".globl {label}")
        a.lines.append(".p2align 8")
        a.lines.append(f".type {label},@function")
        a.label(label)
        a("s_cmp_ge_u32 s2, 256")
        a(f"s_cbranch_scc1 {self.Lend}")
        a("s_load_dwordx16 s[4:19], s[0:1], 0")
        a("s_load_dwordx8 s[20:27], s[0:1], 64")
        a("s_load_dwordx4 s[28:31], s[0:1], 96")
        a("s_memrealtime s[100:101]")
        if self.prof:
            a("s_memrealtime s[98:99]")
        a("v_lshrrev_b32 v1, 6, v0")
        a("v_and_b32 v0, 63, v0")
        a(f"v_readfirstlane_b32 {self.sWave}, v1")
        if self.prof:
            a("s_waitcnt lgkmcnt(0)")
            a("v_mov_b32 v255, 0")
            a("v_writelane_b32 v255, s98, 50")
        self.body(self.sWave)
        i = 0
        while i < len(self.late):
            fn, args = self.late[i]; fn(*args); i += 1
        a.label(self.Lend)
        a("s_endpgm")

    def build(self):
        hdr = open('cdna_kernels/' + NAME + '.s.ref').read().split('\n')
        head = [l for l in hdr if l.startswith(';') and '@launch' not in l]
        out = list(head)
        K = NAME + '_kernel'
        out.append(f"; @launch grid=(256,1,1) block=(512,1,1) lds={LDS_END_MARK if self.o.get('mark') else LDS_END}")
        out.append('.amdgcn_target "amdgcn-amd-amdhsa--gfx950"')
        out.append('.text')
        self.kernel(K)
        body = self.a.finalize()
        print(f"{K}: {len(self.a.lines)} lines, nops {self.a.nops}", file=sys.stderr)
        out.append(body)
        out.append('.section .rodata,"a"')
        out.append(f""".p2align 6
.amdhsa_kernel {K}
  .amdhsa_next_free_vgpr 256
  .amdhsa_next_free_sgpr 102
  .amdhsa_accum_offset 256
  .amdhsa_group_segment_fixed_size 0
  .amdhsa_kernarg_size 112
  .amdhsa_user_sgpr_count 2
  .amdhsa_user_sgpr_kernarg_segment_ptr 1
  .amdhsa_system_sgpr_workgroup_id_x 1
.end_amdhsa_kernel""")
        return '\n'.join(out) + '\n'


if __name__ == '__main__':
    import argparse, ast
    ap = argparse.ArgumentParser()
    ap.add_argument('--prof', action='store_true')
    ap.add_argument('--opt', action='append', default=[])
    ap.add_argument('-o', required=True)
    args = ap.parse_args()
    opts = {}
    for kv in args.opt:
        k, v = kv.split('=', 1)
        try: v = ast.literal_eval(v)
        except Exception: pass
        opts[k] = v
    g = Gen(args.prof or bool(opts.get('dbgprof')), opts)
    s = g.build()
    open(args.o, 'w').write(s)
```
